```python
import torch

def _softmax(x, axis=-1):
    return torch.softmax(x, dim=axis)
def _gelu(x):
    return torch.nn.functional.gelu(x, approximate="tanh")
def _silu(x):
    return torch.nn.functional.silu(x)
def _sigmoid(x):
    return torch.sigmoid(x)
def _layernorm(x, axis=-1, eps=1e-5):
    m = x.mean(dim=axis, keepdim=True)
    v = x.var(dim=axis, keepdim=True, unbiased=False)
    return (x - m) / torch.sqrt(v + eps)
def _scatter_add(tgt, idx, src, axis=0):
    return tgt.clone().index_add_(axis, idx, src)
def _segment_sum(src, seg, n):
    out = torch.zeros((n,) + src.shape[1:], dtype=src.dtype)
    return out.index_add_(0, seg, src)
def _pad(x, pw):
    flat = tuple(v for pair in reversed(pw) for v in pair)
    return torch.nn.functional.pad(x, flat)

kernel_name = 'recurrent_scan__gqa_block_cached__geglu_ffn__decode'

def setup_inputs():

    _w = (lambda a: (lambda t: t.to(torch.bfloat16) if t.is_floating_point() else t)(torch.as_tensor(a)))
    def _A_setup():
        B, Sq, D = 2, 1, 640
        Hq, Hkv, Sk, Dh = 32, 32, 4096, 192
        assert Hq % Hkv == 0, (Hq, Hkv)
        return {
            "x": _w((lambda *s: torch.randn(*s, dtype=torch.bfloat16) * 0.05)(B, Sq, D)),
            "k_cache": _w((lambda *s: torch.randn(*s, dtype=torch.bfloat16) * 1.6)(B, Hkv, Sk, Dh)),
            "v_cache": _w((lambda *s: torch.randn(*s, dtype=torch.bfloat16) * 0.2)(B, Hkv, Sk, Dh)),
            "wq": _w((lambda *s: torch.randn(*s, dtype=torch.bfloat16) * 1.6)(D, Hq * Dh) * (D ** -0.5)),
            "wo": _w((lambda *s: torch.randn(*s, dtype=torch.bfloat16) * 0.2)(Hq * Dh, D) * ((Hq * Dh) ** -0.5)),
        }
    _A_in = _A_setup()

    def _B_setup():
        B, S, D, F = 2, 1, 640, 1536
        return {
            "x": _w((lambda *s: torch.randn(*s, dtype=torch.bfloat16) * 0.05)(B, S, D)),
            "w_gate": _w((lambda *s: torch.randn(*s, dtype=torch.bfloat16) * 0.1)(D, F)),
            "w_up": _w((lambda *s: torch.randn(*s, dtype=torch.bfloat16) * 0.1)(D, F)),
            "w_down": _w((lambda *s: torch.randn(*s, dtype=torch.bfloat16) * 0.1)(F, D)),
        }
    _B_in = _B_setup()

    return {
        "A_x": _A_in["x"],
        "A_k_cache": _A_in["k_cache"],
        "A_v_cache": _A_in["v_cache"],
        "A_wq": _A_in["wq"],
        "A_wo": _A_in["wo"],
        "B_x": _B_in["x"],
        "B_w_gate": _B_in["w_gate"],
        "B_w_up": _B_in["w_up"],
        "B_w_down": _B_in["w_down"],
    }

def reference(A_x, A_k_cache, A_v_cache, A_wq, A_wo, B_x, B_w_gate, B_w_up, B_w_down):
    def _A_ref(x, k_cache, v_cache, wq, wo):
        B, Sq, D = x.shape
        Hq, Dh = 32, 192
        Hkv = k_cache.shape[1]
        rep = Hq // Hkv
        q = (lambda x, *d: x.permute(*d))((x @ wq).reshape(B, Sq, Hq, Dh), 0, 2, 1, 3)
        k = (lambda x, n, axis: torch.repeat_interleave(x, n, dim=axis))(k_cache, rep, axis=1)
        v = (lambda x, n, axis: torch.repeat_interleave(x, n, dim=axis))(v_cache, rep, axis=1)
        scores = torch.einsum("bhqd,bhkd->bhqk", q, k) * (Dh ** -0.5)
        p = _softmax(scores, axis=-1)
        o = torch.einsum("bhqk,bhkd->bhqd", p, v)
        return (lambda x, *d: x.permute(*d))(o, 0, 2, 1, 3).reshape(B, Sq, Hq * Dh) @ wo

    def _B_ref(x, w_gate, w_up, w_down):
        return (_gelu(x @ w_gate) * (x @ w_up)) @ w_down

    x = A_x
    xn = _layernorm(x, axis=-1)
    s = _A_ref(xn, A_k_cache, A_v_cache, A_wq, A_wo)
    g = _silu(_B_ref(xn, B_w_gate, B_w_up, B_w_down))
    return x + s * g
```

```python
import struct, sys
NAME = "recurrent_scan__gqa_block_cached__geglu_ffn__decode"

def f2u(x): return struct.unpack("<I", struct.pack("<f", x))[0]
def hx(x): return "0x%08x" % (x & 0xffffffff)
LOG2E = 1.4426950408889634

WS_P1 = 0
WS_P2 = 0x80000
WS_Y  = 0xC0000
WS_ML = 0x180000
WS_SIZE = 0x181000
WS_DBG = 0x200000
STAMP_OFF = 300 << 20
OOB = 0x7ffffff0

L_XN = 0
L_QP = 5120
PSTR = 784
L_QB = 17664
L_F1 = 18176
L_F2 = 34560
L_ML = 42752
L_CNT = 42816
L_YP = 42880
L_CO = 63488
L_END = 65536

class Em:
    def __init__(self):
        self.L = []; self.vm = []; self.lab = 0
    def __call__(self, s): self.L.append("  " + s)
    def raw(self, s): self.L.append(s)
    def label(self, n): self.L.append(n + ":")
    def newlab(self, p):
        self.lab += 1; return "L_%s_%d" % (p, self.lab)
    def vmem(self, s, tag=None, counted=True):
        self.L.append("  " + s)
        if counted: self.vm.append(tag)
    def wait_vm(self, tag):
        idx = max(i for i, t in enumerate(self.vm) if t == tag)
        n = len(self.vm) - 1 - idx
        self("s_waitcnt vmcnt(%d)" % min(n, 63))
    def wait_all_vm(self):
        self("s_waitcnt vmcnt(0)")

def vr(a, n=4): return "v[%d:%d]" % (a, a + n - 1)
def sr(a, n=4): return "s[%d:%d]" % (a, a + n - 1)
DPP = "row_mask:0xf bank_mask:0xf"

def gen(stamps=False, debug=False, kvf="nt", wf="nt", VR=6, conf_g=14, st2_g=4, ml_g=15, nffn=240):
    e = Em()
    vTID, vL, vKV, vWQ, vWO, vPUB = 0, 1, 2, 3, 4, 5
    vM = 6; vA0 = 10; vA1 = 14; vACC = 18; vQF = 30; vS = 42
    vT = 58
    vCONF, vMW, vLW = 58, 60, 61
    POOL = 64
    def slot(i): return POOL + 4 * i
    sK, sV, sWQ, sWO, sX, sWG, sWU, sWD, sWS, sOUT, sDBG, sWSF = 28, 32, 36, 40, 44, 48, 52, 56, 60, 64, 68, 92
    sW, sB, sH, sP, sFS, sFR, sC5, sRR, sSO, sT0, sT1, sT2 = 72, 73, 74, 75, 76, 77, 78, 79, 80, 81, 82, 83
    sEX = 84; sVAL = 86; sCNT = 88; sCI = 89; sPIDX = 90; sWQO = 91
    sST = 96
    nst = [0]
    def stamp():
        if not stamps: return
        e("s_memrealtime s[%d:%d]" % (sEX, sEX + 1))
        e("s_waitcnt lgkmcnt(0)")
        e("s_mov_b32 s%d, s%d" % (sST + nst[0], sEX))
        nst[0] += 1

    e.raw("; @launch grid=(256,1,1) block=(512,1,1) lds=%d" % L_END)
    e.raw('.amdgcn_target "amdgcn-amd-amdhsa--gfx950"')
    e.raw(".text"); e.raw(".globl %s_kernel" % NAME); e.raw(".p2align 8"); e.raw(".type %s_kernel,@function" % NAME)
    e.label("%s_kernel" % NAME)
    e("s_cmp_ge_u32 s2, 256"); e("s_cbranch_scc1 L_end")
    e("s_load_dwordx16 s[4:19], s[0:1], 0")
    e("s_load_dwordx8 s[20:27], s[0:1], 64")
    if stamps:
        e("s_memrealtime s[%d:%d]" % (sST, sST + 1)); nst[0] = 1
    e("v_and_b32 v%d, 63, v0" % vL)
    e("v_lshrrev_b32 v58, 6, v0")
    e("v_lshrrev_b32 v59, 3, v%d" % vL)
    e("v_and_b32 v60, 7, v%d" % vL)
    e("v_readfirstlane_b32 s%d, v58" % sW)
    e("v_mul_u32_u24 v%d, 384, v59" % vKV)
    e("v_lshl_add_u32 v%d, v60, 4, v%d" % (vKV, vKV))
    e("v_mul_u32_u24 v61, 3072, v58")
    e("v_add_u32 v%d, v%d, v61" % (vKV, vKV))
    e("v_mul_u32_u24 v%d, 12288, v59" % vWQ)
    e("v_lshl_add_u32 v%d, v60, 4, v%d" % (vWQ, vWQ))
    e("v_lshrrev_b32 v61, 5, v%d" % vL)
    e("v_mul_u32_u24 v61, 1280, v61")
    e("v_and_b32 v63, 31, v%d" % vL)
    e("v_lshl_add_u32 v62, v63, 4, v61")
    e("v_lshl_add_u32 v63, v63, 3, v61")
    e("s_and_b32 s%d, s2, 7" % sT0)
    e("s_lshr_b32 s%d, s2, 3" % sT1)
    e("s_lshr_b32 s%d, s%d, 3" % (sT2, sT1))
    e("s_lshl_b32 s%d, s%d, 2" % (sH, sT0))
    e("s_add_u32 s%d, s%d, s%d" % (sH, sH, sT2))
    e("s_lshr_b32 s%d, s%d, 2" % (sB, sT1))
    e("s_and_b32 s%d, s%d, 1" % (sB, sB))
    e("s_and_b32 s%d, s%d, 3" % (sT1, sT1))
    e("s_lshl_b32 s%d, s%d, 2" % (sP, sH))
    e("s_add_u32 s%d, s%d, s%d" % (sP, sP, sT1))
    e("s_lshl_b32 s%d, s%d, 7" % (sT0, sB))
    e("s_add_u32 s%d, s%d, s%d" % (sT0, sT0, sP))
    e("s_mul_i32 s%d, s%d, 393216" % (sT0, sT0))
    e("s_mov_b32 s%d, 393216" % (sK + 2)); e("s_mov_b32 s%d, 0x20000" % (sK + 3))
    e("s_mov_b32 s%d, 2560" % (sX + 2)); e("s_mov_b32 s%d, 0x20000" % (sX + 3))
    e("s_waitcnt lgkmcnt(0)")
    e("s_mov_b32 s%d, s4" % sX); e("s_mov_b32 s%d, s5" % (sX + 1))
    e("s_add_u32 s%d, s6, s%d" % (sK, sT0)); e("s_addc_u32 s%d, s7, 0" % (sK + 1))
    e.vmem("buffer_load_dwordx4 %s, v62, %s, 0 offen" % (vr(18), sr(sX)), "x")
    e.vmem("buffer_load_dwordx4 %s, v62, %s, 0 offen offset:512" % (vr(22), sr(sX)), "x")
    e.vmem("buffer_load_dwordx2 %s, v63, %s, 0 offen offset:1024" % (vr(26, 2), sr(sX)), "x")

    kslot = {}; wslot = {}; vslot = {}; oslot = {}
    def issue_kv(srd, g, slots, tag):
        if g * 24576 <= 64: so = "0"
        else:
            e("s_mov_b32 s%d, %d" % (sSO, g * 24576)); so = "s%d" % sSO
        for t in range(3):
            e.vmem("buffer_load_dwordx4 %s, v%d, %s, %s offen offset:%d %s" % (vr(slot(slots[t])), vKV, sr(srd), so, t * 128, kvf), tag)
    def issue_k(g, slots): kslot[g] = slots; issue_kv(sK, g, slots, "K%d" % g)
    def issue_v(g, slots): vslot[g] = slots; issue_kv(sV, g, slots, "V%d" % g)
    def issue_wq(i, slots):
        wslot[i] = slots
        e("s_add_u32 s%d, s%d, %d" % (sSO, sWQO, i * 8 * 12288))
        for t in range(3):
            e.vmem("buffer_load_dwordx4 %s, v%d, %s, s%d offen offset:%d %s" % (vr(slot(slots[t])), vWQ, sr(sWQ), sSO, t * 128, wf), "W%d" % i)
    def issue_wo(n, slots):
        for t in range(3):
            q = 3 * n + t; i, seg = q // 5, q % 5
            oslot[q] = slots[t]
            if i == 0: so = "0"
            else:
                e("s_mov_b32 s%d, %d" % (sSO, i * 5120)); so = "s%d" % sSO
            e.vmem("buffer_load_dwordx4 %s, v%d, %s, %s offen offset:%d %s" % (vr(slot(slots[t])), vWO, sr(sWO), so, seg * 256, wf), "O%d" % n)

    issue_k(0, [0, 1, 2])
    e("s_add_u32 s%d, s8, s%d" % (sV, sT0)); e("s_addc_u32 s%d, s9, 0" % (sV + 1))
    e("s_mov_b32 s%d, 393216" % (sV + 2)); e("s_mov_b32 s%d, 0x20000" % (sV + 3))
    e("s_mul_i32 s%d, s%d, 384" % (sT0, sH))
    e("s_add_u32 s%d, s10, s%d" % (sWQ, sT0)); e("s_addc_u32 s%d, s11, 0" % (sWQ + 1))
    e("s_sub_u32 s%d, %d, s%d" % (sWQ + 2, 640 * 12288, sT0)); e("s_mov_b32 s%d, 0x20000" % (sWQ + 3))
    e("s_mul_i32 s%d, s%d, %d" % (sWQO, sW, 80 * 12288))
    issue_wq(0, [15, 16, 17]); issue_wq(1, [18, 19, 20])
    issue_k(1, [3, 4, 5])
    e("s_mul_i32 s%d, s%d, 245760" % (sT0, sH))
    e("s_add_u32 s%d, s12, s%d" % (sWO, sT0)); e("s_addc_u32 s%d, s13, 0" % (sWO + 1))
    e("s_mov_b32 s%d, 245760" % (sWO + 2)); e("s_mov_b32 s%d, 0x20000" % (sWO + 3))
    e("s_mov_b32 s%d, s26" % sWS); e("s_mov_b32 s%d, s27" % (sWS + 1))
    e("s_mov_b32 s%d, %d" % (sWS + 2, WS_SIZE)); e("s_mov_b32 s%d, 0x20000" % (sWS + 3))
    e("s_mov_b32 s%d, s22" % sOUT); e("s_mov_b32 s%d, s23" % (sOUT + 1))
    e("s_mov_b32 s%d, 2560" % (sOUT + 2)); e("s_mov_b32 s%d, 0x20000" % (sOUT + 3))
    e("s_mov_b32 s%d, s24" % sDBG); e("s_mov_b32 s%d, s25" % (sDBG + 1))
    e("s_mov_b32 s%d, 256" % (sDBG + 2)); e("s_mov_b32 s%d, 0x20000" % (sDBG + 3))
    e("s_mul_i32 s%d, s2, 5462" % sFR); e("s_lshr_b32 s%d, s%d, 16" % (sFR, sFR))
    e("s_mul_i32 s%d, s%d, 12" % (sT0, sFR)); e("s_sub_u32 s%d, s2, s%d" % (sFS, sT0))
    e("s_mul_i32 s%d, s%d, 52" % (sRR, sFR)); e("s_lshr_b32 s%d, s%d, 8" % (sRR, sRR))
    e("s_mul_i32 s%d, s%d, 5" % (sT0, sRR)); e("s_sub_u32 s%d, s%d, s%d" % (sC5, sFR, sT0))
    e("s_lshl_b32 s%d, s%d, 2" % (sPIDX, sFS)); e("s_add_u32 s%d, s%d, s%d" % (sPIDX, sPIDX, sRR))
    e("s_cmp_lt_u32 s2, %d" % nffn)
    e("s_cselect_b32 s%d, %d, 0" % (sWG + 2, 640 * 3072))
    e("s_cselect_b32 s%d, %d, 0" % (sWU + 2, 640 * 3072))
    e("s_cselect_b32 s%d, %d, 0" % (sWD + 2, 1536 * 1280))
    e("s_cselect_b32 s%d, %d, 0" % (sWSF + 2, WS_Y))
    e("s_mov_b32 s%d, s16" % sWG); e("s_mov_b32 s%d, s17" % (sWG + 1)); e("s_mov_b32 s%d, 0x20000" % (sWG + 3))
    e("s_mov_b32 s%d, s18" % sWU); e("s_mov_b32 s%d, s19" % (sWU + 1)); e("s_mov_b32 s%d, 0x20000" % (sWU + 3))
    e("s_mov_b32 s%d, s20" % sWD); e("s_mov_b32 s%d, s21" % (sWD + 1)); e("s_mov_b32 s%d, 0x20000" % (sWD + 3))
    e("s_mov_b32 s%d, s26" % sWSF); e("s_mov_b32 s%d, s27" % (sWSF + 1)); e("s_mov_b32 s%d, 0x20000" % (sWSF + 3))
    e("s_mov_b32 s%d, 0x00ff00ff" % sVAL); e("s_mov_b32 s%d, 0xff00ff00" % (sVAL + 1))
    e("v_lshrrev_b32 v58, 2, v0")
    e("s_lshl_b32 s%d, s%d, 5" % (sT0, sFS))
    e("v_add_u32 v58, s%d, v58" % sT0)
    e("v_mul_u32_u24 v58, 1280, v58")
    e("v_and_b32 v59, 3, v0")
    e("v_lshl_add_u32 v58, v59, 4, v58")
    e("s_lshl_b32 s%d, s%d, 6" % (sT0, sFR))
    e("v_add_u32 v58, s%d, v58" % sT0)
    e("v_lshrrev_b32 v59, 3, v%d" % vL)
    e("v_mul_u32_u24 v59, 6144, v59")
    e("v_and_b32 v60, 7, v%d" % vL)
    e("v_lshl_add_u32 v59, v60, 4, v59")
    e("s_mul_i32 s%d, s%d, %d" % (sT0, sC5, 8 * 6144))
    e("s_lshl_b32 s%d, s%d, 7" % (sT1, sPIDX))
    e("s_add_u32 s%d, s%d, s%d" % (sT0, sT0, sT1)); e("s_add_u32 s%d, s%d, %d" % (sT0, sT0, WS_P2))
    e("v_add_u32 v59, s%d, v59" % sT0)
    e("v_cmp_gt_u32 vcc, 128, v0")
    e("s_cmp_lt_u32 s2, %d" % nffn)
    e("s_nop 0")
    e("v_cndmask_b32 v58, v59, v58, vcc")
    e("s_cselect_b32 s%d, 0, %d" % (sT2, OOB))
    e("v_or_b32 v58, s%d, v58" % sT2)
    e("v_subrev_u32 v59, 192, v0")
    e("v_lshrrev_b32 v59, 3, v59")
    e("v_lshlrev_b32 v59, 14, v59")
    e("v_lshl_add_u32 v59, v60, 4, v59")
    e("s_mul_i32 s%d, s%d, %d" % (sT0, sB, 20 * 16384))
    e("s_lshl_b32 s%d, s%d, 7" % (sT1, sP))
    e("s_add_u32 s%d, s%d, s%d" % (sT0, sT0, sT1)); e("s_add_u32 s%d, s%d, %d" % (sT0, sT0, WS_Y))
    e("v_add_u32 v59, s%d, v59" % sT0)
    e("v_cmp_gt_u32 vcc, 192, v0")
    e("s_lshl_b32 s%d, s%d, 7" % (sT0, sB)); e("s_add_u32 s%d, s%d, s%d" % (sT0, sT0, sP))
    e("v_cndmask_b32 v58, v59, v58, vcc")
    e("s_lshl_b32 s%d, s%d, 4" % (sT0, sT0)); e("s_add_u32 s%d, s%d, %d" % (sT0, sT0, WS_ML))
    e("v_mov_b32 v59, s%d" % sT0)
    e("v_cmp_gt_u32 vcc, 352, v0")
    e("s_nop 1")
    e("v_cndmask_b32 v58, v59, v58, vcc")
    e("v_mov_b32 v59, %d" % OOB)
    e("v_cmp_gt_u32 vcc, 353, v0")
    e("v_mov_b32 v10, -1"); e("v_mov_b32 v11, -1")
    e("v_cndmask_b32 v%d, v59, v58, vcc" % vPUB)
    e("v_mov_b32 v12, -1"); e("v_mov_b32 v13, -1")
    e.vmem("buffer_store_dwordx4 v[10:13], v%d, %s, 0 offen sc1" % (vPUB, sr(sWS)), "clr")
    issue_wq(2, [21, 22, 23]); issue_wq(3, [24, 25, 26])
    issue_k(2, [6, 7, 8])
    issue_wq(4, [27, 28, 29]); issue_wq(5, [30, 31, 32])
    issue_k(3, [9, 10, 11])
    issue_wq(6, [33, 34, 35]); issue_wq(7, [36, 37, 38])
    issue_k(4, [12, 13, 14])
    issue_wq(8, [39, 40, 41]); issue_wq(9, [42, 43, 44])
    e("v_lshrrev_b32 v58, 4, v%d" % vL)
    e("v_and_b32 v59, 15, v%d" % vL)
    e("v_mul_u32_u24 v60, 3072, v58")
    e("v_lshl_add_u32 v60, v59, 4, v60")
    e("s_lshl_b32 s%d, s%d, 3" % (sT0, sFR)); e("s_add_u32 s%d, s%d, s%d" % (sT0, sT0, sW))
    e("s_mul_i32 s%d, s%d, %d" % (sT0, sT0, 4 * 3072))
    e("s_lshl_b32 s%d, s%d, 8" % (sT1, sFS)); e("s_add_u32 s%d, s%d, s%d" % (sSO, sT0, sT1))
    e.vmem("buffer_load_dwordx4 %s, v60, %s, s%d offen %s" % (vr(slot(45)), sr(sWG), sSO, wf), "F1")
    e.vmem("buffer_load_dwordx4 %s, v60, %s, s%d offen %s" % (vr(slot(46)), sr(sWU), sSO, wf), "F1")
    e("v_mul_u32_u24 v%d, 1280, v58" % vWO)
    e("v_lshl_add_u32 v%d, v59, 4, v%d" % (vWO, vWO))
    e("s_mul_i32 s%d, s%d, 30720" % (sT0, sW))
    e("v_add_u32 v%d, s%d, v%d" % (vWO, sT0, vWO))
    e("v_and_b32 v58, 1, v%d" % vL)
    e("v_lshlrev_b32 v58, 4, v58")
    e("v_mov_b32 v59, 0xffff")
    e("v_lshlrev_b32 v58, v58, v59")
    e("v_bfe_u32 v59, v%d, 1, 2" % vL)
    for r in range(4):
        e("v_cmp_eq_u32 vcc, %d, v59" % r)
        e("s_nop 1")
        e("v_cndmask_b32 v%d, 0, v58, vcc" % (vM + r))

    e.wait_vm("x")
    X = 28
    for r in range(10):
        e("v_lshlrev_b32 v%d, 16, v%d" % (X + 2 * r, 18 + r))
        e("v_and_b32 v%d, 0xffff0000, v%d" % (X + 2 * r + 1, 18 + r))
    def half_allreduce(v, t, op="v_add_f32"):
        for pat in ("quad_perm:[1,0,3,2]", "quad_perm:[2,3,0,1]", "row_half_mirror", "row_mirror"):
            e("s_nop 1")
            e("%s_dpp v%d, v%d, v%d %s %s" % (op, v, v, v, pat, DPP))
        e("v_mov_b32 v%d, v%d" % (t, v))
        e("s_nop 1")
        e("v_permlane16_swap_b32 v%d, v%d" % (v, t))
        e("s_nop 1")
        e("%s v%d, v%d, v%d" % (op, v, v, t))
    for r in range(4): e("v_add_f32 v%d, v%d, v%d" % (48 + r, X + r, X + 4 + r))
    for k in range(8, 20): e("v_add_f32 v%d, v%d, v%d" % (48 + k % 4, 48 + k % 4, X + k))
    e("v_add_f32 v48, v48, v49"); e("v_add_f32 v50, v50, v51"); e("v_add_f32 v48, v48, v50")
    half_allreduce(48, 49)
    e("v_mul_f32 v48, %s, v48" % hx(f2u(1.0 / 640)))
    for k in range(20):
        e("v_sub_f32 v%d, v%d, v48" % (18 + k % 4, X + k))
        if k < 4: e("v_mul_f32 v%d, v%d, v%d" % (52 + k, 18 + k, 18 + k))
        else: e("v_fmac_f32 v%d, v%d, v%d" % (52 + k % 4, 18 + k % 4, 18 + k % 4))
    e("v_add_f32 v52, v52, v53"); e("v_add_f32 v54, v54, v55"); e("v_add_f32 v52, v52, v54")
    half_allreduce(52, 53)
    e("v_mul_f32 v52, %s, v52" % hx(f2u(1.0 / 640)))
    e("v_cvt_pk_bf16_f32 v48, v48, v52")
    e("v_and_b32 v52, 0xffff0000, v48")
    e("v_lshlrev_b32 v48, 16, v48")
    e("v_add_f32 v52, %s, v52" % hx(f2u(1e-5)))
    e("v_cvt_pk_bf16_f32 v52, v52, v52")
    e("v_and_b32 v52, 0xffff0000, v52")
    e("v_sqrt_f32 v52, v52")
    e("s_nop 0")
    e("v_cvt_pk_bf16_f32 v52, v52, v52")
    e("v_and_b32 v52, 0xffff0000, v52")
    e("v_rcp_f32 v53, v52")
    for k in range(0, 20, 2):
        a, b2 = X + k, X + k + 1
        e("v_sub_f32 v%d, v%d, v48" % (a, a)); e("v_sub_f32 v%d, v%d, v48" % (b2, b2))
        e("v_cvt_pk_bf16_f32 v18, v%d, v%d" % (a, b2))
        e("v_lshlrev_b32 v%d, 16, v18" % a); e("v_and_b32 v%d, 0xffff0000, v18" % b2)
        e("v_mul_f32 v19, v%d, v53" % a); e("v_mul_f32 v20, v%d, v53" % b2)
        e("v_fma_f32 v%d, -v19, v52, v%d" % (a, a)); e("v_fma_f32 v%d, -v20, v52, v%d" % (b2, b2))
        e("v_fmac_f32 v19, v%d, v53" % a); e("v_fmac_f32 v20, v%d, v53" % b2)
        e("v_cvt_pk_bf16_f32 v%d, v19, v19" % a); e("v_cvt_pk_bf16_f32 v%d, v20, v20" % b2)
    e("v_lshlrev_b32 v58, 1, v62"); e("v_lshlrev_b32 v59, 1, v63")
    e("ds_write_b128 v58, %s offset:%d" % (vr(X), L_XN))
    e("ds_write_b128 v58, %s offset:%d" % (vr(X + 4), L_XN + 16))
    e("ds_write_b128 v58, %s offset:%d" % (vr(X + 8), L_XN + 1024))
    e("ds_write_b128 v58, %s offset:%d" % (vr(X + 12), L_XN + 1024 + 16))
    e("ds_write_b128 v59, %s offset:%d" % (vr(X + 16), L_XN + 2048))
    e("s_mul_i32 s%d, s%d, 2560" % (sT0, sB)); e("s_mul_i32 s%d, s%d, 320" % (sT1, sW)); e("s_add_u32 s%d, s%d, s%d" % (sT0, sT0, sT1))
    e("v_lshrrev_b32 v58, 3, v%d" % vL)
    e("v_lshlrev_b32 v59, 2, v58")
    e("v_add_u32 v59, s%d, v59" % sT0)
    e("v_and_b32 v58, 1, v58"); e("v_mul_u32_u24 v58, 2560, v58")
    e("v_lshrrev_b32 v60, 4, v%d" % vL); e("v_lshl_add_u32 v58, v60, 2, v58")
    e("s_lshl_b32 s%d, s%d, 3" % (sT0, sFR)); e("s_add_u32 s%d, s%d, s%d" % (sT0, sT0, sW)); e("s_lshl_b32 s%d, s%d, 4" % (sT0, sT0))
    e("s_min_u32 s%d, s%d, %d" % (sT0, sT0, 2544))
    e("v_add_u32 v58, s%d, v58" % sT0)
    e("s_waitcnt lgkmcnt(0)")
    for i in range(10): e("ds_read_b32 v%d, v59 offset:%d" % (vS + i, L_XN + 32 * i))
    e("ds_read_b32 v%d, v58 offset:%d" % (vS + 10, L_XN))
    e("v_mov_b32 v58, %d" % L_CNT); e("v_mov_b32 v59, 0")
    e("ds_write_b32 v58, v59")
    e("s_waitcnt lgkmcnt(0)")

    def afrag(dst, src, mod=""):
        for r in range(4): e("v_and_b32 v%d, v%d, v%d" % (dst + r, src, vM + r))
    for i in range(10):
        A = vA0 if i % 2 == 0 else vA1
        afrag(A, vS + i)
        e("s_nop 0")
        e.wait_vm("W%d" % i)
        for t in range(3):
            c = "0" if i == 0 else vr(vACC + 4 * t)
            e("v_mfma_f32_16x16x32_bf16 %s, %s, %s, %s" % (vr(vACC + 4 * t), vr(A), vr(slot(wslot[i][t])), c))
        issue_k(5 + i, wslot[i])
    afrag(vA0, vS + 10)
    e("s_nop 0")
    e.wait_vm("F1")
    e("v_mfma_f32_16x16x32_bf16 %s, %s, %s, 0" % (vr(vQF), vr(vA0), vr(slot(45))))
    e("v_mfma_f32_16x16x32_bf16 %s, %s, %s, 0" % (vr(vQF + 4), vr(vA0), vr(slot(46))))
    issue_k(15, [45, 46, 47])
    e("v_lshrrev_b32 v58, 5, v%d" % vL); e("v_mul_u32_u24 v58, %d, v58" % PSTR)
    e("v_and_b32 v59, 7, v%d" % vL); e("v_lshl_add_u32 v58, v59, 5, v58")
    e("v_and_b32 v59, 16, v%d" % vL); e("v_add_u32 v58, v58, v59")
    e("s_mul_i32 s%d, s%d, %d" % (sT0, sW, 2 * PSTR))
    e("v_add_u32 v62, s%d, v58" % sT0)
    e("v_lshrrev_b32 v58, 5, v%d" % vL); e("v_lshlrev_b32 v58, 9, v58")
    e("v_and_b32 v60, 15, v%d" % vL); e("v_lshl_add_u32 v58, v60, 5, v58")
    e("v_add_u32 v63, v58, v59")
    e("s_lshl_b32 s%d, s%d, 11" % (sT0, sW))
    e("v_add_u32 v58, s%d, v63" % sT0)
    e("s_mov_b64 exec, %s" % sr(sVAL, 2))
    for t in range(3): e("ds_write_b128 v62, %s offset:%d" % (vr(vACC + 4 * t), L_QP + t * 256))
    e("s_mov_b64 exec, -1")
    e("ds_write_b128 v58, %s offset:%d" % (vr(vQF), L_F1))
    e("ds_write_b128 v58, %s offset:%d" % (vr(vQF + 4), L_F1 + 1024))
    e("s_waitcnt lgkmcnt(0)")
    e("s_barrier")
    stamp()
    lab = e.newlab("noatom")
    e("s_cmp_lg_u32 s%d, 0" % sW); e("s_cbranch_scc1 %s" % lab)
    e("s_mov_b64 exec, 1")
    e("v_mov_b32 v58, 1")
    e.vmem("buffer_atomic_add v58, off, %s, 0" % sr(sDBG), counted=False)
    e("s_mov_b64 exec, -1")
    e.label(lab)
    e("v_lshlrev_b32 v58, 4, v%d" % vL)
    for pp in range(4): e("ds_read_b128 %s, v58 offset:%d" % (vr(vS + 4 * pp), L_QP + pp * PSTR))
    for pp in range(4, 16):
        e("s_waitcnt lgkmcnt(3)")
        src = vS + 4 * (pp % 4)
        if pp == 4:
            for r in range(4): e("v_mov_b32 v%d, v%d" % (vQF + r, src + r))
        else:
            for r in range(4): e("v_add_f32 v%d, v%d, v%d" % (vQF + r, vQF + r, src + r))
        e("ds_read_b128 %s, v58 offset:%d" % (vr(src), L_QP + pp * PSTR))
    for pp in range(4):
        e("s_waitcnt lgkmcnt(%d)" % (3 - pp))
        for r in range(4): e("v_add_f32 v%d, v%d, v%d" % (vQF + r, vQF + r, vS + 4 * pp + r))
    e("v_cvt_pk_bf16_f32 v%d, v%d, v%d" % (vQF, vQF, vQF + 1))
    e("v_cvt_pk_bf16_f32 v%d, v%d, v%d" % (vQF + 1, vQF + 2, vQF + 3))
    e("v_lshlrev_b32 v58, 3, v%d" % vL)
    e("ds_write_b64 v58, %s offset:%d" % (vr(vQF, 2), L_QB))
    e("v_and_b32 v58, 7, v%d" % vL); e("v_lshlrev_b32 v58, 4, v58")
    e("s_waitcnt lgkmcnt(0)")
    for t in range(3): e("ds_read_b128 %s, v58 offset:%d" % (vr(vQF + 4 * t), L_QB + t * 128))
    lab = e.newlab("nof1")
    e("s_cmp_ge_u32 s%d, 2" % sW); e("s_cbranch_scc1 %s" % lab)
    e("v_and_b32 v58, 3, v0"); e("v_lshlrev_b32 v58, 9, v58")
    e("v_lshrrev_b32 v59, 2, v0"); e("v_lshl_add_u32 v58, v59, 4, v58")
    for pp in range(4): e("ds_read_b128 %s, v58 offset:%d" % (vr(vS + 4 * pp), L_F1 + pp * 2048))
    e("s_waitcnt lgkmcnt(0)")
    for r in range(4): e("v_add_f32 v%d, v%d, v%d" % (vACC + r, vS + r, vS + 4 + r))
    for r in range(4): e("v_add_f32 v%d, v%d, v%d" % (vACC + r, vACC + r, vS + 8 + r))
    for r in range(4): e("v_add_f32 v%d, v%d, v%d" % (vACC + r, vACC + r, vS + 12 + r))
    for pp in range(4): e("ds_read_b128 %s, v58 offset:%d" % (vr(vS + 4 * pp), L_F1 + (4 + pp) * 2048))
    e("s_waitcnt lgkmcnt(0)")
    for pp in range(4):
        for r in range(4): e("v_add_f32 v%d, v%d, v%d" % (vACC + r, vACC + r, vS + 4 * pp + r))
    for r in range(4): e("v_min_u32 v%d, -2, v%d" % (vACC + r, vACC + r))
    e.vmem("buffer_store_dwordx4 %s, v%d, %s, 0 offen sc1" % (vr(vACC), vPUB, sr(sWS)), counted=False)
    e.label(lab)
    for g in range(16): e("v_mov_b32 v%d, 0" % (vS + g))
    e("s_waitcnt lgkmcnt(0)")
    if debug:
        dump(e, [vQF + i for i in range(12)], 0, sWS, "q")

    held = []
    nwo = 0
    for g in range(16):
        e.wait_vm("K%d" % g)
        for t in range(3):
            for r in range(4):
                e("v_dot2c_f32_bf16 v%d, v%d, v%d" % (vS + g, slot(kslot[g][t]) + r, vQF + 4 * t + r))
        if g < 2 * VR:
            if g % 2 == 0: issue_v(g // 2, kslot[g])
            else: issue_wo(nwo, kslot[g]); nwo += 1
        else: held.append(kslot[g])
        if g == conf_g:
            e.vmem("buffer_load_dword v%d, off, %s, 0 sc1" % (vCONF, sr(sDBG)), "conf")
    e("s_nop 2")
    for pat in ("quad_perm:[1,0,3,2]", "quad_perm:[2,3,0,1]", "row_half_mirror"):
        for g in range(16): e("v_add_f32_dpp v%d, v%d, v%d %s %s" % (vS + g, vS + g, vS + g, pat, DPP))
    sc = hx(f2u(192 ** -0.5))
    for g in range(0, 16, 2):
        a, b2, t = vS + g, vS + g + 1, vQF + (g // 2)
        e("v_cvt_pk_bf16_f32 v%d, v%d, v%d" % (t, a, b2))
        e("v_lshlrev_b32 v%d, 16, v%d" % (a, t)); e("v_and_b32 v%d, 0xffff0000, v%d" % (b2, t))
        e("v_mul_f32 v%d, %s, v%d" % (a, sc, a)); e("v_mul_f32 v%d, %s, v%d" % (b2, sc, b2))
        e("v_cvt_pk_bf16_f32 v%d, v%d, v%d" % (t, a, b2))
        e("v_lshlrev_b32 v%d, 16, v%d" % (a, t)); e("v_and_b32 v%d, 0xffff0000, v%d" % (b2, t))
    if debug:
        dump(e, [vS + i for i in range(16)], 1, sWS, "s")
    e("v_max3_f32 v%d, v%d, v%d, v%d" % (vMW, vS, vS + 1, vS + 2))
    for g in range(3, 15, 2): e("v_max3_f32 v%d, v%d, v%d, v%d" % (vMW, vMW, vS + g, vS + g + 1))
    e("v_max_f32 v%d, v%d, v%d" % (vMW, vMW, vS + 15))
    def group_allreduce(v, t, op):
        e("s_nop 1")
        e("%s_dpp v%d, v%d, v%d row_ror:8 %s" % (op, v, v, v, DPP))
        e("v_mov_b32 v%d, v%d" % (t, v)); e("s_nop 1")
        e("v_permlane16_swap_b32 v%d, v%d" % (v, t)); e("s_nop 1")
        e("%s v%d, v%d, v%d" % (op, v, v, t))
        e("v_mov_b32 v%d, v%d" % (t, v)); e("s_nop 1")
        e("v_permlane32_swap_b32 v%d, v%d" % (v, t)); e("s_nop 1")
        e("%s v%d, v%d, v%d" % (op, v, v, t))
    group_allreduce(vMW, 59, "v_max_f32")
    l2e = hx(f2u(LOG2E))
    for g in range(16): e("v_sub_f32 v%d, v%d, v%d" % (vS + g, vS + g, vMW))
    for g in range(16): e("v_mul_f32 v%d, %s, v%d" % (vS + g, l2e, vS + g))
    for g in range(16): e("v_exp_f32 v%d, v%d" % (vS + g, vS + g))
    e("v_add_f32 v%d, v%d, v%d" % (vLW, vS, vS + 1)); e("v_add_f32 v59, v%d, v%d" % (vS + 2, vS + 3))
    for g in range(4, 16, 2):
        e("v_add_f32 v%d, v%d, v%d" % (vLW, vLW, vS + g)); e("v_add_f32 v59, v59, v%d" % (vS + g + 1))
    e("v_add_f32 v%d, v%d, v59" % (vLW, vLW))
    group_allreduce(vLW, 59, "v_add_f32")
    e("s_lshl_b32 s%d, s%d, 3" % (sT0, sW)); e("v_mov_b32 v59, s%d" % sT0)
    e("ds_write_b64 v59, v[%d:%d] offset:%d" % (vMW, vLW, L_ML))
    e("v_and_b32 v59, 7, v%d" % vL); e("v_lshlrev_b32 v59, 3, v59")
    e("s_waitcnt lgkmcnt(0)")
    e("s_barrier")
    e("ds_read_b64 v[30:31], v59 offset:%d" % L_ML)
    e("s_waitcnt lgkmcnt(0)")
    e("v_mov_b32 v32, v30")
    for pat in ("quad_perm:[1,0,3,2]", "quad_perm:[2,3,0,1]", "row_half_mirror"):
        e("s_nop 1"); e("v_max_f32_dpp v32, v32, v32 %s %s" % (pat, DPP))
    e("v_sub_f32 v30, v30, v32"); e("v_sub_f32 v33, v%d, v32" % vMW)
    e("v_mul_f32 v30, %s, v30" % l2e); e("v_mul_f32 v33, %s, v33" % l2e)
    e("v_exp_f32 v30, v30"); e("v_exp_f32 v33, v33")
    e("s_nop 0")
    e("v_mul_f32 v30, v30, v31")
    for pat in ("quad_perm:[1,0,3,2]", "quad_perm:[2,3,0,1]", "row_half_mirror"):
        e("s_nop 1"); e("v_add_f32_dpp v30, v30, v30 %s %s" % (pat, DPP))
    e("v_rcp_f32 v31, v30")
    e("v_mov_b32 v%d, v32" % vMW); e("v_mov_b32 v%d, v30" % vLW)
    e("v_mul_f32 v33, v33, v31")
    for g in range(16): e("v_mul_f32 v%d, v%d, v33" % (vS + g, vS + g))
    for g in range(16): e("v_cvt_pk_bf16_f32 v%d, v%d, v%d" % (vS + g, vS + g, vS + g))
    e("v_min_u32 v%d, -2, v%d" % (vMW, vMW)); e("v_min_u32 v%d, -2, v%d" % (vLW, vLW))
    stamp()
    e.wait_vm("conf")
    lab = e.newlab("confok"); lp = e.newlab("confloop")
    e("s_mov_b32 s%d, 0x10000" % sCNT)
    e.label(lp)
    e("v_readfirstlane_b32 s%d, v%d" % (sT0, vCONF))
    e("s_nop 3")
    e("s_cmp_ge_u32 s%d, 256" % sT0); e("s_cbranch_scc1 %s" % lab)
    e("s_sub_u32 s%d, s%d, 1" % (sCNT, sCNT)); e("s_cbranch_scc1 %s" % lab)
    e("s_sleep 4")
    e.vmem("buffer_load_dword v%d, off, %s, 0 sc1" % (vCONF, sr(sDBG)), counted=False)
    e("s_waitcnt vmcnt(0)")
    e("s_branch %s" % lp)
    e.label(lab)
    vWD, vP1 = 30, 34
    e("s_lshl_b32 s%d, s%d, 2" % (sT0, sFS)); e("s_add_u32 s%d, s%d, s%d" % (sT0, sT0, sRR))
    e("s_lshl_b32 s%d, s%d, 3" % (sT0, sT0)); e("s_add_u32 s%d, s%d, s%d" % (sT0, sT0, sW))
    e("s_mul_i32 s%d, s%d, 1280" % (sT1, sT0))
    e("v_lshlrev_b32 v59, 2, v%d" % vL); e("v_add_u32 v59, s%d, v59" % sT1)
    def issue_p1(counted):
        for j in range(5):
            e.vmem("buffer_load_dword v%d, v59, %s, 0 offen offset:%d sc1" % (vP1 + j, sr(sWSF), 256 * j), "P1", counted=counted)
    issue_p1(True)
    e("s_mul_i32 s%d, s%d, 5120" % (sT1, sT0))
    e("s_lshl_b32 s%d, s%d, 8" % (sT2, sC5)); e("s_add_u32 s%d, s%d, s%d" % (sT1, sT1, sT2))
    e("s_mul_i32 s%d, s%d, 30720" % (sT2, sW))
    e("v_subrev_u32 v%d, s%d, v%d" % (vCONF, sT2, vWO))
    e.vmem("buffer_load_dwordx4 %s, v%d, %s, s%d offen %s" % (vr(vWD), vCONF, sr(sWD), sT1, wf), "WD")

    for g in range(16):
        A = vA0 if g % 2 == 0 else vA1
        afrag(A, vS + g)
        e("s_nop 0")
        e.wait_vm("V%d" % g)
        if g == ml_g:
            lab = e.newlab("noml")
            e("s_cmp_lg_u32 s%d, 5" % sW); e("s_cbranch_scc1 %s" % lab)
            e("s_mov_b32 exec_lo, 0"); e("s_mov_b32 exec_hi, 1")
            e.vmem("buffer_store_dwordx2 v[%d:%d], v%d, %s, 0 offen sc1" % (vMW, vLW, vPUB, sr(sWS)), counted=False)
            e("s_mov_b64 exec, -1")
            e.label(lab)
        for t in range(3):
            c = "0" if g == 0 else vr(vACC + 4 * t)
            e("v_mfma_f32_16x16x32_bf16 %s, %s, %s, %s" % (vr(vACC + 4 * t), vr(A), vr(slot(vslot[g][t])), c))
        if g + VR < 16: issue_v(g + VR, vslot[g])
        if held: issue_wo(nwo, held.pop(0)); nwo += 1
        if g == st2_g:
            e.wait_vm("WD")
            lab = e.newlab("p1ok"); lp = e.newlab("p1loop")
            e("s_mov_b32 s%d, 0x10000" % sCNT)
            e.label(lp)
            e("v_max3_u32 v39, v%d, v%d, v%d" % (vP1, vP1 + 1, vP1 + 2))
            e("v_max3_u32 v39, v39, v%d, v%d" % (vP1 + 3, vP1 + 4))
            e("v_cmp_eq_u32 vcc, -1, v39")
            e("s_nop 1")
            e("s_cbranch_vccz %s" % lab)
            e("s_sub_u32 s%d, s%d, 1" % (sCNT, sCNT)); e("s_cbranch_scc1 %s" % lab)
            e("s_sleep 4")
            issue_p1(False)
            e("s_waitcnt vmcnt(0)")
            e("s_branch %s" % lp)
            e.label(lab)
            for j in range(1, 5): e("v_add_f32 v%d, v%d, v%d" % (vP1, vP1, vP1 + j))
            e("v_mov_b32 v35, v34"); e("s_nop 1"); e("v_permlane16_swap_b32 v34, v35"); e("s_nop 1"); e("v_add_f32 v34, v34, v35")
            e("v_mov_b32 v35, v34"); e("s_nop 1"); e("v_permlane32_swap_b32 v34, v35"); e("s_nop 1"); e("v_add_f32 v34, v34, v35")
            e("v_cvt_pk_bf16_f32 v34, v34, v34"); e("v_and_b32 v34, 0xffff0000, v34")
            e("s_nop 1")
            e("v_mov_b32_dpp v35, v34 row_ror:8 %s" % DPP)
            e("v_mul_f32 v36, v34, v34")
            e("v_mul_f32 v36, %s, v36" % hx(f2u(0.044715)))
            e("v_fma_f32 v36, v36, v34, v34")
            e("v_mul_f32 v36, %s, v36" % hx(f2u(-2.0 * LOG2E * 0.7978845608028654)))
            e("v_exp_f32 v36, v36"); e("s_nop 0")
            e("v_add_f32 v36, 1.0, v36")
            e("v_rcp_f32 v36, v36"); e("s_nop 0")
            e("v_mul_f32 v36, v34, v36")
            e("v_cvt_pk_bf16_f32 v36, v36, v36"); e("v_and_b32 v36, 0xffff0000, v36")
            e("v_mul_f32 v36, v36, v35")
            e("v_cvt_pk_bf16_f32 v36, v36, v36")
            e("v_bfe_u32 v37, v%d, 3, 1" % vL); e("v_lshrrev_b32 v38, 4, v%d" % vL)
            e("v_lshl_add_u32 v37, v37, 2, v38"); e("v_lshlrev_b32 v37, 2, v37")
            e("ds_bpermute_b32 v36, v37, v36")
            e("s_waitcnt lgkmcnt(0)")
            A2 = vA1 if g % 2 == 0 else vA0
            afrag(A2, 36)
            e("s_nop 1")
            e("v_mfma_f32_16x16x32_bf16 %s, %s, %s, 0" % (vr(34), vr(A2), vr(vWD)))
            e("s_lshl_b32 s%d, s%d, 10" % (sT0, sW))
            e("v_add_u32 v38, s%d, v63" % sT0)
            e("v_mov_b32 v39, %d" % L_CNT); e("v_mov_b32 v40, 1")
            e("s_nop 5")
            e("ds_write_b128 v38, %s offset:%d" % (vr(34), L_F2))
            e("s_waitcnt lgkmcnt(0)")
            e("s_mov_b64 exec, 1")
            e("ds_add_rtn_u32 v40, v39, v40")
            e("s_mov_b64 exec, -1")
            e("s_waitcnt lgkmcnt(0)")
            e("v_readfirstlane_b32 s%d, v40" % sT0)
            lab = e.newlab("nop2")
            e("s_nop 3")
            e("s_cmp_lg_u32 s%d, 7" % sT0); e("s_cbranch_scc1 %s" % lab)
            e("v_lshlrev_b32 v38, 4, v%d" % vL)
            e("ds_read_b128 %s, v38 offset:%d" % (vr(30), L_F2))
            for pp in range(1, 8):
                e("ds_read_b128 %s, v38 offset:%d" % (vr(34), L_F2 + pp * 1024))
                e("s_waitcnt lgkmcnt(0)")
                for r in range(4): e("v_add_f32 v%d, v%d, v%d" % (30 + r, 30 + r, 34 + r))
            for r in range(4): e("v_min_u32 v%d, -2, v%d" % (30 + r, 30 + r))
            e("v_lshrrev_b32 v38, 3, v%d" % vL); e("v_mul_u32_u24 v38, 6144, v38")
            e("v_and_b32 v39, 7, v%d" % vL); e("v_lshl_add_u32 v38, v39, 4, v38")
            e("s_mul_i32 s%d, s%d, %d" % (sT0, sC5, 8 * 6144))
            e("s_lshl_b32 s%d, s%d, 7" % (sT1, sPIDX))
            e("s_add_u32 s%d, s%d, s%d" % (sT0, sT0, sT1)); e("s_add_u32 s%d, s%d, %d" % (sT0, sT0, WS_P2))
            e.vmem("buffer_store_dwordx4 %s, v38, %s, s%d offen sc1" % (vr(30), sr(sWSF), sT0), counted=False)
            e("s_nop 1")
            e.label(lab)
    assert nwo == 10 and not held
    stamp()
    e("v_and_b32 v58, 15, v%d" % vL); e("v_mul_u32_u24 v58, %d, v58" % PSTR)
    e("v_lshrrev_b32 v59, 4, v%d" % vL); e("v_lshl_add_u32 v58, v59, 2, v58")
    e("s_mul_i32 s%d, s%d, 96" % (sT0, sW))
    e("v_add_u32 v58, s%d, v58" % sT0)
    e("s_mov_b64 exec, %s" % sr(sVAL, 2))
    e("s_nop 1")
    for t in range(3): e("ds_write_b128 v62, %s offset:%d" % (vr(vACC + 4 * t), L_QP + t * 256))
    e("s_mov_b64 exec, -1")
    e("v_add_u32 v58, %d, v58" % L_QP)
    e("s_waitcnt lgkmcnt(0)")
    e("s_barrier")
    vO = 52
    for i in range(0, 6, 2): e("ds_read2_b32 v[%d:%d], v58 offset0:%d offset1:%d" % (vO + i, vO + i + 1, 4 * i, 4 * i + 4))
    e("s_waitcnt lgkmcnt(0)")
    for pat in ("quad_perm:[1,0,3,2]", "quad_perm:[2,3,0,1]", "row_half_mirror", "row_mirror"):
        for i in range(6): e("v_add_f32_dpp v%d, v%d, v%d %s %s" % (vO + i, vO + i, vO + i, pat, DPP))
    for i in range(6): e("v_cvt_pk_bf16_f32 v%d, v%d, v%d" % (vO + i, vO + i, vO + i))
    if debug:
        dump(e, [vO + i for i in range(6)], 2, sWS, "o")
    e.wait_all_vm()
    vY = 30
    for i in range(6):
        A = vA0 if i % 2 == 0 else vA1
        afrag(A, vO + i)
        e("s_nop 1")
        for seg in range(5):
            c = "0" if i == 0 else vr(vY + 4 * seg)
            e("v_mfma_f32_16x16x32_bf16 %s, %s, %s, %s" % (vr(vY + 4 * seg), vr(A), vr(slot(oslot[5 * i + seg])), c))
    e("s_mul_i32 s%d, s%d, 2560" % (sT0, sW))
    e("v_add_u32 v58, s%d, v63" % sT0)
    e("v_subrev_u32 v59, 192, v0"); e("v_lshlrev_b32 v59, 4, v59")
    e("s_mov_b32 exec_hi, 0")
    e("s_nop 3")
    for seg in range(5): e("ds_write_b128 v58, %s offset:%d" % (vr(vY + 4 * seg), L_YP + seg * 512))
    e("s_mov_b64 exec, -1")
    e("s_waitcnt lgkmcnt(0)")
    e("s_barrier")
    lab = e.newlab("noy")
    e("s_sub_u32 s%d, s%d, 3" % (sT0, sW)); e("s_cmp_ge_u32 s%d, 3" % sT0); e("s_cbranch_scc1 %s" % lab)
    e("v_cmp_gt_u32 vcc, 352, v0")
    e("s_and_saveexec_b64 %s, vcc" % sr(sEX, 2))
    for pp in range(8): e("ds_read_b128 %s, v59 offset:%d" % (vr(64 + 4 * pp), L_YP + pp * 2560))
    e("s_waitcnt lgkmcnt(6)")
    for r in range(4): e("v_add_f32 v%d, v%d, v%d" % (64 + r, 64 + r, 68 + r))
    for pp in range(2, 8):
        e("s_waitcnt lgkmcnt(%d)" % (7 - pp))
        for r in range(4): e("v_add_f32 v%d, v%d, v%d" % (64 + r, 64 + r, 64 + 4 * pp + r))
    for r in range(4): e("v_min_u32 v%d, -2, v%d" % (64 + r, 64 + r))
    e.vmem("buffer_store_dwordx4 %s, v%d, %s, 0 offen sc1" % (vr(64), vPUB, sr(sWS)), counted=False)
    e("s_mov_b64 exec, -1")
    e.label(lab)
    stamp()
    e("s_and_b32 s%d, s2, 1" % sT0); e("s_cmp_lg_u32 s%d, 0" % sT0); e("s_cbranch_scc1 L_fin")
    e("s_cmp_ge_u32 s2, 80"); e("s_cbranch_scc1 L_fin")
    e("s_lshr_b32 s%d, s2, 1" % sCI)
    e("s_cmp_ge_u32 s%d, 20" % sCI); e("s_cselect_b32 s%d, 1, 0" % sB)
    e("s_mul_i32 s%d, s%d, 20" % (sT0, sB)); e("s_sub_u32 s%d, s%d, s%d" % (sH, sCI, sT0))
    e("v_lshlrev_b32 v10, 4, v%d" % vL)
    e("s_lshl_b32 s%d, s%d, 14" % (sT0, sCI)); e("s_lshl_b32 s%d, s%d, 11" % (sT1, sW))
    e("s_add_u32 s%d, s%d, s%d" % (sT0, sT0, sT1)); e("s_add_u32 s%d, s%d, %d" % (sT0, sT0, WS_Y))
    e("v_add_u32 v11, s%d, v10" % sT0)
    e("s_lshr_b32 s%d, s%d, 2" % (sT0, sH)); e("s_lshl_b32 s%d, s%d, 1" % (sT0, sT0)); e("s_add_u32 s%d, s%d, s%d" % (sT0, sT0, sB))
    e("s_lshl_b32 s%d, s%d, 2" % (sT0, sT0)); e("s_and_b32 s%d, s%d, 3" % (sT1, sH)); e("s_add_u32 s%d, s%d, s%d" % (sT0, sT0, sT1))
    e("s_mul_i32 s%d, s%d, 6144" % (sT0, sT0)); e("s_lshl_b32 s%d, s%d, 10" % (sT1, sW))
    e("s_add_u32 s%d, s%d, s%d" % (sT0, sT0, sT1)); e("s_add_u32 s%d, s%d, %d" % (sT0, sT0, WS_P2))
    e("s_cmp_lt_u32 s%d, 6" % sW); e("s_cselect_b32 s%d, s%d, %d" % (sT0, sT0, 0x7fff0000))
    e("v_add_u32 v12, s%d, v10" % sT0)
    e("v_lshrrev_b32 v13, 3, v%d" % vL); e("v_lshlrev_b32 v13, 4, v13")
    e("s_lshl_b32 s%d, s%d, 11" % (sT0, sB)); e("s_lshl_b32 s%d, s%d, 8" % (sT1, sW))
    e("s_add_u32 s%d, s%d, s%d" % (sT0, sT0, sT1)); e("s_add_u32 s%d, s%d, %d" % (sT0, sT0, WS_ML))
    e("v_add_u32 v13, s%d, v13" % sT0)
    e("v_and_b32 v14, 31, v%d" % vL); e("v_lshlrev_b32 v14, 1, v14")
    e("s_lshl_b32 s%d, s%d, 6" % (sT0, sCI)); e("v_add_u32 v14, s%d, v14" % sT0)
    def ld_ml():
        e("buffer_load_dwordx2 v[20:21], v13, %s, 0 offen sc1" % sr(sWS))
        e("buffer_load_dwordx2 v[22:23], v13, %s, 0 offen offset:128 sc1" % sr(sWS))
    def ld_y():
        e("buffer_load_dwordx4 v[24:27], v11, %s, 0 offen sc1" % sr(sWS))
        e("buffer_load_dwordx4 v[28:31], v11, %s, 0 offen offset:1024 sc1" % sr(sWS))
        e("buffer_load_dwordx4 v[32:35], v12, %s, 0 offen sc1" % sr(sWS))
    ld_ml(); ld_y()
    e("buffer_load_ushort v15, v14, %s, 0 offen" % sr(sX))
    e("s_mov_b32 s%d, 0x10000" % sCNT)
    lab = e.newlab("mlok"); lp = e.newlab("mlloop")
    e("s_waitcnt vmcnt(4)")
    e.label(lp)
    e("v_max3_u32 v16, v20, v21, v22"); e("v_max_u32 v16, v16, v23")
    e("v_cmp_eq_u32 vcc, -1, v16"); e("s_nop 1")
    e("s_cbranch_vccz %s" % lab)
    e("s_sub_u32 s%d, s%d, 1" % (sCNT, sCNT)); e("s_cbranch_scc1 %s" % lab)
    e("s_sleep 2")
    ld_ml()
    e("s_waitcnt vmcnt(0)")
    e("s_branch %s" % lp)
    e.label(lab)
    e("v_mov_b32 v16, v20"); e("v_mov_b32 v17, v22"); e("s_nop 0")
    e("v_max_f32_dpp v16, v16, v16 row_ror:8 %s" % DPP); e("v_max_f32_dpp v17, v17, v17 row_ror:8 %s" % DPP)
    e("v_mov_b32 v18, v16"); e("v_mov_b32 v19, v17"); e("s_nop 1")
    e("v_permlane16_swap_b32 v16, v18"); e("v_permlane16_swap_b32 v17, v19"); e("s_nop 1")
    e("v_max_f32 v16, v16, v18"); e("v_max_f32 v17, v17, v19")
    e("v_sub_f32 v20, v20, v16"); e("v_sub_f32 v22, v22, v17")
    e("v_mul_f32 v20, %s, v20" % l2e); e("v_mul_f32 v22, %s, v22" % l2e)
    e("v_exp_f32 v20, v20"); e("v_exp_f32 v22, v22"); e("s_nop 0")
    e("v_mul_f32 v20, v20, v21"); e("v_mul_f32 v22, v22, v23")
    e("v_mov_b32 v16, v20"); e("v_mov_b32 v17, v22"); e("s_nop 0")
    e("v_add_f32_dpp v16, v16, v16 row_ror:8 %s" % DPP); e("v_add_f32_dpp v17, v17, v17 row_ror:8 %s" % DPP)
    e("v_mov_b32 v18, v16"); e("v_mov_b32 v19, v17"); e("s_nop 1")
    e("v_permlane16_swap_b32 v16, v18"); e("v_permlane16_swap_b32 v17, v19"); e("s_nop 1")
    e("v_add_f32 v16, v16, v18"); e("v_add_f32 v17, v17, v19")
    e("v_rcp_f32 v16, v16"); e("v_rcp_f32 v17, v17"); e("s_nop 0")
    e("v_mul_f32 v20, v20, v16"); e("v_mul_f32 v22, v22, v17")
    e("v_and_b32 v16, 7, v%d" % vL); e("v_lshlrev_b32 v16, 4, v16")
    e("v_and_b32 v17, 8, v%d" % vL); e("v_add_u32 v16, v16, v17")
    e("v_bfe_u32 v17, v%d, 4, 1" % vL); e("v_lshl_add_u32 v16, v17, 2, v16")
    e("v_lshrrev_b32 v17, 5, v%d" % vL); e("v_lshl_add_u32 v16, v17, 7, v16")
    e("s_lshl_b32 s%d, s%d, 8" % (sT0, sW)); e("v_add_u32 v16, s%d, v16" % sT0)
    e("v_and_b32 v17, 8, v%d" % vL); e("v_cmp_ne_u32 s[%d:%d], 0, v17" % (sEX, sEX + 1))
    lab = e.newlab("yok"); lp = e.newlab("yloop")
    e("s_waitcnt vmcnt(0)")
    e.label(lp)
    e("v_max3_u32 v17, v24, v25, v26"); e("v_max3_u32 v18, v27, v28, v29"); e("v_max3_u32 v17, v17, v30, v31")
    e("v_max3_u32 v18, v18, v32, v33"); e("v_max3_u32 v17, v17, v34, v35"); e("v_max_u32 v17, v17, v18")
    e("v_cmp_eq_u32 vcc, -1, v17"); e("s_nop 1")
    e("s_cbranch_vccz %s" % lab)
    e("s_sub_u32 s%d, s%d, 1" % (sCNT, sCNT)); e("s_cbranch_scc1 %s" % lab)
    ld_y()
    e("s_waitcnt vmcnt(0)")
    e("s_branch %s" % lp)
    e.label(lab)
    for r in range(4): e("v_mul_f32 v%d, v%d, v20" % (24 + r, 24 + r))
    for r in range(4): e("v_fmac_f32 v%d, v%d, v22" % (24 + r, 28 + r))
    e("s_nop 1")
    for r in range(4): e("v_permlane32_swap_b32 v%d, v%d" % (24 + r, 32 + r))
    e("s_nop 1")
    for r in range(4): e("v_add_f32 v%d, v%d, v%d" % (24 + r, 24 + r, 32 + r))
    e("s_nop 1")
    e("v_permlane16_swap_b32 v24, v25"); e("v_permlane16_swap_b32 v26, v27"); e("s_nop 1")
    e("v_add_f32 v24, v24, v25"); e("v_add_f32 v26, v26, v27"); e("s_nop 1")
    e("v_add_f32_dpp v24, v24, v24 row_ror:8 %s" % DPP); e("v_add_f32_dpp v26, v26, v26 row_ror:8 %s" % DPP)
    e("s_nop 0")
    e("v_cndmask_b32 v24, v24, v26, s[%d:%d]" % (sEX, sEX + 1))
    e("ds_write_b32 v16, v24 offset:%d" % L_CO)
    e("v_lshlrev_b32 v17, 2, v%d" % vL)
    e("s_waitcnt lgkmcnt(0)")
    e("s_barrier")
    e("s_cmp_lg_u32 s%d, 0" % sW); e("s_cbranch_scc1 L_fin")
    for k in range(4): e("ds_read2st64_b32 v[%d:%d], v17 offset0:%d offset1:%d" % (24 + 2 * k, 25 + 2 * k, L_CO // 256 + 2 * k, L_CO // 256 + 2 * k + 1))
    assert L_CO % 256 == 0
    e("s_waitcnt lgkmcnt(0)")
    for k in range(1, 8): e("v_add_f32 v24, v24, v%d" % (24 + k))
    e("v_cvt_pk_bf16_f32 v24, v24, v24"); e("v_and_b32 v24, 0xffff0000, v24")
    e("v_mul_f32 v25, %s, v24" % hx(f2u(-LOG2E)))
    e("v_exp_f32 v25, v25"); e("s_nop 0")
    e("v_add_f32 v25, 1.0, v25")
    e("v_rcp_f32 v25, v25"); e("s_nop 0")
    e("v_mul_f32 v25, v24, v25")
    e("v_cvt_pk_bf16_f32 v25, v25, v25"); e("v_and_b32 v25, 0xffff0000, v25")
    e("v_mov_b32 v26, v25"); e("s_nop 1")
    e("v_permlane32_swap_b32 v25, v26"); e("s_nop 1")
    e("v_mul_f32 v24, v24, v26")
    e("v_cvt_pk_bf16_f32 v24, v24, v24"); e("v_and_b32 v24, 0xffff0000, v24")
    e("v_lshlrev_b32 v15, 16, v15")
    e("v_add_f32 v24, v24, v15")
    e("v_cvt_pk_bf16_f32 v24, v24, v24")
    e("s_mov_b32 exec_hi, 0")
    e("buffer_store_short v24, v14, %s, 0 offen" % sr(sOUT))
    e("s_mov_b64 exec, -1")
    e.label("L_fin")
    if stamps:
        stamp()
        n = nst[0]
        e("s_cmp_lg_u32 s%d, 0" % sW); e("s_cbranch_scc1 L_end")
        e("s_add_u32 s26, s26, %d" % STAMP_OFF); e("s_addc_u32 s27, s27, 0")
        e("s_mul_i32 s%d, s2, %d" % (sT0, 8 * n)); e("v_mov_b32 v10, s%d" % sT0); e("v_mov_b32 v13, 0")
        e("s_mov_b64 exec, 1")
        for k in range(n):
            e("v_mov_b32 v12, s%d" % (sST + k))
            e("global_store_dwordx2 v10, v[12:13], s[26:27] offset:%d" % (8 * k))
            e("s_nop 1")
    e.label("L_end")
    e("s_endpgm")
    e.raw('.section .rodata,"a"'); e.raw(".p2align 6"); e.raw(".amdhsa_kernel %s_kernel" % NAME)
    for s in (".amdhsa_next_free_vgpr 256", ".amdhsa_next_free_sgpr 102", ".amdhsa_accum_offset 256",
              ".amdhsa_group_segment_fixed_size 0", ".amdhsa_kernarg_size 96", ".amdhsa_user_sgpr_count 2",
              ".amdhsa_user_sgpr_kernarg_segment_ptr 1", ".amdhsa_system_sgpr_workgroup_id_x 1"):
        e(s)
    e.raw(".end_amdhsa_kernel")
    return "\n".join(e.L) + "\n", nst[0]

def dump(e, regs, region, sWS, name):
    e("s_lshl_b32 s81, s2, 15"); e("s_add_u32 s81, s81, %d" % (WS_DBG + region * (8 << 20)))
    e("s_add_u32 s82, s26, s81"); e("s_addc_u32 s83, s27, 0")
    e("v_lshlrev_b32 v59, 6, v0")
    for k, r in enumerate(regs):
        e.vmem("global_store_dword v59, v%d, s[82:83] offset:%d" % (r, 4 * k), counted=False)
    e("s_waitcnt vmcnt(0)")

if __name__ == "__main__":
    import argparse
    ap = argparse.ArgumentParser()
    ap.add_argument("out"); ap.add_argument("--stamps", action="store_true"); ap.add_argument("--debug", action="store_true")
    ap.add_argument("--opt", default="")
    a = ap.parse_args()
    kw = eval("dict(%s)" % a.opt)
    s, n = gen(stamps=a.stamps, debug=a.debug, **kw)
    hdr = open("cdna_kernels/%s.s.ref" % NAME).read().split("; Override launch")[0]
    open(a.out, "w").write(hdr + s)
    print("wrote", a.out, "stamps", n)
```

```python
import struct, sys
NAME = "recurrent_scan__gqa_block_cached__geglu_ffn__decode"

def f2u(x): return struct.unpack("<I", struct.pack("<f", x))[0]
def hx(x): return "0x%08x" % (x & 0xffffffff)
LOG2E = 1.4426950408889634

WS_P1 = 0
WS_P2 = 0x80000
WS_Y  = 0xC0000
WS_ML = 0x180000
WS_SIZE = 0x181000
WS_DBG = 0x200000
STAMP_OFF = 300 << 20
OOB = 0x7ffffff0

L_XN = 0
L_QP = 5120
PSTR = 784
L_QB = 17664
L_F1 = 18176
L_F2 = 34560
L_ML = 42752
L_CNT = 42816
L_YP = 42880
L_CO = 63488
L_END = 65536

class Em:
    def __init__(self):
        self.L = []; self.vm = []; self.lab = 0
    def __call__(self, s): self.L.append("  " + s)
    def raw(self, s): self.L.append(s)
    def label(self, n): self.L.append(n + ":")
    def newlab(self, p):
        self.lab += 1; return "L_%s_%d" % (p, self.lab)
    def vmem(self, s, tag=None, counted=True):
        self.L.append("  " + s)
        if counted: self.vm.append(tag)
    def wait_vm(self, tag):
        idx = max(i for i, t in enumerate(self.vm) if t == tag)
        n = len(self.vm) - 1 - idx
        self("s_waitcnt vmcnt(%d)" % min(n, 63))
    def wait_all_vm(self):
        self("s_waitcnt vmcnt(0)")

def vr(a, n=4): return "v[%d:%d]" % (a, a + n - 1)
def sr(a, n=4): return "s[%d:%d]" % (a, a + n - 1)
DPP = "row_mask:0xf bank_mask:0xf"

def gen(stamps=False, debug=False, kvf="nt", wf="nt", VR=6, conf_g=14, st2_g=4, ml_g=15, nffn=240, prio=0, allw=False, sel=('b1','b2','vend','pub','fin')):
    e = Em()
    vTID, vL, vKV, vWQ, vWO, vPUB = 0, 1, 2, 3, 4, 5
    vM = 6; vA0 = 10; vA1 = 14; vACC = 18; vQF = 30; vS = 42
    vT = 58
    vCONF, vMW, vLW = 58, 60, 61
    POOL = 64
    def slot(i): return POOL + 4 * i
    sK, sV, sWQ, sWO, sX, sWG, sWU, sWD, sWS, sOUT, sDBG, sWSF = 28, 32, 36, 40, 44, 48, 52, 56, 60, 64, 68, 92
    sW, sB, sH, sP, sFS, sFR, sC5, sRR, sSO, sT0, sT1, sT2 = 72, 73, 74, 75, 76, 77, 78, 79, 80, 81, 82, 83
    sEX = 84; sVAL = 86; sCNT = 88; sCI = 89; sPIDX = 90; sWQO = 91
    sST = 96
    nst = [0]
    def stamp(name):
        if not stamps or name not in sel: return
        e("s_memrealtime s[%d:%d]" % (sEX, sEX + 1))
        e("s_waitcnt lgkmcnt(0)")
        e("s_mov_b32 s%d, s%d" % (sST + nst[0], sEX))
        nst[0] += 1

    e.raw("; @launch grid=(256,1,1) block=(512,1,1) lds=%d" % L_END)
    e.raw('.amdgcn_target "amdgcn-amd-amdhsa--gfx950"')
    e.raw(".text"); e.raw(".globl %s_kernel" % NAME); e.raw(".p2align 8"); e.raw(".type %s_kernel,@function" % NAME)
    e.label("%s_kernel" % NAME)
    e("s_cmp_ge_u32 s2, 256"); e("s_cbranch_scc1 L_end")
    e("s_load_dwordx16 s[4:19], s[0:1], 0")
    e("s_load_dwordx8 s[20:27], s[0:1], 64")
    if prio: e("s_setprio 3")
    if stamps:
        e("s_memrealtime s[%d:%d]" % (sST, sST + 1)); nst[0] = 1
    e("v_and_b32 v%d, 63, v0" % vL)
    e("v_lshrrev_b32 v58, 6, v0")
    e("v_lshrrev_b32 v59, 3, v%d" % vL)
    e("v_and_b32 v60, 7, v%d" % vL)
    e("v_readfirstlane_b32 s%d, v58" % sW)
    e("v_mul_u32_u24 v%d, 384, v59" % vKV)
    e("v_lshl_add_u32 v%d, v60, 4, v%d" % (vKV, vKV))
    e("v_mul_u32_u24 v61, 3072, v58")
    e("v_add_u32 v%d, v%d, v61" % (vKV, vKV))
    e("v_mul_u32_u24 v%d, 12288, v59" % vWQ)
    e("v_lshl_add_u32 v%d, v60, 4, v%d" % (vWQ, vWQ))
    e("v_lshrrev_b32 v61, 5, v%d" % vL)
    e("v_mul_u32_u24 v61, 1280, v61")
    e("v_and_b32 v63, 31, v%d" % vL)
    e("v_lshl_add_u32 v62, v63, 4, v61")
    e("v_lshl_add_u32 v63, v63, 3, v61")
    e("s_and_b32 s%d, s2, 7" % sT0)
    e("s_lshr_b32 s%d, s2, 3" % sT1)
    e("s_lshr_b32 s%d, s%d, 3" % (sT2, sT1))
    e("s_lshl_b32 s%d, s%d, 2" % (sH, sT0))
    e("s_add_u32 s%d, s%d, s%d" % (sH, sH, sT2))
    e("s_lshr_b32 s%d, s%d, 2" % (sB, sT1))
    e("s_and_b32 s%d, s%d, 1" % (sB, sB))
    e("s_and_b32 s%d, s%d, 3" % (sT1, sT1))
    e("s_lshl_b32 s%d, s%d, 2" % (sP, sH))
    e("s_add_u32 s%d, s%d, s%d" % (sP, sP, sT1))
    e("s_lshl_b32 s%d, s%d, 7" % (sT0, sB))
    e("s_add_u32 s%d, s%d, s%d" % (sT0, sT0, sP))
    e("s_mul_i32 s%d, s%d, 393216" % (sT0, sT0))
    e("s_mov_b32 s%d, 393216" % (sK + 2)); e("s_mov_b32 s%d, 0x20000" % (sK + 3))
    e("s_mov_b32 s%d, 2560" % (sX + 2)); e("s_mov_b32 s%d, 0x20000" % (sX + 3))
    e("s_waitcnt lgkmcnt(0)")
    e("s_mov_b32 s%d, s4" % sX); e("s_mov_b32 s%d, s5" % (sX + 1))
    e("s_add_u32 s%d, s6, s%d" % (sK, sT0)); e("s_addc_u32 s%d, s7, 0" % (sK + 1))
    e.vmem("buffer_load_dwordx4 %s, v62, %s, 0 offen" % (vr(18), sr(sX)), "x")
    e.vmem("buffer_load_dwordx4 %s, v62, %s, 0 offen offset:512" % (vr(22), sr(sX)), "x")
    e.vmem("buffer_load_dwordx2 %s, v63, %s, 0 offen offset:1024" % (vr(26, 2), sr(sX)), "x")

    kslot = {}; wslot = {}; vslot = {}; oslot = {}
    def issue_kv(srd, g, slots, tag):
        if g * 24576 <= 64: so = "0"
        else:
            e("s_mov_b32 s%d, %d" % (sSO, g * 24576)); so = "s%d" % sSO
        for t in range(3):
            e.vmem("buffer_load_dwordx4 %s, v%d, %s, %s offen offset:%d %s" % (vr(slot(slots[t])), vKV, sr(srd), so, t * 128, kvf), tag)
    def issue_k(g, slots): kslot[g] = slots; issue_kv(sK, g, slots, "K%d" % g)
    def issue_v(g, slots): vslot[g] = slots; issue_kv(sV, g, slots, "V%d" % g)
    def issue_wq(i, slots):
        wslot[i] = slots
        e("s_add_u32 s%d, s%d, %d" % (sSO, sWQO, i * 8 * 12288))
        for t in range(3):
            e.vmem("buffer_load_dwordx4 %s, v%d, %s, s%d offen offset:%d %s" % (vr(slot(slots[t])), vWQ, sr(sWQ), sSO, t * 128, wf), "W%d" % i)
    def issue_wo(n, slots):
        for t in range(3):
            q = 3 * n + t; i, seg = q // 5, q % 5
            oslot[q] = slots[t]
            if i == 0: so = "0"
            else:
                e("s_mov_b32 s%d, %d" % (sSO, i * 5120)); so = "s%d" % sSO
            e.vmem("buffer_load_dwordx4 %s, v%d, %s, %s offen offset:%d %s" % (vr(slot(slots[t])), vWO, sr(sWO), so, seg * 256, wf), "O%d" % n)

    issue_k(0, [0, 1, 2])
    e("s_add_u32 s%d, s8, s%d" % (sV, sT0)); e("s_addc_u32 s%d, s9, 0" % (sV + 1))
    e("s_mov_b32 s%d, 393216" % (sV + 2)); e("s_mov_b32 s%d, 0x20000" % (sV + 3))
    e("s_mul_i32 s%d, s%d, 384" % (sT0, sH))
    e("s_add_u32 s%d, s10, s%d" % (sWQ, sT0)); e("s_addc_u32 s%d, s11, 0" % (sWQ + 1))
    e("s_sub_u32 s%d, %d, s%d" % (sWQ + 2, 640 * 12288, sT0)); e("s_mov_b32 s%d, 0x20000" % (sWQ + 3))
    e("s_mul_i32 s%d, s%d, %d" % (sWQO, sW, 80 * 12288))
    issue_wq(0, [15, 16, 17]); issue_wq(1, [18, 19, 20])
    issue_k(1, [3, 4, 5])
    e("s_mul_i32 s%d, s%d, 245760" % (sT0, sH))
    e("s_add_u32 s%d, s12, s%d" % (sWO, sT0)); e("s_addc_u32 s%d, s13, 0" % (sWO + 1))
    e("s_mov_b32 s%d, 245760" % (sWO + 2)); e("s_mov_b32 s%d, 0x20000" % (sWO + 3))
    e("s_mov_b32 s%d, s26" % sWS); e("s_mov_b32 s%d, s27" % (sWS + 1))
    e("s_mov_b32 s%d, %d" % (sWS + 2, WS_SIZE)); e("s_mov_b32 s%d, 0x20000" % (sWS + 3))
    e("s_mov_b32 s%d, s22" % sOUT); e("s_mov_b32 s%d, s23" % (sOUT + 1))
    e("s_mov_b32 s%d, 2560" % (sOUT + 2)); e("s_mov_b32 s%d, 0x20000" % (sOUT + 3))
    e("s_mov_b32 s%d, s24" % sDBG); e("s_mov_b32 s%d, s25" % (sDBG + 1))
    e("s_mov_b32 s%d, 256" % (sDBG + 2)); e("s_mov_b32 s%d, 0x20000" % (sDBG + 3))
    e("s_mul_i32 s%d, s2, 5462" % sFR); e("s_lshr_b32 s%d, s%d, 16" % (sFR, sFR))
    e("s_mul_i32 s%d, s%d, 12" % (sT0, sFR)); e("s_sub_u32 s%d, s2, s%d" % (sFS, sT0))
    e("s_mul_i32 s%d, s%d, 52" % (sRR, sFR)); e("s_lshr_b32 s%d, s%d, 8" % (sRR, sRR))
    e("s_mul_i32 s%d, s%d, 5" % (sT0, sRR)); e("s_sub_u32 s%d, s%d, s%d" % (sC5, sFR, sT0))
    e("s_lshl_b32 s%d, s%d, 2" % (sPIDX, sFS)); e("s_add_u32 s%d, s%d, s%d" % (sPIDX, sPIDX, sRR))
    e("s_cmp_lt_u32 s2, %d" % nffn)
    e("s_cselect_b32 s%d, %d, 0" % (sWG + 2, 640 * 3072))
    e("s_cselect_b32 s%d, %d, 0" % (sWU + 2, 640 * 3072))
    e("s_cselect_b32 s%d, %d, 0" % (sWD + 2, 1536 * 1280))
    e("s_cselect_b32 s%d, %d, 0" % (sWSF + 2, WS_Y))
    e("s_mov_b32 s%d, s16" % sWG); e("s_mov_b32 s%d, s17" % (sWG + 1)); e("s_mov_b32 s%d, 0x20000" % (sWG + 3))
    e("s_mov_b32 s%d, s18" % sWU); e("s_mov_b32 s%d, s19" % (sWU + 1)); e("s_mov_b32 s%d, 0x20000" % (sWU + 3))
    e("s_mov_b32 s%d, s20" % sWD); e("s_mov_b32 s%d, s21" % (sWD + 1)); e("s_mov_b32 s%d, 0x20000" % (sWD + 3))
    e("s_mov_b32 s%d, s26" % sWSF); e("s_mov_b32 s%d, s27" % (sWSF + 1)); e("s_mov_b32 s%d, 0x20000" % (sWSF + 3))
    e("s_mov_b32 s%d, 0x00ff00ff" % sVAL); e("s_mov_b32 s%d, 0xff00ff00" % (sVAL + 1))
    e("v_lshrrev_b32 v58, 2, v0")
    e("s_lshl_b32 s%d, s%d, 5" % (sT0, sFS))
    e("v_add_u32 v58, s%d, v58" % sT0)
    e("v_mul_u32_u24 v58, 1280, v58")
    e("v_and_b32 v59, 3, v0")
    e("v_lshl_add_u32 v58, v59, 4, v58")
    e("s_lshl_b32 s%d, s%d, 6" % (sT0, sFR))
    e("v_add_u32 v58, s%d, v58" % sT0)
    e("v_lshrrev_b32 v59, 3, v%d" % vL)
    e("v_mul_u32_u24 v59, 6144, v59")
    e("v_and_b32 v60, 7, v%d" % vL)
    e("v_lshl_add_u32 v59, v60, 4, v59")
    e("s_mul_i32 s%d, s%d, %d" % (sT0, sC5, 8 * 6144))
    e("s_lshl_b32 s%d, s%d, 7" % (sT1, sPIDX))
    e("s_add_u32 s%d, s%d, s%d" % (sT0, sT0, sT1)); e("s_add_u32 s%d, s%d, %d" % (sT0, sT0, WS_P2))
    e("v_add_u32 v59, s%d, v59" % sT0)
    e("v_cmp_gt_u32 vcc, 128, v0")
    e("s_cmp_lt_u32 s2, %d" % nffn)
    e("s_nop 0")
    e("v_cndmask_b32 v58, v59, v58, vcc")
    e("s_cselect_b32 s%d, 0, %d" % (sT2, OOB))
    e("v_or_b32 v58, s%d, v58" % sT2)
    e("v_subrev_u32 v59, 192, v0")
    e("v_lshrrev_b32 v59, 3, v59")
    e("v_lshlrev_b32 v59, 14, v59")
    e("v_lshl_add_u32 v59, v60, 4, v59")
    e("s_mul_i32 s%d, s%d, %d" % (sT0, sB, 20 * 16384))
    e("s_lshl_b32 s%d, s%d, 7" % (sT1, sP))
    e("s_add_u32 s%d, s%d, s%d" % (sT0, sT0, sT1)); e("s_add_u32 s%d, s%d, %d" % (sT0, sT0, WS_Y))
    e("v_add_u32 v59, s%d, v59" % sT0)
    e("v_cmp_gt_u32 vcc, 192, v0")
    e("s_lshl_b32 s%d, s%d, 7" % (sT0, sB)); e("s_add_u32 s%d, s%d, s%d" % (sT0, sT0, sP))
    e("v_cndmask_b32 v58, v59, v58, vcc")
    e("s_lshl_b32 s%d, s%d, 4" % (sT0, sT0)); e("s_add_u32 s%d, s%d, %d" % (sT0, sT0, WS_ML))
    e("v_mov_b32 v59, s%d" % sT0)
    e("v_cmp_gt_u32 vcc, 352, v0")
    e("s_nop 1")
    e("v_cndmask_b32 v58, v59, v58, vcc")
    e("v_mov_b32 v59, %d" % OOB)
    e("v_cmp_gt_u32 vcc, 353, v0")
    e("v_mov_b32 v10, -1"); e("v_mov_b32 v11, -1")
    e("v_cndmask_b32 v%d, v59, v58, vcc" % vPUB)
    e("v_mov_b32 v12, -1"); e("v_mov_b32 v13, -1")
    e.vmem("buffer_store_dwordx4 v[10:13], v%d, %s, 0 offen sc1" % (vPUB, sr(sWS)), "clr")
    issue_wq(2, [21, 22, 23]); issue_wq(3, [24, 25, 26])
    issue_k(2, [6, 7, 8])
    issue_wq(4, [27, 28, 29]); issue_wq(5, [30, 31, 32])
    issue_k(3, [9, 10, 11])
    issue_wq(6, [33, 34, 35]); issue_wq(7, [36, 37, 38])
    issue_k(4, [12, 13, 14])
    issue_wq(8, [39, 40, 41]); issue_wq(9, [42, 43, 44])
    e("v_lshrrev_b32 v58, 4, v%d" % vL)
    e("v_and_b32 v59, 15, v%d" % vL)
    e("v_mul_u32_u24 v60, 3072, v58")
    e("v_lshl_add_u32 v60, v59, 4, v60")
    e("s_lshl_b32 s%d, s%d, 3" % (sT0, sFR)); e("s_add_u32 s%d, s%d, s%d" % (sT0, sT0, sW))
    e("s_mul_i32 s%d, s%d, %d" % (sT0, sT0, 4 * 3072))
    e("s_lshl_b32 s%d, s%d, 8" % (sT1, sFS)); e("s_add_u32 s%d, s%d, s%d" % (sSO, sT0, sT1))
    e.vmem("buffer_load_dwordx4 %s, v60, %s, s%d offen %s" % (vr(slot(45)), sr(sWG), sSO, wf), "F1")
    e.vmem("buffer_load_dwordx4 %s, v60, %s, s%d offen %s" % (vr(slot(46)), sr(sWU), sSO, wf), "F1")
    if prio == 1: e("s_setprio 0")
    if prio == 2: e("s_setprio 2")
    stamp('iss')
    e("v_mul_u32_u24 v%d, 1280, v58" % vWO)
    e("v_lshl_add_u32 v%d, v59, 4, v%d" % (vWO, vWO))
    e("s_mul_i32 s%d, s%d, 30720" % (sT0, sW))
    e("v_add_u32 v%d, s%d, v%d" % (vWO, sT0, vWO))
    e("v_and_b32 v58, 1, v%d" % vL)
    e("v_lshlrev_b32 v58, 4, v58")
    e("v_mov_b32 v59, 0xffff")
    e("v_lshlrev_b32 v58, v58, v59")
    e("v_bfe_u32 v59, v%d, 1, 2" % vL)
    for r in range(4):
        e("v_cmp_eq_u32 vcc, %d, v59" % r)
        e("s_nop 1")
        e("v_cndmask_b32 v%d, 0, v58, vcc" % (vM + r))

    e.wait_vm("x")
    X = 28
    for r in range(10):
        e("v_lshlrev_b32 v%d, 16, v%d" % (X + 2 * r, 18 + r))
        e("v_and_b32 v%d, 0xffff0000, v%d" % (X + 2 * r + 1, 18 + r))
    def half_allreduce(v, t, op="v_add_f32"):
        for pat in ("quad_perm:[1,0,3,2]", "quad_perm:[2,3,0,1]", "row_half_mirror", "row_mirror"):
            e("s_nop 1")
            e("%s_dpp v%d, v%d, v%d %s %s" % (op, v, v, v, pat, DPP))
        e("v_mov_b32 v%d, v%d" % (t, v))
        e("s_nop 1")
        e("v_permlane16_swap_b32 v%d, v%d" % (v, t))
        e("s_nop 1")
        e("%s v%d, v%d, v%d" % (op, v, v, t))
    for r in range(4): e("v_add_f32 v%d, v%d, v%d" % (48 + r, X + r, X + 4 + r))
    for k in range(8, 20): e("v_add_f32 v%d, v%d, v%d" % (48 + k % 4, 48 + k % 4, X + k))
    e("v_add_f32 v48, v48, v49"); e("v_add_f32 v50, v50, v51"); e("v_add_f32 v48, v48, v50")
    half_allreduce(48, 49)
    e("v_mul_f32 v48, %s, v48" % hx(f2u(1.0 / 640)))
    for k in range(20):
        e("v_sub_f32 v%d, v%d, v48" % (18 + k % 4, X + k))
        if k < 4: e("v_mul_f32 v%d, v%d, v%d" % (52 + k, 18 + k, 18 + k))
        else: e("v_fmac_f32 v%d, v%d, v%d" % (52 + k % 4, 18 + k % 4, 18 + k % 4))
    e("v_add_f32 v52, v52, v53"); e("v_add_f32 v54, v54, v55"); e("v_add_f32 v52, v52, v54")
    half_allreduce(52, 53)
    e("v_mul_f32 v52, %s, v52" % hx(f2u(1.0 / 640)))
    e("v_cvt_pk_bf16_f32 v48, v48, v52")
    e("v_and_b32 v52, 0xffff0000, v48")
    e("v_lshlrev_b32 v48, 16, v48")
    e("v_add_f32 v52, %s, v52" % hx(f2u(1e-5)))
    e("v_cvt_pk_bf16_f32 v52, v52, v52")
    e("v_and_b32 v52, 0xffff0000, v52")
    e("v_sqrt_f32 v52, v52")
    e("s_nop 0")
    e("v_cvt_pk_bf16_f32 v52, v52, v52")
    e("v_and_b32 v52, 0xffff0000, v52")
    e("v_rcp_f32 v53, v52")
    for k in range(0, 20, 2):
        a, b2 = X + k, X + k + 1
        e("v_sub_f32 v%d, v%d, v48" % (a, a)); e("v_sub_f32 v%d, v%d, v48" % (b2, b2))
        e("v_cvt_pk_bf16_f32 v18, v%d, v%d" % (a, b2))
        e("v_lshlrev_b32 v%d, 16, v18" % a); e("v_and_b32 v%d, 0xffff0000, v18" % b2)
        e("v_mul_f32 v19, v%d, v53" % a); e("v_mul_f32 v20, v%d, v53" % b2)
        e("v_fma_f32 v%d, -v19, v52, v%d" % (a, a)); e("v_fma_f32 v%d, -v20, v52, v%d" % (b2, b2))
        e("v_fmac_f32 v19, v%d, v53" % a); e("v_fmac_f32 v20, v%d, v53" % b2)
        e("v_cvt_pk_bf16_f32 v%d, v19, v19" % a); e("v_cvt_pk_bf16_f32 v%d, v20, v20" % b2)
    e("v_lshlrev_b32 v58, 1, v62"); e("v_lshlrev_b32 v59, 1, v63")
    e("ds_write_b128 v58, %s offset:%d" % (vr(X), L_XN))
    e("ds_write_b128 v58, %s offset:%d" % (vr(X + 4), L_XN + 16))
    e("ds_write_b128 v58, %s offset:%d" % (vr(X + 8), L_XN + 1024))
    e("ds_write_b128 v58, %s offset:%d" % (vr(X + 12), L_XN + 1024 + 16))
    e("ds_write_b128 v59, %s offset:%d" % (vr(X + 16), L_XN + 2048))
    e("s_mul_i32 s%d, s%d, 2560" % (sT0, sB)); e("s_mul_i32 s%d, s%d, 320" % (sT1, sW)); e("s_add_u32 s%d, s%d, s%d" % (sT0, sT0, sT1))
    e("v_lshrrev_b32 v58, 3, v%d" % vL)
    e("v_lshlrev_b32 v59, 2, v58")
    e("v_add_u32 v59, s%d, v59" % sT0)
    e("v_and_b32 v58, 1, v58"); e("v_mul_u32_u24 v58, 2560, v58")
    e("v_lshrrev_b32 v60, 4, v%d" % vL); e("v_lshl_add_u32 v58, v60, 2, v58")
    e("s_lshl_b32 s%d, s%d, 3" % (sT0, sFR)); e("s_add_u32 s%d, s%d, s%d" % (sT0, sT0, sW)); e("s_lshl_b32 s%d, s%d, 4" % (sT0, sT0))
    e("s_min_u32 s%d, s%d, %d" % (sT0, sT0, 2544))
    e("v_add_u32 v58, s%d, v58" % sT0)
    e("s_waitcnt lgkmcnt(0)")
    for i in range(10): e("ds_read_b32 v%d, v59 offset:%d" % (vS + i, L_XN + 32 * i))
    e("ds_read_b32 v%d, v58 offset:%d" % (vS + 10, L_XN))
    e("v_mov_b32 v58, %d" % L_CNT); e("v_mov_b32 v59, 0")
    e("ds_write_b32 v58, v59")
    e("s_waitcnt lgkmcnt(0)")

    stamp('ln')
    def afrag(dst, src, mod=""):
        for r in range(4): e("v_and_b32 v%d, v%d, v%d" % (dst + r, src, vM + r))
    for i in range(10):
        A = vA0 if i % 2 == 0 else vA1
        afrag(A, vS + i)
        e("s_nop 0")
        e.wait_vm("W%d" % i)
        stamp('w%d' % i)
        for t in range(3):
            c = "0" if i == 0 else vr(vACC + 4 * t)
            e("v_mfma_f32_16x16x32_bf16 %s, %s, %s, %s" % (vr(vACC + 4 * t), vr(A), vr(slot(wslot[i][t])), c))
        issue_k(5 + i, wslot[i])
    afrag(vA0, vS + 10)
    e("s_nop 0")
    e.wait_vm("F1")
    e("v_mfma_f32_16x16x32_bf16 %s, %s, %s, 0" % (vr(vQF), vr(vA0), vr(slot(45))))
    e("v_mfma_f32_16x16x32_bf16 %s, %s, %s, 0" % (vr(vQF + 4), vr(vA0), vr(slot(46))))
    issue_k(15, [45, 46, 47])
    e("v_lshrrev_b32 v58, 5, v%d" % vL); e("v_mul_u32_u24 v58, %d, v58" % PSTR)
    e("v_and_b32 v59, 7, v%d" % vL); e("v_lshl_add_u32 v58, v59, 5, v58")
    e("v_and_b32 v59, 16, v%d" % vL); e("v_add_u32 v58, v58, v59")
    e("s_mul_i32 s%d, s%d, %d" % (sT0, sW, 2 * PSTR))
    e("v_add_u32 v62, s%d, v58" % sT0)
    e("v_lshrrev_b32 v58, 5, v%d" % vL); e("v_lshlrev_b32 v58, 9, v58")
    e("v_and_b32 v60, 15, v%d" % vL); e("v_lshl_add_u32 v58, v60, 5, v58")
    e("v_add_u32 v63, v58, v59")
    e("s_lshl_b32 s%d, s%d, 11" % (sT0, sW))
    e("v_add_u32 v58, s%d, v63" % sT0)
    e("s_mov_b64 exec, %s" % sr(sVAL, 2))
    for t in range(3): e("ds_write_b128 v62, %s offset:%d" % (vr(vACC + 4 * t), L_QP + t * 256))
    e("s_mov_b64 exec, -1")
    e("ds_write_b128 v58, %s offset:%d" % (vr(vQF), L_F1))
    e("ds_write_b128 v58, %s offset:%d" % (vr(vQF + 4), L_F1 + 1024))
    e("s_waitcnt lgkmcnt(0)")
    e("s_barrier")
    stamp('b1')
    lab = e.newlab("noatom")
    e("s_cmp_lg_u32 s%d, 0" % sW); e("s_cbranch_scc1 %s" % lab)
    e("s_mov_b64 exec, 1")
    e("v_mov_b32 v58, 1")
    e.vmem("buffer_atomic_add v58, off, %s, 0" % sr(sDBG), counted=False)
    e("s_mov_b64 exec, -1")
    e.label(lab)
    e("v_lshlrev_b32 v58, 4, v%d" % vL)
    for pp in range(4): e("ds_read_b128 %s, v58 offset:%d" % (vr(vS + 4 * pp), L_QP + pp * PSTR))
    for pp in range(4, 16):
        e("s_waitcnt lgkmcnt(3)")
        src = vS + 4 * (pp % 4)
        if pp == 4:
            for r in range(4): e("v_mov_b32 v%d, v%d" % (vQF + r, src + r))
        else:
            for r in range(4): e("v_add_f32 v%d, v%d, v%d" % (vQF + r, vQF + r, src + r))
        e("ds_read_b128 %s, v58 offset:%d" % (vr(src), L_QP + pp * PSTR))
    for pp in range(4):
        e("s_waitcnt lgkmcnt(%d)" % (3 - pp))
        for r in range(4): e("v_add_f32 v%d, v%d, v%d" % (vQF + r, vQF + r, vS + 4 * pp + r))
    e("v_cvt_pk_bf16_f32 v%d, v%d, v%d" % (vQF, vQF, vQF + 1))
    e("v_cvt_pk_bf16_f32 v%d, v%d, v%d" % (vQF + 1, vQF + 2, vQF + 3))
    e("v_lshlrev_b32 v58, 3, v%d" % vL)
    e("ds_write_b64 v58, %s offset:%d" % (vr(vQF, 2), L_QB))
    e("v_and_b32 v58, 7, v%d" % vL); e("v_lshlrev_b32 v58, 4, v58")
    e("s_waitcnt lgkmcnt(0)")
    for t in range(3): e("ds_read_b128 %s, v58 offset:%d" % (vr(vQF + 4 * t), L_QB + t * 128))
    lab = e.newlab("nof1")
    e("s_cmp_ge_u32 s%d, 2" % sW); e("s_cbranch_scc1 %s" % lab)
    e("v_and_b32 v58, 3, v0"); e("v_lshlrev_b32 v58, 9, v58")
    e("v_lshrrev_b32 v59, 2, v0"); e("v_lshl_add_u32 v58, v59, 4, v58")
    for pp in range(4): e("ds_read_b128 %s, v58 offset:%d" % (vr(vS + 4 * pp), L_F1 + pp * 2048))
    e("s_waitcnt lgkmcnt(0)")
    for r in range(4): e("v_add_f32 v%d, v%d, v%d" % (vACC + r, vS + r, vS + 4 + r))
    for r in range(4): e("v_add_f32 v%d, v%d, v%d" % (vACC + r, vACC + r, vS + 8 + r))
    for r in range(4): e("v_add_f32 v%d, v%d, v%d" % (vACC + r, vACC + r, vS + 12 + r))
    for pp in range(4): e("ds_read_b128 %s, v58 offset:%d" % (vr(vS + 4 * pp), L_F1 + (4 + pp) * 2048))
    e("s_waitcnt lgkmcnt(0)")
    for pp in range(4):
        for r in range(4): e("v_add_f32 v%d, v%d, v%d" % (vACC + r, vACC + r, vS + 4 * pp + r))
    for r in range(4): e("v_min_u32 v%d, -2, v%d" % (vACC + r, vACC + r))
    e.vmem("buffer_store_dwordx4 %s, v%d, %s, 0 offen sc1" % (vr(vACC), vPUB, sr(sWS)), counted=False)
    e.label(lab)
    for g in range(16): e("v_mov_b32 v%d, 0" % (vS + g))
    e("s_waitcnt lgkmcnt(0)")
    if debug:
        dump(e, [vQF + i for i in range(12)], 0, sWS, "q")

    if prio == 2: e("s_setprio 1")
    held = []
    nwo = 0
    for g in range(16):
        e.wait_vm("K%d" % g)
        stamp('k%d' % g)
        for t in range(3):
            for r in range(4):
                e("v_dot2c_f32_bf16 v%d, v%d, v%d" % (vS + g, slot(kslot[g][t]) + r, vQF + 4 * t + r))
        if g < 2 * VR:
            if g % 2 == 0: issue_v(g // 2, kslot[g])
            else: issue_wo(nwo, kslot[g]); nwo += 1
        else: held.append(kslot[g])
        if g == conf_g:
            e.vmem("buffer_load_dword v%d, off, %s, 0 sc1" % (vCONF, sr(sDBG)), "conf")
    e("s_nop 2")
    for pat in ("quad_perm:[1,0,3,2]", "quad_perm:[2,3,0,1]", "row_half_mirror"):
        for g in range(16): e("v_add_f32_dpp v%d, v%d, v%d %s %s" % (vS + g, vS + g, vS + g, pat, DPP))
    sc = hx(f2u(192 ** -0.5))
    for g in range(0, 16, 2):
        a, b2, t = vS + g, vS + g + 1, vQF + (g // 2)
        e("v_cvt_pk_bf16_f32 v%d, v%d, v%d" % (t, a, b2))
        e("v_lshlrev_b32 v%d, 16, v%d" % (a, t)); e("v_and_b32 v%d, 0xffff0000, v%d" % (b2, t))
        e("v_mul_f32 v%d, %s, v%d" % (a, sc, a)); e("v_mul_f32 v%d, %s, v%d" % (b2, sc, b2))
        e("v_cvt_pk_bf16_f32 v%d, v%d, v%d" % (t, a, b2))
        e("v_lshlrev_b32 v%d, 16, v%d" % (a, t)); e("v_and_b32 v%d, 0xffff0000, v%d" % (b2, t))
    if debug:
        dump(e, [vS + i for i in range(16)], 1, sWS, "s")
    e("v_max3_f32 v%d, v%d, v%d, v%d" % (vMW, vS, vS + 1, vS + 2))
    for g in range(3, 15, 2): e("v_max3_f32 v%d, v%d, v%d, v%d" % (vMW, vMW, vS + g, vS + g + 1))
    e("v_max_f32 v%d, v%d, v%d" % (vMW, vMW, vS + 15))
    def group_allreduce(v, t, op):
        e("s_nop 1")
        e("%s_dpp v%d, v%d, v%d row_ror:8 %s" % (op, v, v, v, DPP))
        e("v_mov_b32 v%d, v%d" % (t, v)); e("s_nop 1")
        e("v_permlane16_swap_b32 v%d, v%d" % (v, t)); e("s_nop 1")
        e("%s v%d, v%d, v%d" % (op, v, v, t))
        e("v_mov_b32 v%d, v%d" % (t, v)); e("s_nop 1")
        e("v_permlane32_swap_b32 v%d, v%d" % (v, t)); e("s_nop 1")
        e("%s v%d, v%d, v%d" % (op, v, v, t))
    group_allreduce(vMW, 59, "v_max_f32")
    l2e = hx(f2u(LOG2E))
    for g in range(16): e("v_sub_f32 v%d, v%d, v%d" % (vS + g, vS + g, vMW))
    for g in range(16): e("v_mul_f32 v%d, %s, v%d" % (vS + g, l2e, vS + g))
    for g in range(16): e("v_exp_f32 v%d, v%d" % (vS + g, vS + g))
    e("v_add_f32 v%d, v%d, v%d" % (vLW, vS, vS + 1)); e("v_add_f32 v59, v%d, v%d" % (vS + 2, vS + 3))
    for g in range(4, 16, 2):
        e("v_add_f32 v%d, v%d, v%d" % (vLW, vLW, vS + g)); e("v_add_f32 v59, v59, v%d" % (vS + g + 1))
    e("v_add_f32 v%d, v%d, v59" % (vLW, vLW))
    group_allreduce(vLW, 59, "v_add_f32")
    e("s_lshl_b32 s%d, s%d, 3" % (sT0, sW)); e("v_mov_b32 v59, s%d" % sT0)
    e("ds_write_b64 v59, v[%d:%d] offset:%d" % (vMW, vLW, L_ML))
    e("v_and_b32 v59, 7, v%d" % vL); e("v_lshlrev_b32 v59, 3, v59")
    e("s_waitcnt lgkmcnt(0)")
    e("s_barrier")
    e("ds_read_b64 v[30:31], v59 offset:%d" % L_ML)
    e("s_waitcnt lgkmcnt(0)")
    e("v_mov_b32 v32, v30")
    for pat in ("quad_perm:[1,0,3,2]", "quad_perm:[2,3,0,1]", "row_half_mirror"):
        e("s_nop 1"); e("v_max_f32_dpp v32, v32, v32 %s %s" % (pat, DPP))
    e("v_sub_f32 v30, v30, v32"); e("v_sub_f32 v33, v%d, v32" % vMW)
    e("v_mul_f32 v30, %s, v30" % l2e); e("v_mul_f32 v33, %s, v33" % l2e)
    e("v_exp_f32 v30, v30"); e("v_exp_f32 v33, v33")
    e("s_nop 0")
    e("v_mul_f32 v30, v30, v31")
    for pat in ("quad_perm:[1,0,3,2]", "quad_perm:[2,3,0,1]", "row_half_mirror"):
        e("s_nop 1"); e("v_add_f32_dpp v30, v30, v30 %s %s" % (pat, DPP))
    e("v_rcp_f32 v31, v30")
    e("v_mov_b32 v%d, v32" % vMW); e("v_mov_b32 v%d, v30" % vLW)
    e("v_mul_f32 v33, v33, v31")
    for g in range(16): e("v_mul_f32 v%d, v%d, v33" % (vS + g, vS + g))
    for g in range(16): e("v_cvt_pk_bf16_f32 v%d, v%d, v%d" % (vS + g, vS + g, vS + g))
    e("v_min_u32 v%d, -2, v%d" % (vMW, vMW)); e("v_min_u32 v%d, -2, v%d" % (vLW, vLW))
    stamp('b2')
    e.wait_vm("conf")
    lab = e.newlab("confok"); lp = e.newlab("confloop")
    e("s_mov_b32 s%d, 0x10000" % sCNT)
    e.label(lp)
    e("v_readfirstlane_b32 s%d, v%d" % (sT0, vCONF))
    e("s_nop 3")
    e("s_cmp_ge_u32 s%d, 256" % sT0); e("s_cbranch_scc1 %s" % lab)
    e("s_sub_u32 s%d, s%d, 1" % (sCNT, sCNT)); e("s_cbranch_scc1 %s" % lab)
    e("s_sleep 4")
    e.vmem("buffer_load_dword v%d, off, %s, 0 sc1" % (vCONF, sr(sDBG)), counted=False)
    e("s_waitcnt vmcnt(0)")
    e("s_branch %s" % lp)
    e.label(lab)
    vWD, vP1 = 30, 34
    e("s_lshl_b32 s%d, s%d, 2" % (sT0, sFS)); e("s_add_u32 s%d, s%d, s%d" % (sT0, sT0, sRR))
    e("s_lshl_b32 s%d, s%d, 3" % (sT0, sT0)); e("s_add_u32 s%d, s%d, s%d" % (sT0, sT0, sW))
    e("s_mul_i32 s%d, s%d, 1280" % (sT1, sT0))
    e("v_lshlrev_b32 v59, 2, v%d" % vL); e("v_add_u32 v59, s%d, v59" % sT1)
    def issue_p1(counted):
        for j in range(5):
            e.vmem("buffer_load_dword v%d, v59, %s, 0 offen offset:%d sc1" % (vP1 + j, sr(sWSF), 256 * j), "P1", counted=counted)
    issue_p1(True)
    e("s_mul_i32 s%d, s%d, 5120" % (sT1, sT0))
    e("s_lshl_b32 s%d, s%d, 8" % (sT2, sC5)); e("s_add_u32 s%d, s%d, s%d" % (sT1, sT1, sT2))
    e("s_mul_i32 s%d, s%d, 30720" % (sT2, sW))
    e("v_subrev_u32 v%d, s%d, v%d" % (vCONF, sT2, vWO))
    e.vmem("buffer_load_dwordx4 %s, v%d, %s, s%d offen %s" % (vr(vWD), vCONF, sr(sWD), sT1, wf), "WD")

    if prio == 2: e("s_setprio 0")
    for g in range(16):
        A = vA0 if g % 2 == 0 else vA1
        afrag(A, vS + g)
        e("s_nop 0")
        e.wait_vm("V%d" % g)
        stamp('v%d' % g)
        if g == ml_g:
            lab = e.newlab("noml")
            e("s_cmp_lg_u32 s%d, 5" % sW); e("s_cbranch_scc1 %s" % lab)
            e("s_mov_b32 exec_lo, 0"); e("s_mov_b32 exec_hi, 1")
            e.vmem("buffer_store_dwordx2 v[%d:%d], v%d, %s, 0 offen sc1" % (vMW, vLW, vPUB, sr(sWS)), counted=False)
            e("s_mov_b64 exec, -1")
            e.label(lab)
        for t in range(3):
            c = "0" if g == 0 else vr(vACC + 4 * t)
            e("v_mfma_f32_16x16x32_bf16 %s, %s, %s, %s" % (vr(vACC + 4 * t), vr(A), vr(slot(vslot[g][t])), c))
        if g + VR < 16: issue_v(g + VR, vslot[g])
        if held: issue_wo(nwo, held.pop(0)); nwo += 1
        if g == st2_g:
            e.wait_vm("WD")
            lab = e.newlab("p1ok"); lp = e.newlab("p1loop")
            e("s_mov_b32 s%d, 0x10000" % sCNT)
            e.label(lp)
            e("v_max3_u32 v39, v%d, v%d, v%d" % (vP1, vP1 + 1, vP1 + 2))
            e("v_max3_u32 v39, v39, v%d, v%d" % (vP1 + 3, vP1 + 4))
            e("v_cmp_eq_u32 vcc, -1, v39")
            e("s_nop 1")
            e("s_cbranch_vccz %s" % lab)
            e("s_sub_u32 s%d, s%d, 1" % (sCNT, sCNT)); e("s_cbranch_scc1 %s" % lab)
            e("s_sleep 4")
            issue_p1(False)
            e("s_waitcnt vmcnt(0)")
            e("s_branch %s" % lp)
            e.label(lab)
            for j in range(1, 5): e("v_add_f32 v%d, v%d, v%d" % (vP1, vP1, vP1 + j))
            e("v_mov_b32 v35, v34"); e("s_nop 1"); e("v_permlane16_swap_b32 v34, v35"); e("s_nop 1"); e("v_add_f32 v34, v34, v35")
            e("v_mov_b32 v35, v34"); e("s_nop 1"); e("v_permlane32_swap_b32 v34, v35"); e("s_nop 1"); e("v_add_f32 v34, v34, v35")
            e("v_cvt_pk_bf16_f32 v34, v34, v34"); e("v_and_b32 v34, 0xffff0000, v34")
            e("s_nop 1")
            e("v_mov_b32_dpp v35, v34 row_ror:8 %s" % DPP)
            e("v_mul_f32 v36, v34, v34")
            e("v_mul_f32 v36, %s, v36" % hx(f2u(0.044715)))
            e("v_fma_f32 v36, v36, v34, v34")
            e("v_mul_f32 v36, %s, v36" % hx(f2u(-2.0 * LOG2E * 0.7978845608028654)))
            e("v_exp_f32 v36, v36"); e("s_nop 0")
            e("v_add_f32 v36, 1.0, v36")
            e("v_rcp_f32 v36, v36"); e("s_nop 0")
            e("v_mul_f32 v36, v34, v36")
            e("v_cvt_pk_bf16_f32 v36, v36, v36"); e("v_and_b32 v36, 0xffff0000, v36")
            e("v_mul_f32 v36, v36, v35")
            e("v_cvt_pk_bf16_f32 v36, v36, v36")
            e("v_bfe_u32 v37, v%d, 3, 1" % vL); e("v_lshrrev_b32 v38, 4, v%d" % vL)
            e("v_lshl_add_u32 v37, v37, 2, v38"); e("v_lshlrev_b32 v37, 2, v37")
            e("ds_bpermute_b32 v36, v37, v36")
            e("s_waitcnt lgkmcnt(0)")
            A2 = vA1 if g % 2 == 0 else vA0
            afrag(A2, 36)
            e("s_nop 1")
            e("v_mfma_f32_16x16x32_bf16 %s, %s, %s, 0" % (vr(34), vr(A2), vr(vWD)))
            e("s_lshl_b32 s%d, s%d, 10" % (sT0, sW))
            e("v_add_u32 v38, s%d, v63" % sT0)
            e("v_mov_b32 v39, %d" % L_CNT); e("v_mov_b32 v40, 1")
            e("s_nop 5")
            e("ds_write_b128 v38, %s offset:%d" % (vr(34), L_F2))
            e("s_waitcnt lgkmcnt(0)")
            e("s_mov_b64 exec, 1")
            e("ds_add_rtn_u32 v40, v39, v40")
            e("s_mov_b64 exec, -1")
            e("s_waitcnt lgkmcnt(0)")
            e("v_readfirstlane_b32 s%d, v40" % sT0)
            lab = e.newlab("nop2")
            e("s_nop 3")
            e("s_cmp_lg_u32 s%d, 7" % sT0); e("s_cbranch_scc1 %s" % lab)
            e("v_lshlrev_b32 v38, 4, v%d" % vL)
            e("ds_read_b128 %s, v38 offset:%d" % (vr(30), L_F2))
            for pp in range(1, 8):
                e("ds_read_b128 %s, v38 offset:%d" % (vr(34), L_F2 + pp * 1024))
                e("s_waitcnt lgkmcnt(0)")
                for r in range(4): e("v_add_f32 v%d, v%d, v%d" % (30 + r, 30 + r, 34 + r))
            for r in range(4): e("v_min_u32 v%d, -2, v%d" % (30 + r, 30 + r))
            e("v_lshrrev_b32 v38, 3, v%d" % vL); e("v_mul_u32_u24 v38, 6144, v38")
            e("v_and_b32 v39, 7, v%d" % vL); e("v_lshl_add_u32 v38, v39, 4, v38")
            e("s_mul_i32 s%d, s%d, %d" % (sT0, sC5, 8 * 6144))
            e("s_lshl_b32 s%d, s%d, 7" % (sT1, sPIDX))
            e("s_add_u32 s%d, s%d, s%d" % (sT0, sT0, sT1)); e("s_add_u32 s%d, s%d, %d" % (sT0, sT0, WS_P2))
            e.vmem("buffer_store_dwordx4 %s, v38, %s, s%d offen sc1" % (vr(30), sr(sWSF), sT0), counted=False)
            e("s_nop 1")
            e.label(lab)
    assert nwo == 10 and not held
    stamp('vend')
    e("v_and_b32 v58, 15, v%d" % vL); e("v_mul_u32_u24 v58, %d, v58" % PSTR)
    e("v_lshrrev_b32 v59, 4, v%d" % vL); e("v_lshl_add_u32 v58, v59, 2, v58")
    e("s_mul_i32 s%d, s%d, 96" % (sT0, sW))
    e("v_add_u32 v58, s%d, v58" % sT0)
    e("s_mov_b64 exec, %s" % sr(sVAL, 2))
    e("s_nop 1")
    for t in range(3): e("ds_write_b128 v62, %s offset:%d" % (vr(vACC + 4 * t), L_QP + t * 256))
    e("s_mov_b64 exec, -1")
    e("v_add_u32 v58, %d, v58" % L_QP)
    e("s_waitcnt lgkmcnt(0)")
    e("s_barrier")
    vO = 52
    for i in range(0, 6, 2): e("ds_read2_b32 v[%d:%d], v58 offset0:%d offset1:%d" % (vO + i, vO + i + 1, 4 * i, 4 * i + 4))
    e("s_waitcnt lgkmcnt(0)")
    for pat in ("quad_perm:[1,0,3,2]", "quad_perm:[2,3,0,1]", "row_half_mirror", "row_mirror"):
        for i in range(6): e("v_add_f32_dpp v%d, v%d, v%d %s %s" % (vO + i, vO + i, vO + i, pat, DPP))
    for i in range(6): e("v_cvt_pk_bf16_f32 v%d, v%d, v%d" % (vO + i, vO + i, vO + i))
    if debug:
        dump(e, [vO + i for i in range(6)], 2, sWS, "o")
    e.wait_all_vm()
    vY = 30
    for i in range(6):
        A = vA0 if i % 2 == 0 else vA1
        afrag(A, vO + i)
        e("s_nop 1")
        for seg in range(5):
            c = "0" if i == 0 else vr(vY + 4 * seg)
            e("v_mfma_f32_16x16x32_bf16 %s, %s, %s, %s" % (vr(vY + 4 * seg), vr(A), vr(slot(oslot[5 * i + seg])), c))
    e("s_mul_i32 s%d, s%d, 2560" % (sT0, sW))
    e("v_add_u32 v58, s%d, v63" % sT0)
    e("v_subrev_u32 v59, 192, v0"); e("v_lshlrev_b32 v59, 4, v59")
    e("s_mov_b32 exec_hi, 0")
    e("s_nop 3")
    for seg in range(5): e("ds_write_b128 v58, %s offset:%d" % (vr(vY + 4 * seg), L_YP + seg * 512))
    e("s_mov_b64 exec, -1")
    e("s_waitcnt lgkmcnt(0)")
    e("s_barrier")
    lab = e.newlab("noy")
    e("s_sub_u32 s%d, s%d, 3" % (sT0, sW)); e("s_cmp_ge_u32 s%d, 3" % sT0); e("s_cbranch_scc1 %s" % lab)
    e("v_cmp_gt_u32 vcc, 352, v0")
    e("s_and_saveexec_b64 %s, vcc" % sr(sEX, 2))
    for pp in range(8): e("ds_read_b128 %s, v59 offset:%d" % (vr(64 + 4 * pp), L_YP + pp * 2560))
    e("s_waitcnt lgkmcnt(6)")
    for r in range(4): e("v_add_f32 v%d, v%d, v%d" % (64 + r, 64 + r, 68 + r))
    for pp in range(2, 8):
        e("s_waitcnt lgkmcnt(%d)" % (7 - pp))
        for r in range(4): e("v_add_f32 v%d, v%d, v%d" % (64 + r, 64 + r, 64 + 4 * pp + r))
    for r in range(4): e("v_min_u32 v%d, -2, v%d" % (64 + r, 64 + r))
    e.vmem("buffer_store_dwordx4 %s, v%d, %s, 0 offen sc1" % (vr(64), vPUB, sr(sWS)), counted=False)
    e("s_mov_b64 exec, -1")
    e.label(lab)
    stamp('pub')
    e("s_and_b32 s%d, s2, 1" % sT0); e("s_cmp_lg_u32 s%d, 0" % sT0); e("s_cbranch_scc1 L_fin")
    e("s_cmp_ge_u32 s2, 80"); e("s_cbranch_scc1 L_fin")
    e("s_lshr_b32 s%d, s2, 1" % sCI)
    e("s_cmp_ge_u32 s%d, 20" % sCI); e("s_cselect_b32 s%d, 1, 0" % sB)
    e("s_mul_i32 s%d, s%d, 20" % (sT0, sB)); e("s_sub_u32 s%d, s%d, s%d" % (sH, sCI, sT0))
    e("v_lshlrev_b32 v10, 4, v%d" % vL)
    e("s_lshl_b32 s%d, s%d, 14" % (sT0, sCI)); e("s_lshl_b32 s%d, s%d, 11" % (sT1, sW))
    e("s_add_u32 s%d, s%d, s%d" % (sT0, sT0, sT1)); e("s_add_u32 s%d, s%d, %d" % (sT0, sT0, WS_Y))
    e("v_add_u32 v11, s%d, v10" % sT0)
    e("s_lshr_b32 s%d, s%d, 2" % (sT0, sH)); e("s_lshl_b32 s%d, s%d, 1" % (sT0, sT0)); e("s_add_u32 s%d, s%d, s%d" % (sT0, sT0, sB))
    e("s_lshl_b32 s%d, s%d, 2" % (sT0, sT0)); e("s_and_b32 s%d, s%d, 3" % (sT1, sH)); e("s_add_u32 s%d, s%d, s%d" % (sT0, sT0, sT1))
    e("s_mul_i32 s%d, s%d, 6144" % (sT0, sT0)); e("s_lshl_b32 s%d, s%d, 10" % (sT1, sW))
    e("s_add_u32 s%d, s%d, s%d" % (sT0, sT0, sT1)); e("s_add_u32 s%d, s%d, %d" % (sT0, sT0, WS_P2))
    e("s_cmp_lt_u32 s%d, 6" % sW); e("s_cselect_b32 s%d, s%d, %d" % (sT0, sT0, 0x7fff0000))
    e("v_add_u32 v12, s%d, v10" % sT0)
    e("v_lshrrev_b32 v13, 3, v%d" % vL); e("v_lshlrev_b32 v13, 4, v13")
    e("s_lshl_b32 s%d, s%d, 11" % (sT0, sB)); e("s_lshl_b32 s%d, s%d, 8" % (sT1, sW))
    e("s_add_u32 s%d, s%d, s%d" % (sT0, sT0, sT1)); e("s_add_u32 s%d, s%d, %d" % (sT0, sT0, WS_ML))
    e("v_add_u32 v13, s%d, v13" % sT0)
    e("v_and_b32 v14, 31, v%d" % vL); e("v_lshlrev_b32 v14, 1, v14")
    e("s_lshl_b32 s%d, s%d, 6" % (sT0, sCI)); e("v_add_u32 v14, s%d, v14" % sT0)
    def ld_ml():
        e("buffer_load_dwordx2 v[20:21], v13, %s, 0 offen sc1" % sr(sWS))
        e("buffer_load_dwordx2 v[22:23], v13, %s, 0 offen offset:128 sc1" % sr(sWS))
    def ld_y():
        e("buffer_load_dwordx4 v[24:27], v11, %s, 0 offen sc1" % sr(sWS))
        e("buffer_load_dwordx4 v[28:31], v11, %s, 0 offen offset:1024 sc1" % sr(sWS))
        e("buffer_load_dwordx4 v[32:35], v12, %s, 0 offen sc1" % sr(sWS))
    ld_ml(); ld_y()
    e("buffer_load_ushort v15, v14, %s, 0 offen" % sr(sX))
    e("s_mov_b32 s%d, 0x10000" % sCNT)
    lab = e.newlab("mlok"); lp = e.newlab("mlloop")
    e("s_waitcnt vmcnt(4)")
    e.label(lp)
    e("v_max3_u32 v16, v20, v21, v22"); e("v_max_u32 v16, v16, v23")
    e("v_cmp_eq_u32 vcc, -1, v16"); e("s_nop 1")
    e("s_cbranch_vccz %s" % lab)
    e("s_sub_u32 s%d, s%d, 1" % (sCNT, sCNT)); e("s_cbranch_scc1 %s" % lab)
    e("s_sleep 2")
    ld_ml()
    e("s_waitcnt vmcnt(0)")
    e("s_branch %s" % lp)
    e.label(lab)
    e("v_mov_b32 v16, v20"); e("v_mov_b32 v17, v22"); e("s_nop 0")
    e("v_max_f32_dpp v16, v16, v16 row_ror:8 %s" % DPP); e("v_max_f32_dpp v17, v17, v17 row_ror:8 %s" % DPP)
    e("v_mov_b32 v18, v16"); e("v_mov_b32 v19, v17"); e("s_nop 1")
    e("v_permlane16_swap_b32 v16, v18"); e("v_permlane16_swap_b32 v17, v19"); e("s_nop 1")
    e("v_max_f32 v16, v16, v18"); e("v_max_f32 v17, v17, v19")
    e("v_sub_f32 v20, v20, v16"); e("v_sub_f32 v22, v22, v17")
    e("v_mul_f32 v20, %s, v20" % l2e); e("v_mul_f32 v22, %s, v22" % l2e)
    e("v_exp_f32 v20, v20"); e("v_exp_f32 v22, v22"); e("s_nop 0")
    e("v_mul_f32 v20, v20, v21"); e("v_mul_f32 v22, v22, v23")
    e("v_mov_b32 v16, v20"); e("v_mov_b32 v17, v22"); e("s_nop 0")
    e("v_add_f32_dpp v16, v16, v16 row_ror:8 %s" % DPP); e("v_add_f32_dpp v17, v17, v17 row_ror:8 %s" % DPP)
    e("v_mov_b32 v18, v16"); e("v_mov_b32 v19, v17"); e("s_nop 1")
    e("v_permlane16_swap_b32 v16, v18"); e("v_permlane16_swap_b32 v17, v19"); e("s_nop 1")
    e("v_add_f32 v16, v16, v18"); e("v_add_f32 v17, v17, v19")
    e("v_rcp_f32 v16, v16"); e("v_rcp_f32 v17, v17"); e("s_nop 0")
    e("v_mul_f32 v20, v20, v16"); e("v_mul_f32 v22, v22, v17")
    e("v_and_b32 v16, 7, v%d" % vL); e("v_lshlrev_b32 v16, 4, v16")
    e("v_and_b32 v17, 8, v%d" % vL); e("v_add_u32 v16, v16, v17")
    e("v_bfe_u32 v17, v%d, 4, 1" % vL); e("v_lshl_add_u32 v16, v17, 2, v16")
    e("v_lshrrev_b32 v17, 5, v%d" % vL); e("v_lshl_add_u32 v16, v17, 7, v16")
    e("s_lshl_b32 s%d, s%d, 8" % (sT0, sW)); e("v_add_u32 v16, s%d, v16" % sT0)
    e("v_and_b32 v17, 8, v%d" % vL); e("v_cmp_ne_u32 s[%d:%d], 0, v17" % (sEX, sEX + 1))
    lab = e.newlab("yok"); lp = e.newlab("yloop")
    e("s_waitcnt vmcnt(0)")
    e.label(lp)
    e("v_max3_u32 v17, v24, v25, v26"); e("v_max3_u32 v18, v27, v28, v29"); e("v_max3_u32 v17, v17, v30, v31")
    e("v_max3_u32 v18, v18, v32, v33"); e("v_max3_u32 v17, v17, v34, v35"); e("v_max_u32 v17, v17, v18")
    e("v_cmp_eq_u32 vcc, -1, v17"); e("s_nop 1")
    e("s_cbranch_vccz %s" % lab)
    e("s_sub_u32 s%d, s%d, 1" % (sCNT, sCNT)); e("s_cbranch_scc1 %s" % lab)
    ld_y()
    e("s_waitcnt vmcnt(0)")
    e("s_branch %s" % lp)
    e.label(lab)
    for r in range(4): e("v_mul_f32 v%d, v%d, v20" % (24 + r, 24 + r))
    for r in range(4): e("v_fmac_f32 v%d, v%d, v22" % (24 + r, 28 + r))
    e("s_nop 1")
    for r in range(4): e("v_permlane32_swap_b32 v%d, v%d" % (24 + r, 32 + r))
    e("s_nop 1")
    for r in range(4): e("v_add_f32 v%d, v%d, v%d" % (24 + r, 24 + r, 32 + r))
    e("s_nop 1")
    e("v_permlane16_swap_b32 v24, v25"); e("v_permlane16_swap_b32 v26, v27"); e("s_nop 1")
    e("v_add_f32 v24, v24, v25"); e("v_add_f32 v26, v26, v27"); e("s_nop 1")
    e("v_add_f32_dpp v24, v24, v24 row_ror:8 %s" % DPP); e("v_add_f32_dpp v26, v26, v26 row_ror:8 %s" % DPP)
    e("s_nop 0")
    e("v_cndmask_b32 v24, v24, v26, s[%d:%d]" % (sEX, sEX + 1))
    e("ds_write_b32 v16, v24 offset:%d" % L_CO)
    e("v_lshlrev_b32 v17, 2, v%d" % vL)
    e("s_waitcnt lgkmcnt(0)")
    e("s_barrier")
    e("s_cmp_lg_u32 s%d, 0" % sW); e("s_cbranch_scc1 L_fin")
    for k in range(4): e("ds_read2st64_b32 v[%d:%d], v17 offset0:%d offset1:%d" % (24 + 2 * k, 25 + 2 * k, L_CO // 256 + 2 * k, L_CO // 256 + 2 * k + 1))
    assert L_CO % 256 == 0
    e("s_waitcnt lgkmcnt(0)")
    for k in range(1, 8): e("v_add_f32 v24, v24, v%d" % (24 + k))
    e("v_cvt_pk_bf16_f32 v24, v24, v24"); e("v_and_b32 v24, 0xffff0000, v24")
    e("v_mul_f32 v25, %s, v24" % hx(f2u(-LOG2E)))
    e("v_exp_f32 v25, v25"); e("s_nop 0")
    e("v_add_f32 v25, 1.0, v25")
    e("v_rcp_f32 v25, v25"); e("s_nop 0")
    e("v_mul_f32 v25, v24, v25")
    e("v_cvt_pk_bf16_f32 v25, v25, v25"); e("v_and_b32 v25, 0xffff0000, v25")
    e("v_mov_b32 v26, v25"); e("s_nop 1")
    e("v_permlane32_swap_b32 v25, v26"); e("s_nop 1")
    e("v_mul_f32 v24, v24, v26")
    e("v_cvt_pk_bf16_f32 v24, v24, v24"); e("v_and_b32 v24, 0xffff0000, v24")
    e("v_lshlrev_b32 v15, 16, v15")
    e("v_add_f32 v24, v24, v15")
    e("v_cvt_pk_bf16_f32 v24, v24, v24")
    e("s_mov_b32 exec_hi, 0")
    e("buffer_store_short v24, v14, %s, 0 offen" % sr(sOUT))
    e("s_mov_b64 exec, -1")
    e.label("L_fin")
    if stamps:
        stamp('fin')
        n = nst[0]
        e("s_add_u32 s92, s26, %d" % STAMP_OFF); e("s_addc_u32 s93, s27, 0"); e("s_mov_b32 s94, 0x100000"); e("s_mov_b32 s95, 0x20000")
        if allw:
            e("s_lshl_b32 s%d, s2, 3" % sT0); e("s_add_u32 s%d, s%d, s%d" % (sT0, sT0, sW)); e("s_mul_i32 s%d, s%d, %d" % (sT0, sT0, 8 * n))
        else:
            e("s_cmp_lg_u32 s%d, 0" % sW); e("s_cbranch_scc1 L_end")
            e("s_mul_i32 s%d, s2, %d" % (sT0, 8 * n))
        e("v_mov_b32 v10, s%d" % sT0); e("v_mov_b32 v13, 0")
        e("s_mov_b64 exec, 1")
        for k in range(n):
            e("v_mov_b32 v12, s%d" % (sST + k))
            e("buffer_store_dwordx2 v[12:13], v10, s[92:95], 0 offen offset:%d" % (8 * k))
            e("s_nop 1")
    e.label("L_end")
    e("s_endpgm")
    e.raw('.section .rodata,"a"'); e.raw(".p2align 6"); e.raw(".amdhsa_kernel %s_kernel" % NAME)
    for s in (".amdhsa_next_free_vgpr 256", ".amdhsa_next_free_sgpr 102", ".amdhsa_accum_offset 256",
              ".amdhsa_group_segment_fixed_size 0", ".amdhsa_kernarg_size 96", ".amdhsa_user_sgpr_count 2",
              ".amdhsa_user_sgpr_kernarg_segment_ptr 1", ".amdhsa_system_sgpr_workgroup_id_x 1"):
        e(s)
    e.raw(".end_amdhsa_kernel")
    return "\n".join(e.L) + "\n", nst[0]

def dump(e, regs, region, sWS, name):
    e("s_lshl_b32 s81, s2, 15"); e("s_add_u32 s81, s81, %d" % (WS_DBG + region * (8 << 20)))
    e("s_add_u32 s82, s26, s81"); e("s_addc_u32 s83, s27, 0")
    e("v_lshlrev_b32 v59, 6, v0")
    for k, r in enumerate(regs):
        e.vmem("global_store_dword v59, v%d, s[82:83] offset:%d" % (r, 4 * k), counted=False)
    e("s_waitcnt vmcnt(0)")

if __name__ == "__main__":
    import argparse
    ap = argparse.ArgumentParser()
    ap.add_argument("out"); ap.add_argument("--stamps", action="store_true"); ap.add_argument("--debug", action="store_true")
    ap.add_argument("--opt", default="")
    a = ap.parse_args()
    kw = eval("dict(%s)" % a.opt)
    s, n = gen(stamps=a.stamps, debug=a.debug, **kw)
    hdr = open("cdna_kernels/%s.s.ref" % NAME).read().split("; Override launch")[0]
    open(a.out, "w").write(hdr + s)
    print("wrote", a.out, "stamps", n)
```

```python
import struct, sys
NAME = "recurrent_scan__gqa_block_cached__geglu_ffn__decode"

def f2u(x): return struct.unpack("<I", struct.pack("<f", x))[0]
def hx(x): return "0x%08x" % (x & 0xffffffff)
LOG2E = 1.4426950408889634

WS_P1 = 0
WS_P2 = 0x80000
WS_Y  = 0xC0000
WS_ML = 0x180000
WS_SIZE = 0x181000
STAMP_OFF = 300 << 20
OOB = 0x7ffffff0

L_XN = 0
L_QP = 5120
PSTR = 784
L_QB = 12288
L_F1 = 12800
L_F2 = 20992
L_ML = 25088
L_CNT = 25152
L_YP = 25344
L_CO = 35584
L_END = 36608

class Em:
    def __init__(self):
        self.L = []; self.vm = []; self.lab = 0
    def __call__(self, s): self.L.append("  " + s)
    def raw(self, s): self.L.append(s)
    def label(self, n): self.L.append(n + ":")
    def newlab(self, p):
        self.lab += 1; return "L_%s_%d" % (p, self.lab)
    def vmem(self, s, tag=None, counted=True):
        self.L.append("  " + s)
        if counted: self.vm.append(tag)
    def behind(self, tag):
        idx = max(i for i, t in enumerate(self.vm) if t == tag)
        return len(self.vm) - 1 - idx
    def wait_vm(self, tag):
        self("s_waitcnt vmcnt(%d)" % min(self.behind(tag), 63))

def vr(a, n=4): return "v[%d:%d]" % (a, a + n - 1)
def ar(a, n=4): return "a[%d:%d]" % (a, a + n - 1)
def sr(a, n=4): return "s[%d:%d]" % (a, a + n - 1)
DPP = "row_mask:0xf bank_mask:0xf"
X1, X2, HM, RM, R8 = "quad_perm:[1,0,3,2]", "quad_perm:[2,3,0,1]", "row_half_mirror", "row_mirror", "row_ror:8"

def gen(stamps=False, kvf="nt", wf="", ff="nt", RING=14, conf_g=24, st2_g=6, ml_g=31, nffn=240, allw=False,
        sel=('b1', 'b2', 'vend', 'pub', 'fin'), lag=16, ostep=2, ostart=0, init="WWK", first=18, nfirst=2, ntrail=4):
    e = Em()
    vL, vKV, vWQ, vWO, vPUB = 1, 2, 3, 4, 5
    vM = 6; vA0 = 10; vA1 = 14; vACC = 18; vQF = 30; vS = 42
    vMW, vLW = 74, 75
    vCONF, vPY, vQA, vFA, vP1O = 76, 77, 78, 79, 80
    T0, T1, T2, T3, T4, T5 = 82, 83, 84, 85, 86, 87
    RB = 256 - 12 * RING
    assert RB >= 88
    def rslot(i, t): return RB + 12 * i + 4 * t
    sK, sV, sWQ, sWO, sX, sWG, sWU, sWD, sWS, sOUT, sDBG, sWSF = 28, 32, 36, 40, 44, 48, 52, 56, 60, 64, 68, 92
    sW, sB, sH, sP, sFS, sFR, sC5, sRR, sSO, sT0, sT1, sT2 = 72, 73, 74, 75, 76, 77, 78, 79, 80, 81, 82, 83
    sEX = 84; sVAL = 86; sCNT = 88; sCI = 89; sPIDX = 90; sWQO = 91
    sST = 96
    nst = [0]
    def stamp(name):
        if not stamps or name not in sel: return
        e("s_memrealtime s[%d:%d]" % (sEX, sEX + 1))
        e("s_waitcnt lgkmcnt(0)")
        e("s_mov_b32 s%d, s%d" % (sST + nst[0], sEX))
        nst[0] += 1
    def mfma(d, a, b, c): e("v_mfma_f32_16x16x32_bf16 %s, %s, %s, %s" % (d, a, b, c))
    def afrag(dst, src, dpp=None):
        for r in range(4):
            if dpp: e("v_and_b32_dpp v%d, v%d, v%d %s %s" % (dst + r, src, vM + r, dpp, DPP))
            else: e("v_and_b32 v%d, v%d, v%d" % (dst + r, src, vM + r))

    e.raw("; @launch grid=(256,1,1) block=(256,1,1) lds=%d" % L_END)
    e.raw('.amdgcn_target "amdgcn-amd-amdhsa--gfx950"')
    e.raw(".text"); e.raw(".globl %s_kernel" % NAME); e.raw(".p2align 8"); e.raw(".type %s_kernel,@function" % NAME)
    e.label("%s_kernel" % NAME)
    e("s_cmp_ge_u32 s2, 256"); e("s_cbranch_scc1 L_end")
    e("s_load_dwordx16 s[4:19], s[0:1], 0")
    e("s_load_dwordx8 s[20:27], s[0:1], 64")
    if stamps:
        e("s_memrealtime s[%d:%d]" % (sST, sST + 1)); nst[0] = 1
    e("v_and_b32 v%d, 63, v0" % vL)
    e("v_lshrrev_b32 v%d, 6, v0" % T0)
    e("v_lshrrev_b32 v%d, 3, v%d" % (T1, vL))
    e("v_and_b32 v%d, 7, v%d" % (T2, vL))
    e("v_readfirstlane_b32 s%d, v%d" % (sW, T0))
    e("v_mul_u32_u24 v%d, 384, v%d" % (vKV, T1))
    e("v_lshl_add_u32 v%d, v%d, 4, v%d" % (vKV, T2, vKV))
    e("v_mul_u32_u24 v%d, 3072, v%d" % (T3, T0))
    e("v_add_u32 v%d, v%d, v%d" % (vKV, vKV, T3))
    e("v_mul_u32_u24 v%d, 12288, v%d" % (vWQ, T1))
    e("v_lshl_add_u32 v%d, v%d, 4, v%d" % (vWQ, T2, vWQ))
    e("v_lshrrev_b32 v%d, 5, v%d" % (T3, vL))
    e("v_mul_u32_u24 v%d, 1280, v%d" % (T3, T3))
    e("v_and_b32 v%d, 31, v%d" % (T5, vL))
    e("v_lshl_add_u32 v%d, v%d, 4, v%d" % (T4, T5, T3))
    e("v_lshl_add_u32 v%d, v%d, 3, v%d" % (T5, T5, T3))
    e("s_and_b32 s%d, s2, 7" % sT0)
    e("s_lshr_b32 s%d, s2, 3" % sT1)
    e("s_lshr_b32 s%d, s%d, 3" % (sT2, sT1))
    e("s_lshl_b32 s%d, s%d, 2" % (sH, sT0))
    e("s_add_u32 s%d, s%d, s%d" % (sH, sH, sT2))
    e("s_lshr_b32 s%d, s%d, 2" % (sB, sT1))
    e("s_and_b32 s%d, s%d, 1" % (sB, sB))
    e("s_and_b32 s%d, s%d, 3" % (sT1, sT1))
    e("s_lshl_b32 s%d, s%d, 2" % (sP, sH))
    e("s_add_u32 s%d, s%d, s%d" % (sP, sP, sT1))
    e("s_lshl_b32 s%d, s%d, 7" % (sT0, sB))
    e("s_add_u32 s%d, s%d, s%d" % (sT0, sT0, sP))
    e("s_mul_i32 s%d, s%d, 393216" % (sT0, sT0))
    e("s_mov_b32 s%d, 393216" % (sK + 2)); e("s_mov_b32 s%d, 0x20000" % (sK + 3))
    e("s_mov_b32 s%d, 2560" % (sX + 2)); e("s_mov_b32 s%d, 0x20000" % (sX + 3))
    e("s_mul_i32 s%d, s%d, 384" % (sT1, sH))
    e("s_sub_u32 s%d, %d, s%d" % (sWQ + 2, 640 * 12288, sT1)); e("s_mov_b32 s%d, 0x20000" % (sWQ + 3))
    e("s_mul_i32 s%d, s%d, %d" % (sWQO, sW, 160 * 12288))
    e("s_waitcnt lgkmcnt(0)")
    e("s_mov_b32 s%d, s4" % sX); e("s_mov_b32 s%d, s5" % (sX + 1))
    e("s_add_u32 s%d, s6, s%d" % (sK, sT0)); e("s_addc_u32 s%d, s7, 0" % (sK + 1))
    e.vmem("buffer_load_dwordx4 %s, v%d, %s, 0 offen" % (vr(18), T4, sr(sX)), "x")
    e.vmem("buffer_load_dwordx4 %s, v%d, %s, 0 offen offset:512" % (vr(22), T4, sr(sX)), "x")
    e.vmem("buffer_load_dwordx2 %s, v%d, %s, 0 offen offset:1024" % (vr(26, 2), T5, sr(sX)), "x")
    e("s_add_u32 s%d, s10, s%d" % (sWQ, sT1)); e("s_addc_u32 s%d, s11, 0" % (sWQ + 1))

    ring = {}
    def issue_kv(kind, g, rs):
        ring[(kind, g)] = rs
        srd = sK if kind == "K" else sV
        if g == 0: so = "0"
        else:
            e("s_mov_b32 s%d, %d" % (sSO, g * 12288)); so = "s%d" % sSO
        for t in range(3):
            e.vmem("buffer_load_dwordx4 %s, v%d, %s, %s offen offset:%d %s" % (vr(rslot(rs, t)), vKV, sr(srd), so, t * 128, kvf), "%s%d" % (kind, g))
    def issue_wq(i):
        e("s_add_u32 s%d, s%d, %d" % (sSO, sWQO, i * 8 * 12288))
        for t in range(3):
            e.vmem("buffer_load_dwordx4 %s, v%d, %s, s%d offen offset:%d %s" % (ar(12 * i + 4 * t), vWQ, sr(sWQ), sSO, t * 128, wf), "W%d" % i)
    def issue_wo(n):
        last = None
        for t in range(3):
            q = 3 * n + t; i, seg = q // 5, q % 5
            if i == 0: so = "0"
            else:
                if last != i: e("s_mov_b32 s%d, %d" % (sSO, i * 5120))
                so = "s%d" % sSO
            last = i
            e.vmem("buffer_load_dwordx4 %s, v%d, %s, %s offen offset:%d %s" % (ar(4 * q), vWO, sr(sWO), so, seg * 256, wf), "O%d" % n)
    def issue_f1():
        e("s_lshl_b32 s%d, s%d, 2" % (sT0, sFR)); e("s_add_u32 s%d, s%d, s%d" % (sT0, sT0, sW))
        e("s_mul_i32 s%d, s%d, %d" % (sT0, sT0, 8 * 3072))
        e("s_lshl_b32 s%d, s%d, 8" % (sT1, sFS)); e("s_add_u32 s%d, s%d, s%d" % (sSO, sT0, sT1))
        e("s_add_u32 s%d, s%d, %d" % (sT0, sSO, 4 * 3072))
        e.vmem("buffer_load_dwordx4 %s, v%d, %s, s%d offen %s" % (ar(240), vP1O, sr(sWG), sSO, ff), "F1")
        e.vmem("buffer_load_dwordx4 %s, v%d, %s, s%d offen %s" % (ar(244), vP1O, sr(sWU), sSO, ff), "F1")
        e.vmem("buffer_load_dwordx4 %s, v%d, %s, s%d offen %s" % (ar(248), vP1O, sr(sWG), sT0, ff), "F1")
        e.vmem("buffer_load_dwordx4 %s, v%d, %s, s%d offen %s" % (ar(252), vP1O, sr(sWU), sT0, ff), "F1")

    items = [("K", i) for i in range(nfirst)]
    kn, wn = nfirst, 0
    while wn < 20:
        for ch in init:
            if ch == "W" and wn < 20: items.append(("W", wn)); wn += 1
            if ch == "K" and kn < RING - ntrail: items.append(("K", kn)); kn += 1
    items.append(("F", 0))
    while kn < RING: items.append(("K", kn)); kn += 1

    def do_issue(it):
        if it[0] == "K": issue_kv("K", it[1], it[1])
        elif it[0] == "W": issue_wq(it[1])
        else: issue_f1()

    pos = 0
    while len(e.vm) < first - 2:
        do_issue(items[pos]); pos += 1
    e("s_lshl_b32 s%d, s%d, 7" % (sT0, sB)); e("s_add_u32 s%d, s%d, s%d" % (sT0, sT0, sP)); e("s_mul_i32 s%d, s%d, 393216" % (sT0, sT0))
    e("s_add_u32 s%d, s8, s%d" % (sV, sT0)); e("s_addc_u32 s%d, s9, 0" % (sV + 1))
    e("s_mov_b32 s%d, 393216" % (sV + 2)); e("s_mov_b32 s%d, 0x20000" % (sV + 3))
    e("s_mul_i32 s%d, s%d, 245760" % (sT0, sH))
    e("s_add_u32 s%d, s12, s%d" % (sWO, sT0)); e("s_addc_u32 s%d, s13, 0" % (sWO + 1))
    e("s_mov_b32 s%d, 245760" % (sWO + 2)); e("s_mov_b32 s%d, 0x20000" % (sWO + 3))
    e("s_mov_b32 s%d, s26" % sWS); e("s_mov_b32 s%d, s27" % (sWS + 1))
    e("s_mov_b32 s%d, %d" % (sWS + 2, WS_SIZE)); e("s_mov_b32 s%d, 0x20000" % (sWS + 3))
    e("s_mov_b32 s%d, s22" % sOUT); e("s_mov_b32 s%d, s23" % (sOUT + 1))
    e("s_mov_b32 s%d, 2560" % (sOUT + 2)); e("s_mov_b32 s%d, 0x20000" % (sOUT + 3))
    e("s_mov_b32 s%d, s24" % sDBG); e("s_mov_b32 s%d, s25" % (sDBG + 1))
    e("s_mov_b32 s%d, 256" % (sDBG + 2)); e("s_mov_b32 s%d, 0x20000" % (sDBG + 3))
    e("s_mul_i32 s%d, s2, 5462" % sFR); e("s_lshr_b32 s%d, s%d, 16" % (sFR, sFR))
    e("s_mul_i32 s%d, s%d, 12" % (sT0, sFR)); e("s_sub_u32 s%d, s2, s%d" % (sFS, sT0))
    e("s_mul_i32 s%d, s%d, 52" % (sRR, sFR)); e("s_lshr_b32 s%d, s%d, 8" % (sRR, sRR))
    e("s_mul_i32 s%d, s%d, 5" % (sT0, sRR)); e("s_sub_u32 s%d, s%d, s%d" % (sC5, sFR, sT0))
    e("s_lshl_b32 s%d, s%d, 2" % (sPIDX, sFS)); e("s_add_u32 s%d, s%d, s%d" % (sPIDX, sPIDX, sRR))
    e("s_cmp_lt_u32 s2, %d" % nffn)
    e("s_cselect_b32 s%d, %d, 0" % (sWG + 2, 640 * 3072))
    e("s_cselect_b32 s%d, %d, 0" % (sWU + 2, 640 * 3072))
    e("s_cselect_b32 s%d, %d, 0" % (sWD + 2, 1536 * 1280))
    e("s_cselect_b32 s%d, %d, 0" % (sWSF + 2, WS_Y))
    e("s_cselect_b32 s%d, 0, %d" % (sT2, OOB))
    e("s_mov_b32 s%d, s16" % sWG); e("s_mov_b32 s%d, s17" % (sWG + 1)); e("s_mov_b32 s%d, 0x20000" % (sWG + 3))
    e("s_mov_b32 s%d, s18" % sWU); e("s_mov_b32 s%d, s19" % (sWU + 1)); e("s_mov_b32 s%d, 0x20000" % (sWU + 3))
    e("s_mov_b32 s%d, s20" % sWD); e("s_mov_b32 s%d, s21" % (sWD + 1)); e("s_mov_b32 s%d, 0x20000" % (sWD + 3))
    e("s_mov_b32 s%d, s26" % sWSF); e("s_mov_b32 s%d, s27" % (sWSF + 1)); e("s_mov_b32 s%d, 0x20000" % (sWSF + 3))
    e("s_mov_b32 s%d, 0x00ff00ff" % sVAL); e("s_mov_b32 s%d, 0xff00ff00" % (sVAL + 1))
    e("v_lshrrev_b32 v%d, 3, v0" % T0)
    e("s_lshl_b32 s%d, s%d, 4" % (sT0, sFS))
    e("v_add_u32 v%d, s%d, v%d" % (T1, sT0, T0))
    e("v_mul_u32_u24 v%d, 2560, v%d" % (T1, T1))
    e("v_lshl_add_u32 v%d, v%d, 4, v%d" % (T1, T2, T1))
    e("s_lshl_b32 s%d, s%d, 7" % (sT0, sFR))
    e("v_add_u32 v%d, s%d, v%d" % (T1, sT0, T1))
    e("v_lshrrev_b32 v%d, 3, v%d" % (T3, vL))
    e("v_mul_u32_u24 v%d, 6144, v%d" % (T3, T3))
    e("v_lshl_add_u32 v%d, v%d, 4, v%d" % (T3, T2, T3))
    e("s_mul_i32 s%d, s%d, %d" % (sT0, sC5, 8 * 6144))
    e("s_lshl_b32 s%d, s%d, 7" % (sT1, sPIDX))
    e("s_add_u32 s%d, s%d, s%d" % (sT0, sT0, sT1)); e("s_add_u32 s%d, s%d, %d" % (sT0, sT0, WS_P2))
    e("v_cmp_gt_u32 vcc, 128, v0")
    e("v_add_u32 v%d, s%d, v%d" % (T3, sT0, T3))
    e("s_lshl_b32 s%d, s%d, 7" % (sT0, sB)); e("s_add_u32 s%d, s%d, s%d" % (sT0, sT0, sP))
    e("v_cndmask_b32 v%d, v%d, v%d, vcc" % (T1, T3, T1))
    e("v_or_b32 v%d, s%d, v%d" % (T1, sT2, T1))
    e("s_lshl_b32 s%d, s%d, 4" % (sT0, sT0)); e("s_add_u32 s%d, s%d, %d" % (sT0, sT0, WS_ML))
    e("v_mov_b32 v%d, s%d" % (T3, sT0))
    e("v_cmp_gt_u32 vcc, 192, v0")
    e("v_mov_b32 v10, -1"); e("v_mov_b32 v11, -1")
    e("v_cndmask_b32 v%d, v%d, v%d, vcc" % (T1, T3, T1))
    e("v_mov_b32 v%d, %d" % (T3, OOB))
    e("v_cmp_gt_u32 vcc, 193, v0")
    e("v_mov_b32 v12, -1"); e("v_mov_b32 v13, -1")
    e("v_cndmask_b32 v%d, v%d, v%d, vcc" % (vPUB, T3, T1))
    e("v_lshlrev_b32 v%d, 14, v%d" % (T0, T0))
    e("v_lshl_add_u32 v%d, v%d, 4, v%d" % (T0, T2, T0))
    e("s_mul_i32 s%d, s%d, %d" % (sT0, sB, 20 * 16384))
    e("s_lshl_b32 s%d, s%d, 7" % (sT1, sP))
    e("s_add_u32 s%d, s%d, s%d" % (sT0, sT0, sT1)); e("s_add_u32 s%d, s%d, %d" % (sT0, sT0, WS_Y))
    e("v_cmp_gt_u32 vcc, 160, v0")
    e("v_add_u32 v%d, s%d, v%d" % (T0, sT0, T0))
    e("s_nop 0")
    e("v_cndmask_b32 v%d, v%d, v%d, vcc" % (vPY, T3, T0))
    e.vmem("buffer_store_dwordx4 v[10:13], v%d, %s, 0 offen sc1" % (vPUB, sr(sWS)), "clr")
    e.vmem("buffer_store_dwordx4 v[10:13], v%d, %s, 0 offen sc1" % (vPY, sr(sWS)), "clr")
    e("v_lshrrev_b32 v%d, 4, v%d" % (T0, vL))
    e("v_and_b32 v%d, 15, v%d" % (T1, vL))
    e("v_mul_u32_u24 v%d, 3072, v%d" % (vP1O, T0))
    e("v_lshl_add_u32 v%d, v%d, 4, v%d" % (vP1O, T1, vP1O))
    e("v_mul_u32_u24 v%d, 1280, v%d" % (vWO, T0))
    e("v_lshl_add_u32 v%d, v%d, 4, v%d" % (vWO, T1, vWO))
    e("s_mul_i32 s%d, s%d, 61440" % (sT0, sW))
    e("v_add_u32 v%d, s%d, v%d" % (vWO, sT0, vWO))
    e("v_lshrrev_b32 v%d, 5, v%d" % (T0, vL)); e("v_mul_u32_u24 v%d, %d, v%d" % (vQA, PSTR, T0))
    e("v_lshl_add_u32 v%d, v%d, 5, v%d" % (vQA, T2, vQA))
    e("v_and_b32 v%d, 16, v%d" % (T3, vL)); e("v_add_u32 v%d, v%d, v%d" % (vQA, vQA, T3))
    e("s_mul_i32 s%d, s%d, %d" % (sT0, sW, 2 * PSTR))
    e("v_add_u32 v%d, s%d, v%d" % (vQA, sT0, vQA))
    e("v_lshlrev_b32 v%d, 9, v%d" % (vFA, T0)); e("v_lshl_add_u32 v%d, v%d, 5, v%d" % (vFA, T1, vFA))
    e("v_add_u32 v%d, v%d, v%d" % (vFA, vFA, T3))
    e("v_and_b32 v%d, 1, v%d" % (T0, vL))
    e("v_lshlrev_b32 v%d, 4, v%d" % (T0, T0))
    e("v_mov_b32 v%d, 0xffff" % T1)
    e("v_lshlrev_b32 v%d, v%d, v%d" % (T0, T0, T1))
    e("v_bfe_u32 v%d, v%d, 1, 2" % (T1, vL))
    for r in range(4):
        e("v_cmp_eq_u32 vcc, %d, v%d" % (r, T1))
        e("s_nop 1")
        e("v_cndmask_b32 v%d, 0, v%d, vcc" % (vM + r, T0))
    stamp('iss')
    e.wait_vm("x")
    X = 28
    for r in range(10):
        e("v_lshlrev_b32 v%d, 16, v%d" % (X + 2 * r, 18 + r))
        e("v_and_b32 v%d, 0xffff0000, v%d" % (X + 2 * r + 1, 18 + r))
    def half_allreduce(v, t, op="v_add_f32"):
        for pat in (X1, X2, HM, RM):
            e("s_nop 1")
            e("%s_dpp v%d, v%d, v%d %s %s" % (op, v, v, v, pat, DPP))
        e("v_mov_b32 v%d, v%d" % (t, v))
        e("s_nop 1")
        e("v_permlane16_swap_b32 v%d, v%d" % (v, t))
        e("s_nop 1")
        e("%s v%d, v%d, v%d" % (op, v, v, t))
    for r in range(4): e("v_add_f32 v%d, v%d, v%d" % (48 + r, X + r, X + 4 + r))
    for k in range(8, 20): e("v_add_f32 v%d, v%d, v%d" % (48 + k % 4, 48 + k % 4, X + k))
    e("v_add_f32 v48, v48, v49"); e("v_add_f32 v50, v50, v51"); e("v_add_f32 v48, v48, v50")
    half_allreduce(48, 49)
    e("v_mul_f32 v48, %s, v48" % hx(f2u(1.0 / 640)))
    for k in range(20):
        e("v_sub_f32 v%d, v%d, v48" % (18 + k % 4, X + k))
        if k < 4: e("v_mul_f32 v%d, v%d, v%d" % (52 + k, 18 + k, 18 + k))
        else: e("v_fmac_f32 v%d, v%d, v%d" % (52 + k % 4, 18 + k % 4, 18 + k % 4))
    e("v_add_f32 v52, v52, v53"); e("v_add_f32 v54, v54, v55"); e("v_add_f32 v52, v52, v54")
    half_allreduce(52, 53)
    e("v_mul_f32 v52, %s, v52" % hx(f2u(1.0 / 640)))
    e("v_cvt_pk_bf16_f32 v48, v48, v52")
    e("v_and_b32 v52, 0xffff0000, v48")
    e("v_lshlrev_b32 v48, 16, v48")
    e("v_add_f32 v52, %s, v52" % hx(f2u(1e-5)))
    e("v_cvt_pk_bf16_f32 v52, v52, v52")
    e("v_and_b32 v52, 0xffff0000, v52")
    e("v_sqrt_f32 v52, v52")
    e("s_nop 0")
    e("v_cvt_pk_bf16_f32 v52, v52, v52")
    e("v_and_b32 v52, 0xffff0000, v52")
    e("v_rcp_f32 v53, v52")
    for k in range(0, 20, 2):
        a, b2 = X + k, X + k + 1
        e("v_sub_f32 v%d, v%d, v48" % (a, a)); e("v_sub_f32 v%d, v%d, v48" % (b2, b2))
        e("v_cvt_pk_bf16_f32 v18, v%d, v%d" % (a, b2))
        e("v_lshlrev_b32 v%d, 16, v18" % a); e("v_and_b32 v%d, 0xffff0000, v18" % b2)
        e("v_mul_f32 v19, v%d, v53" % a); e("v_mul_f32 v20, v%d, v53" % b2)
        e("v_fma_f32 v%d, -v19, v52, v%d" % (a, a)); e("v_fma_f32 v%d, -v20, v52, v%d" % (b2, b2))
        e("v_fmac_f32 v19, v%d, v53" % a); e("v_fmac_f32 v20, v%d, v53" % b2)
        e("v_cvt_pk_bf16_f32 v%d, v19, v19" % a); e("v_cvt_pk_bf16_f32 v%d, v20, v20" % b2)
    e("v_lshlrev_b32 v%d, 1, v%d" % (T4, T4)); e("v_lshlrev_b32 v%d, 1, v%d" % (T5, T5))
    e("ds_write_b128 v%d, %s offset:%d" % (T4, vr(X), L_XN))
    e("ds_write_b128 v%d, %s offset:%d" % (T4, vr(X + 4), L_XN + 16))
    e("ds_write_b128 v%d, %s offset:%d" % (T4, vr(X + 8), L_XN + 1024))
    e("ds_write_b128 v%d, %s offset:%d" % (T4, vr(X + 12), L_XN + 1024 + 16))
    e("ds_write_b128 v%d, %s offset:%d" % (T5, vr(X + 16), L_XN + 2048))
    e("s_mul_i32 s%d, s%d, 2560" % (sT0, sB)); e("s_mul_i32 s%d, s%d, 640" % (sT1, sW)); e("s_add_u32 s%d, s%d, s%d" % (sT0, sT0, sT1))
    e("v_lshrrev_b32 v%d, 3, v%d" % (T0, vL))
    e("v_lshlrev_b32 v%d, 2, v%d" % (T1, T0))
    e("v_add_u32 v%d, s%d, v%d" % (T1, sT0, T1))
    e("v_and_b32 v%d, 1, v%d" % (T0, T0)); e("v_mul_u32_u24 v%d, 2560, v%d" % (T0, T0))
    e("v_lshrrev_b32 v%d, 4, v%d" % (T3, vL)); e("v_lshl_add_u32 v%d, v%d, 2, v%d" % (T0, T3, T0))
    e("s_lshl_b32 s%d, s%d, 2" % (sT0, sFR)); e("s_add_u32 s%d, s%d, s%d" % (sT0, sT0, sW)); e("s_lshl_b32 s%d, s%d, 5" % (sT0, sT0))
    e("s_min_u32 s%d, s%d, %d" % (sT0, sT0, 2528))
    e("v_add_u32 v%d, s%d, v%d" % (T0, sT0, T0))
    e("v_mov_b32 v%d, %d" % (T4, L_CNT)); e("v_mov_b32 v%d, 0" % T5)
    e("s_waitcnt lgkmcnt(0)")
    for i in range(0, 20, 2): e("ds_read2_b32 v[%d:%d], v%d offset0:%d offset1:%d" % (vS + i, vS + i + 1, T1, 8 * i, 8 * i + 8))
    e("ds_read2_b32 v[%d:%d], v%d offset0:0 offset1:4" % (vS + 20, vS + 21, T0))
    e("ds_write_b32 v%d, v%d" % (T4, T5))
    e("s_waitcnt lgkmcnt(0)")
    stamp('ln')

    wdone = [0]
    def consume_w(i):
        A = vA0 if i % 2 == 0 else vA1
        afrag(A, vS + i)
        e("s_nop 0")
        e.wait_vm("W%d" % i)
        for t in range(3):
            mfma(vr(vACC + 4 * t), vr(A), ar(12 * i + 4 * t), "0" if i == 0 else vr(vACC + 4 * t))
    issued_w = lambda: [t for t in e.vm if t and t[0] == "W"]
    while pos < len(items):
        do_issue(items[pos]); pos += 1
        while wdone[0] < 20 and ("W%d" % wdone[0]) in e.vm and e.behind("W%d" % wdone[0]) >= lag:
            consume_w(wdone[0]); wdone[0] += 1
    stamp('iss2')
    while wdone[0] < 20:
        consume_w(wdone[0]); wdone[0] += 1
    afrag(vA0, vS + 20); afrag(vA1, vS + 21)
    e.wait_vm("F1")
    mfma(vr(vQF), vr(vA0), ar(240), "0"); mfma(vr(vQF + 4), vr(vA0), ar(244), "0")
    mfma(vr(vQF), vr(vA1), ar(248), vr(vQF)); mfma(vr(vQF + 4), vr(vA1), ar(252), vr(vQF + 4))
    e("s_lshl_b32 s%d, s%d, 11" % (sT0, sW))
    e("v_add_u32 v%d, s%d, v%d" % (T0, sT0, vFA))
    e("v_lshlrev_b32 v%d, 4, v%d" % (T1, vL))
    e("s_mov_b64 exec, %s" % sr(sVAL, 2))
    e("s_nop 0")
    for t in range(3): e("ds_write_b128 v%d, %s offset:%d" % (vQA, vr(vACC + 4 * t), L_QP + t * 256))
    e("s_mov_b64 exec, -1")
    e("s_nop 0")
    e("ds_write_b128 v%d, %s offset:%d" % (T0, vr(vQF), L_F1))
    e("ds_write_b128 v%d, %s offset:%d" % (T0, vr(vQF + 4), L_F1 + 1024))
    e("s_waitcnt lgkmcnt(0)")
    e("s_barrier")
    stamp('b1')
    for pp in range(8): e("ds_read_b128 %s, v%d offset:%d" % (vr(vS + 4 * pp), T1, L_QP + pp * PSTR))
    e("v_lshlrev_b32 v%d, 3, v%d" % (T0, vL))
    e("v_and_b32 v%d, 7, v%d" % (T2, vL)); e("v_lshlrev_b32 v%d, 4, v%d" % (T2, T2))
    e("s_waitcnt lgkmcnt(6)")
    for r in range(4): e("v_add_f32 v%d, v%d, v%d" % (vQF + r, vS + r, vS + 4 + r))
    for pp in range(2, 8):
        e("s_waitcnt lgkmcnt(%d)" % (7 - pp))
        for r in range(4): e("v_add_f32 v%d, v%d, v%d" % (vQF + r, vQF + r, vS + 4 * pp + r))
    e("v_cvt_pk_bf16_f32 v%d, v%d, v%d" % (vQF, vQF, vQF + 1))
    e("v_cvt_pk_bf16_f32 v%d, v%d, v%d" % (vQF + 1, vQF + 2, vQF + 3))
    e("ds_write_b64 v%d, %s offset:%d" % (T0, vr(vQF, 2), L_QB))
    e("s_waitcnt lgkmcnt(0)")
    for t in range(3): e("ds_read_b128 %s, v%d offset:%d" % (vr(vQF + 4 * t), T2, L_QB + t * 128))
    for g in range(32): e("v_mov_b32 v%d, 0" % (vS + g))
    e("s_waitcnt lgkmcnt(0)")

    sc = hx(f2u(192 ** -0.5))
    nwo = [0]
    def finish_scores(g0):
        a, b2, t = vS + g0, vS + g0 + 1, T0
        for pat in (X1, X2, HM):
            e("v_add_f32_dpp v%d, v%d, v%d %s %s" % (a, a, a, pat, DPP))
            e("v_add_f32_dpp v%d, v%d, v%d %s %s" % (b2, b2, b2, pat, DPP))
            e("s_nop 0")
        e("v_cvt_pk_bf16_f32 v%d, v%d, v%d" % (t, a, b2))
        e("v_lshlrev_b32 v%d, 16, v%d" % (a, t)); e("v_and_b32 v%d, 0xffff0000, v%d" % (b2, t))
        e("v_mul_f32 v%d, %s, v%d" % (a, sc, a)); e("v_mul_f32 v%d, %s, v%d" % (b2, sc, b2))
        e("v_cvt_pk_bf16_f32 v%d, v%d, v%d" % (t, a, b2))
        e("v_lshlrev_b32 v%d, 16, v%d" % (a, t)); e("v_and_b32 v%d, 0xffff0000, v%d" % (b2, t))
        if g0 == 0: e("v_max_f32 v%d, v%d, v%d" % (vMW, a, b2))
        else: e("v_max3_f32 v%d, v%d, v%d, v%d" % (vMW, vMW, a, b2))
    def maybe_wo(step):
        if nwo[0] < 20 and step >= ostart and (step - ostart) % ostep == 0:
            issue_wo(nwo[0]); nwo[0] += 1
    for g in range(32):
        e.wait_vm("K%d" % g)
        stamp('k%d' % g)
        rs = ring[("K", g)]
        for t in range(3):
            for r in range(4):
                e("v_dot2c_f32_bf16 v%d, v%d, v%d" % (vS + g, rslot(rs, t) + r, vQF + 4 * t + r))
        if g + RING < 32: issue_kv("K", g + RING, rs)
        else: issue_kv("V", g + RING - 32, rs)
        maybe_wo(g)
        if g == 0:
            lab = e.newlab("noatom")
            e("s_cmp_lg_u32 s%d, 3" % sW); e("s_cbranch_scc1 %s" % lab)
            e("s_mov_b64 exec, 1")
            e("v_mov_b32 v%d, 1" % T0)
            e.vmem("buffer_atomic_add v%d, off, %s, 0" % (T0, sr(sDBG)), counted=False)
            e("s_mov_b64 exec, -1")
            e.label(lab)
            lab = e.newlab("nof1")
            e("s_cmp_ge_u32 s%d, 2" % sW); e("s_cbranch_scc1 %s" % lab)
            e("v_bfe_u32 v%d, v0, 1, 2" % T0); e("v_lshlrev_b32 v%d, 9, v%d" % (T0, T0))
            e("v_lshrrev_b32 v%d, 3, v0" % T1); e("v_lshl_add_u32 v%d, v%d, 5, v%d" % (T0, T1, T0))
            e("v_and_b32 v%d, 1, v0" % T1); e("v_lshl_add_u32 v%d, v%d, 4, v%d" % (T0, T1, T0))
            e("ds_read_b128 %s, v%d offset:%d" % (vr(vACC), T0, L_F1))
            e("ds_read_b128 %s, v%d offset:%d" % (vr(vACC + 4), T0, L_F1 + 2048))
            e("ds_read_b128 %s, v%d offset:%d" % (vr(vACC + 8), T0, L_F1 + 4096))
            e("ds_read_b128 %s, v%d offset:%d" % (vr(vA0), T0, L_F1 + 6144))
            e("s_waitcnt lgkmcnt(0)")
            for src in (vACC + 4, vACC + 8, vA0):
                for r in range(4): e("v_add_f32 v%d, v%d, v%d" % (vACC + r, vACC + r, src + r))
            for r in range(4): e("v_min_u32 v%d, -2, v%d" % (vACC + r, vACC + r))
            e.vmem("buffer_store_dwordx4 %s, v%d, %s, 0 offen sc1" % (vr(vACC), vPUB, sr(sWS)), counted=False)
            e.label(lab)
        if g == conf_g:
            e.vmem("buffer_load_dword v%d, off, %s, 0 sc1" % (vCONF, sr(sDBG)), "conf")
        if g % 2 == 1 and g >= 3: finish_scores(g - 3)
    e("s_nop 2")
    finish_scores(30)
    def group_allreduce(v, t, op):
        e("s_nop 1")
        e("%s_dpp v%d, v%d, v%d %s %s" % (op, v, v, v, R8, DPP))
        e("v_mov_b32 v%d, v%d" % (t, v)); e("s_nop 1")
        e("v_permlane16_swap_b32 v%d, v%d" % (v, t)); e("s_nop 1")
        e("%s v%d, v%d, v%d" % (op, v, v, t))
        e("v_mov_b32 v%d, v%d" % (t, v)); e("s_nop 1")
        e("v_permlane32_swap_b32 v%d, v%d" % (v, t)); e("s_nop 1")
        e("%s v%d, v%d, v%d" % (op, v, v, t))
    group_allreduce(vMW, T0, "v_max_f32")
    l2e = hx(f2u(LOG2E))
    for g in range(32): e("v_sub_f32 v%d, v%d, v%d" % (vS + g, vS + g, vMW))
    for g in range(32): e("v_mul_f32 v%d, %s, v%d" % (vS + g, l2e, vS + g))
    for g in range(32): e("v_exp_f32 v%d, v%d" % (vS + g, vS + g))
    e("v_add_f32 v%d, v%d, v%d" % (vLW, vS, vS + 1)); e("v_add_f32 v%d, v%d, v%d" % (T0, vS + 2, vS + 3))
    for g in range(4, 32, 2):
        e("v_add_f32 v%d, v%d, v%d" % (vLW, vLW, vS + g)); e("v_add_f32 v%d, v%d, v%d" % (T0, T0, vS + g + 1))
    e("v_add_f32 v%d, v%d, v%d" % (vLW, vLW, T0))
    group_allreduce(vLW, T0, "v_add_f32")
    e("s_lshl_b32 s%d, s%d, 3" % (sT0, sW)); e("v_mov_b32 v%d, s%d" % (T0, sT0))
    e("ds_write_b64 v%d, v[%d:%d] offset:%d" % (T0, vMW, vLW, L_ML))
    e("v_and_b32 v%d, 3, v%d" % (T0, vL)); e("v_lshlrev_b32 v%d, 3, v%d" % (T0, T0))
    e("s_waitcnt lgkmcnt(0)")
    e("s_barrier")
    e("ds_read_b64 v[30:31], v%d offset:%d" % (T0, L_ML))
    e("s_waitcnt lgkmcnt(0)")
    e("v_mov_b32 v32, v30")
    for pat in (X1, X2):
        e("s_nop 1"); e("v_max_f32_dpp v32, v32, v32 %s %s" % (pat, DPP))
    e("v_sub_f32 v30, v30, v32"); e("v_sub_f32 v33, v%d, v32" % vMW)
    e("v_mul_f32 v30, %s, v30" % l2e); e("v_mul_f32 v33, %s, v33" % l2e)
    e("v_exp_f32 v30, v30"); e("v_exp_f32 v33, v33")
    e("s_nop 0")
    e("v_mul_f32 v30, v30, v31")
    for pat in (X1, X2):
        e("s_nop 1"); e("v_add_f32_dpp v30, v30, v30 %s %s" % (pat, DPP))
    e("v_rcp_f32 v31, v30")
    e("v_min_u32 v%d, -2, v32" % vMW); e("v_min_u32 v%d, -2, v30" % vLW)
    e("v_mul_f32 v33, v33, v31")
    vFAC = 41
    e("v_mov_b32 v%d, v33" % vFAC)
    stamp('b2')
    def conf_and_p1():
        e.wait_vm("conf")
        lab = e.newlab("confok"); lp = e.newlab("confloop")
        e("s_mov_b32 s%d, 0x10000" % sCNT)
        e.label(lp)
        e("v_readfirstlane_b32 s%d, v%d" % (sT0, vCONF))
        e("s_nop 3")
        e("s_cmp_ge_u32 s%d, 256" % sT0); e("s_cbranch_scc1 %s" % lab)
        e("s_sub_u32 s%d, s%d, 1" % (sCNT, sCNT)); e("s_cbranch_scc1 %s" % lab)
        e("s_sleep 4")
        e.vmem("buffer_load_dword v%d, off, %s, 0 sc1" % (vCONF, sr(sDBG)), counted=False)
        e("s_waitcnt vmcnt(0)")
        e("s_branch %s" % lp)
        e.label(lab)
        e("s_lshl_b32 s%d, s%d, 2" % (sT0, sPIDX)); e("s_add_u32 s%d, s%d, s%d" % (sT0, sT0, sW))
        e("s_mul_i32 s%d, s%d, 2560" % (sT1, sT0))
        e("v_lshlrev_b32 v%d, 3, v%d" % (vP1O, vL)); e("v_add_u32 v%d, s%d, v%d" % (vP1O, sT1, vP1O))
        issue_p1(True)
        e("s_mul_i32 s%d, s%d, 10240" % (sT1, sT0))
        e("s_lshl_b32 s%d, s%d, 8" % (sT2, sC5)); e("s_add_u32 s%d, s%d, s%d" % (sT1, sT1, sT2))
        e("s_mul_i32 s%d, s%d, 61440" % (sT2, sW))
        e("v_subrev_u32 v%d, s%d, v%d" % (T1, sT2, vWO))
        e("s_add_u32 s%d, s%d, 5120" % (sT2, sT1))
        e.vmem("buffer_load_dwordx4 %s, v%d, %s, s%d offen %s" % (ar(240), T1, sr(sWD), sT1, ff), "WD")
        e.vmem("buffer_load_dwordx4 %s, v%d, %s, s%d offen %s" % (ar(244), T1, sr(sWD), sT2, ff), "WD")
    vP1 = 30
    def issue_p1(counted):
        for j in range(5):
            e.vmem("buffer_load_dwordx2 %s, v%d, %s, 0 offen offset:%d sc1" % (vr(vP1 + 2 * j, 2), vP1O, sr(sWSF), 512 * j), "P1", counted=counted)

    def stage2(A2):
        e.wait_vm("WD")
        lab = e.newlab("p1ok"); lp = e.newlab("p1loop")
        e("s_mov_b32 s%d, 0x10000" % sCNT)
        e.label(lp)
        e("v_max3_u32 v%d, v30, v31, v32" % T0); e("v_max3_u32 v%d, v33, v34, v35" % T1)
        e("v_max3_u32 v%d, v%d, v36, v37" % (T0, T0)); e("v_max3_u32 v%d, v%d, v38, v39" % (T1, T1))
        e("v_max_u32 v%d, v%d, v%d" % (T0, T0, T1))
        e("v_cmp_eq_u32 vcc, -1, v%d" % T0)
        e("s_nop 1")
        e("s_cbranch_vccz %s" % lab)
        e("s_sub_u32 s%d, s%d, 1" % (sCNT, sCNT)); e("s_cbranch_scc1 %s" % lab)
        e("s_sleep 4")
        issue_p1(False)
        e("s_waitcnt vmcnt(0)")
        e("s_branch %s" % lp)
        e.label(lab)
        for j in range(1, 5):
            e("v_add_f32 v30, v30, v%d" % (30 + 2 * j)); e("v_add_f32 v31, v31, v%d" % (31 + 2 * j))
        for sw in ("v_permlane16_swap_b32", "v_permlane32_swap_b32"):
            e("v_mov_b32 v32, v30"); e("v_mov_b32 v33, v31"); e("s_nop 1")
            e("%s v30, v32" % sw); e("%s v31, v33" % sw); e("s_nop 1")
            e("v_add_f32 v30, v30, v32"); e("v_add_f32 v31, v31, v33")
        e("v_cvt_pk_bf16_f32 v32, v30, v31")
        e("v_lshlrev_b32 v30, 16, v32"); e("v_and_b32 v31, 0xffff0000, v32")
        e("s_nop 1")
        e("v_mov_b32_dpp v32, v30 %s %s" % (R8, DPP)); e("v_mov_b32_dpp v33, v31 %s %s" % (R8, DPP))
        for k in range(2):
            x, t = 30 + k, 34 + k
            e("v_mul_f32 v%d, v%d, v%d" % (t, x, x))
            e("v_mul_f32 v%d, %s, v%d" % (t, hx(f2u(0.044715)), t))
            e("v_fma_f32 v%d, v%d, v%d, v%d" % (t, t, x, x))
            e("v_mul_f32 v%d, %s, v%d" % (t, hx(f2u(-2.0 * LOG2E * 0.7978845608028654)), t))
            e("v_exp_f32 v%d, v%d" % (t, t)); e("s_nop 0")
            e("v_add_f32 v%d, 1.0, v%d" % (t, t))
            e("v_rcp_f32 v%d, v%d" % (t, t)); e("s_nop 0")
            e("v_mul_f32 v%d, v%d, v%d" % (t, x, t))
        e("v_cvt_pk_bf16_f32 v36, v34, v35")
        e("v_lshlrev_b32 v34, 16, v36"); e("v_and_b32 v35, 0xffff0000, v36")
        e("v_mul_f32 v34, v34, v32"); e("v_mul_f32 v35, v35, v33")
        e("v_cvt_pk_bf16_f32 v36, v34, v35")
        e("v_bfe_u32 v37, v%d, 3, 1" % vL); e("v_lshrrev_b32 v38, 5, v%d" % vL)
        e("v_lshl_add_u32 v37, v37, 2, v38"); e("v_lshlrev_b32 v37, 2, v37")
        e("v_add_u32 v38, 8, v37")
        e("ds_bpermute_b32 v30, v37, v36"); e("ds_bpermute_b32 v31, v38, v36")
        e("v_bfe_u32 v37, v%d, 4, 1" % vL); e("v_mul_u32_u24 v37, 0x0202, v37"); e("v_add_u32 v37, 0x0100, v37")
        e("v_lshl_or_b32 v37, v37, 16, v37")
        e("s_waitcnt lgkmcnt(0)")
        e("v_perm_b32 v30, v30, v30, v37"); e("v_perm_b32 v31, v31, v31, v37")
        afrag(A2, 30); afrag(32, 31)
        e("s_nop 1")
        mfma(vr(36), vr(A2), ar(240), "0"); mfma(vr(36), vr(32), ar(244), vr(36))
        e("s_lshl_b32 s%d, s%d, 10" % (sT0, sW))
        e("v_add_u32 v30, s%d, v%d" % (sT0, vFA))
        e("v_mov_b32 v31, %d" % L_CNT); e("v_mov_b32 v40, 1")
        e("s_nop 5")
        e("ds_write_b128 v30, %s offset:%d" % (vr(36), L_F2))
        e("s_waitcnt lgkmcnt(0)")
        e("s_mov_b64 exec, 1")
        e("ds_add_rtn_u32 v40, v31, v40")
        e("s_mov_b64 exec, -1")
        e("s_waitcnt lgkmcnt(0)")
        e("v_readfirstlane_b32 s%d, v40" % sT0)
        lab = e.newlab("nop2")
        e("s_nop 3")
        e("s_cmp_lg_u32 s%d, 3" % sT0); e("s_cbranch_scc1 %s" % lab)
        e("v_lshlrev_b32 v40, 4, v%d" % vL)
        e("ds_read_b128 %s, v40 offset:%d" % (vr(30), L_F2))
        e("ds_read_b128 %s, v40 offset:%d" % (vr(34), L_F2 + 1024))
        e("ds_read_b128 %s, v40 offset:%d" % (vr(A2), L_F2 + 2048))
        e("ds_read_b128 %s, v40 offset:%d" % (vr(T0), L_F2 + 3072))
        e("v_lshrrev_b32 v38, 3, v%d" % vL); e("v_mul_u32_u24 v38, 6144, v38")
        e("v_and_b32 v39, 7, v%d" % vL); e("v_lshl_add_u32 v38, v39, 4, v38")
        e("s_mul_i32 s%d, s%d, %d" % (sT0, sC5, 8 * 6144))
        e("s_lshl_b32 s%d, s%d, 7" % (sT1, sPIDX))
        e("s_add_u32 s%d, s%d, s%d" % (sT0, sT0, sT1)); e("s_add_u32 s%d, s%d, %d" % (sT0, sT0, WS_P2))
        e("s_waitcnt lgkmcnt(0)")
        for src in (34, A2, T0):
            for r in range(4): e("v_add_f32 v%d, v%d, v%d" % (30 + r, 30 + r, src + r))
        for r in range(4): e("v_min_u32 v%d, -2, v%d" % (30 + r, 30 + r))
        e.vmem("buffer_store_dwordx4 %s, v38, %s, s%d offen sc1" % (vr(30), sr(sWSF), sT0), counted=False)
        e("s_nop 1")
        e.label(lab)

    for g in range(32):
        A = vA0 if g % 2 == 0 else vA1
        e("v_mul_f32 v%d, v%d, v%d" % (vS + g, vS + g, vFAC))
        e("v_cvt_pk_bf16_f32 v%d, v%d, v%d" % (vS + g, vS + g, vS + g))
        afrag(A, vS + g)
        e("s_nop 0")
        e.wait_vm("V%d" % g)
        stamp('v%d' % g)
        if g == ml_g:
            lab = e.newlab("noml")
            e("s_cmp_lg_u32 s%d, 3" % sW); e("s_cbranch_scc1 %s" % lab)
            e("s_mov_b64 exec, 1")
            e.vmem("buffer_store_dwordx2 v[%d:%d], v%d, %s, 0 offen sc1" % (vMW, vLW, vPUB, sr(sWS)), counted=False)
            e("s_mov_b64 exec, -1")
            e.label(lab)
        rs = ring[("V", g)]
        for t in range(3):
            mfma(vr(vACC + 4 * t), vr(A), vr(rslot(rs, t)), "0" if g == 0 else vr(vACC + 4 * t))
        if g + RING < 32: issue_kv("V", g + RING, rs)
        maybe_wo(32 + g)
        if g == 0: conf_and_p1()
        if g == st2_g: stage2(vA1 if g % 2 == 0 else vA0)
    assert nwo[0] == 20
    stamp('vend')
    e("v_and_b32 v%d, 7, v%d" % (T0, vL)); e("v_mul_u32_u24 v%d, %d, v%d" % (T0, PSTR, T0))
    e("v_lshrrev_b32 v%d, 4, v%d" % (T1, vL)); e("v_lshl_add_u32 v%d, v%d, 2, v%d" % (T0, T1, T0))
    e("v_bfe_u32 v%d, v%d, 3, 1" % (T1, vL)); e("v_mul_u32_u24 v%d, 96, v%d" % (T1, T1))
    e("s_mul_i32 s%d, s%d, 192" % (sT0, sW))
    e("s_add_u32 s%d, s%d, %d" % (sT0, sT0, L_QP))
    e("v_add3_u32 v%d, s%d, v%d, v%d" % (T0, sT0, T0, T1))
    e("s_mov_b64 exec, %s" % sr(sVAL, 2))
    for t in range(3): e("ds_write_b128 v%d, %s offset:%d" % (vQA, vr(vACC + 4 * t), L_QP + t * 256))
    e("s_mov_b64 exec, -1")
    e("s_waitcnt lgkmcnt(0)")
    e("s_barrier")
    stamp('b3')
    vO = 52
    for i in range(0, 6, 2): e("ds_read2_b32 v[%d:%d], v%d offset0:%d offset1:%d" % (vO + i, vO + i + 1, T0, 4 * i, 4 * i + 4))
    e("s_mul_i32 s%d, s%d, 2560" % (sT0, sW))
    e("v_add_u32 v%d, s%d, v%d" % (T1, sT0, vFA))
    e("v_lshlrev_b32 v%d, 4, v0" % T2)
    e("s_waitcnt lgkmcnt(0)")
    for pat in (X1, X2, HM):
        for i in range(6): e("v_add_f32_dpp v%d, v%d, v%d %s %s" % (vO + i, vO + i, vO + i, pat, DPP))
    for i in range(6): e("v_cvt_pk_bf16_f32 v%d, v%d, v%d" % (vO + i, vO + i, vO + i))
    e("s_waitcnt vmcnt(0)")
    vY = 30
    afrag(vA0, vO)
    for i in range(12):
        A = vA0 if i % 2 == 0 else vA1
        An = vA1 if i % 2 == 0 else vA0
        if i == 0: e("s_nop 1")
        for seg in range(5):
            mfma(vr(vY + 4 * seg), vr(A), ar(4 * (5 * i + seg)), "0" if i == 0 else vr(vY + 4 * seg))
            if i < 11 and seg < 2:
                n = i + 1
                for r in (2 * seg, 2 * seg + 1):
                    if n >= 6: e("v_and_b32_dpp v%d, v%d, v%d %s %s" % (An + r, vO + n - 6, vM + r, R8, DPP))
                    else: e("v_and_b32 v%d, v%d, v%d" % (An + r, vO + n, vM + r))
    stamp('mf')
    e("s_mov_b32 exec_hi, 0")
    e("s_nop 3")
    for seg in range(5): e("ds_write_b128 v%d, %s offset:%d" % (T1, vr(vY + 4 * seg), L_YP + seg * 512))
    e("s_mov_b64 exec, -1")
    e("s_waitcnt lgkmcnt(0)")
    e("s_barrier")
    lab = e.newlab("noy")
    e("s_cmp_ge_u32 s%d, 3" % sW); e("s_cbranch_scc1 %s" % lab)
    for pp in range(4): e("ds_read_b128 %s, v%d offset:%d" % (vr(88 + 4 * pp), T2, L_YP + pp * 2560))
    e("s_waitcnt lgkmcnt(2)")
    for r in range(4): e("v_add_f32 v%d, v%d, v%d" % (88 + r, 88 + r, 92 + r))
    e("s_waitcnt lgkmcnt(0)")
    for r in range(4): e("v_add_f32 v%d, v%d, v%d" % (96 + r, 96 + r, 100 + r))
    for r in range(4): e("v_add_f32 v%d, v%d, v%d" % (88 + r, 88 + r, 96 + r))
    for r in range(4): e("v_min_u32 v%d, -2, v%d" % (88 + r, 88 + r))
    e.vmem("buffer_store_dwordx4 %s, v%d, %s, 0 offen sc1" % (vr(88), vPY, sr(sWS)), counted=False)
    e.label(lab)
    stamp('pub')
    e("s_and_b32 s%d, s2, 1" % sT0); e("s_cmp_lg_u32 s%d, 0" % sT0); e("s_cbranch_scc1 L_fin")
    e("s_cmp_ge_u32 s2, 80"); e("s_cbranch_scc1 L_fin")
    e("s_lshr_b32 s%d, s2, 1" % sCI)
    e("s_cmp_ge_u32 s%d, 20" % sCI); e("s_cselect_b32 s%d, 1, 0" % sB)
    e("s_mul_i32 s%d, s%d, 20" % (sT0, sB)); e("s_sub_u32 s%d, s%d, s%d" % (sH, sCI, sT0))
    e("v_lshlrev_b32 v10, 4, v%d" % vL)
    e("s_lshl_b32 s%d, s%d, 14" % (sT0, sCI)); e("s_lshl_b32 s%d, s%d, 12" % (sT1, sW))
    e("s_add_u32 s%d, s%d, s%d" % (sT0, sT0, sT1)); e("s_add_u32 s%d, s%d, %d" % (sT0, sT0, WS_Y))
    e("v_add_u32 v11, s%d, v10" % sT0)
    e("s_lshr_b32 s%d, s%d, 2" % (sT0, sH)); e("s_lshl_b32 s%d, s%d, 1" % (sT0, sT0)); e("s_add_u32 s%d, s%d, s%d" % (sT0, sT0, sB))
    e("s_lshl_b32 s%d, s%d, 2" % (sT0, sT0)); e("s_and_b32 s%d, s%d, 3" % (sT1, sH)); e("s_add_u32 s%d, s%d, s%d" % (sT0, sT0, sT1))
    e("s_mul_i32 s%d, s%d, 6144" % (sT0, sT0)); e("s_lshl_b32 s%d, s%d, 10" % (sT1, sW))
    e("s_add_u32 s%d, s%d, s%d" % (sT0, sT0, sT1)); e("s_add_u32 s%d, s%d, %d" % (sT0, sT0, WS_P2))
    e("v_add_u32 v12, s%d, v10" % sT0)
    e("s_add_u32 s%d, s%d, 4096" % (sT0, sT0))
    e("s_cmp_lt_u32 s%d, 2" % sW); e("s_cselect_b32 s%d, s%d, %d" % (sT0, sT0, 0x7fff0000))
    e("v_add_u32 v9, s%d, v10" % sT0)
    e("v_lshrrev_b32 v13, 3, v%d" % vL); e("v_lshlrev_b32 v13, 4, v13")
    e("s_lshl_b32 s%d, s%d, 11" % (sT0, sB)); e("s_lshl_b32 s%d, s%d, 9" % (sT1, sW))
    e("s_add_u32 s%d, s%d, s%d" % (sT0, sT0, sT1)); e("s_add_u32 s%d, s%d, %d" % (sT0, sT0, WS_ML))
    e("v_add_u32 v13, s%d, v13" % sT0)
    e("v_and_b32 v14, 31, v%d" % vL); e("v_lshlrev_b32 v14, 1, v14")
    e("s_lshl_b32 s%d, s%d, 6" % (sT0, sCI)); e("v_add_u32 v14, s%d, v14" % sT0)
    ML0, Y0, F0 = 20, 32, 48
    def ld_ml():
        for i in range(4): e("buffer_load_dwordx2 %s, v13, %s, 0 offen offset:%d sc1" % (vr(ML0 + 2 * i, 2), sr(sWS), 128 * i))
    def ld_y():
        for i in range(4): e("buffer_load_dwordx4 %s, v11, %s, 0 offen offset:%d sc1" % (vr(Y0 + 4 * i), sr(sWS), 1024 * i))
        e("buffer_load_dwordx4 %s, v12, %s, 0 offen sc1" % (vr(F0), sr(sWS)))
        e("buffer_load_dwordx4 %s, v9, %s, 0 offen sc1" % (vr(F0 + 4), sr(sWS)))
    ld_ml(); ld_y()
    e("buffer_load_ushort v15, v14, %s, 0 offen" % sr(sX))
    e("s_mov_b32 s%d, 0x10000" % sCNT)
    lab = e.newlab("mlok"); lp = e.newlab("mlloop")
    e("s_waitcnt vmcnt(7)")
    e.label(lp)
    e("v_max3_u32 v16, v20, v21, v22"); e("v_max3_u32 v17, v23, v24, v25"); e("v_max3_u32 v16, v16, v26, v27"); e("v_max_u32 v16, v16, v17")
    e("v_cmp_eq_u32 vcc, -1, v16"); e("s_nop 1")
    e("s_cbranch_vccz %s" % lab)
    e("s_sub_u32 s%d, s%d, 1" % (sCNT, sCNT)); e("s_cbranch_scc1 %s" % lab)
    e("s_sleep 2")
    ld_ml()
    e("s_waitcnt vmcnt(0)")
    e("s_branch %s" % lp)
    e.label(lab)
    def sib_reduce(op):
        for i in range(4): e("%s_dpp v%d, v%d, v%d %s %s" % (op, 56 + i, 56 + i, 56 + i, R8, DPP))
        for i in range(4): e("v_mov_b32 v%d, v%d" % (60 + i, 56 + i))
        e("s_nop 0")
        for i in range(4): e("v_permlane16_swap_b32 v%d, v%d" % (56 + i, 60 + i))
        e("s_nop 0")
        for i in range(4): e("%s v%d, v%d, v%d" % (op, 56 + i, 56 + i, 60 + i))
    for i in range(4): e("v_mov_b32 v%d, v%d" % (56 + i, 20 + 2 * i))
    sib_reduce("v_max_f32")
    for i in range(4): e("v_sub_f32 v%d, v%d, v%d" % (20 + 2 * i, 20 + 2 * i, 56 + i))
    for i in range(4): e("v_mul_f32 v%d, %s, v%d" % (20 + 2 * i, l2e, 20 + 2 * i))
    for i in range(4): e("v_exp_f32 v%d, v%d" % (20 + 2 * i, 20 + 2 * i))
    for i in range(4): e("v_mul_f32 v%d, v%d, v%d" % (20 + 2 * i, 20 + 2 * i, 21 + 2 * i))
    for i in range(4): e("v_mov_b32 v%d, v%d" % (56 + i, 20 + 2 * i))
    sib_reduce("v_add_f32")
    for i in range(4): e("v_rcp_f32 v%d, v%d" % (56 + i, 56 + i))
    for i in range(4): e("v_mul_f32 v%d, v%d, v%d" % (20 + 2 * i, 20 + 2 * i, 56 + i))
    e("v_and_b32 v16, 7, v%d" % vL); e("v_lshlrev_b32 v16, 4, v16")
    e("v_and_b32 v17, 8, v%d" % vL); e("v_add_u32 v16, v16, v17")
    e("v_cmp_ne_u32 s[%d:%d], 0, v17" % (sEX, sEX + 1))
    e("v_bfe_u32 v17, v%d, 4, 1" % vL); e("v_lshl_add_u32 v16, v17, 2, v16")
    e("v_lshrrev_b32 v17, 5, v%d" % vL); e("v_lshl_add_u32 v16, v17, 7, v16")
    e("s_lshl_b32 s%d, s%d, 8" % (sT0, sW)); e("v_add_u32 v16, s%d, v16" % sT0)
    lab = e.newlab("yok"); lp = e.newlab("yloop")
    e("s_waitcnt vmcnt(0)")
    e.label(lp)
    e("v_max3_u32 v17, v32, v33, v34"); e("v_max3_u32 v18, v35, v36, v37")
    for k in range(38, 54, 4):
        e("v_max3_u32 v17, v17, v%d, v%d" % (k, k + 1)); e("v_max3_u32 v18, v18, v%d, v%d" % (k + 2, k + 3))
    e("v_max3_u32 v17, v17, v54, v55"); e("v_max_u32 v17, v17, v18")
    e("v_cmp_eq_u32 vcc, -1, v17"); e("s_nop 1")
    e("s_cbranch_vccz %s" % lab)
    e("s_sub_u32 s%d, s%d, 1" % (sCNT, sCNT)); e("s_cbranch_scc1 %s" % lab)
    ld_y()
    e("s_waitcnt vmcnt(0)")
    e("s_branch %s" % lp)
    e.label(lab)
    for r in range(4): e("v_mul_f32 v%d, v%d, v20" % (32 + r, 32 + r))
    for r in range(4): e("v_add_f32 v%d, v%d, v%d" % (48 + r, 48 + r, 52 + r))
    for i in range(1, 4):
        for r in range(4): e("v_fmac_f32 v%d, v%d, v%d" % (32 + r, 32 + 4 * i + r, 20 + 2 * i))
    e("s_nop 1")
    for r in range(4): e("v_permlane32_swap_b32 v%d, v%d" % (32 + r, 48 + r))
    e("s_nop 1")
    for r in range(4): e("v_add_f32 v%d, v%d, v%d" % (32 + r, 32 + r, 48 + r))
    e("s_nop 1")
    e("v_permlane16_swap_b32 v32, v33"); e("v_permlane16_swap_b32 v34, v35"); e("s_nop 1")
    e("v_add_f32 v32, v32, v33"); e("v_add_f32 v34, v34, v35"); e("s_nop 1")
    e("v_add_f32_dpp v32, v32, v32 %s %s" % (R8, DPP)); e("v_add_f32_dpp v34, v34, v34 %s %s" % (R8, DPP))
    e("s_nop 0")
    e("v_cndmask_b32 v32, v32, v34, s[%d:%d]" % (sEX, sEX + 1))
    e("ds_write_b32 v16, v32 offset:%d" % L_CO)
    e("v_lshlrev_b32 v17, 2, v%d" % vL)
    e("s_waitcnt lgkmcnt(0)")
    e("s_barrier")
    e("s_cmp_lg_u32 s%d, 0" % sW); e("s_cbranch_scc1 L_fin")
    assert L_CO % 256 == 0
    for k in range(2): e("ds_read2st64_b32 v[%d:%d], v17 offset0:%d offset1:%d" % (24 + 2 * k, 25 + 2 * k, L_CO // 256 + 2 * k, L_CO // 256 + 2 * k + 1))
    e("s_waitcnt lgkmcnt(0)")
    e("v_add_f32 v24, v24, v25"); e("v_add_f32 v26, v26, v27"); e("v_add_f32 v24, v24, v26")
    e("v_cvt_pk_bf16_f32 v24, v24, v24"); e("v_and_b32 v24, 0xffff0000, v24")
    e("v_mul_f32 v25, %s, v24" % hx(f2u(-LOG2E)))
    e("v_exp_f32 v25, v25"); e("s_nop 0")
    e("v_add_f32 v25, 1.0, v25")
    e("v_rcp_f32 v25, v25"); e("s_nop 0")
    e("v_mul_f32 v25, v24, v25")
    e("v_cvt_pk_bf16_f32 v25, v25, v25"); e("v_and_b32 v25, 0xffff0000, v25")
    e("v_mov_b32 v26, v25"); e("s_nop 1")
    e("v_permlane32_swap_b32 v25, v26"); e("s_nop 1")
    e("v_mul_f32 v24, v24, v26")
    e("v_cvt_pk_bf16_f32 v24, v24, v24"); e("v_and_b32 v24, 0xffff0000, v24")
    e("v_lshlrev_b32 v15, 16, v15")
    e("v_add_f32 v24, v24, v15")
    e("v_cvt_pk_bf16_f32 v24, v24, v24")
    e("s_mov_b32 exec_hi, 0")
    e("buffer_store_short v24, v14, %s, 0 offen" % sr(sOUT))
    e("s_mov_b64 exec, -1")
    e.label("L_fin")
    if stamps:
        stamp('fin')
        n = nst[0]
        e("s_add_u32 s92, s26, %d" % STAMP_OFF); e("s_addc_u32 s93, s27, 0"); e("s_mov_b32 s94, 0x100000"); e("s_mov_b32 s95, 0x20000")
        if allw:
            e("s_lshl_b32 s%d, s2, 2" % sT0); e("s_add_u32 s%d, s%d, s%d" % (sT0, sT0, sW)); e("s_mul_i32 s%d, s%d, %d" % (sT0, sT0, 8 * n))
        else:
            e("s_cmp_lg_u32 s%d, 0" % sW); e("s_cbranch_scc1 L_end")
            e("s_mul_i32 s%d, s2, %d" % (sT0, 8 * n))
        e("v_mov_b32 v10, s%d" % sT0); e("v_mov_b32 v13, 0")
        e("s_mov_b64 exec, 1")
        for k in range(n):
            e("v_mov_b32 v12, s%d" % (sST + k))
            e("buffer_store_dwordx2 v[12:13], v10, s[92:95], 0 offen offset:%d" % (8 * k))
            e("s_nop 1")
    e.label("L_end")
    e("s_endpgm")
    e.raw('.section .rodata,"a"'); e.raw(".p2align 6"); e.raw(".amdhsa_kernel %s_kernel" % NAME)
    for s in (".amdhsa_next_free_vgpr 512", ".amdhsa_next_free_sgpr 102", ".amdhsa_accum_offset 256",
              ".amdhsa_group_segment_fixed_size 0", ".amdhsa_kernarg_size 96", ".amdhsa_user_sgpr_count 2",
              ".amdhsa_user_sgpr_kernarg_segment_ptr 1", ".amdhsa_system_sgpr_workgroup_id_x 1"):
        e(s)
    e.raw(".end_amdhsa_kernel")
    return "\n".join(e.L) + "\n", nst[0]

if __name__ == "__main__":
    import argparse
    ap = argparse.ArgumentParser()
    ap.add_argument("out"); ap.add_argument("--stamps", action="store_true")
    ap.add_argument("--opt", default="")
    a = ap.parse_args()
    kw = eval("dict(%s)" % a.opt)
    s, n = gen(stamps=a.stamps, **kw)
    hdr = open("cdna_kernels/%s.s.ref" % NAME).read().split("; Override launch")[0]
    open(a.out, "w").write(hdr + s)
    print("wrote", a.out, "stamps", n)
```

```python
import struct, sys
NAME = "recurrent_scan__gqa_block_cached__geglu_ffn__decode"

def f2u(x): return struct.unpack("<I", struct.pack("<f", x))[0]
def hx(x): return "0x%08x" % (x & 0xffffffff)
LOG2E = 1.4426950408889634

WS_Q1 = 0
WS_P1 = 0x30000
WS_P2 = 0x6C000
WS_Y  = 0xA8000
WS_ML = 0x1E8000
WS_EP = 0x1E9000
WS_SIZE = 0x1EA000
STAMP_OFF = 300 << 20
OOB = 0x7ffffff0

L_XN = 0
L_Q1 = 5120
PS2 = 528
L_QC = 9472
L_QB = 24064
L_F1 = 24576
L_F2 = 32768
L_ML = 36864
L_CNT = 36928
L_OP = 37120
PSTR = 784
L_YP = 43520
L_CO = 53760
L_END = 54272

class Em:
    def __init__(self):
        self.L = []; self.vm = []; self.lab = 0
    def __call__(self, s): self.L.append("  " + s)
    def raw(self, s): self.L.append(s)
    def label(self, n): self.L.append(n + ":")
    def newlab(self, p):
        self.lab += 1; return "L_%s_%d" % (p, self.lab)
    def vmem(self, s, tag=None, counted=True):
        self.L.append("  " + s)
        if counted: self.vm.append(tag)
    def behind(self, tag):
        idx = max(i for i, t in enumerate(self.vm) if t == tag)
        return len(self.vm) - 1 - idx
    def wait_vm(self, tag):
        self("s_waitcnt vmcnt(%d)" % min(self.behind(tag), 63))

def vr(a, n=4): return "v[%d:%d]" % (a, a + n - 1)
def ar(a, n=4): return "a[%d:%d]" % (a, a + n - 1)
def sr(a, n=4): return "s[%d:%d]" % (a, a + n - 1)
DPP = "row_mask:0xf bank_mask:0xf"
X1, X2, HM, RM, R8 = "quad_perm:[1,0,3,2]", "quad_perm:[2,3,0,1]", "row_half_mirror", "row_mirror", "row_ror:8"

def gen(stamps=False, kvf="nt", wf="", qf="", ff="", RING=14, NE=5, st2_g=8, p1_g=0, ml_g=31, allw=False,
        sel=('b1', 'b2', 'vend', 'pub', 'fin'), ostep=2, ostart=0, k_pre=3, k_mid=3, qc_after=14, win=0, tmo=0x10000,
        trace=False, xspec=True, mlsleep=2, epsleep=4, nopoll=False, nocheck=False, stf='sc1', yf='sc1'):
    e = Em()
    vL, vKV, vWQ, vWO, vPY = 1, 2, 3, 4, 5
    vM = 6; vA0 = 10; vA1 = 14; vACC = 18; vQF = 30; vS = 42
    vMW, vTAG, vLW = 74, 75, 76
    vQA, vFA, vP1O, vF1 = 78, 79, 80, 81
    T0, T1, T2, T3, T4, T5 = 82, 83, 84, 85, 86, 87
    RB = 256 - 12 * RING
    assert RB >= 88
    def rslot(i, t): return RB + 12 * i + 4 * t
    AVE = 240 - 12 * NE
    sK, sV, sRE, sWO, sX, sRO, sWD, sWS, sOUT, sWSF = 28, 32, 36, 40, 44, 48, 56, 60, 64, 92
    sS1, sS2, sKH, sNT = 52, 53, 54, 55
    sTAG, sU, sACT, sFACT = 68, 69, 70, 71
    sW, sB, sH, sP, sFS, sKR, sC5, sRB, sSO, sT0, sT1, sT2 = 72, 73, 74, 75, 76, 77, 78, 79, 80, 81, 82, 83
    sEX = 84; sVAL = 86; sCNT = 88; sCI = 89; sPIDX = 90; sWQO = 91
    sST = 96
    nst = [0]
    def stamp(name):
        if trace: trace_pt(name); return
        if not stamps or name not in sel: return
        e("s_memrealtime s[%d:%d]" % (sEX, sEX + 1))
        e("s_waitcnt lgkmcnt(0)")
        e("s_mov_b32 s%d, s%d" % (sST + nst[0], sEX))
        nst[0] += 1
    tr = [0]; trnames = []
    def trace_pt(name):
        if not trace: return
        k = tr[0]; tr[0] += 1; trnames.append(name)
        e("s_memrealtime s[%d:%d]" % (sST + 2, sST + 3))
        e("s_waitcnt lgkmcnt(0)")
        e("v_writelane_b32 v%d, s%d, %d" % (88 + k // 64, sST + 2, k % 64))
    def mfma(d, a, b, c): e("v_mfma_f32_16x16x32_bf16 %s, %s, %s, %s" % (d, a, b, c))
    def afrag(dst, src):
        for r in range(4): e("v_and_b32 v%d, v%d, v%d" % (dst + r, src, vM + r))
    def tagcheck(tags, t0, t1, oklab):
        tg = list(tags)
        e("v_min3_u32 v%d, v%d, v%d, v%d" % (t0, vTAG, tg[0], tg[1])); e("v_max3_u32 v%d, v%d, v%d, v%d" % (t1, vTAG, tg[0], tg[1]))
        for k in range(2, len(tg), 2):
            e("v_min3_u32 v%d, v%d, v%d, v%d" % (t0, t0, tg[k], tg[k + 1])); e("v_max3_u32 v%d, v%d, v%d, v%d" % (t1, t1, tg[k], tg[k + 1]))
        e("v_cmp_ne_u32 vcc, v%d, v%d" % (t0, t1))
        e("s_nop 1")
        e("s_cbranch_vccz %s" % oklab)
    def poll(name, tags, t0, t1, reload, sleep=4):
        if nocheck: return
        lab = e.newlab(name + "ok"); lp = e.newlab(name + "loop")
        e("s_mov_b32 s%d, %d" % (sCNT, tmo))
        e.label(lp)
        tagcheck(tags, t0, t1, lab)
        e("s_sub_u32 s%d, s%d, 1" % (sCNT, sCNT)); e("s_cbranch_scc1 %s" % lab)
        if sleep: e("s_sleep %d" % sleep)
        reload()
        e("s_waitcnt vmcnt(0)")
        e("s_branch %s" % lp)
        e.label(lab)

    e.raw("; @launch grid=(256,1,1) block=(256,1,1) lds=%d" % L_END)
    e.raw('.amdgcn_target "amdgcn-amd-amdhsa--gfx950"')
    e.raw(".text"); e.raw(".globl %s_kernel" % NAME); e.raw(".p2align 8"); e.raw(".type %s_kernel,@function" % NAME)
    e.label("%s_kernel" % NAME)
    e("s_cmp_ge_u32 s2, 256"); e("s_cbranch_scc1 L_end")
    e("s_load_dwordx16 s[4:19], s[0:1], 0")
    e("s_load_dwordx8 s[20:27], s[0:1], 64")
    if stamps or trace:
        e("s_memrealtime s[%d:%d]" % (sST, sST + 1)); nst[0] = 1
    e("v_and_b32 v%d, 63, v0" % vL)
    e("v_lshrrev_b32 v%d, 6, v0" % T0)
    e("v_lshrrev_b32 v%d, 3, v%d" % (T1, vL))
    e("v_and_b32 v%d, 7, v%d" % (T2, vL))
    e("v_readfirstlane_b32 s%d, v%d" % (sW, T0))
    e("v_mul_u32_u24 v%d, 384, v%d" % (vKV, T1))
    e("v_lshl_add_u32 v%d, v%d, 4, v%d" % (vKV, T2, vKV))
    e("v_mul_u32_u24 v%d, 3072, v%d" % (T3, T0))
    e("v_add_u32 v%d, v%d, v%d" % (vKV, vKV, T3))
    e("v_lshl_add_u32 v%d, v%d, 3, v%d" % (vWQ, T0, T1))
    e("v_mul_u32_u24 v%d, 12288, v%d" % (vWQ, vWQ))
    e("v_lshl_add_u32 v%d, v%d, 4, v%d" % (vWQ, T2, vWQ))
    e("v_lshrrev_b32 v%d, 5, v%d" % (T3, vL))
    e("v_mul_u32_u24 v%d, 1280, v%d" % (T3, T3))
    e("v_and_b32 v%d, 31, v%d" % (T5, vL))
    e("v_lshl_add_u32 v%d, v%d, 4, v%d" % (T4, T5, T3))
    e("v_lshl_add_u32 v%d, v%d, 3, v%d" % (T5, T5, T3))
    e("v_lshrrev_b32 v%d, 4, v%d" % (T3, vL))
    e("v_lshl_add_u32 v%d, v%d, 2, v%d" % (vF1, T0, T3))
    e("v_mul_u32_u24 v%d, 3072, v%d" % (vF1, vF1))
    e("v_and_b32 v%d, 15, v%d" % (T1, vL))
    e("v_lshl_add_u32 v%d, v%d, 4, v%d" % (vF1, T1, vF1))
    e("s_and_b32 s%d, s2, 7" % sT0)
    e("s_lshr_b32 s%d, s2, 3" % sT1)
    e("s_lshr_b32 s%d, s%d, 3" % (sT2, sT1))
    e("s_lshl_b32 s%d, s%d, 2" % (sH, sT0))
    e("s_add_u32 s%d, s%d, s%d" % (sH, sH, sT2))
    e("s_and_b32 s%d, s%d, 7" % (sU, sT1))
    e("s_lshr_b32 s%d, s%d, 2" % (sB, sU))
    e("s_and_b32 s%d, s%d, 3" % (sT1, sT1))
    e("s_lshl_b32 s%d, s%d, 2" % (sP, sH))
    e("s_add_u32 s%d, s%d, s%d" % (sP, sP, sT1))
    e("s_lshl_b32 s%d, s%d, 7" % (sT0, sB))
    e("s_add_u32 s%d, s%d, s%d" % (sT0, sT0, sP))
    e("s_mul_i32 s%d, s%d, 393216" % (sT0, sT0))
    e("s_mov_b32 s%d, 393216" % (sK + 2)); e("s_mov_b32 s%d, 0x20000" % (sK + 3))
    e("s_mov_b32 s%d, 2560" % (sX + 2)); e("s_mov_b32 s%d, 0x20000" % (sX + 3))
    e("s_cmp_ge_u32 s%d, 3" % sU); e("s_cselect_b32 s%d, 1, 0" % sKH)
    e("s_mul_i32 s%d, s%d, 3" % (sT1, sKH)); e("s_sub_u32 s%d, s%d, s%d" % (sNT, sU, sT1))
    e("s_mul_i32 s%d, s%d, %d" % (sCI, sKH, 320 * 12288))
    e("s_mul_i32 s%d, s%d, 384" % (sT1, sH)); e("s_add_u32 s%d, s%d, s%d" % (sCI, sCI, sT1))
    e("s_lshl_b32 s%d, s%d, 7" % (sT1, sNT)); e("s_add_u32 s%d, s%d, s%d" % (sCI, sCI, sT1))
    e("s_lshl_b32 s%d, s%d, 1" % (sT1, sH)); e("s_add_u32 s%d, s%d, s%d" % (sT1, sT1, sU)); e("s_sub_u32 s%d, s%d, 6" % (sT1, sT1))
    e("s_and_b32 s%d, s%d, 63" % (sT1, sT1))
    e("s_mul_i32 s%d, s%d, 43" % (sKR, sT1)); e("s_lshr_b32 s%d, s%d, 9" % (sKR, sKR))
    e("s_mul_i32 s%d, s%d, 12" % (sT2, sKR)); e("s_sub_u32 s%d, s%d, s%d" % (sFS, sT1, sT2))
    e("s_cmp_lt_u32 s%d, 60" % sT1); e("s_cselect_b32 s%d, %d, 0" % (sFACT, 127 * 3072 + 256))
    e("s_min_u32 s%d, s%d, 4" % (sKR, sKR))
    e("s_mul_i32 s%d, s%d, %d" % (sCNT, sKR, 128 * 3072))
    e("s_lshl_b32 s%d, s%d, 8" % (sT2, sFS)); e("s_add_u32 s%d, s%d, s%d" % (sCNT, sCNT, sT2))
    e("s_mov_b32 s%d, 0x20000" % (sRE + 3)); e("s_mov_b32 s%d, 0x20000" % (sRO + 3))
    e("s_mov_b32 s%d, 786432" % sS2)
    e("s_cmp_ge_u32 s%d, 6" % sU)
    e("s_cselect_b32 s%d, s%d, %d" % (sRE + 2, sFACT, 319 * 12288 + 128))
    e("s_cselect_b32 s%d, s%d, %d" % (sRO + 2, sFACT, 319 * 12288 + 128))
    e("s_cselect_b32 s%d, 0, 393216" % sS1)
    e("s_cselect_b32 s%d, 49152, s%d" % (sS2, sS2))
    e("s_cselect_b32 s%d, s%d, s%d" % (sCI, sCNT, sCI))
    e("s_cselect_b64 vcc, -1, 0")
    e("s_waitcnt lgkmcnt(0)")
    e("s_cselect_b32 s%d, s16, s10" % sRE); e("s_cselect_b32 s%d, s17, s11" % (sRE + 1))
    e("s_cselect_b32 s%d, s18, s10" % sRO); e("s_cselect_b32 s%d, s19, s11" % (sRO + 1))
    e("s_mov_b32 s%d, s4" % sX); e("s_mov_b32 s%d, s5" % (sX + 1))
    e("v_cndmask_b32 v%d, v%d, v%d, vcc" % (vWQ, vWQ, vF1))
    e.vmem("buffer_load_dwordx4 %s, v%d, %s, 0 offen" % (vr(18), T4, sr(sX)), "x")
    e.vmem("buffer_load_dwordx4 %s, v%d, %s, 0 offen offset:512" % (vr(22), T4, sr(sX)), "x")
    e.vmem("buffer_load_dwordx2 %s, v%d, %s, 0 offen offset:1024" % (vr(26, 2), T5, sr(sX)), "x")
    e("s_add_u32 s%d, s%d, s%d" % (sRE, sRE, sCI)); e("s_addc_u32 s%d, s%d, 0" % (sRE + 1, sRE + 1))
    e("s_add_u32 s%d, s%d, s%d" % (sRO, sRO, sCI)); e("s_addc_u32 s%d, s%d, 0" % (sRO + 1, sRO + 1))
    e("s_add_u32 s%d, s6, s%d" % (sK, sT0)); e("s_addc_u32 s%d, s7, 0" % (sK + 1))
    e("s_add_u32 s%d, s8, s%d" % (sV, sT0)); e("s_addc_u32 s%d, s9, 0" % (sV + 1))

    ring = {}
    curwin = [0]
    def throttle(n=3):
        if curwin[0] and len(e.vm) + n > curwin[0]: e("s_waitcnt vmcnt(%d)" % (curwin[0] - n))
    def issue_kv(kind, g, rs):
        throttle()
        ring[(kind, g)] = rs
        srd = sK if kind == "K" else sV
        if g == 0: so = "0"
        else:
            e("s_mov_b32 s%d, %d" % (sSO, g * 12288)); so = "s%d" % sSO
        for t in range(3):
            e.vmem("buffer_load_dwordx4 %s, v%d, %s, %s offen offset:%d %s" % (reg_of(rs, t), vKV, sr(srd), so, t * 128, kvf), "%s%d" % (kind, g))
    def reg_of(rs, t):
        return ar(rs[1] + 4 * t) if isinstance(rs, tuple) else vr(rslot(rs, t))
    def issue_wo(n):
        throttle()
        last = None
        for t in range(3):
            q = 3 * n + t; i, seg = q // 5, q % 5
            if i == 0: so = "0"
            else:
                if last != i: e("s_mov_b32 s%d, %d" % (sSO, i * 5120))
                so = "s%d" % sSO
            last = i
            e.vmem("buffer_load_dwordx4 %s, v%d, %s, %s offen offset:%d %s" % (ar(4 * q), vWO, sr(sWO), so, seg * 256, wf), "O%d" % n)
    e("s_mov_b32 s%d, 0" % sCNT)
    for m in range(8):
        e.vmem("buffer_load_dwordx4 %s, v%d, %s, s%d offen %s" % (ar(8 * m), vWQ, sr(sRE), sCNT, qf), "R")
        e("s_add_u32 s%d, s%d, s%d" % (sSO, sCNT, sS1))
        e.vmem("buffer_load_dwordx4 %s, v%d, %s, s%d offen %s" % (ar(8 * m + 4), vWQ, sr(sRO), sSO, qf), "R")
        if m < 7: e("s_add_u32 s%d, s%d, s%d" % (sCNT, sCNT, sS2))
    e("s_add_u32 s%d, s26, %d" % (sEX, WS_EP)); e("s_addc_u32 s%d, s27, 0" % (sEX + 1))
    e("s_load_dword s%d, s[%d:%d], 0" % (sTAG, sEX, sEX + 1))
    e("s_mov_b32 s%d, 393216" % (sV + 2)); e("s_mov_b32 s%d, 0x20000" % (sV + 3))
    e("s_mul_i32 s%d, s%d, 245760" % (sT0, sH))
    e("s_add_u32 s%d, s12, s%d" % (sWO, sT0)); e("s_addc_u32 s%d, s13, 0" % (sWO + 1))
    e("s_mov_b32 s%d, 245760" % (sWO + 2)); e("s_mov_b32 s%d, 0x20000" % (sWO + 3))
    e("s_mov_b32 s%d, s26" % sWS); e("s_mov_b32 s%d, s27" % (sWS + 1))
    e("s_mov_b32 s%d, %d" % (sWS + 2, WS_SIZE)); e("s_mov_b32 s%d, 0x20000" % (sWS + 3))
    e("s_mov_b32 s%d, s22" % sOUT); e("s_mov_b32 s%d, s23" % (sOUT + 1))
    e("s_mov_b32 s%d, 2560" % (sOUT + 2)); e("s_mov_b32 s%d, 0x20000" % (sOUT + 3))
    e("s_lshl_b32 s%d, s%d, 2" % (sT0, sH)); e("s_add_u32 s%d, s%d, s%d" % (sT0, sT0, sU))
    e("s_mul_i32 s%d, s%d, 205" % (sRB, sT0)); e("s_lshr_b32 s%d, s%d, 10" % (sRB, sRB))
    e("s_mul_i32 s%d, s%d, 5" % (sT1, sRB)); e("s_sub_u32 s%d, s%d, s%d" % (sC5, sT0, sT1))
    e("s_cmp_lt_u32 s%d, 4" % sU); e("s_cselect_b32 s%d, s%d, 255" % (sT0, sT0))
    e("s_cmp_lt_u32 s%d, 120" % sT0)
    e("s_cselect_b32 s%d, %d, 0" % (sWD + 2, 1536 * 1280))
    e("s_cselect_b32 s%d, %d, 0" % (sWSF + 2, WS_Y))
    e("s_cselect_b32 s%d, 1, 0" % sACT)
    e("s_mov_b32 s%d, s20" % sWD); e("s_mov_b32 s%d, s21" % (sWD + 1)); e("s_mov_b32 s%d, 0x20000" % (sWD + 3))
    e("s_mov_b32 s%d, s26" % sWSF); e("s_mov_b32 s%d, s27" % (sWSF + 1)); e("s_mov_b32 s%d, 0x20000" % (sWSF + 3))
    e("s_mov_b32 s%d, 0x00ff00ff" % sVAL); e("s_mov_b32 s%d, 0xff00ff00" % (sVAL + 1))
    e("v_mul_u32_u24 v%d, 1280, v%d" % (vWO, T3))
    e("v_lshl_add_u32 v%d, v%d, 4, v%d" % (vWO, T1, vWO))
    e("s_mul_i32 s%d, s%d, 61440" % (sT0, sW))
    e("v_add_u32 v%d, s%d, v%d" % (vWO, sT0, vWO))
    e("v_lshrrev_b32 v%d, 5, v%d" % (T0, vL))
    e("v_and_b32 v%d, 16, v%d" % (T3, vL))
    e("v_lshl_add_u32 v%d, v%d, 5, v%d" % (vP1O, T2, T3))
    e("v_mul_u32_u24 v%d, %d, v%d" % (vQA, PSTR, T0)); e("v_add_u32 v%d, v%d, v%d" % (vQA, vQA, vP1O))
    e("s_mul_i32 s%d, s%d, %d" % (sT0, sW, 2 * PSTR))
    e("v_add_u32 v%d, s%d, v%d" % (vQA, sT0, vQA))
    e("v_mul_u32_u24 v%d, %d, v%d" % (vF1, PS2, T0)); e("v_add_u32 v%d, v%d, v%d" % (vF1, vF1, vP1O))
    e("s_mul_i32 s%d, s%d, %d" % (sT0, sW, 2 * PS2))
    e("v_add_u32 v%d, s%d, v%d" % (vF1, sT0, vF1))
    e("v_lshlrev_b32 v%d, 9, v%d" % (vFA, T0)); e("v_lshl_add_u32 v%d, v%d, 5, v%d" % (vFA, T1, vFA))
    e("v_add_u32 v%d, v%d, v%d" % (vFA, vFA, T3))
    e("v_lshrrev_b32 v%d, 3, v%d" % (T0, vL)); e("v_lshlrev_b32 v%d, 14, v%d" % (T0, T0))
    e("v_lshl_add_u32 v%d, v%d, 4, v%d" % (T0, T2, T0))
    e("s_mul_i32 s%d, s%d, 4" % (sT0, sB)); e("s_add_u32 s%d, s%d, s%d" % (sT0, sT0, sW)); e("s_mul_i32 s%d, s%d, %d" % (sT0, sT0, 10 * 16384))
    e("s_lshl_b32 s%d, s%d, 7" % (sT1, sP))
    e("s_add_u32 s%d, s%d, s%d" % (sT0, sT0, sT1)); e("s_add_u32 s%d, s%d, %d" % (sT0, sT0, WS_Y))
    e("v_add_u32 v%d, s%d, v%d" % (vPY, sT0, T0))
    e("v_and_b32 v%d, 1, v%d" % (T0, vL))
    e("v_lshlrev_b32 v%d, 4, v%d" % (T0, T0))
    e("v_mov_b32 v%d, 0xffff" % T1)
    e("v_lshlrev_b32 v%d, v%d, v%d" % (T0, T0, T1))
    e("v_bfe_u32 v%d, v%d, 1, 2" % (T1, vL))
    for r in range(4):
        e("v_cmp_eq_u32 vcc, %d, v%d" % (r, T1))
        e("s_nop 1")
        e("v_cndmask_b32 v%d, 0, v%d, vcc" % (vM + r, T0))
    kn = [0]
    def more_k(n):
        for _ in range(n):
            if kn[0] < RING: issue_kv("K", kn[0], kn[0]); trace_pt("ik%d" % kn[0]); kn[0] += 1
    more_k(k_pre)
    stamp('iss')
    e.wait_vm("x")
    X = 28
    for r in range(10):
        e("v_lshlrev_b32 v%d, 16, v%d" % (X + 2 * r, 18 + r))
        e("v_and_b32 v%d, 0xffff0000, v%d" % (X + 2 * r + 1, 18 + r))
    def half_allreduce(v, t, op="v_add_f32"):
        for pat in (X1, X2, HM, RM):
            e("s_nop 1")
            e("%s_dpp v%d, v%d, v%d %s %s" % (op, v, v, v, pat, DPP))
        e("v_mov_b32 v%d, v%d" % (t, v))
        e("s_nop 1")
        e("v_permlane16_swap_b32 v%d, v%d" % (v, t))
        e("s_nop 1")
        e("%s v%d, v%d, v%d" % (op, v, v, t))
    for r in range(4): e("v_add_f32 v%d, v%d, v%d" % (48 + r, X + r, X + 4 + r))
    for k in range(8, 20): e("v_add_f32 v%d, v%d, v%d" % (48 + k % 4, 48 + k % 4, X + k))
    e("v_add_f32 v48, v48, v49"); e("v_add_f32 v50, v50, v51"); e("v_add_f32 v48, v48, v50")
    half_allreduce(48, 49)
    e("v_mul_f32 v48, %s, v48" % hx(f2u(1.0 / 640)))
    for k in range(20):
        e("v_sub_f32 v%d, v%d, v48" % (18 + k % 4, X + k))
        if k < 4: e("v_mul_f32 v%d, v%d, v%d" % (52 + k, 18 + k, 18 + k))
        else: e("v_fmac_f32 v%d, v%d, v%d" % (52 + k % 4, 18 + k % 4, 18 + k % 4))
    e("v_add_f32 v52, v52, v53"); e("v_add_f32 v54, v54, v55"); e("v_add_f32 v52, v52, v54")
    half_allreduce(52, 53)
    e("v_mul_f32 v52, %s, v52" % hx(f2u(1.0 / 640)))
    e("v_cvt_pk_bf16_f32 v48, v48, v52")
    e("v_and_b32 v52, 0xffff0000, v48")
    e("v_lshlrev_b32 v48, 16, v48")
    e("v_add_f32 v52, %s, v52" % hx(f2u(1e-5)))
    e("v_cvt_pk_bf16_f32 v52, v52, v52")
    e("v_and_b32 v52, 0xffff0000, v52")
    e("v_sqrt_f32 v52, v52")
    e("s_nop 0")
    e("v_cvt_pk_bf16_f32 v52, v52, v52")
    e("v_and_b32 v52, 0xffff0000, v52")
    e("v_rcp_f32 v53, v52")
    for k in range(0, 20, 2):
        a, b2 = X + k, X + k + 1
        e("v_sub_f32 v%d, v%d, v48" % (a, a)); e("v_sub_f32 v%d, v%d, v48" % (b2, b2))
        e("v_cvt_pk_bf16_f32 v18, v%d, v%d" % (a, b2))
        e("v_lshlrev_b32 v%d, 16, v18" % a); e("v_and_b32 v%d, 0xffff0000, v18" % b2)
        e("v_mul_f32 v19, v%d, v53" % a); e("v_mul_f32 v20, v%d, v53" % b2)
        e("v_fma_f32 v%d, -v19, v52, v%d" % (a, a)); e("v_fma_f32 v%d, -v20, v52, v%d" % (b2, b2))
        e("v_fmac_f32 v19, v%d, v53" % a); e("v_fmac_f32 v20, v%d, v53" % b2)
        e("v_cvt_pk_bf16_f32 v%d, v19, v19" % a); e("v_cvt_pk_bf16_f32 v%d, v20, v20" % b2)
    e("v_lshlrev_b32 v%d, 1, v%d" % (T4, T4)); e("v_lshlrev_b32 v%d, 1, v%d" % (T5, T5))
    e("ds_write_b128 v%d, %s offset:%d" % (T4, vr(X), L_XN))
    e("ds_write_b128 v%d, %s offset:%d" % (T4, vr(X + 4), L_XN + 16))
    e("ds_write_b128 v%d, %s offset:%d" % (T4, vr(X + 8), L_XN + 1024))
    e("ds_write_b128 v%d, %s offset:%d" % (T4, vr(X + 12), L_XN + 1024 + 16))
    e("ds_write_b128 v%d, %s offset:%d" % (T5, vr(X + 16), L_XN + 2048))
    e("v_mov_b32 v%d, %d" % (T4, L_CNT)); e("v_mov_b32 v%d, 0" % T5)
    e("s_waitcnt lgkmcnt(0)")
    e("s_add_u32 s%d, s%d, 1" % (sTAG, sTAG))
    e("ds_write_b32 v%d, v%d" % (T4, T5))
    e("v_mov_b32 v%d, s%d" % (vTAG, sTAG)); e("v_mov_b32 v%d, s%d" % (vTAG + 2, sTAG))
    more_k(k_mid)
    stamp('ln')
    e("s_cmp_ge_u32 s%d, 6" % sU); e("s_cbranch_scc1 L_frole")
    e("s_mul_i32 s%d, s%d, 1280" % (sT0, sKH)); e("s_lshl_b32 s%d, s%d, 5" % (sT1, sW)); e("s_add_u32 s%d, s%d, s%d" % (sT0, sT0, sT1))
    e("v_lshrrev_b32 v%d, 3, v%d" % (T0, vL)); e("v_lshlrev_b32 v%d, 2, v%d" % (T1, T0))
    e("v_add_u32 v%d, s%d, v%d" % (T1, sT0, T1))
    for n in range(10):
        e("ds_read_b32 v%d, v%d offset:%d" % (vS + 2 * n, T1, 128 * n))
        e("ds_read_b32 v%d, v%d offset:%d" % (vS + 2 * n + 1, T1, 128 * n + 2560))
        if n == 6: e("s_waitcnt lgkmcnt(8)")
    e("s_waitcnt lgkmcnt(0)")
    for n in range(10):
        afrag(vA0, vS + 2 * n); afrag(vA1, vS + 2 * n + 1)
        if n == 0: e.wait_vm("R")
        else: e("s_nop 0")
        mfma(vr(vACC), vr(vA0), ar(4 * n), "0" if n == 0 else vr(vACC))
        mfma(vr(vACC + 4), vr(vA1), ar(4 * n), "0" if n == 0 else vr(vACC + 4))
    e("v_lshlrev_b32 v%d, 3, v%d" % (T1, vL))
    e("v_lshrrev_b32 v%d, 5, v%d" % (T3, vL)); e("v_mul_u32_u24 v%d, 3072, v%d" % (T3, T3))
    e("v_and_b32 v%d, 31, v%d" % (T4, vL)); e("v_lshl_add_u32 v%d, v%d, 4, v%d" % (T3, T4, T3))
    e("s_mul_i32 s%d, s%d, 6144" % (sT0, sH)); e("s_mul_i32 s%d, s%d, 1536" % (sT1, sKH)); e("s_add_u32 s%d, s%d, s%d" % (sT0, sT0, sT1))
    e("s_lshl_b32 s%d, s%d, 9" % (sT1, sNT)); e("s_add_u32 s%d, s%d, s%d" % (sT0, sT0, sT1))
    e("s_mov_b64 exec, %s" % sr(sVAL, 2))
    e("ds_write_b128 v%d, %s offset:%d" % (vF1, vr(vACC), L_Q1))
    e("ds_write_b128 v%d, %s offset:%d" % (vF1, vr(vACC + 4), L_Q1 + 256))
    e("s_mov_b64 exec, -1")
    e("s_waitcnt lgkmcnt(0)")
    e("s_barrier")
    e("s_cmp_lg_u32 s%d, 0" % sW); e("s_cbranch_scc1 L_rdone")
    for pp in range(8): e("ds_read_b64 %s, v%d offset:%d" % (vr(vS + 2 * pp, 2), T1, L_Q1 + pp * PS2))
    e("v_mov_b32 v19, v%d" % vTAG); e("v_mov_b32 v21, v%d" % vTAG)
    e("s_waitcnt lgkmcnt(6)")
    e("v_add_f32 v18, v%d, v%d" % (vS, vS + 2)); e("v_add_f32 v20, v%d, v%d" % (vS + 1, vS + 3))
    for pp in range(2, 8):
        e("s_waitcnt lgkmcnt(%d)" % (7 - pp))
        e("v_add_f32 v18, v18, v%d" % (vS + 2 * pp)); e("v_add_f32 v20, v20, v%d" % (vS + 2 * pp + 1))
    e.vmem("buffer_store_dwordx4 v[18:21], v%d, %s, s%d offen %s" % (T3, sr(sWS), sT0, stf), counted=False)
    e("s_branch L_rdone")
    e.label("L_frole")
    e("v_bfe_u32 v%d, v%d, 3, 1" % (T0, vL)); e("v_mul_u32_u24 v%d, 2560, v%d" % (T0, T0))
    e("v_lshrrev_b32 v%d, 4, v%d" % (T3, vL)); e("v_lshl_add_u32 v%d, v%d, 2, v%d" % (T0, T3, T0))
    e("s_lshl_b32 s%d, s%d, 9" % (sT0, sKR)); e("s_lshl_b32 s%d, s%d, 4" % (sT1, sW)); e("s_add_u32 s%d, s%d, s%d" % (sT0, sT0, sT1))
    e("v_add_u32 v%d, s%d, v%d" % (T0, sT0, T0))
    for m in range(0, 8, 2): e("ds_read2_b32 v[%d:%d], v%d offset0:%d offset1:%d" % (vS + m, vS + m + 1, T0, 16 * m, 16 * m + 16))
    e("s_waitcnt lgkmcnt(0)")
    for m in range(8):
        A = vA0 if m % 2 == 0 else vA1
        afrag(A, vS + m)
        e("s_nop 0")
        if m == 0: e.wait_vm("R")
        else: e("s_nop 0")
        mfma(vr(vACC), vr(A), ar(8 * m), "0" if m == 0 else vr(vACC))
        mfma(vr(vACC + 4), vr(A), ar(8 * m + 4), "0" if m == 0 else vr(vACC + 4))
    e("s_lshl_b32 s%d, s%d, 11" % (sT0, sW))
    e("v_add_u32 v%d, s%d, v%d" % (T0, sT0, vFA))
    e("v_bfe_u32 v%d, v0, 2, 2" % T2); e("v_lshlrev_b32 v%d, 9, v%d" % (T2, T2))
    e("v_lshrrev_b32 v%d, 4, v0" % T3); e("v_lshl_add_u32 v%d, v%d, 5, v%d" % (T2, T3, T2))
    e("v_and_b32 v%d, 3, v0" % T4); e("v_lshl_add_u32 v%d, v%d, 3, v%d" % (T2, T4, T2))
    e("v_lshlrev_b32 v%d, 4, v0" % T3)
    e("s_mul_i32 s%d, s%d, 49152" % (sT0, sKR)); e("s_lshl_b32 s%d, s%d, 12" % (sT1, sFS))
    e("s_add_u32 s%d, s%d, s%d" % (sT0, sT0, sT1)); e("s_add_u32 s%d, s%d, %d" % (sT0, sT0, WS_P1))
    e("ds_write_b128 v%d, %s offset:%d" % (T0, vr(vACC), L_F1))
    e("ds_write_b128 v%d, %s offset:%d" % (T0, vr(vACC + 4), L_F1 + 1024))
    e("s_waitcnt lgkmcnt(0)")
    e("s_barrier")
    e("s_cmp_eq_u32 s%d, 0" % sFACT); e("s_cbranch_scc1 L_rdone")
    for pp in range(4): e("ds_read_b64 %s, v%d offset:%d" % (vr(vS + 2 * pp, 2), T2, L_F1 + pp * 2048))
    e("v_mov_b32 v19, v%d" % vTAG); e("v_mov_b32 v21, v%d" % vTAG)
    e("s_waitcnt lgkmcnt(0)")
    e("v_add_f32 v18, v%d, v%d" % (vS, vS + 2)); e("v_add_f32 v20, v%d, v%d" % (vS + 1, vS + 3))
    e("v_add_f32 v18, v18, v%d" % (vS + 4)); e("v_add_f32 v20, v20, v%d" % (vS + 5))
    e("v_add_f32 v18, v18, v%d" % (vS + 6)); e("v_add_f32 v20, v20, v%d" % (vS + 7))
    e.vmem("buffer_store_dwordx4 v[18:21], v%d, %s, s%d offen %s" % (T3, sr(sWS), sT0, stf), counted=False)
    e.label("L_rdone")
    stamp('q1')
    e("s_lshl_b32 s%d, s%d, 1" % (sT0, sH)); e("s_add_u32 s%d, s%d, s%d" % (sT0, sT0, sB)); e("s_mul_i32 s%d, s%d, 3072" % (sT0, sT0))
    e("s_mul_i32 s%d, s%d, 768" % (sT1, sW)); e("s_add_u32 s%d, s%d, s%d" % (sT0, sT0, sT1))
    e("v_lshlrev_b32 v%d, 4, v%d" % (T4, vL)); e("v_add_u32 v%d, s%d, v%d" % (vWQ, sT0, T4))
    vQC = vS
    def issue_qc(counted):
        e.vmem("buffer_load_dwordx4 %s, v%d, %s, 0 offen sc1" % (vr(vQC), vWQ, sr(sWS)), "QC", counted=counted)
    more_k(qc_after - kn[0])
    e("s_mov_b32 exec_hi, 0xffff")
    issue_qc(True)
    e("s_mov_b64 exec, -1")
    more_k(RING)
    for g in range(NE): issue_kv("V", g, ('a', AVE + 12 * g)); trace_pt("iv%d" % g)
    e("s_mul_i32 s%d, s%d, 384" % (sT0, sW)); e("s_add_u32 s%d, s%d, %d" % (sT0, sT0, L_QC))
    e("v_lshlrev_b32 v%d, 3, v%d" % (T2, vL)); e("v_add_u32 v%d, s%d, v%d" % (T3, sT0, T2))
    e("v_and_b32 v%d, 7, v%d" % (T5, vL)); e("v_lshlrev_b32 v%d, 4, v%d" % (T5, T5))
    stamp('iss2')
    e.wait_vm("QC")
    e("s_mov_b32 exec_hi, 0xffff")
    poll("qc", [vQC + 1, vQC + 3], T0, T1, lambda: issue_qc(False))
    e("ds_write2_b32 v%d, v%d, v%d offset0:0 offset1:1" % (T3, vQC, vQC + 2))
    e("s_mov_b64 exec, -1")
    e("s_waitcnt lgkmcnt(0)")
    e("s_barrier")
    stamp('b1')
    e("ds_read_b128 %s, v%d offset:%d" % (vr(vQF), T4, L_QC))
    e("ds_read_b128 %s, v%d offset:%d" % (vr(vQF + 4), T4, L_QC + 768))
    for g in range(32): e("v_mov_b32 v%d, 0" % (vS + g))
    e("s_waitcnt lgkmcnt(0)")
    for r in range(4): e("v_add_f32 v%d, v%d, v%d" % (vQF + r, vQF + r, vQF + 4 + r))
    e("v_cvt_pk_bf16_f32 v%d, v%d, v%d" % (vQF, vQF, vQF + 1))
    e("v_cvt_pk_bf16_f32 v%d, v%d, v%d" % (vQF + 1, vQF + 2, vQF + 3))
    e("ds_write_b64 v%d, %s offset:%d" % (T2, vr(vQF, 2), L_QB))
    e("s_waitcnt lgkmcnt(0)")
    for t in range(3): e("ds_read_b128 %s, v%d offset:%d" % (vr(vQF + 4 * t), T5, L_QB + t * 128))
    e("s_waitcnt lgkmcnt(0)")

    vP1 = 10
    def issue_p1(counted):
        e("s_mov_b32 s%d, 98304" % sSO)
        e.vmem("buffer_load_dwordx4 %s, v%d, %s, 0 offen sc1" % (vr(vP1), vP1O, sr(sWSF)), "P1", counted=counted)
        e.vmem("buffer_load_dwordx4 %s, v%d, %s, s%d offen sc1" % (vr(vP1 + 4), vP1O, sr(sWSF), sSO), "P1", counted=counted)
        e.vmem("buffer_load_dwordx4 %s, v%d, %s, 0 offen sc1" % (vr(vP1 + 8), vF1, sr(sWSF)), "P1", counted=counted)
    def start_p1():
        e("s_lshl_b32 s%d, s%d, 2" % (sT0, sRB)); e("s_add_u32 s%d, s%d, s%d" % (sT0, sT0, sW))
        e("s_lshl_b32 s%d, s%d, 9" % (sT1, sT0)); e("s_add_u32 s%d, s%d, %d" % (sT1, sT1, WS_P1))
        e("v_and_b32 v%d, 31, v%d" % (vF1, vL)); e("v_lshlrev_b32 v%d, 4, v%d" % (vF1, vF1)); e("v_add_u32 v%d, s%d, v%d" % (vF1, sT1, vF1))
        e("v_lshrrev_b32 v%d, 5, v%d" % (vP1O, vL)); e("v_mul_u32_u24 v%d, 49152, v%d" % (vP1O, vP1O)); e("v_add_u32 v%d, v%d, v%d" % (vP1O, vP1O, vF1))
        e("v_add_u32 v%d, %d, v%d" % (vF1, 4 * 49152, vF1))
        issue_p1(True)
        e("s_mul_i32 s%d, s%d, 20480" % (sT1, sT0))
        e("s_lshl_b32 s%d, s%d, 8" % (sT2, sC5)); e("s_add_u32 s%d, s%d, s%d" % (sT1, sT1, sT2))
        e("s_mul_i32 s%d, s%d, 61440" % (sT2, sW))
        e("v_subrev_u32 v%d, s%d, v%d" % (T1, sT2, vWO))
        for i in range(4):
            e.vmem("buffer_load_dwordx4 %s, v%d, %s, s%d offen %s" % (ar(240 + 4 * i), T1, sr(sWD), sT1, ff), "WD")
            if i < 3: e("s_add_u32 s%d, s%d, 5120" % (sT1, sT1))
    def stage2():
        skip = e.newlab("nost2")
        e("s_cmp_eq_u32 s%d, 0" % sACT); e("s_cbranch_scc1 %s" % skip)
        e.wait_vm("WD")
        poll("p1", [vP1 + 1 + 2 * k for k in range(6)], T1, T2, lambda: issue_p1(False))
        e("v_add_f32 v10, v10, v14"); e("v_add_f32 v12, v12, v16")
        e("s_mov_b32 exec_hi, 0")
        e("v_add_f32 v10, v10, v18"); e("v_add_f32 v12, v12, v20")
        e("s_mov_b64 exec, -1")
        e("v_mov_b32 v11, v10"); e("v_mov_b32 v13, v12"); e("s_nop 1")
        e("v_permlane32_swap_b32 v10, v11"); e("v_permlane32_swap_b32 v12, v13"); e("s_nop 1")
        e("v_add_f32 v10, v10, v11"); e("v_add_f32 v12, v12, v13")
        e("v_cvt_pk_bf16_f32 v14, v10, v12")
        e("v_lshlrev_b32 v10, 16, v14"); e("v_and_b32 v11, 0xffff0000, v14")
        e("s_nop 1")
        e("v_mov_b32_dpp v12, v10 %s %s" % (R8, DPP)); e("v_mov_b32_dpp v13, v11 %s %s" % (R8, DPP))
        for k in range(2):
            x, t = 10 + k, 14 + k
            e("v_mul_f32 v%d, v%d, v%d" % (t, x, x))
            e("v_mul_f32 v%d, %s, v%d" % (t, hx(f2u(0.044715)), t))
            e("v_fma_f32 v%d, v%d, v%d, v%d" % (t, t, x, x))
            e("v_mul_f32 v%d, %s, v%d" % (t, hx(f2u(-2.0 * LOG2E * 0.7978845608028654)), t))
            e("v_exp_f32 v%d, v%d" % (t, t)); e("s_nop 0")
            e("v_add_f32 v%d, 1.0, v%d" % (t, t))
            e("v_rcp_f32 v%d, v%d" % (t, t)); e("s_nop 0")
            e("v_mul_f32 v%d, v%d, v%d" % (t, x, t))
        e("v_cvt_pk_bf16_f32 v16, v14, v15")
        e("v_lshlrev_b32 v14, 16, v16"); e("v_and_b32 v15, 0xffff0000, v16")
        e("v_mul_f32 v14, v14, v12"); e("v_mul_f32 v15, v15, v13")
        e("v_cvt_pk_bf16_f32 v16, v14, v15")
        e("v_bfe_u32 v17, v%d, 3, 1" % vL); e("v_lshrrev_b32 v18, 5, v%d" % vL)
        e("v_lshl_add_u32 v17, v17, 2, v18"); e("v_lshlrev_b32 v17, 2, v17")
        for i, off in enumerate((0, 8, 64, 72)): e("ds_bpermute_b32 v%d, v17, v16 offset:%d" % (10 + i, off))
        e("v_bfe_u32 v17, v%d, 4, 1" % vL); e("v_mul_u32_u24 v17, 0x0202, v17"); e("v_add_u32 v17, 0x0100, v17")
        e("v_lshl_or_b32 v17, v17, 16, v17")
        e("s_waitcnt lgkmcnt(0)")
        for i in range(4): e("v_perm_b32 v%d, v%d, v%d, v17" % (10 + i, 10 + i, 10 + i))
        for i in range(4):
            A = 20 if i % 2 == 0 else 24
            afrag(A, 10 + i)
            e("s_nop 1")
            mfma(vr(16), vr(A), ar(240 + 4 * i), "0" if i == 0 else vr(16))
        e("s_lshl_b32 s%d, s%d, 10" % (sT0, sW))
        e("v_add_u32 v10, s%d, v%d" % (sT0, vFA))
        e("v_mov_b32 v11, %d" % L_CNT); e("v_mov_b32 v12, 1")
        e("s_nop 5")
        e("ds_write_b128 v10, %s offset:%d" % (vr(16), L_F2))
        e("s_waitcnt lgkmcnt(0)")
        e("s_mov_b64 exec, 1")
        e("ds_add_rtn_u32 v12, v11, v12")
        e("s_mov_b64 exec, -1")
        e("s_waitcnt lgkmcnt(0)")
        e("v_readfirstlane_b32 s%d, v12" % sT0)
        e("s_nop 3")
        e("s_cmp_lg_u32 s%d, 3" % sT0); e("s_cbranch_scc1 %s" % skip)
        e("v_lshlrev_b32 v28, 3, v%d" % vL)
        for k in range(2):
            for pp in range(4): e("ds_read_b64 %s, v28 offset:%d" % (vr(10 + 8 * k + 2 * pp, 2), L_F2 + pp * 1024 + k * 512))
        e("v_lshrrev_b32 v28, 3, v%d" % vL); e("v_mul_u32_u24 v28, 3072, v28")
        e("v_and_b32 v29, 7, v%d" % vL); e("v_lshl_add_u32 v28, v29, 4, v28")
        e("s_mul_i32 s%d, s%d, %d" % (sT0, sC5, 16 * 3072))
        e("s_lshl_b32 s%d, s%d, 7" % (sT1, sRB))
        e("s_add_u32 s%d, s%d, s%d" % (sT0, sT0, sT1)); e("s_add_u32 s%d, s%d, %d" % (sT0, sT0, WS_P2))
        e("s_add_u32 s%d, s%d, %d" % (sT1, sT0, 8 * 3072))
        e("s_waitcnt lgkmcnt(0)")
        for k in range(2):
            b0 = 10 + 8 * k
            e("v_add_f32 v%d, v%d, v%d" % (b0, b0, b0 + 2)); e("v_add_f32 v%d, v%d, v%d" % (b0 + 2, b0 + 1, b0 + 3))
            e("v_add_f32 v%d, v%d, v%d" % (b0, b0, b0 + 4)); e("v_add_f32 v%d, v%d, v%d" % (b0 + 2, b0 + 2, b0 + 5))
            e("v_add_f32 v%d, v%d, v%d" % (b0, b0, b0 + 6)); e("v_add_f32 v%d, v%d, v%d" % (b0 + 2, b0 + 2, b0 + 7))
            e("v_mov_b32 v%d, v%d" % (b0 + 1, vTAG)); e("v_mov_b32 v%d, v%d" % (b0 + 3, vTAG))
            e.vmem("buffer_store_dwordx4 %s, v28, %s, s%d offen %s" % (vr(b0), sr(sWSF), sT0 if k == 0 else sT1, stf), counted=False)
        e("s_nop 1")
        e.label(skip)

    curwin[0] = win
    sc = hx(f2u(192 ** -0.5))
    nwo = [0]
    NO1 = AVE // 12
    def finish_scores(g0):
        a, b2, t = vS + g0, vS + g0 + 1, T0
        for pat in (X1, X2, HM):
            e("v_add_f32_dpp v%d, v%d, v%d %s %s" % (a, a, a, pat, DPP))
            e("v_add_f32_dpp v%d, v%d, v%d %s %s" % (b2, b2, b2, pat, DPP))
            e("s_nop 0")
        e("v_cvt_pk_bf16_f32 v%d, v%d, v%d" % (t, a, b2))
        e("v_lshlrev_b32 v%d, 16, v%d" % (a, t)); e("v_and_b32 v%d, 0xffff0000, v%d" % (b2, t))
        e("v_mul_f32 v%d, %s, v%d" % (a, sc, a)); e("v_mul_f32 v%d, %s, v%d" % (b2, sc, b2))
        e("v_cvt_pk_bf16_f32 v%d, v%d, v%d" % (t, a, b2))
        e("v_lshlrev_b32 v%d, 16, v%d" % (a, t)); e("v_and_b32 v%d, 0xffff0000, v%d" % (b2, t))
        if g0 == 0: e("v_max_f32 v%d, v%d, v%d" % (vMW, a, b2))
        else: e("v_max3_f32 v%d, v%d, v%d, v%d" % (vMW, vMW, a, b2))
    vn = [NE]
    for g in range(32):
        e.wait_vm("K%d" % g)
        stamp('k%d' % g)
        rs = ring[("K", g)]
        for t in range(3):
            for r in range(4):
                e("v_dot2c_f32_bf16 v%d, v%d, v%d" % (vS + g, rslot(rs, t) + r, vQF + 4 * t + r))
        if g + RING < 32: issue_kv("K", g + RING, rs)
        else: issue_kv("V", vn[0], rs); vn[0] += 1
        if nwo[0] < NO1 and g >= ostart and (g - ostart) % ostep == 0:
            issue_wo(nwo[0]); nwo[0] += 1
        if g == p1_g: start_p1()
        if g == st2_g: stage2()
        if g % 2 == 1 and g >= 3: finish_scores(g - 3)
    e("s_nop 2")
    finish_scores(30)
    def group_allreduce(v, t, op):
        e("s_nop 1")
        e("%s_dpp v%d, v%d, v%d %s %s" % (op, v, v, v, R8, DPP))
        e("v_mov_b32 v%d, v%d" % (t, v)); e("s_nop 1")
        e("v_permlane16_swap_b32 v%d, v%d" % (v, t)); e("s_nop 1")
        e("%s v%d, v%d, v%d" % (op, v, v, t))
        e("v_mov_b32 v%d, v%d" % (t, v)); e("s_nop 1")
        e("v_permlane32_swap_b32 v%d, v%d" % (v, t)); e("s_nop 1")
        e("%s v%d, v%d, v%d" % (op, v, v, t))
    group_allreduce(vMW, T0, "v_max_f32")
    l2e = hx(f2u(LOG2E))
    for g in range(32): e("v_sub_f32 v%d, v%d, v%d" % (vS + g, vS + g, vMW))
    for g in range(32): e("v_mul_f32 v%d, %s, v%d" % (vS + g, l2e, vS + g))
    for g in range(32): e("v_exp_f32 v%d, v%d" % (vS + g, vS + g))
    e("v_add_f32 v%d, v%d, v%d" % (vLW, vS, vS + 1)); e("v_add_f32 v%d, v%d, v%d" % (T0, vS + 2, vS + 3))
    for g in range(4, 32, 2):
        e("v_add_f32 v%d, v%d, v%d" % (vLW, vLW, vS + g)); e("v_add_f32 v%d, v%d, v%d" % (T0, T0, vS + g + 1))
    e("v_add_f32 v%d, v%d, v%d" % (vLW, vLW, T0))
    group_allreduce(vLW, T0, "v_add_f32")
    e("s_lshl_b32 s%d, s%d, 3" % (sT0, sW)); e("s_add_u32 s%d, s%d, %d" % (sT0, sT0, L_ML)); e("v_mov_b32 v%d, s%d" % (T0, sT0))
    e("ds_write2_b32 v%d, v%d, v%d offset0:0 offset1:1" % (T0, vMW, vLW))
    e("v_and_b32 v%d, 3, v%d" % (T0, vL)); e("v_lshlrev_b32 v%d, 3, v%d" % (T0, T0))
    e("s_waitcnt lgkmcnt(0)")
    e("s_barrier")
    e("ds_read_b64 v[30:31], v%d offset:%d" % (T0, L_ML))
    e("s_waitcnt lgkmcnt(0)")
    e("v_mov_b32 v32, v30")
    for pat in (X1, X2):
        e("s_nop 1"); e("v_max_f32_dpp v32, v32, v32 %s %s" % (pat, DPP))
    e("v_sub_f32 v30, v30, v32"); e("v_sub_f32 v33, v%d, v32" % vMW)
    e("v_mul_f32 v30, %s, v30" % l2e); e("v_mul_f32 v33, %s, v33" % l2e)
    e("v_exp_f32 v30, v30"); e("v_exp_f32 v33, v33")
    e("s_nop 0")
    e("v_mul_f32 v30, v30, v31")
    for pat in (X1, X2):
        e("s_nop 1"); e("v_add_f32_dpp v30, v30, v30 %s %s" % (pat, DPP))
    e("v_rcp_f32 v31, v30")
    e("v_mov_b32 v%d, v32" % vMW); e("v_mov_b32 v%d, v30" % vLW)
    vFAC = 41
    e("v_mul_f32 v%d, v33, v31" % vFAC)
    e("s_lshl_b32 s%d, s%d, 7" % (sT0, sB)); e("s_add_u32 s%d, s%d, s%d" % (sT0, sT0, sP))
    e("s_lshl_b32 s%d, s%d, 4" % (sT0, sT0)); e("s_add_u32 s%d, s%d, %d" % (sWQO, sT0, WS_ML))
    stamp('b2')

    for g in range(32):
        A = vA0 if g % 2 == 0 else vA1
        e("v_mul_f32 v%d, v%d, v%d" % (vS + g, vS + g, vFAC))
        e("v_cvt_pk_bf16_f32 v%d, v%d, v%d" % (vS + g, vS + g, vS + g))
        afrag(A, vS + g)
        e("s_nop 0")
        e.wait_vm("V%d" % g)
        stamp('v%d' % g)
        if g == ml_g:
            lab = e.newlab("noml")
            e("s_cmp_lg_u32 s%d, 3" % sW); e("s_cbranch_scc1 %s" % lab)
            e("s_mov_b64 exec, 1")
            e.vmem("buffer_store_dwordx4 %s, off, %s, s%d sc1" % (vr(vMW), sr(sWS), sWQO), counted=False)
            e("s_mov_b64 exec, -1")
            e.label(lab)
        rs = ring[("V", g)]
        for t in range(3):
            mfma(vr(vACC + 4 * t), vr(A), reg_of(rs, t), "0" if g == 0 else vr(vACC + 4 * t))
        if not isinstance(rs, tuple) and vn[0] < 32:
            issue_kv("V", vn[0], rs); vn[0] += 1
        if nwo[0] < 20 and (nwo[0] < NO1 or g >= nwo[0] - NO1):
            issue_wo(nwo[0]); nwo[0] += 1
    assert nwo[0] == 20 and vn[0] == 32
    stamp('vend')
    e("v_and_b32 v%d, 7, v%d" % (T0, vL)); e("v_mul_u32_u24 v%d, %d, v%d" % (T0, PSTR, T0))
    e("v_lshrrev_b32 v%d, 4, v%d" % (T1, vL)); e("v_lshl_add_u32 v%d, v%d, 2, v%d" % (T0, T1, T0))
    e("v_bfe_u32 v%d, v%d, 3, 1" % (T1, vL)); e("v_mul_u32_u24 v%d, 96, v%d" % (T1, T1))
    e("s_mul_i32 s%d, s%d, 192" % (sT0, sW))
    e("s_add_u32 s%d, s%d, %d" % (sT0, sT0, L_OP))
    e("v_add3_u32 v%d, s%d, v%d, v%d" % (T0, sT0, T0, T1))
    e("s_mov_b64 exec, %s" % sr(sVAL, 2))
    for t in range(3): e("ds_write_b128 v%d, %s offset:%d" % (vQA, vr(vACC + 4 * t), L_OP + t * 256))
    e("s_mov_b64 exec, -1")
    e("s_waitcnt lgkmcnt(0)")
    e("s_barrier")
    stamp('b3')
    vO = 52
    for i in range(0, 6, 2): e("ds_read2_b32 v[%d:%d], v%d offset0:%d offset1:%d" % (vO + i, vO + i + 1, T0, 4 * i, 4 * i + 4))
    e("s_mul_i32 s%d, s%d, 2560" % (sT0, sW))
    e("v_add_u32 v%d, s%d, v%d" % (T1, sT0, vFA))
    e("s_mul_i32 s%d, s%d, 640" % (sT0, sW))
    e("v_lshlrev_b32 v%d, 3, v%d" % (T2, vL)); e("v_add_u32 v%d, s%d, v%d" % (T2, sT0, T2))
    e("s_waitcnt lgkmcnt(0)")
    for pat in (X1, X2, HM):
        for i in range(6): e("v_add_f32_dpp v%d, v%d, v%d %s %s" % (vO + i, vO + i, vO + i, pat, DPP))
    for i in range(6): e("v_cvt_pk_bf16_f32 v%d, v%d, v%d" % (vO + i, vO + i, vO + i))
    assert e.vm[-1] == "V31"
    vY = 30
    afrag(vA0, vO)
    for i in range(12):
        A = vA0 if i % 2 == 0 else vA1
        An = vA1 if i % 2 == 0 else vA0
        if i == 0: e("s_nop 1")
        for seg in range(5):
            mfma(vr(vY + 4 * seg), vr(A), ar(4 * (5 * i + seg)), "0" if i == 0 else vr(vY + 4 * seg))
            if i < 11 and seg < 2:
                n = i + 1
                for r in (2 * seg, 2 * seg + 1):
                    if n >= 6: e("v_and_b32_dpp v%d, v%d, v%d %s %s" % (An + r, vO + n - 6, vM + r, R8, DPP))
                    else: e("v_and_b32 v%d, v%d, v%d" % (An + r, vO + n, vM + r))
    stamp('mf')
    e("s_mov_b32 exec_hi, 0")
    e("v_mov_b32 v101, v%d" % vTAG); e("v_mov_b32 v103, v%d" % vTAG)
    e("s_nop 1")
    for seg in range(5): e("ds_write_b128 v%d, %s offset:%d" % (T1, vr(vY + 4 * seg), L_YP + seg * 512))
    e("s_mov_b64 exec, -1")
    e("v_mov_b32 v101, v%d" % vTAG); e("v_mov_b32 v103, v%d" % vTAG)
    e("v_mov_b32 v105, v%d" % vTAG); e("v_mov_b32 v107, v%d" % vTAG)
    e("s_mov_b32 s%d, 0x20000" % sT0)
    e("s_waitcnt lgkmcnt(0)")
    e("s_barrier")
    for pp in range(4): e("ds_read_b64 %s, v%d offset:%d" % (vr(108 + 2 * pp, 2), T2, L_YP + pp * 2560))
    for pp in range(4): e("ds_read_b64 %s, v%d offset:%d" % (vr(116 + 2 * pp, 2), T2, L_YP + 512 + pp * 2560))
    e("s_waitcnt lgkmcnt(4)")
    e("v_add_f32 v108, v108, v110"); e("v_add_f32 v109, v109, v111"); e("v_add_f32 v112, v112, v114"); e("v_add_f32 v113, v113, v115")
    e("v_add_f32 v100, v108, v112"); e("v_add_f32 v102, v109, v113")
    e.vmem("buffer_store_dwordx4 v[100:103], v%d, %s, 0 offen %s" % (vPY, sr(sWS), yf), counted=False)
    e("s_waitcnt lgkmcnt(0)")
    e("v_add_f32 v116, v116, v118"); e("v_add_f32 v117, v117, v119"); e("v_add_f32 v120, v120, v122"); e("v_add_f32 v121, v121, v123")
    e("v_add_f32 v104, v116, v120"); e("v_add_f32 v106, v117, v121")
    e("s_mov_b64 exec, 0xffff")
    e.vmem("buffer_store_dwordx4 v[104:107], v%d, %s, s%d offen %s" % (vPY, sr(sWS), sT0, yf), counted=False)
    e("s_mov_b64 exec, -1")
    stamp('pub')
    if nopoll: e("s_branch L_fin")
    e("s_cmp_eq_u32 s2, 1"); e("s_cbranch_scc1 L_epoch")
    e("s_and_b32 s%d, s2, 1" % sT0); e("s_cmp_lg_u32 s%d, 0" % sT0); e("s_cbranch_scc1 L_fin")
    e("s_cmp_ge_u32 s2, 160"); e("s_cbranch_scc1 L_fin")
    e("s_lshr_b32 s%d, s2, 1" % sCI)
    e("s_cmp_ge_u32 s%d, 40" % sCI); e("s_cselect_b32 s%d, 1, 0" % sB)
    e("s_mul_i32 s%d, s%d, 40" % (sT0, sB)); e("s_sub_u32 s%d, s%d, s%d" % (sH, sCI, sT0))
    e("v_lshlrev_b32 v10, 4, v%d" % vL)
    e("s_lshl_b32 s%d, s%d, 14" % (sT0, sCI)); e("s_lshl_b32 s%d, s%d, 12" % (sT1, sW))
    e("s_add_u32 s%d, s%d, s%d" % (sT0, sT0, sT1)); e("s_add_u32 s%d, s%d, %d" % (sT0, sT0, WS_Y))
    e("v_add_u32 v11, s%d, v10" % sT0)
    e("s_lshr_b32 s%d, s%d, 3" % (sT0, sH)); e("s_lshl_b32 s%d, s%d, 1" % (sT0, sT0)); e("s_add_u32 s%d, s%d, s%d" % (sT0, sT0, sB))
    e("s_lshl_b32 s%d, s%d, 3" % (sT0, sT0)); e("s_and_b32 s%d, s%d, 7" % (sT1, sH)); e("s_add_u32 s%d, s%d, s%d" % (sT0, sT0, sT1))
    e("s_mul_i32 s%d, s%d, 3072" % (sT0, sT0)); e("s_mul_i32 s%d, s%d, 768" % (sT1, sW))
    e("s_add_u32 s%d, s%d, s%d" % (sT0, sT0, sT1)); e("s_add_u32 s%d, s%d, %d" % (sT0, sT0, WS_P2))
    e("v_min_u32 v12, 752, v10"); e("v_add_u32 v12, s%d, v12" % sT0)
    e("v_lshrrev_b32 v13, 3, v%d" % vL); e("v_lshlrev_b32 v13, 4, v13")
    e("s_lshl_b32 s%d, s%d, 11" % (sT0, sB)); e("s_lshl_b32 s%d, s%d, 9" % (sT1, sW))
    e("s_add_u32 s%d, s%d, s%d" % (sT0, sT0, sT1)); e("s_add_u32 s%d, s%d, %d" % (sT0, sT0, WS_ML))
    e("v_add_u32 v13, s%d, v13" % sT0)
    e("v_and_b32 v14, 15, v%d" % vL); e("v_lshlrev_b32 v14, 1, v14")
    e("s_lshl_b32 s%d, s%d, 5" % (sT0, sCI)); e("v_add_u32 v14, s%d, v14" % sT0)
    ML0, Y0, F0 = 16, 32, 48
    def ld_ml():
        for i in range(4): e("buffer_load_dwordx4 %s, v13, %s, 0 offen offset:%d sc1" % (vr(ML0 + 4 * i), sr(sWS), 128 * i))
    def ld_y():
        for i in range(4): e("buffer_load_dwordx4 %s, v11, %s, 0 offen offset:%d sc1" % (vr(Y0 + 4 * i), sr(sWS), 1024 * i))
        e("buffer_load_dwordx4 %s, v12, %s, 0 offen sc1" % (vr(F0), sr(sWS)))
    ld_ml()
    if xspec: ld_y()
    e("buffer_load_ushort v15, v14, %s, 0 offen" % sr(sX))
    e("s_waitcnt vmcnt(%d)" % (6 if xspec else 1))
    poll("ml", [ML0 + 1 + 2 * k for k in range(8)], 56, 57, ld_ml, sleep=mlsleep)
    if not xspec: ld_y()
    def sib_reduce(op):
        for i in range(4): e("%s_dpp v%d, v%d, v%d %s %s" % (op, 56 + i, 56 + i, 56 + i, R8, DPP))
        for i in range(4): e("v_mov_b32 v%d, v%d" % (60 + i, 56 + i))
        e("s_nop 0")
        for i in range(4): e("v_permlane16_swap_b32 v%d, v%d" % (56 + i, 60 + i))
        e("s_nop 0")
        for i in range(4): e("%s v%d, v%d, v%d" % (op, 56 + i, 56 + i, 60 + i))
    mreg = [ML0 + 4 * i for i in range(4)]
    for i in range(4): e("v_mov_b32 v%d, v%d" % (56 + i, mreg[i]))
    sib_reduce("v_max_f32")
    for i in range(4): e("v_sub_f32 v%d, v%d, v%d" % (mreg[i], mreg[i], 56 + i))
    for i in range(4): e("v_mul_f32 v%d, %s, v%d" % (mreg[i], l2e, mreg[i]))
    for i in range(4): e("v_exp_f32 v%d, v%d" % (mreg[i], mreg[i]))
    for i in range(4): e("v_mul_f32 v%d, v%d, v%d" % (mreg[i], mreg[i], mreg[i] + 2))
    for i in range(4): e("v_mov_b32 v%d, v%d" % (56 + i, mreg[i]))
    sib_reduce("v_add_f32")
    for i in range(4): e("v_rcp_f32 v%d, v%d" % (56 + i, 56 + i))
    for i in range(4): e("v_mul_f32 v%d, v%d, v%d" % (mreg[i], mreg[i], 56 + i))
    e("v_and_b32 v60, 7, v%d" % vL); e("v_lshlrev_b32 v60, 3, v60")
    e("v_bfe_u32 v61, v%d, 4, 1" % vL); e("v_lshl_add_u32 v60, v61, 2, v60")
    e("v_lshrrev_b32 v61, 5, v%d" % vL); e("v_lshl_add_u32 v60, v61, 6, v60")
    e("s_lshl_b32 s%d, s%d, 7" % (sT0, sW)); e("v_add_u32 v60, s%d, v60" % sT0)
    e("v_and_b32 v61, 31, v%d" % vL); e("v_lshlrev_b32 v61, 2, v61")
    e("s_waitcnt vmcnt(0)")
    poll("y", [Y0 + 1 + 2 * k for k in range(10)], 56, 57, ld_y, sleep=0)
    e("v_mul_f32 v32, v32, v%d" % mreg[0]); e("v_mul_f32 v34, v34, v%d" % mreg[0])
    e("s_mov_b32 exec_lo, 0"); e("s_mov_b32 exec_hi, 0xffff0000")
    e("v_mov_b32 v48, 0"); e("v_mov_b32 v50, 0")
    e("s_mov_b64 exec, -1")
    for i in range(1, 4):
        e("v_fmac_f32 v32, v%d, v%d" % (32 + 4 * i, mreg[i])); e("v_fmac_f32 v34, v%d, v%d" % (34 + 4 * i, mreg[i]))
    e("s_nop 1")
    e("v_permlane32_swap_b32 v32, v48"); e("v_permlane32_swap_b32 v34, v50")
    e("s_nop 1")
    e("v_add_f32 v32, v32, v48"); e("v_add_f32 v34, v34, v50")
    e("s_nop 1")
    e("v_permlane16_swap_b32 v32, v34"); e("s_nop 1")
    e("v_add_f32 v32, v32, v34"); e("s_nop 1")
    e("v_add_f32_dpp v32, v32, v32 %s %s" % (R8, DPP))
    e("ds_write_b32 v60, v32 offset:%d" % L_CO)
    e("s_waitcnt lgkmcnt(0)")
    e("s_barrier")
    e("s_cmp_lg_u32 s%d, 0" % sW); e("s_cbranch_scc1 L_fin")
    e("v_add_u32 v61, %d, v61" % L_CO)
    e("ds_read2_b32 v[24:25], v61 offset0:0 offset1:32"); e("ds_read2_b32 v[26:27], v61 offset0:64 offset1:96")
    e("s_waitcnt lgkmcnt(0)")
    e("v_add_f32 v24, v24, v25"); e("v_add_f32 v26, v26, v27"); e("v_add_f32 v24, v24, v26")
    e("v_cvt_pk_bf16_f32 v24, v24, v24"); e("v_and_b32 v24, 0xffff0000, v24")
    e("v_mul_f32 v25, %s, v24" % hx(f2u(-LOG2E)))
    e("v_exp_f32 v25, v25"); e("s_nop 0")
    e("v_add_f32 v25, 1.0, v25")
    e("v_rcp_f32 v25, v25"); e("s_nop 0")
    e("v_mul_f32 v25, v24, v25")
    e("v_cvt_pk_bf16_f32 v25, v25, v25"); e("v_and_b32 v25, 0xffff0000, v25")
    e("v_mov_b32 v26, v25"); e("s_nop 1")
    e("v_permlane16_swap_b32 v25, v26"); e("s_nop 1")
    e("v_mul_f32 v24, v24, v26")
    e("v_cvt_pk_bf16_f32 v24, v24, v24"); e("v_and_b32 v24, 0xffff0000, v24")
    e("v_lshlrev_b32 v15, 16, v15")
    e("v_add_f32 v24, v24, v15")
    e("v_cvt_pk_bf16_f32 v24, v24, v24")
    e("s_mov_b64 exec, 0xffff")
    e("buffer_store_short v24, v14, %s, 0 offen" % sr(sOUT))
    e("s_mov_b64 exec, -1")
    e("s_branch L_fin")
    e.label("L_epoch")
    e("s_cmp_lg_u32 s%d, 0" % sW); e("s_cbranch_scc1 L_fin")
    e("v_lshlrev_b32 v13, 4, v%d" % vL); e("v_add_u32 v13, %d, v13" % WS_ML)
    def ld_all():
        for i in range(4): e("buffer_load_dwordx4 %s, v13, %s, 0 offen offset:%d sc1" % (vr(16 + 4 * i), sr(sWS), 1024 * i))
    ld_all()
    e("s_waitcnt vmcnt(0)")
    poll("ep", [17 + 2 * k for k in range(8)], 56, 57, ld_all, sleep=epsleep)
    e("s_mov_b32 s%d, %d" % (sT0, WS_EP))
    e("s_mov_b64 exec, 1")
    e("buffer_store_dword v%d, off, %s, s%d" % (vTAG, sr(sWS), sT0))
    e("s_mov_b64 exec, -1")
    e.label("L_fin")
    if trace:
        trace_pt('fin')
        e("v_writelane_b32 v89, s%d, 63" % sST)
        e("s_add_u32 s92, s26, %d" % STAMP_OFF); e("s_addc_u32 s93, s27, 0"); e("s_mov_b32 s94, 0x100000"); e("s_mov_b32 s95, 0x20000")
        e("s_lshl_b32 s%d, s2, 2" % sT0); e("s_add_u32 s%d, s%d, s%d" % (sT0, sT0, sW)); e("s_lshl_b32 s%d, s%d, 9" % (sT0, sT0))
        e("v_lshlrev_b32 v10, 2, v%d" % vL); e("v_add_u32 v10, s%d, v10" % sT0)
        e("buffer_store_dword v88, v10, s[92:95], 0 offen")
        e("buffer_store_dword v89, v10, s[92:95], 0 offen offset:256")
        open("trace_names.txt", "w").write(" ".join(trnames))
    if stamps:
        stamp('fin')
        n = nst[0]
        e("s_add_u32 s92, s26, %d" % STAMP_OFF); e("s_addc_u32 s93, s27, 0"); e("s_mov_b32 s94, 0x100000"); e("s_mov_b32 s95, 0x20000")
        if allw:
            e("s_lshl_b32 s%d, s2, 2" % sT0); e("s_add_u32 s%d, s%d, s%d" % (sT0, sT0, sW)); e("s_mul_i32 s%d, s%d, %d" % (sT0, sT0, 8 * n))
        else:
            e("s_cmp_lg_u32 s%d, 0" % sW); e("s_cbranch_scc1 L_end")
            e("s_mul_i32 s%d, s2, %d" % (sT0, 8 * n))
        e("v_mov_b32 v10, s%d" % sT0); e("v_mov_b32 v13, 0")
        e("s_mov_b64 exec, 1")
        for k in range(n):
            e("v_mov_b32 v12, s%d" % (sST + k))
            e("buffer_store_dwordx2 v[12:13], v10, s[92:95], 0 offen offset:%d" % (8 * k))
            e("s_nop 1")
    e.label("L_end")
    e("s_endpgm")
    e.raw('.section .rodata,"a"'); e.raw(".p2align 6"); e.raw(".amdhsa_kernel %s_kernel" % NAME)
    for s in (".amdhsa_next_free_vgpr 512", ".amdhsa_next_free_sgpr 102", ".amdhsa_accum_offset 256",
              ".amdhsa_group_segment_fixed_size 0", ".amdhsa_kernarg_size 96", ".amdhsa_user_sgpr_count 2",
              ".amdhsa_user_sgpr_kernarg_segment_ptr 1", ".amdhsa_system_sgpr_workgroup_id_x 1"):
        e(s)
    e.raw(".end_amdhsa_kernel")
    return "\n".join(e.L) + "\n", nst[0]

if __name__ == "__main__":
    import argparse
    ap = argparse.ArgumentParser()
    ap.add_argument("out"); ap.add_argument("--stamps", action="store_true")
    ap.add_argument("--opt", default="")
    a = ap.parse_args()
    kw = eval("dict(%s)" % a.opt)
    s, n = gen(stamps=a.stamps, **kw)
    hdr = open("cdna_kernels/%s.s.ref" % NAME).read().split("; Override launch")[0]
    open(a.out, "w").write(hdr + s)
    print("wrote", a.out, "stamps", n)
```

```python
import struct, sys
NAME = "recurrent_scan__gqa_block_cached__geglu_ffn__decode"

def f2u(x): return struct.unpack("<I", struct.pack("<f", x))[0]
def hx(x): return "0x%08x" % (x & 0xffffffff)
LOG2E = 1.4426950408889634

WS_Q1 = 0
WS_P1 = 0x30000
WS_P2 = 0x6C000
WS_Y  = 0xA8000
WS_ML = 0x1E8000
WS_EP = 0x1E9000
WS_SIZE = 0x1EA000
STAMP_OFF = 300 << 20
OOB = 0x7ffffff0

L_XN = 0
L_Q1 = 5120
PS2 = 528
L_QC = 9472
L_QB = 24064
L_F1 = 24576
L_F2 = 32768
L_ML = 36864
L_CNT = 36928
L_OP = 37120
PSTR = 784
L_YP = 43520
L_CO = 53760
L_END = 54272

class Em:
    def __init__(self):
        self.L = []; self.vm = []; self.lab = 0
    def __call__(self, s): self.L.append("  " + s)
    def raw(self, s): self.L.append(s)
    def label(self, n): self.L.append(n + ":")
    def newlab(self, p):
        self.lab += 1; return "L_%s_%d" % (p, self.lab)
    def vmem(self, s, tag=None, counted=True):
        self.L.append("  " + s)
        if counted: self.vm.append(tag)
    def behind(self, tag):
        idx = max(i for i, t in enumerate(self.vm) if t == tag)
        return len(self.vm) - 1 - idx
    def wait_vm(self, tag):
        self("s_waitcnt vmcnt(%d)" % min(self.behind(tag), 63))

def vr(a, n=4): return "v[%d:%d]" % (a, a + n - 1)
def ar(a, n=4): return "a[%d:%d]" % (a, a + n - 1)
def sr(a, n=4): return "s[%d:%d]" % (a, a + n - 1)
DPP = "row_mask:0xf bank_mask:0xf"
X1, X2, HM, RM, R8 = "quad_perm:[1,0,3,2]", "quad_perm:[2,3,0,1]", "row_half_mirror", "row_mirror", "row_ror:8"

def gen(stamps=False, kvf="nt", wf="", qf="", ff="", RING=14, NE=5, st2_g=8, p1_g=0, ml_g=31, allw=False,
        sel=('b1', 'b2', 'vend', 'pub', 'fin'), ostep=2, ostart=0, k_pre=3, k_mid=3, qc_after=14, win=0, tmo=0x10000,
        trace=False, xspec=True, mlsleep=2, epsleep=4, nopoll=False, nocheck=False, stf='sc1', yf='sc1', cpf=0):
    e = Em()
    vL, vKV, vWQ, vWO, vPY = 1, 2, 3, 4, 5
    vM = 6; vA0 = 10; vA1 = 14; vACC = 18; vQF = 30; vS = 42
    vMW, vTAG, vLW = 74, 75, 76
    vQA, vFA, vP1O, vF1 = 78, 79, 80, 81
    T0, T1, T2, T3, T4, T5 = 82, 83, 84, 85, 86, 87
    RB = 256 - 12 * RING
    assert RB >= 88
    def rslot(i, t): return RB + 12 * i + 4 * t
    AVE = 240 - 12 * NE
    sK, sV, sRE, sWO, sX, sRO, sWD, sWS, sOUT, sWSF = 28, 32, 36, 40, 44, 48, 56, 60, 64, 92
    sS1, sS2, sKH, sNT = 52, 53, 54, 55
    sTAG, sU, sACT, sFACT = 68, 69, 70, 71
    sW, sB, sH, sP, sFS, sKR, sC5, sRB, sSO, sT0, sT1, sT2 = 72, 73, 74, 75, 76, 77, 78, 79, 80, 81, 82, 83
    sEX = 84; sVAL = 86; sCNT = 88; sCI = 89; sPIDX = 90; sWQO = 91
    sST = 96
    nst = [0]
    def stamp(name):
        if trace: trace_pt(name); return
        if not stamps or name not in sel: return
        e("s_memrealtime s[%d:%d]" % (sEX, sEX + 1))
        e("s_waitcnt lgkmcnt(0)")
        e("s_mov_b32 s%d, s%d" % (sST + nst[0], sEX))
        nst[0] += 1
    tr = [0]; trnames = []
    def trace_pt(name):
        if not trace: return
        k = tr[0]; tr[0] += 1; trnames.append(name)
        e("s_memrealtime s[%d:%d]" % (sST + 2, sST + 3))
        e("s_waitcnt lgkmcnt(0)")
        e("v_writelane_b32 v%d, s%d, %d" % (88 + k // 64, sST + 2, k % 64))
    def mfma(d, a, b, c): e("v_mfma_f32_16x16x32_bf16 %s, %s, %s, %s" % (d, a, b, c))
    def afrag(dst, src):
        for r in range(4): e("v_and_b32 v%d, v%d, v%d" % (dst + r, src, vM + r))
    def tagcheck(tags, t0, t1, oklab):
        tg = list(tags)
        e("v_min3_u32 v%d, v%d, v%d, v%d" % (t0, vTAG, tg[0], tg[1])); e("v_max3_u32 v%d, v%d, v%d, v%d" % (t1, vTAG, tg[0], tg[1]))
        for k in range(2, len(tg), 2):
            e("v_min3_u32 v%d, v%d, v%d, v%d" % (t0, t0, tg[k], tg[k + 1])); e("v_max3_u32 v%d, v%d, v%d, v%d" % (t1, t1, tg[k], tg[k + 1]))
        e("v_cmp_ne_u32 vcc, v%d, v%d" % (t0, t1))
        e("s_nop 1")
        e("s_cbranch_vccz %s" % oklab)
    def poll(name, tags, t0, t1, reload, sleep=4):
        if nocheck: return
        lab = e.newlab(name + "ok"); lp = e.newlab(name + "loop")
        e("s_mov_b32 s%d, %d" % (sCNT, tmo))
        e.label(lp)
        tagcheck(tags, t0, t1, lab)
        e("s_sub_u32 s%d, s%d, 1" % (sCNT, sCNT)); e("s_cbranch_scc1 %s" % lab)
        if sleep: e("s_sleep %d" % sleep)
        reload()
        e("s_waitcnt vmcnt(0)")
        e("s_branch %s" % lp)
        e.label(lab)

    e.raw("; @launch grid=(256,1,1) block=(256,1,1) lds=%d" % L_END)
    e.raw('.amdgcn_target "amdgcn-amd-amdhsa--gfx950"')
    e.raw(".text"); e.raw(".globl %s_kernel" % NAME); e.raw(".p2align 8"); e.raw(".type %s_kernel,@function" % NAME)
    e.label("%s_kernel" % NAME)
    e("s_cmp_ge_u32 s2, 256"); e("s_cbranch_scc1 L_end")
    e("s_load_dwordx16 s[4:19], s[0:1], 0")
    e("s_load_dwordx8 s[20:27], s[0:1], 64")
    if stamps or trace:
        e("s_memrealtime s[%d:%d]" % (sST, sST + 1)); nst[0] = 1
    e("v_and_b32 v%d, 63, v0" % vL)
    e("v_lshrrev_b32 v%d, 6, v0" % T0)
    e("v_lshrrev_b32 v%d, 3, v%d" % (T1, vL))
    e("v_and_b32 v%d, 7, v%d" % (T2, vL))
    e("v_readfirstlane_b32 s%d, v%d" % (sW, T0))
    e("v_mul_u32_u24 v%d, 384, v%d" % (vKV, T1))
    e("v_lshl_add_u32 v%d, v%d, 4, v%d" % (vKV, T2, vKV))
    e("v_mul_u32_u24 v%d, 3072, v%d" % (T3, T0))
    e("v_add_u32 v%d, v%d, v%d" % (vKV, vKV, T3))
    e("v_lshl_add_u32 v%d, v%d, 3, v%d" % (vWQ, T0, T1))
    e("v_mul_u32_u24 v%d, 12288, v%d" % (vWQ, vWQ))
    e("v_lshl_add_u32 v%d, v%d, 4, v%d" % (vWQ, T2, vWQ))
    e("v_lshrrev_b32 v%d, 5, v%d" % (T3, vL))
    e("v_mul_u32_u24 v%d, 1280, v%d" % (T3, T3))
    e("v_and_b32 v%d, 31, v%d" % (T5, vL))
    e("v_lshl_add_u32 v%d, v%d, 4, v%d" % (T4, T5, T3))
    e("v_lshl_add_u32 v%d, v%d, 3, v%d" % (T5, T5, T3))
    e("v_lshrrev_b32 v%d, 4, v%d" % (T3, vL))
    e("v_lshl_add_u32 v%d, v%d, 2, v%d" % (vF1, T0, T3))
    e("v_mul_u32_u24 v%d, 3072, v%d" % (vF1, vF1))
    e("v_and_b32 v%d, 15, v%d" % (T1, vL))
    e("v_lshl_add_u32 v%d, v%d, 4, v%d" % (vF1, T1, vF1))
    e("s_and_b32 s%d, s2, 7" % sT0)
    e("s_lshr_b32 s%d, s2, 3" % sT1)
    e("s_lshr_b32 s%d, s%d, 3" % (sT2, sT1))
    e("s_lshl_b32 s%d, s%d, 2" % (sH, sT0))
    e("s_add_u32 s%d, s%d, s%d" % (sH, sH, sT2))
    e("s_and_b32 s%d, s%d, 7" % (sU, sT1))
    e("s_lshr_b32 s%d, s%d, 2" % (sB, sU))
    e("s_and_b32 s%d, s%d, 3" % (sT1, sT1))
    e("s_lshl_b32 s%d, s%d, 2" % (sP, sH))
    e("s_add_u32 s%d, s%d, s%d" % (sP, sP, sT1))
    e("s_lshl_b32 s%d, s%d, 7" % (sT0, sB))
    e("s_add_u32 s%d, s%d, s%d" % (sT0, sT0, sP))
    e("s_mul_i32 s%d, s%d, 393216" % (sT0, sT0))
    e("s_mov_b32 s%d, 393216" % (sK + 2)); e("s_mov_b32 s%d, 0x20000" % (sK + 3))
    e("s_mov_b32 s%d, 2560" % (sX + 2)); e("s_mov_b32 s%d, 0x20000" % (sX + 3))
    e("s_cmp_ge_u32 s%d, 3" % sU); e("s_cselect_b32 s%d, 1, 0" % sKH)
    e("s_mul_i32 s%d, s%d, 3" % (sT1, sKH)); e("s_sub_u32 s%d, s%d, s%d" % (sNT, sU, sT1))
    e("s_mul_i32 s%d, s%d, %d" % (sCI, sKH, 320 * 12288))
    e("s_mul_i32 s%d, s%d, 384" % (sT1, sH)); e("s_add_u32 s%d, s%d, s%d" % (sCI, sCI, sT1))
    e("s_lshl_b32 s%d, s%d, 7" % (sT1, sNT)); e("s_add_u32 s%d, s%d, s%d" % (sCI, sCI, sT1))
    e("s_lshl_b32 s%d, s%d, 1" % (sT1, sH)); e("s_add_u32 s%d, s%d, s%d" % (sT1, sT1, sU)); e("s_sub_u32 s%d, s%d, 6" % (sT1, sT1))
    e("s_and_b32 s%d, s%d, 63" % (sT1, sT1))
    e("s_mul_i32 s%d, s%d, 43" % (sKR, sT1)); e("s_lshr_b32 s%d, s%d, 9" % (sKR, sKR))
    e("s_mul_i32 s%d, s%d, 12" % (sT2, sKR)); e("s_sub_u32 s%d, s%d, s%d" % (sFS, sT1, sT2))
    e("s_cmp_lt_u32 s%d, 60" % sT1); e("s_cselect_b32 s%d, %d, 0" % (sFACT, 127 * 3072 + 256))
    e("s_min_u32 s%d, s%d, 4" % (sKR, sKR))
    e("s_mul_i32 s%d, s%d, %d" % (sCNT, sKR, 128 * 3072))
    e("s_lshl_b32 s%d, s%d, 8" % (sT2, sFS)); e("s_add_u32 s%d, s%d, s%d" % (sCNT, sCNT, sT2))
    e("s_mov_b32 s%d, 0x20000" % (sRE + 3)); e("s_mov_b32 s%d, 0x20000" % (sRO + 3))
    e("s_mov_b32 s%d, 786432" % sS2)
    e("s_cmp_ge_u32 s%d, 6" % sU)
    e("s_cselect_b32 s%d, s%d, %d" % (sRE + 2, sFACT, 319 * 12288 + 128))
    e("s_cselect_b32 s%d, s%d, %d" % (sRO + 2, sFACT, 319 * 12288 + 128))
    e("s_cselect_b32 s%d, 0, 393216" % sS1)
    e("s_cselect_b32 s%d, 49152, s%d" % (sS2, sS2))
    e("s_cselect_b32 s%d, s%d, s%d" % (sCI, sCNT, sCI))
    e("s_cselect_b64 vcc, -1, 0")
    e("s_waitcnt lgkmcnt(0)")
    e("s_cselect_b32 s%d, s16, s10" % sRE); e("s_cselect_b32 s%d, s17, s11" % (sRE + 1))
    e("s_cselect_b32 s%d, s18, s10" % sRO); e("s_cselect_b32 s%d, s19, s11" % (sRO + 1))
    e("s_mov_b32 s%d, s4" % sX); e("s_mov_b32 s%d, s5" % (sX + 1))
    e("v_cndmask_b32 v%d, v%d, v%d, vcc" % (vWQ, vWQ, vF1))
    e.vmem("buffer_load_dwordx4 %s, v%d, %s, 0 offen" % (vr(18), T4, sr(sX)), "x")
    e.vmem("buffer_load_dwordx4 %s, v%d, %s, 0 offen offset:512" % (vr(22), T4, sr(sX)), "x")
    e.vmem("buffer_load_dwordx2 %s, v%d, %s, 0 offen offset:1024" % (vr(26, 2), T5, sr(sX)), "x")
    e("s_add_u32 s%d, s%d, s%d" % (sRE, sRE, sCI)); e("s_addc_u32 s%d, s%d, 0" % (sRE + 1, sRE + 1))
    e("s_add_u32 s%d, s%d, s%d" % (sRO, sRO, sCI)); e("s_addc_u32 s%d, s%d, 0" % (sRO + 1, sRO + 1))
    e("s_add_u32 s%d, s6, s%d" % (sK, sT0)); e("s_addc_u32 s%d, s7, 0" % (sK + 1))
    e("s_add_u32 s%d, s8, s%d" % (sV, sT0)); e("s_addc_u32 s%d, s9, 0" % (sV + 1))

    ring = {}
    curwin = [0]
    def throttle(n=3):
        if curwin[0] and len(e.vm) + n > curwin[0]: e("s_waitcnt vmcnt(%d)" % (curwin[0] - n))
    def issue_kv(kind, g, rs):
        throttle()
        ring[(kind, g)] = rs
        srd = sK if kind == "K" else sV
        if g == 0: so = "0"
        else:
            e("s_mov_b32 s%d, %d" % (sSO, g * 12288)); so = "s%d" % sSO
        for t in range(3):
            e.vmem("buffer_load_dwordx4 %s, v%d, %s, %s offen offset:%d %s" % (reg_of(rs, t), vKV, sr(srd), so, t * 128, kvf), "%s%d" % (kind, g))
    def reg_of(rs, t):
        return ar(rs[1] + 4 * t) if isinstance(rs, tuple) else vr(rslot(rs, t))
    def issue_wo(n):
        throttle()
        last = None
        for t in range(3):
            q = 3 * n + t; i, seg = q // 5, q % 5
            if i == 0: so = "0"
            else:
                if last != i: e("s_mov_b32 s%d, %d" % (sSO, i * 5120))
                so = "s%d" % sSO
            last = i
            e.vmem("buffer_load_dwordx4 %s, v%d, %s, %s offen offset:%d %s" % (ar(4 * q), vWO, sr(sWO), so, seg * 256, wf), "O%d" % n)
    e("s_mov_b32 s%d, 0" % sCNT)
    for m in range(8):
        e.vmem("buffer_load_dwordx4 %s, v%d, %s, s%d offen %s" % (ar(8 * m), vWQ, sr(sRE), sCNT, qf), "R")
        e("s_add_u32 s%d, s%d, s%d" % (sSO, sCNT, sS1))
        e.vmem("buffer_load_dwordx4 %s, v%d, %s, s%d offen %s" % (ar(8 * m + 4), vWQ, sr(sRO), sSO, qf), "R")
        if m < 7: e("s_add_u32 s%d, s%d, s%d" % (sCNT, sCNT, sS2))
    if cpf:
        e("s_getpc_b64 s[6:7]")
        e.label("L_pc")
        e("s_sub_u32 s6, s6, L_pc-%s_kernel" % NAME); e("s_subb_u32 s7, s7, 0")
        e("s_lshr_b32 s8, s2, 3"); e("s_lshl_b32 s8, s8, 2"); e("s_add_u32 s8, s8, s%d" % sW)
        e("s_mul_i32 s8, s8, %d" % (64 * cpf)); e("s_min_u32 s8, s8, L_end-%s_kernel-%d" % (NAME, 64 * cpf))
        e("s_add_u32 s6, s6, s8"); e("s_addc_u32 s7, s7, 0")
        for k in range(cpf): e("s_load_dword s8, s[6:7], %d" % (64 * k))
    e("s_add_u32 s%d, s26, %d" % (sEX, WS_EP)); e("s_addc_u32 s%d, s27, 0" % (sEX + 1))
    e("s_load_dword s%d, s[%d:%d], 0" % (sTAG, sEX, sEX + 1))
    e("s_mov_b32 s%d, 393216" % (sV + 2)); e("s_mov_b32 s%d, 0x20000" % (sV + 3))
    e("s_mul_i32 s%d, s%d, 245760" % (sT0, sH))
    e("s_add_u32 s%d, s12, s%d" % (sWO, sT0)); e("s_addc_u32 s%d, s13, 0" % (sWO + 1))
    e("s_mov_b32 s%d, 245760" % (sWO + 2)); e("s_mov_b32 s%d, 0x20000" % (sWO + 3))
    e("s_mov_b32 s%d, s26" % sWS); e("s_mov_b32 s%d, s27" % (sWS + 1))
    e("s_mov_b32 s%d, %d" % (sWS + 2, WS_SIZE)); e("s_mov_b32 s%d, 0x20000" % (sWS + 3))
    e("s_mov_b32 s%d, s22" % sOUT); e("s_mov_b32 s%d, s23" % (sOUT + 1))
    e("s_mov_b32 s%d, 2560" % (sOUT + 2)); e("s_mov_b32 s%d, 0x20000" % (sOUT + 3))
    e("s_lshl_b32 s%d, s%d, 2" % (sT0, sH)); e("s_add_u32 s%d, s%d, s%d" % (sT0, sT0, sU))
    e("s_mul_i32 s%d, s%d, 205" % (sRB, sT0)); e("s_lshr_b32 s%d, s%d, 10" % (sRB, sRB))
    e("s_mul_i32 s%d, s%d, 5" % (sT1, sRB)); e("s_sub_u32 s%d, s%d, s%d" % (sC5, sT0, sT1))
    e("s_cmp_lt_u32 s%d, 4" % sU); e("s_cselect_b32 s%d, s%d, 255" % (sT0, sT0))
    e("s_cmp_lt_u32 s%d, 120" % sT0)
    e("s_cselect_b32 s%d, %d, 0" % (sWD + 2, 1536 * 1280))
    e("s_cselect_b32 s%d, %d, 0" % (sWSF + 2, WS_Y))
    e("s_cselect_b32 s%d, 1, 0" % sACT)
    e("s_mov_b32 s%d, s20" % sWD); e("s_mov_b32 s%d, s21" % (sWD + 1)); e("s_mov_b32 s%d, 0x20000" % (sWD + 3))
    e("s_mov_b32 s%d, s26" % sWSF); e("s_mov_b32 s%d, s27" % (sWSF + 1)); e("s_mov_b32 s%d, 0x20000" % (sWSF + 3))
    e("s_mov_b32 s%d, 0x00ff00ff" % sVAL); e("s_mov_b32 s%d, 0xff00ff00" % (sVAL + 1))
    e("v_mul_u32_u24 v%d, 1280, v%d" % (vWO, T3))
    e("v_lshl_add_u32 v%d, v%d, 4, v%d" % (vWO, T1, vWO))
    e("s_mul_i32 s%d, s%d, 61440" % (sT0, sW))
    e("v_add_u32 v%d, s%d, v%d" % (vWO, sT0, vWO))
    e("v_lshrrev_b32 v%d, 5, v%d" % (T0, vL))
    e("v_and_b32 v%d, 16, v%d" % (T3, vL))
    e("v_lshl_add_u32 v%d, v%d, 5, v%d" % (vP1O, T2, T3))
    e("v_mul_u32_u24 v%d, %d, v%d" % (vQA, PSTR, T0)); e("v_add_u32 v%d, v%d, v%d" % (vQA, vQA, vP1O))
    e("s_mul_i32 s%d, s%d, %d" % (sT0, sW, 2 * PSTR))
    e("v_add_u32 v%d, s%d, v%d" % (vQA, sT0, vQA))
    e("v_mul_u32_u24 v%d, %d, v%d" % (vF1, PS2, T0)); e("v_add_u32 v%d, v%d, v%d" % (vF1, vF1, vP1O))
    e("s_mul_i32 s%d, s%d, %d" % (sT0, sW, 2 * PS2))
    e("v_add_u32 v%d, s%d, v%d" % (vF1, sT0, vF1))
    e("v_lshlrev_b32 v%d, 9, v%d" % (vFA, T0)); e("v_lshl_add_u32 v%d, v%d, 5, v%d" % (vFA, T1, vFA))
    e("v_add_u32 v%d, v%d, v%d" % (vFA, vFA, T3))
    e("v_lshrrev_b32 v%d, 3, v%d" % (T0, vL)); e("v_lshlrev_b32 v%d, 14, v%d" % (T0, T0))
    e("v_lshl_add_u32 v%d, v%d, 4, v%d" % (T0, T2, T0))
    e("s_mul_i32 s%d, s%d, 4" % (sT0, sB)); e("s_add_u32 s%d, s%d, s%d" % (sT0, sT0, sW)); e("s_mul_i32 s%d, s%d, %d" % (sT0, sT0, 10 * 16384))
    e("s_lshl_b32 s%d, s%d, 7" % (sT1, sP))
    e("s_add_u32 s%d, s%d, s%d" % (sT0, sT0, sT1)); e("s_add_u32 s%d, s%d, %d" % (sT0, sT0, WS_Y))
    e("v_add_u32 v%d, s%d, v%d" % (vPY, sT0, T0))
    e("v_and_b32 v%d, 1, v%d" % (T0, vL))
    e("v_lshlrev_b32 v%d, 4, v%d" % (T0, T0))
    e("v_mov_b32 v%d, 0xffff" % T1)
    e("v_lshlrev_b32 v%d, v%d, v%d" % (T0, T0, T1))
    e("v_bfe_u32 v%d, v%d, 1, 2" % (T1, vL))
    for r in range(4):
        e("v_cmp_eq_u32 vcc, %d, v%d" % (r, T1))
        e("s_nop 1")
        e("v_cndmask_b32 v%d, 0, v%d, vcc" % (vM + r, T0))
    kn = [0]
    def more_k(n):
        for _ in range(n):
            if kn[0] < RING: issue_kv("K", kn[0], kn[0]); trace_pt("ik%d" % kn[0]); kn[0] += 1
    more_k(k_pre)
    stamp('iss')
    e.wait_vm("x")
    X = 28
    for r in range(10):
        e("v_lshlrev_b32 v%d, 16, v%d" % (X + 2 * r, 18 + r))
        e("v_and_b32 v%d, 0xffff0000, v%d" % (X + 2 * r + 1, 18 + r))
    def half_allreduce(v, t, op="v_add_f32"):
        for pat in (X1, X2, HM, RM):
            e("s_nop 1")
            e("%s_dpp v%d, v%d, v%d %s %s" % (op, v, v, v, pat, DPP))
        e("v_mov_b32 v%d, v%d" % (t, v))
        e("s_nop 1")
        e("v_permlane16_swap_b32 v%d, v%d" % (v, t))
        e("s_nop 1")
        e("%s v%d, v%d, v%d" % (op, v, v, t))
    for r in range(4): e("v_add_f32 v%d, v%d, v%d" % (48 + r, X + r, X + 4 + r))
    for k in range(8, 20): e("v_add_f32 v%d, v%d, v%d" % (48 + k % 4, 48 + k % 4, X + k))
    e("v_add_f32 v48, v48, v49"); e("v_add_f32 v50, v50, v51"); e("v_add_f32 v48, v48, v50")
    half_allreduce(48, 49)
    e("v_mul_f32 v48, %s, v48" % hx(f2u(1.0 / 640)))
    for k in range(20):
        e("v_sub_f32 v%d, v%d, v48" % (18 + k % 4, X + k))
        if k < 4: e("v_mul_f32 v%d, v%d, v%d" % (52 + k, 18 + k, 18 + k))
        else: e("v_fmac_f32 v%d, v%d, v%d" % (52 + k % 4, 18 + k % 4, 18 + k % 4))
    e("v_add_f32 v52, v52, v53"); e("v_add_f32 v54, v54, v55"); e("v_add_f32 v52, v52, v54")
    half_allreduce(52, 53)
    e("v_mul_f32 v52, %s, v52" % hx(f2u(1.0 / 640)))
    e("v_cvt_pk_bf16_f32 v48, v48, v52")
    e("v_and_b32 v52, 0xffff0000, v48")
    e("v_lshlrev_b32 v48, 16, v48")
    e("v_add_f32 v52, %s, v52" % hx(f2u(1e-5)))
    e("v_cvt_pk_bf16_f32 v52, v52, v52")
    e("v_and_b32 v52, 0xffff0000, v52")
    e("v_sqrt_f32 v52, v52")
    e("s_nop 0")
    e("v_cvt_pk_bf16_f32 v52, v52, v52")
    e("v_and_b32 v52, 0xffff0000, v52")
    e("v_rcp_f32 v53, v52")
    for k in range(0, 20, 2):
        a, b2 = X + k, X + k + 1
        e("v_sub_f32 v%d, v%d, v48" % (a, a)); e("v_sub_f32 v%d, v%d, v48" % (b2, b2))
        e("v_cvt_pk_bf16_f32 v18, v%d, v%d" % (a, b2))
        e("v_lshlrev_b32 v%d, 16, v18" % a); e("v_and_b32 v%d, 0xffff0000, v18" % b2)
        e("v_mul_f32 v19, v%d, v53" % a); e("v_mul_f32 v20, v%d, v53" % b2)
        e("v_fma_f32 v%d, -v19, v52, v%d" % (a, a)); e("v_fma_f32 v%d, -v20, v52, v%d" % (b2, b2))
        e("v_fmac_f32 v19, v%d, v53" % a); e("v_fmac_f32 v20, v%d, v53" % b2)
        e("v_cvt_pk_bf16_f32 v%d, v19, v19" % a); e("v_cvt_pk_bf16_f32 v%d, v20, v20" % b2)
    e("v_lshlrev_b32 v%d, 1, v%d" % (T4, T4)); e("v_lshlrev_b32 v%d, 1, v%d" % (T5, T5))
    e("ds_write_b128 v%d, %s offset:%d" % (T4, vr(X), L_XN))
    e("ds_write_b128 v%d, %s offset:%d" % (T4, vr(X + 4), L_XN + 16))
    e("ds_write_b128 v%d, %s offset:%d" % (T4, vr(X + 8), L_XN + 1024))
    e("ds_write_b128 v%d, %s offset:%d" % (T4, vr(X + 12), L_XN + 1024 + 16))
    e("ds_write_b128 v%d, %s offset:%d" % (T5, vr(X + 16), L_XN + 2048))
    e("v_mov_b32 v%d, %d" % (T4, L_CNT)); e("v_mov_b32 v%d, 0" % T5)
    e("s_waitcnt lgkmcnt(0)")
    e("s_add_u32 s%d, s%d, 1" % (sTAG, sTAG))
    e("ds_write_b32 v%d, v%d" % (T4, T5))
    e("v_mov_b32 v%d, s%d" % (vTAG, sTAG)); e("v_mov_b32 v%d, s%d" % (vTAG + 2, sTAG))
    more_k(k_mid)
    stamp('ln')
    e("s_cmp_ge_u32 s%d, 6" % sU); e("s_cbranch_scc1 L_frole")
    e("s_mul_i32 s%d, s%d, 1280" % (sT0, sKH)); e("s_lshl_b32 s%d, s%d, 5" % (sT1, sW)); e("s_add_u32 s%d, s%d, s%d" % (sT0, sT0, sT1))
    e("v_lshrrev_b32 v%d, 3, v%d" % (T0, vL)); e("v_lshlrev_b32 v%d, 2, v%d" % (T1, T0))
    e("v_add_u32 v%d, s%d, v%d" % (T1, sT0, T1))
    for n in range(10):
        e("ds_read_b32 v%d, v%d offset:%d" % (vS + 2 * n, T1, 128 * n))
        e("ds_read_b32 v%d, v%d offset:%d" % (vS + 2 * n + 1, T1, 128 * n + 2560))
        if n == 6: e("s_waitcnt lgkmcnt(8)")
    e("s_waitcnt lgkmcnt(0)")
    for n in range(10):
        afrag(vA0, vS + 2 * n); afrag(vA1, vS + 2 * n + 1)
        if n == 0: e.wait_vm("R")
        else: e("s_nop 0")
        mfma(vr(vACC), vr(vA0), ar(4 * n), "0" if n == 0 else vr(vACC))
        mfma(vr(vACC + 4), vr(vA1), ar(4 * n), "0" if n == 0 else vr(vACC + 4))
    e("v_lshlrev_b32 v%d, 3, v%d" % (T1, vL))
    e("v_lshrrev_b32 v%d, 5, v%d" % (T3, vL)); e("v_mul_u32_u24 v%d, 3072, v%d" % (T3, T3))
    e("v_and_b32 v%d, 31, v%d" % (T4, vL)); e("v_lshl_add_u32 v%d, v%d, 4, v%d" % (T3, T4, T3))
    e("s_mul_i32 s%d, s%d, 6144" % (sT0, sH)); e("s_mul_i32 s%d, s%d, 1536" % (sT1, sKH)); e("s_add_u32 s%d, s%d, s%d" % (sT0, sT0, sT1))
    e("s_lshl_b32 s%d, s%d, 9" % (sT1, sNT)); e("s_add_u32 s%d, s%d, s%d" % (sT0, sT0, sT1))
    e("s_mov_b64 exec, %s" % sr(sVAL, 2))
    e("ds_write_b128 v%d, %s offset:%d" % (vF1, vr(vACC), L_Q1))
    e("ds_write_b128 v%d, %s offset:%d" % (vF1, vr(vACC + 4), L_Q1 + 256))
    e("s_mov_b64 exec, -1")
    e("s_waitcnt lgkmcnt(0)")
    e("s_barrier")
    e("s_cmp_lg_u32 s%d, 0" % sW); e("s_cbranch_scc1 L_rdone")
    for pp in range(8): e("ds_read_b64 %s, v%d offset:%d" % (vr(vS + 2 * pp, 2), T1, L_Q1 + pp * PS2))
    e("v_mov_b32 v19, v%d" % vTAG); e("v_mov_b32 v21, v%d" % vTAG)
    e("s_waitcnt lgkmcnt(6)")
    e("v_add_f32 v18, v%d, v%d" % (vS, vS + 2)); e("v_add_f32 v20, v%d, v%d" % (vS + 1, vS + 3))
    for pp in range(2, 8):
        e("s_waitcnt lgkmcnt(%d)" % (7 - pp))
        e("v_add_f32 v18, v18, v%d" % (vS + 2 * pp)); e("v_add_f32 v20, v20, v%d" % (vS + 2 * pp + 1))
    e.vmem("buffer_store_dwordx4 v[18:21], v%d, %s, s%d offen %s" % (T3, sr(sWS), sT0, stf), counted=False)
    e("s_branch L_rdone")
    e.label("L_frole")
    e("v_bfe_u32 v%d, v%d, 3, 1" % (T0, vL)); e("v_mul_u32_u24 v%d, 2560, v%d" % (T0, T0))
    e("v_lshrrev_b32 v%d, 4, v%d" % (T3, vL)); e("v_lshl_add_u32 v%d, v%d, 2, v%d" % (T0, T3, T0))
    e("s_lshl_b32 s%d, s%d, 9" % (sT0, sKR)); e("s_lshl_b32 s%d, s%d, 4" % (sT1, sW)); e("s_add_u32 s%d, s%d, s%d" % (sT0, sT0, sT1))
    e("v_add_u32 v%d, s%d, v%d" % (T0, sT0, T0))
    for m in range(0, 8, 2): e("ds_read2_b32 v[%d:%d], v%d offset0:%d offset1:%d" % (vS + m, vS + m + 1, T0, 16 * m, 16 * m + 16))
    e("s_waitcnt lgkmcnt(0)")
    for m in range(8):
        A = vA0 if m % 2 == 0 else vA1
        afrag(A, vS + m)
        e("s_nop 0")
        if m == 0: e.wait_vm("R")
        else: e("s_nop 0")
        mfma(vr(vACC), vr(A), ar(8 * m), "0" if m == 0 else vr(vACC))
        mfma(vr(vACC + 4), vr(A), ar(8 * m + 4), "0" if m == 0 else vr(vACC + 4))
    e("s_lshl_b32 s%d, s%d, 11" % (sT0, sW))
    e("v_add_u32 v%d, s%d, v%d" % (T0, sT0, vFA))
    e("v_bfe_u32 v%d, v0, 2, 2" % T2); e("v_lshlrev_b32 v%d, 9, v%d" % (T2, T2))
    e("v_lshrrev_b32 v%d, 4, v0" % T3); e("v_lshl_add_u32 v%d, v%d, 5, v%d" % (T2, T3, T2))
    e("v_and_b32 v%d, 3, v0" % T4); e("v_lshl_add_u32 v%d, v%d, 3, v%d" % (T2, T4, T2))
    e("v_lshlrev_b32 v%d, 4, v0" % T3)
    e("s_mul_i32 s%d, s%d, 49152" % (sT0, sKR)); e("s_lshl_b32 s%d, s%d, 12" % (sT1, sFS))
    e("s_add_u32 s%d, s%d, s%d" % (sT0, sT0, sT1)); e("s_add_u32 s%d, s%d, %d" % (sT0, sT0, WS_P1))
    e("ds_write_b128 v%d, %s offset:%d" % (T0, vr(vACC), L_F1))
    e("ds_write_b128 v%d, %s offset:%d" % (T0, vr(vACC + 4), L_F1 + 1024))
    e("s_waitcnt lgkmcnt(0)")
    e("s_barrier")
    e("s_cmp_eq_u32 s%d, 0" % sFACT); e("s_cbranch_scc1 L_rdone")
    for pp in range(4): e("ds_read_b64 %s, v%d offset:%d" % (vr(vS + 2 * pp, 2), T2, L_F1 + pp * 2048))
    e("v_mov_b32 v19, v%d" % vTAG); e("v_mov_b32 v21, v%d" % vTAG)
    e("s_waitcnt lgkmcnt(0)")
    e("v_add_f32 v18, v%d, v%d" % (vS, vS + 2)); e("v_add_f32 v20, v%d, v%d" % (vS + 1, vS + 3))
    e("v_add_f32 v18, v18, v%d" % (vS + 4)); e("v_add_f32 v20, v20, v%d" % (vS + 5))
    e("v_add_f32 v18, v18, v%d" % (vS + 6)); e("v_add_f32 v20, v20, v%d" % (vS + 7))
    e.vmem("buffer_store_dwordx4 v[18:21], v%d, %s, s%d offen %s" % (T3, sr(sWS), sT0, stf), counted=False)
    e.label("L_rdone")
    stamp('q1')
    e("s_lshl_b32 s%d, s%d, 1" % (sT0, sH)); e("s_add_u32 s%d, s%d, s%d" % (sT0, sT0, sB)); e("s_mul_i32 s%d, s%d, 3072" % (sT0, sT0))
    e("s_mul_i32 s%d, s%d, 768" % (sT1, sW)); e("s_add_u32 s%d, s%d, s%d" % (sT0, sT0, sT1))
    e("v_lshlrev_b32 v%d, 4, v%d" % (T4, vL)); e("v_add_u32 v%d, s%d, v%d" % (vWQ, sT0, T4))
    vQC = vS
    def issue_qc(counted):
        e.vmem("buffer_load_dwordx4 %s, v%d, %s, 0 offen sc1" % (vr(vQC), vWQ, sr(sWS)), "QC", counted=counted)
    more_k(qc_after - kn[0])
    e("s_mov_b32 exec_hi, 0xffff")
    issue_qc(True)
    e("s_mov_b64 exec, -1")
    more_k(RING)
    for g in range(NE): issue_kv("V", g, ('a', AVE + 12 * g)); trace_pt("iv%d" % g)
    e("s_mul_i32 s%d, s%d, 384" % (sT0, sW)); e("s_add_u32 s%d, s%d, %d" % (sT0, sT0, L_QC))
    e("v_lshlrev_b32 v%d, 3, v%d" % (T2, vL)); e("v_add_u32 v%d, s%d, v%d" % (T3, sT0, T2))
    e("v_and_b32 v%d, 7, v%d" % (T5, vL)); e("v_lshlrev_b32 v%d, 4, v%d" % (T5, T5))
    stamp('iss2')
    e.wait_vm("QC")
    e("s_mov_b32 exec_hi, 0xffff")
    poll("qc", [vQC + 1, vQC + 3], T0, T1, lambda: issue_qc(False))
    e("ds_write2_b32 v%d, v%d, v%d offset0:0 offset1:1" % (T3, vQC, vQC + 2))
    e("s_mov_b64 exec, -1")
    e("s_waitcnt lgkmcnt(0)")
    e("s_barrier")
    stamp('b1')
    e("ds_read_b128 %s, v%d offset:%d" % (vr(vQF), T4, L_QC))
    e("ds_read_b128 %s, v%d offset:%d" % (vr(vQF + 4), T4, L_QC + 768))
    for g in range(32): e("v_mov_b32 v%d, 0" % (vS + g))
    e("s_waitcnt lgkmcnt(0)")
    for r in range(4): e("v_add_f32 v%d, v%d, v%d" % (vQF + r, vQF + r, vQF + 4 + r))
    e("v_cvt_pk_bf16_f32 v%d, v%d, v%d" % (vQF, vQF, vQF + 1))
    e("v_cvt_pk_bf16_f32 v%d, v%d, v%d" % (vQF + 1, vQF + 2, vQF + 3))
    e("ds_write_b64 v%d, %s offset:%d" % (T2, vr(vQF, 2), L_QB))
    e("s_waitcnt lgkmcnt(0)")
    for t in range(3): e("ds_read_b128 %s, v%d offset:%d" % (vr(vQF + 4 * t), T5, L_QB + t * 128))
    e("s_waitcnt lgkmcnt(0)")

    vP1 = 10
    def issue_p1(counted):
        e("s_mov_b32 s%d, 98304" % sSO)
        e.vmem("buffer_load_dwordx4 %s, v%d, %s, 0 offen sc1" % (vr(vP1), vP1O, sr(sWSF)), "P1", counted=counted)
        e.vmem("buffer_load_dwordx4 %s, v%d, %s, s%d offen sc1" % (vr(vP1 + 4), vP1O, sr(sWSF), sSO), "P1", counted=counted)
        e.vmem("buffer_load_dwordx4 %s, v%d, %s, 0 offen sc1" % (vr(vP1 + 8), vF1, sr(sWSF)), "P1", counted=counted)
    def start_p1():
        e("s_lshl_b32 s%d, s%d, 2" % (sT0, sRB)); e("s_add_u32 s%d, s%d, s%d" % (sT0, sT0, sW))
        e("s_lshl_b32 s%d, s%d, 9" % (sT1, sT0)); e("s_add_u32 s%d, s%d, %d" % (sT1, sT1, WS_P1))
        e("v_and_b32 v%d, 31, v%d" % (vF1, vL)); e("v_lshlrev_b32 v%d, 4, v%d" % (vF1, vF1)); e("v_add_u32 v%d, s%d, v%d" % (vF1, sT1, vF1))
        e("v_lshrrev_b32 v%d, 5, v%d" % (vP1O, vL)); e("v_mul_u32_u24 v%d, 49152, v%d" % (vP1O, vP1O)); e("v_add_u32 v%d, v%d, v%d" % (vP1O, vP1O, vF1))
        e("v_add_u32 v%d, %d, v%d" % (vF1, 4 * 49152, vF1))
        issue_p1(True)
        e("s_mul_i32 s%d, s%d, 20480" % (sT1, sT0))
        e("s_lshl_b32 s%d, s%d, 8" % (sT2, sC5)); e("s_add_u32 s%d, s%d, s%d" % (sT1, sT1, sT2))
        e("s_mul_i32 s%d, s%d, 61440" % (sT2, sW))
        e("v_subrev_u32 v%d, s%d, v%d" % (T1, sT2, vWO))
        for i in range(4):
            e.vmem("buffer_load_dwordx4 %s, v%d, %s, s%d offen %s" % (ar(240 + 4 * i), T1, sr(sWD), sT1, ff), "WD")
            if i < 3: e("s_add_u32 s%d, s%d, 5120" % (sT1, sT1))
    def stage2():
        skip = e.newlab("nost2")
        e("s_cmp_eq_u32 s%d, 0" % sACT); e("s_cbranch_scc1 %s" % skip)
        e.wait_vm("WD")
        poll("p1", [vP1 + 1 + 2 * k for k in range(6)], T1, T2, lambda: issue_p1(False))
        e("v_add_f32 v10, v10, v14"); e("v_add_f32 v12, v12, v16")
        e("s_mov_b32 exec_hi, 0")
        e("v_add_f32 v10, v10, v18"); e("v_add_f32 v12, v12, v20")
        e("s_mov_b64 exec, -1")
        e("v_mov_b32 v11, v10"); e("v_mov_b32 v13, v12"); e("s_nop 1")
        e("v_permlane32_swap_b32 v10, v11"); e("v_permlane32_swap_b32 v12, v13"); e("s_nop 1")
        e("v_add_f32 v10, v10, v11"); e("v_add_f32 v12, v12, v13")
        e("v_cvt_pk_bf16_f32 v14, v10, v12")
        e("v_lshlrev_b32 v10, 16, v14"); e("v_and_b32 v11, 0xffff0000, v14")
        e("s_nop 1")
        e("v_mov_b32_dpp v12, v10 %s %s" % (R8, DPP)); e("v_mov_b32_dpp v13, v11 %s %s" % (R8, DPP))
        for k in range(2):
            x, t = 10 + k, 14 + k
            e("v_mul_f32 v%d, v%d, v%d" % (t, x, x))
            e("v_mul_f32 v%d, %s, v%d" % (t, hx(f2u(0.044715)), t))
            e("v_fma_f32 v%d, v%d, v%d, v%d" % (t, t, x, x))
            e("v_mul_f32 v%d, %s, v%d" % (t, hx(f2u(-2.0 * LOG2E * 0.7978845608028654)), t))
            e("v_exp_f32 v%d, v%d" % (t, t)); e("s_nop 0")
            e("v_add_f32 v%d, 1.0, v%d" % (t, t))
            e("v_rcp_f32 v%d, v%d" % (t, t)); e("s_nop 0")
            e("v_mul_f32 v%d, v%d, v%d" % (t, x, t))
        e("v_cvt_pk_bf16_f32 v16, v14, v15")
        e("v_lshlrev_b32 v14, 16, v16"); e("v_and_b32 v15, 0xffff0000, v16")
        e("v_mul_f32 v14, v14, v12"); e("v_mul_f32 v15, v15, v13")
        e("v_cvt_pk_bf16_f32 v16, v14, v15")
        e("v_bfe_u32 v17, v%d, 3, 1" % vL); e("v_lshrrev_b32 v18, 5, v%d" % vL)
        e("v_lshl_add_u32 v17, v17, 2, v18"); e("v_lshlrev_b32 v17, 2, v17")
        for i, off in enumerate((0, 8, 64, 72)): e("ds_bpermute_b32 v%d, v17, v16 offset:%d" % (10 + i, off))
        e("v_bfe_u32 v17, v%d, 4, 1" % vL); e("v_mul_u32_u24 v17, 0x0202, v17"); e("v_add_u32 v17, 0x0100, v17")
        e("v_lshl_or_b32 v17, v17, 16, v17")
        e("s_waitcnt lgkmcnt(0)")
        for i in range(4): e("v_perm_b32 v%d, v%d, v%d, v17" % (10 + i, 10 + i, 10 + i))
        for i in range(4):
            A = 20 if i % 2 == 0 else 24
            afrag(A, 10 + i)
            e("s_nop 1")
            mfma(vr(16), vr(A), ar(240 + 4 * i), "0" if i == 0 else vr(16))
        e("s_lshl_b32 s%d, s%d, 10" % (sT0, sW))
        e("v_add_u32 v10, s%d, v%d" % (sT0, vFA))
        e("v_mov_b32 v11, %d" % L_CNT); e("v_mov_b32 v12, 1")
        e("s_nop 5")
        e("ds_write_b128 v10, %s offset:%d" % (vr(16), L_F2))
        e("s_waitcnt lgkmcnt(0)")
        e("s_mov_b64 exec, 1")
        e("ds_add_rtn_u32 v12, v11, v12")
        e("s_mov_b64 exec, -1")
        e("s_waitcnt lgkmcnt(0)")
        e("v_readfirstlane_b32 s%d, v12" % sT0)
        e("s_nop 3")
        e("s_cmp_lg_u32 s%d, 3" % sT0); e("s_cbranch_scc1 %s" % skip)
        e("v_lshlrev_b32 v28, 3, v%d" % vL)
        for k in range(2):
            for pp in range(4): e("ds_read_b64 %s, v28 offset:%d" % (vr(10 + 8 * k + 2 * pp, 2), L_F2 + pp * 1024 + k * 512))
        e("v_lshrrev_b32 v28, 3, v%d" % vL); e("v_mul_u32_u24 v28, 3072, v28")
        e("v_and_b32 v29, 7, v%d" % vL); e("v_lshl_add_u32 v28, v29, 4, v28")
        e("s_mul_i32 s%d, s%d, %d" % (sT0, sC5, 16 * 3072))
        e("s_lshl_b32 s%d, s%d, 7" % (sT1, sRB))
        e("s_add_u32 s%d, s%d, s%d" % (sT0, sT0, sT1)); e("s_add_u32 s%d, s%d, %d" % (sT0, sT0, WS_P2))
        e("s_add_u32 s%d, s%d, %d" % (sT1, sT0, 8 * 3072))
        e("s_waitcnt lgkmcnt(0)")
        for k in range(2):
            b0 = 10 + 8 * k
            e("v_add_f32 v%d, v%d, v%d" % (b0, b0, b0 + 2)); e("v_add_f32 v%d, v%d, v%d" % (b0 + 2, b0 + 1, b0 + 3))
            e("v_add_f32 v%d, v%d, v%d" % (b0, b0, b0 + 4)); e("v_add_f32 v%d, v%d, v%d" % (b0 + 2, b0 + 2, b0 + 5))
            e("v_add_f32 v%d, v%d, v%d" % (b0, b0, b0 + 6)); e("v_add_f32 v%d, v%d, v%d" % (b0 + 2, b0 + 2, b0 + 7))
            e("v_mov_b32 v%d, v%d" % (b0 + 1, vTAG)); e("v_mov_b32 v%d, v%d" % (b0 + 3, vTAG))
            e.vmem("buffer_store_dwordx4 %s, v28, %s, s%d offen %s" % (vr(b0), sr(sWSF), sT0 if k == 0 else sT1, stf), counted=False)
        e("s_nop 1")
        e.label(skip)

    curwin[0] = win
    sc = hx(f2u(192 ** -0.5))
    nwo = [0]
    NO1 = AVE // 12
    def finish_scores(g0):
        a, b2, t = vS + g0, vS + g0 + 1, T0
        for pat in (X1, X2, HM):
            e("v_add_f32_dpp v%d, v%d, v%d %s %s" % (a, a, a, pat, DPP))
            e("v_add_f32_dpp v%d, v%d, v%d %s %s" % (b2, b2, b2, pat, DPP))
            e("s_nop 0")
        e("v_cvt_pk_bf16_f32 v%d, v%d, v%d" % (t, a, b2))
        e("v_lshlrev_b32 v%d, 16, v%d" % (a, t)); e("v_and_b32 v%d, 0xffff0000, v%d" % (b2, t))
        e("v_mul_f32 v%d, %s, v%d" % (a, sc, a)); e("v_mul_f32 v%d, %s, v%d" % (b2, sc, b2))
        e("v_cvt_pk_bf16_f32 v%d, v%d, v%d" % (t, a, b2))
        e("v_lshlrev_b32 v%d, 16, v%d" % (a, t)); e("v_and_b32 v%d, 0xffff0000, v%d" % (b2, t))
        if g0 == 0: e("v_max_f32 v%d, v%d, v%d" % (vMW, a, b2))
        else: e("v_max3_f32 v%d, v%d, v%d, v%d" % (vMW, vMW, a, b2))
    vn = [NE]
    for g in range(32):
        e.wait_vm("K%d" % g)
        stamp('k%d' % g)
        rs = ring[("K", g)]
        for t in range(3):
            for r in range(4):
                e("v_dot2c_f32_bf16 v%d, v%d, v%d" % (vS + g, rslot(rs, t) + r, vQF + 4 * t + r))
        if g + RING < 32: issue_kv("K", g + RING, rs)
        else: issue_kv("V", vn[0], rs); vn[0] += 1
        if nwo[0] < NO1 and g >= ostart and (g - ostart) % ostep == 0:
            issue_wo(nwo[0]); nwo[0] += 1
        if g == p1_g: start_p1()
        if g == st2_g: stage2()
        if g % 2 == 1 and g >= 3: finish_scores(g - 3)
    e("s_nop 2")
    finish_scores(30)
    def group_allreduce(v, t, op):
        e("s_nop 1")
        e("%s_dpp v%d, v%d, v%d %s %s" % (op, v, v, v, R8, DPP))
        e("v_mov_b32 v%d, v%d" % (t, v)); e("s_nop 1")
        e("v_permlane16_swap_b32 v%d, v%d" % (v, t)); e("s_nop 1")
        e("%s v%d, v%d, v%d" % (op, v, v, t))
        e("v_mov_b32 v%d, v%d" % (t, v)); e("s_nop 1")
        e("v_permlane32_swap_b32 v%d, v%d" % (v, t)); e("s_nop 1")
        e("%s v%d, v%d, v%d" % (op, v, v, t))
    group_allreduce(vMW, T0, "v_max_f32")
    l2e = hx(f2u(LOG2E))
    for g in range(32): e("v_sub_f32 v%d, v%d, v%d" % (vS + g, vS + g, vMW))
    for g in range(32): e("v_mul_f32 v%d, %s, v%d" % (vS + g, l2e, vS + g))
    for g in range(32): e("v_exp_f32 v%d, v%d" % (vS + g, vS + g))
    e("v_add_f32 v%d, v%d, v%d" % (vLW, vS, vS + 1)); e("v_add_f32 v%d, v%d, v%d" % (T0, vS + 2, vS + 3))
    for g in range(4, 32, 2):
        e("v_add_f32 v%d, v%d, v%d" % (vLW, vLW, vS + g)); e("v_add_f32 v%d, v%d, v%d" % (T0, T0, vS + g + 1))
    e("v_add_f32 v%d, v%d, v%d" % (vLW, vLW, T0))
    group_allreduce(vLW, T0, "v_add_f32")
    e("s_lshl_b32 s%d, s%d, 3" % (sT0, sW)); e("s_add_u32 s%d, s%d, %d" % (sT0, sT0, L_ML)); e("v_mov_b32 v%d, s%d" % (T0, sT0))
    e("ds_write2_b32 v%d, v%d, v%d offset0:0 offset1:1" % (T0, vMW, vLW))
    e("v_and_b32 v%d, 3, v%d" % (T0, vL)); e("v_lshlrev_b32 v%d, 3, v%d" % (T0, T0))
    e("s_waitcnt lgkmcnt(0)")
    e("s_barrier")
    e("ds_read_b64 v[30:31], v%d offset:%d" % (T0, L_ML))
    e("s_waitcnt lgkmcnt(0)")
    e("v_mov_b32 v32, v30")
    for pat in (X1, X2):
        e("s_nop 1"); e("v_max_f32_dpp v32, v32, v32 %s %s" % (pat, DPP))
    e("v_sub_f32 v30, v30, v32"); e("v_sub_f32 v33, v%d, v32" % vMW)
    e("v_mul_f32 v30, %s, v30" % l2e); e("v_mul_f32 v33, %s, v33" % l2e)
    e("v_exp_f32 v30, v30"); e("v_exp_f32 v33, v33")
    e("s_nop 0")
    e("v_mul_f32 v30, v30, v31")
    for pat in (X1, X2):
        e("s_nop 1"); e("v_add_f32_dpp v30, v30, v30 %s %s" % (pat, DPP))
    e("v_rcp_f32 v31, v30")
    e("v_mov_b32 v%d, v32" % vMW); e("v_mov_b32 v%d, v30" % vLW)
    vFAC = 41
    e("v_mul_f32 v%d, v33, v31" % vFAC)
    e("s_lshl_b32 s%d, s%d, 7" % (sT0, sB)); e("s_add_u32 s%d, s%d, s%d" % (sT0, sT0, sP))
    e("s_lshl_b32 s%d, s%d, 4" % (sT0, sT0)); e("s_add_u32 s%d, s%d, %d" % (sWQO, sT0, WS_ML))
    stamp('b2')

    for g in range(32):
        A = vA0 if g % 2 == 0 else vA1
        e("v_mul_f32 v%d, v%d, v%d" % (vS + g, vS + g, vFAC))
        e("v_cvt_pk_bf16_f32 v%d, v%d, v%d" % (vS + g, vS + g, vS + g))
        afrag(A, vS + g)
        e("s_nop 0")
        e.wait_vm("V%d" % g)
        stamp('v%d' % g)
        if g == ml_g:
            lab = e.newlab("noml")
            e("s_cmp_lg_u32 s%d, 3" % sW); e("s_cbranch_scc1 %s" % lab)
            e("s_mov_b64 exec, 1")
            e.vmem("buffer_store_dwordx4 %s, off, %s, s%d sc1" % (vr(vMW), sr(sWS), sWQO), counted=False)
            e("s_mov_b64 exec, -1")
            e.label(lab)
        rs = ring[("V", g)]
        for t in range(3):
            mfma(vr(vACC + 4 * t), vr(A), reg_of(rs, t), "0" if g == 0 else vr(vACC + 4 * t))
        if not isinstance(rs, tuple) and vn[0] < 32:
            issue_kv("V", vn[0], rs); vn[0] += 1
        if nwo[0] < 20 and (nwo[0] < NO1 or g >= nwo[0] - NO1):
            issue_wo(nwo[0]); nwo[0] += 1
    assert nwo[0] == 20 and vn[0] == 32
    stamp('vend')
    e("v_and_b32 v%d, 7, v%d" % (T0, vL)); e("v_mul_u32_u24 v%d, %d, v%d" % (T0, PSTR, T0))
    e("v_lshrrev_b32 v%d, 4, v%d" % (T1, vL)); e("v_lshl_add_u32 v%d, v%d, 2, v%d" % (T0, T1, T0))
    e("v_bfe_u32 v%d, v%d, 3, 1" % (T1, vL)); e("v_mul_u32_u24 v%d, 96, v%d" % (T1, T1))
    e("s_mul_i32 s%d, s%d, 192" % (sT0, sW))
    e("s_add_u32 s%d, s%d, %d" % (sT0, sT0, L_OP))
    e("v_add3_u32 v%d, s%d, v%d, v%d" % (T0, sT0, T0, T1))
    e("s_mov_b64 exec, %s" % sr(sVAL, 2))
    for t in range(3): e("ds_write_b128 v%d, %s offset:%d" % (vQA, vr(vACC + 4 * t), L_OP + t * 256))
    e("s_mov_b64 exec, -1")
    e("s_waitcnt lgkmcnt(0)")
    e("s_barrier")
    stamp('b3')
    vO = 52
    for i in range(0, 6, 2): e("ds_read2_b32 v[%d:%d], v%d offset0:%d offset1:%d" % (vO + i, vO + i + 1, T0, 4 * i, 4 * i + 4))
    e("s_mul_i32 s%d, s%d, 2560" % (sT0, sW))
    e("v_add_u32 v%d, s%d, v%d" % (T1, sT0, vFA))
    e("s_mul_i32 s%d, s%d, 640" % (sT0, sW))
    e("v_lshlrev_b32 v%d, 3, v%d" % (T2, vL)); e("v_add_u32 v%d, s%d, v%d" % (T2, sT0, T2))
    e("s_waitcnt lgkmcnt(0)")
    for pat in (X1, X2, HM):
        for i in range(6): e("v_add_f32_dpp v%d, v%d, v%d %s %s" % (vO + i, vO + i, vO + i, pat, DPP))
    for i in range(6): e("v_cvt_pk_bf16_f32 v%d, v%d, v%d" % (vO + i, vO + i, vO + i))
    assert e.vm[-1] == "V31"
    vY = 30
    afrag(vA0, vO)
    for i in range(12):
        A = vA0 if i % 2 == 0 else vA1
        An = vA1 if i % 2 == 0 else vA0
        if i == 0: e("s_nop 1")
        for seg in range(5):
            mfma(vr(vY + 4 * seg), vr(A), ar(4 * (5 * i + seg)), "0" if i == 0 else vr(vY + 4 * seg))
            if i < 11 and seg < 2:
                n = i + 1
                for r in (2 * seg, 2 * seg + 1):
                    if n >= 6: e("v_and_b32_dpp v%d, v%d, v%d %s %s" % (An + r, vO + n - 6, vM + r, R8, DPP))
                    else: e("v_and_b32 v%d, v%d, v%d" % (An + r, vO + n, vM + r))
    stamp('mf')
    e("s_mov_b32 exec_hi, 0")
    e("v_mov_b32 v101, v%d" % vTAG); e("v_mov_b32 v103, v%d" % vTAG)
    e("s_nop 1")
    for seg in range(5): e("ds_write_b128 v%d, %s offset:%d" % (T1, vr(vY + 4 * seg), L_YP + seg * 512))
    e("s_mov_b64 exec, -1")
    e("v_mov_b32 v101, v%d" % vTAG); e("v_mov_b32 v103, v%d" % vTAG)
    e("v_mov_b32 v105, v%d" % vTAG); e("v_mov_b32 v107, v%d" % vTAG)
    e("s_mov_b32 s%d, 0x20000" % sT0)
    e("s_waitcnt lgkmcnt(0)")
    e("s_barrier")
    for pp in range(4): e("ds_read_b64 %s, v%d offset:%d" % (vr(108 + 2 * pp, 2), T2, L_YP + pp * 2560))
    for pp in range(4): e("ds_read_b64 %s, v%d offset:%d" % (vr(116 + 2 * pp, 2), T2, L_YP + 512 + pp * 2560))
    e("s_waitcnt lgkmcnt(4)")
    e("v_add_f32 v108, v108, v110"); e("v_add_f32 v109, v109, v111"); e("v_add_f32 v112, v112, v114"); e("v_add_f32 v113, v113, v115")
    e("v_add_f32 v100, v108, v112"); e("v_add_f32 v102, v109, v113")
    e.vmem("buffer_store_dwordx4 v[100:103], v%d, %s, 0 offen %s" % (vPY, sr(sWS), yf), counted=False)
    e("s_waitcnt lgkmcnt(0)")
    e("v_add_f32 v116, v116, v118"); e("v_add_f32 v117, v117, v119"); e("v_add_f32 v120, v120, v122"); e("v_add_f32 v121, v121, v123")
    e("v_add_f32 v104, v116, v120"); e("v_add_f32 v106, v117, v121")
    e("s_mov_b64 exec, 0xffff")
    e.vmem("buffer_store_dwordx4 v[104:107], v%d, %s, s%d offen %s" % (vPY, sr(sWS), sT0, yf), counted=False)
    e("s_mov_b64 exec, -1")
    stamp('pub')
    if nopoll: e("s_branch L_fin")
    e("s_cmp_eq_u32 s2, 1"); e("s_cbranch_scc1 L_epoch")
    e("s_and_b32 s%d, s2, 1" % sT0); e("s_cmp_lg_u32 s%d, 0" % sT0); e("s_cbranch_scc1 L_fin")
    e("s_cmp_ge_u32 s2, 160"); e("s_cbranch_scc1 L_fin")
    e("s_lshr_b32 s%d, s2, 1" % sCI)
    e("s_cmp_ge_u32 s%d, 40" % sCI); e("s_cselect_b32 s%d, 1, 0" % sB)
    e("s_mul_i32 s%d, s%d, 40" % (sT0, sB)); e("s_sub_u32 s%d, s%d, s%d" % (sH, sCI, sT0))
    e("v_lshlrev_b32 v10, 4, v%d" % vL)
    e("s_lshl_b32 s%d, s%d, 14" % (sT0, sCI)); e("s_lshl_b32 s%d, s%d, 12" % (sT1, sW))
    e("s_add_u32 s%d, s%d, s%d" % (sT0, sT0, sT1)); e("s_add_u32 s%d, s%d, %d" % (sT0, sT0, WS_Y))
    e("v_add_u32 v11, s%d, v10" % sT0)
    e("s_lshr_b32 s%d, s%d, 3" % (sT0, sH)); e("s_lshl_b32 s%d, s%d, 1" % (sT0, sT0)); e("s_add_u32 s%d, s%d, s%d" % (sT0, sT0, sB))
    e("s_lshl_b32 s%d, s%d, 3" % (sT0, sT0)); e("s_and_b32 s%d, s%d, 7" % (sT1, sH)); e("s_add_u32 s%d, s%d, s%d" % (sT0, sT0, sT1))
    e("s_mul_i32 s%d, s%d, 3072" % (sT0, sT0)); e("s_mul_i32 s%d, s%d, 768" % (sT1, sW))
    e("s_add_u32 s%d, s%d, s%d" % (sT0, sT0, sT1)); e("s_add_u32 s%d, s%d, %d" % (sT0, sT0, WS_P2))
    e("v_min_u32 v12, 752, v10"); e("v_add_u32 v12, s%d, v12" % sT0)
    e("v_lshrrev_b32 v13, 3, v%d" % vL); e("v_lshlrev_b32 v13, 4, v13")
    e("s_lshl_b32 s%d, s%d, 11" % (sT0, sB)); e("s_lshl_b32 s%d, s%d, 9" % (sT1, sW))
    e("s_add_u32 s%d, s%d, s%d" % (sT0, sT0, sT1)); e("s_add_u32 s%d, s%d, %d" % (sT0, sT0, WS_ML))
    e("v_add_u32 v13, s%d, v13" % sT0)
    e("v_and_b32 v14, 15, v%d" % vL); e("v_lshlrev_b32 v14, 1, v14")
    e("s_lshl_b32 s%d, s%d, 5" % (sT0, sCI)); e("v_add_u32 v14, s%d, v14" % sT0)
    ML0, Y0, F0 = 16, 32, 48
    def ld_ml():
        for i in range(4): e("buffer_load_dwordx4 %s, v13, %s, 0 offen offset:%d sc1" % (vr(ML0 + 4 * i), sr(sWS), 128 * i))
    def ld_y():
        for i in range(4): e("buffer_load_dwordx4 %s, v11, %s, 0 offen offset:%d sc1" % (vr(Y0 + 4 * i), sr(sWS), 1024 * i))
        e("buffer_load_dwordx4 %s, v12, %s, 0 offen sc1" % (vr(F0), sr(sWS)))
    ld_ml()
    if xspec: ld_y()
    e("buffer_load_ushort v15, v14, %s, 0 offen" % sr(sX))
    e("s_waitcnt vmcnt(%d)" % (6 if xspec else 1))
    poll("ml", [ML0 + 1 + 2 * k for k in range(8)], 56, 57, ld_ml, sleep=mlsleep)
    if not xspec: ld_y()
    def sib_reduce(op):
        for i in range(4): e("%s_dpp v%d, v%d, v%d %s %s" % (op, 56 + i, 56 + i, 56 + i, R8, DPP))
        for i in range(4): e("v_mov_b32 v%d, v%d" % (60 + i, 56 + i))
        e("s_nop 0")
        for i in range(4): e("v_permlane16_swap_b32 v%d, v%d" % (56 + i, 60 + i))
        e("s_nop 0")
        for i in range(4): e("%s v%d, v%d, v%d" % (op, 56 + i, 56 + i, 60 + i))
    mreg = [ML0 + 4 * i for i in range(4)]
    for i in range(4): e("v_mov_b32 v%d, v%d" % (56 + i, mreg[i]))
    sib_reduce("v_max_f32")
    for i in range(4): e("v_sub_f32 v%d, v%d, v%d" % (mreg[i], mreg[i], 56 + i))
    for i in range(4): e("v_mul_f32 v%d, %s, v%d" % (mreg[i], l2e, mreg[i]))
    for i in range(4): e("v_exp_f32 v%d, v%d" % (mreg[i], mreg[i]))
    for i in range(4): e("v_mul_f32 v%d, v%d, v%d" % (mreg[i], mreg[i], mreg[i] + 2))
    for i in range(4): e("v_mov_b32 v%d, v%d" % (56 + i, mreg[i]))
    sib_reduce("v_add_f32")
    for i in range(4): e("v_rcp_f32 v%d, v%d" % (56 + i, 56 + i))
    for i in range(4): e("v_mul_f32 v%d, v%d, v%d" % (mreg[i], mreg[i], 56 + i))
    e("v_and_b32 v60, 7, v%d" % vL); e("v_lshlrev_b32 v60, 3, v60")
    e("v_bfe_u32 v61, v%d, 4, 1" % vL); e("v_lshl_add_u32 v60, v61, 2, v60")
    e("v_lshrrev_b32 v61, 5, v%d" % vL); e("v_lshl_add_u32 v60, v61, 6, v60")
    e("s_lshl_b32 s%d, s%d, 7" % (sT0, sW)); e("v_add_u32 v60, s%d, v60" % sT0)
    e("v_and_b32 v61, 31, v%d" % vL); e("v_lshlrev_b32 v61, 2, v61")
    e("s_waitcnt vmcnt(0)")
    poll("y", [Y0 + 1 + 2 * k for k in range(10)], 56, 57, ld_y, sleep=0)
    e("v_mul_f32 v32, v32, v%d" % mreg[0]); e("v_mul_f32 v34, v34, v%d" % mreg[0])
    e("s_mov_b32 exec_lo, 0"); e("s_mov_b32 exec_hi, 0xffff0000")
    e("v_mov_b32 v48, 0"); e("v_mov_b32 v50, 0")
    e("s_mov_b64 exec, -1")
    for i in range(1, 4):
        e("v_fmac_f32 v32, v%d, v%d" % (32 + 4 * i, mreg[i])); e("v_fmac_f32 v34, v%d, v%d" % (34 + 4 * i, mreg[i]))
    e("s_nop 1")
    e("v_permlane32_swap_b32 v32, v48"); e("v_permlane32_swap_b32 v34, v50")
    e("s_nop 1")
    e("v_add_f32 v32, v32, v48"); e("v_add_f32 v34, v34, v50")
    e("s_nop 1")
    e("v_permlane16_swap_b32 v32, v34"); e("s_nop 1")
    e("v_add_f32 v32, v32, v34"); e("s_nop 1")
    e("v_add_f32_dpp v32, v32, v32 %s %s" % (R8, DPP))
    e("ds_write_b32 v60, v32 offset:%d" % L_CO)
    e("s_waitcnt lgkmcnt(0)")
    e("s_barrier")
    e("s_cmp_lg_u32 s%d, 0" % sW); e("s_cbranch_scc1 L_fin")
    e("v_add_u32 v61, %d, v61" % L_CO)
    e("ds_read2_b32 v[24:25], v61 offset0:0 offset1:32"); e("ds_read2_b32 v[26:27], v61 offset0:64 offset1:96")
    e("s_waitcnt lgkmcnt(0)")
    e("v_add_f32 v24, v24, v25"); e("v_add_f32 v26, v26, v27"); e("v_add_f32 v24, v24, v26")
    e("v_cvt_pk_bf16_f32 v24, v24, v24"); e("v_and_b32 v24, 0xffff0000, v24")
    e("v_mul_f32 v25, %s, v24" % hx(f2u(-LOG2E)))
    e("v_exp_f32 v25, v25"); e("s_nop 0")
    e("v_add_f32 v25, 1.0, v25")
    e("v_rcp_f32 v25, v25"); e("s_nop 0")
    e("v_mul_f32 v25, v24, v25")
    e("v_cvt_pk_bf16_f32 v25, v25, v25"); e("v_and_b32 v25, 0xffff0000, v25")
    e("v_mov_b32 v26, v25"); e("s_nop 1")
    e("v_permlane16_swap_b32 v25, v26"); e("s_nop 1")
    e("v_mul_f32 v24, v24, v26")
    e("v_cvt_pk_bf16_f32 v24, v24, v24"); e("v_and_b32 v24, 0xffff0000, v24")
    e("v_lshlrev_b32 v15, 16, v15")
    e("v_add_f32 v24, v24, v15")
    e("v_cvt_pk_bf16_f32 v24, v24, v24")
    e("s_mov_b64 exec, 0xffff")
    e("buffer_store_short v24, v14, %s, 0 offen" % sr(sOUT))
    e("s_mov_b64 exec, -1")
    e("s_branch L_fin")
    e.label("L_epoch")
    e("s_cmp_lg_u32 s%d, 0" % sW); e("s_cbranch_scc1 L_fin")
    e("v_lshlrev_b32 v13, 4, v%d" % vL); e("v_add_u32 v13, %d, v13" % WS_ML)
    def ld_all():
        for i in range(4): e("buffer_load_dwordx4 %s, v13, %s, 0 offen offset:%d sc1" % (vr(16 + 4 * i), sr(sWS), 1024 * i))
    ld_all()
    e("s_waitcnt vmcnt(0)")
    poll("ep", [17 + 2 * k for k in range(8)], 56, 57, ld_all, sleep=epsleep)
    e("s_mov_b32 s%d, %d" % (sT0, WS_EP))
    e("s_mov_b64 exec, 1")
    e("buffer_store_dword v%d, off, %s, s%d" % (vTAG, sr(sWS), sT0))
    e("s_mov_b64 exec, -1")
    e.label("L_fin")
    if trace:
        trace_pt('fin')
        e("v_writelane_b32 v89, s%d, 63" % sST)
        e("s_add_u32 s92, s26, %d" % STAMP_OFF); e("s_addc_u32 s93, s27, 0"); e("s_mov_b32 s94, 0x100000"); e("s_mov_b32 s95, 0x20000")
        e("s_lshl_b32 s%d, s2, 2" % sT0); e("s_add_u32 s%d, s%d, s%d" % (sT0, sT0, sW)); e("s_lshl_b32 s%d, s%d, 9" % (sT0, sT0))
        e("v_lshlrev_b32 v10, 2, v%d" % vL); e("v_add_u32 v10, s%d, v10" % sT0)
        e("buffer_store_dword v88, v10, s[92:95], 0 offen")
        e("buffer_store_dword v89, v10, s[92:95], 0 offen offset:256")
        open("trace_names.txt", "w").write(" ".join(trnames))
    if stamps:
        stamp('fin')
        n = nst[0]
        e("s_add_u32 s92, s26, %d" % STAMP_OFF); e("s_addc_u32 s93, s27, 0"); e("s_mov_b32 s94, 0x100000"); e("s_mov_b32 s95, 0x20000")
        if allw:
            e("s_lshl_b32 s%d, s2, 2" % sT0); e("s_add_u32 s%d, s%d, s%d" % (sT0, sT0, sW)); e("s_mul_i32 s%d, s%d, %d" % (sT0, sT0, 8 * n))
        else:
            e("s_cmp_lg_u32 s%d, 0" % sW); e("s_cbranch_scc1 L_end")
            e("s_mul_i32 s%d, s2, %d" % (sT0, 8 * n))
        e("v_mov_b32 v10, s%d" % sT0); e("v_mov_b32 v13, 0")
        e("s_mov_b64 exec, 1")
        for k in range(n):
            e("v_mov_b32 v12, s%d" % (sST + k))
            e("buffer_store_dwordx2 v[12:13], v10, s[92:95], 0 offen offset:%d" % (8 * k))
            e("s_nop 1")
    e.label("L_end")
    e("s_endpgm")
    e.raw('.section .rodata,"a"'); e.raw(".p2align 6"); e.raw(".amdhsa_kernel %s_kernel" % NAME)
    for s in (".amdhsa_next_free_vgpr 512", ".amdhsa_next_free_sgpr 102", ".amdhsa_accum_offset 256",
              ".amdhsa_group_segment_fixed_size 0", ".amdhsa_kernarg_size 96", ".amdhsa_user_sgpr_count 2",
              ".amdhsa_user_sgpr_kernarg_segment_ptr 1", ".amdhsa_system_sgpr_workgroup_id_x 1"):
        e(s)
    e.raw(".end_amdhsa_kernel")
    return "\n".join(e.L) + "\n", nst[0]

if __name__ == "__main__":
    import argparse
    ap = argparse.ArgumentParser()
    ap.add_argument("out"); ap.add_argument("--stamps", action="store_true")
    ap.add_argument("--opt", default="")
    a = ap.parse_args()
    kw = eval("dict(%s)" % a.opt)
    s, n = gen(stamps=a.stamps, **kw)
    hdr = open("cdna_kernels/%s.s.ref" % NAME).read().split("; Override launch")[0]
    open(a.out, "w").write(hdr + s)
    print("wrote", a.out, "stamps", n)
```

```python
import struct, sys
NAME = "recurrent_scan__gqa_block_cached__geglu_ffn__decode"

def f2u(x): return struct.unpack("<I", struct.pack("<f", x))[0]
def hx(x): return "0x%08x" % (x & 0xffffffff)
LOG2E = 1.4426950408889634

WS_Q1 = 0
WS_P1 = 0x30000
P1_LO = 5 * 24576
WS_P2 = 0x6C000
WS_Y  = 0x8A000
WS_ML = 0x12A000
WS_EP = 0x12B000
WS_SIZE = 0x12C000
STAMP_OFF = 300 << 20
OOB = 0x7ffffff0

L_XN = 0
L_Q1 = 5120
PS2 = 528
L_QC = 9472
L_QB = 24064
L_F1 = 24576
L_F2 = 32768
L_ML = 36864
L_CNT = 36928
L_OP = 37120
PSTR = 784
L_YP = 43520
L_CO = 53760
L_END = 54784

class Em:
    def __init__(self):
        self.L = []; self.vm = []; self.lab = 0
    def __call__(self, s): self.L.append("  " + s)
    def raw(self, s): self.L.append(s)
    def label(self, n): self.L.append(n + ":")
    def newlab(self, p):
        self.lab += 1; return "L_%s_%d" % (p, self.lab)
    def vmem(self, s, tag=None, counted=True):
        self.L.append("  " + s)
        if counted: self.vm.append(tag)
    def behind(self, tag):
        idx = max(i for i, t in enumerate(self.vm) if t == tag)
        return len(self.vm) - 1 - idx
    def wait_vm(self, tag):
        self("s_waitcnt vmcnt(%d)" % min(self.behind(tag), 63))

def vr(a, n=4): return "v[%d:%d]" % (a, a + n - 1)
def ar(a, n=4): return "a[%d:%d]" % (a, a + n - 1)
def sr(a, n=4): return "s[%d:%d]" % (a, a + n - 1)
DPP = "row_mask:0xf bank_mask:0xf"
X1, X2, HM, RM, R8 = "quad_perm:[1,0,3,2]", "quad_perm:[2,3,0,1]", "row_half_mirror", "row_mirror", "row_ror:8"

def gen(stamps=False, kvf="nt", wf="", qf="", ff="", RING=14, NE=5, st2_g=8, p1_g=0, ml_g=31, allw=False,
        sel=('b1', 'b2', 'vend', 'pub', 'fin'), ostep=2, ostart=0, k_pre=3, k_mid=3, qc_after=14, win=0, tmo=0x10000,
        trace=False, xspec=True, mlsleep=8, epsleep=8, nopoll=False, nocheck=False, stf='sc1', yf='sc1', cpf=0, calib=0, ysleep=1, pdepth=12, p1lo=False):
    e = Em()
    vL, vKV, vWQ, vWO, vPY = 1, 2, 3, 4, 5
    vM = 6; vA0 = 10; vA1 = 14; vACC = 18; vQF = 30; vS = 42
    vMW, vLW, vTAG = 74, 75, 76
    vQA, vFA, vP1O, vF1 = 78, 79, 80, 81
    T0, T1, T2, T3, T4, T5 = 82, 83, 84, 85, 86, 87
    RB = 256 - 12 * RING
    assert RB >= 88
    def rslot(i, t): return RB + 12 * i + 4 * t
    AVE = 240 - 12 * NE
    sK, sV, sRE, sWO, sX, sRO, sWD, sWS, sOUT, sWSF = 28, 32, 36, 40, 44, 48, 56, 60, 64, 92
    sS1, sS2, sKH, sNT = 52, 53, 54, 55
    sTAG, sU, sACT, sFACT = 68, 69, 70, 71
    sW, sB, sH, sP, sFS, sKR, sC5, sRB, sSO, sT0, sT1, sT2 = 72, 73, 74, 75, 76, 77, 78, 79, 80, 81, 82, 83
    sEX = 84; sVAL = 86; sCNT = 88; sCI = 89; sFF = 90; sWQO = 91; sSEL = 24; sMK = 4
    sST = 96
    nst = [0]
    def stamp(name):
        if trace: trace_pt(name); return
        if not stamps or name not in sel: return
        e("s_memrealtime s[%d:%d]" % (sEX, sEX + 1))
        e("s_waitcnt lgkmcnt(0)")
        e("s_mov_b32 s%d, s%d" % (sST + nst[0], sEX))
        nst[0] += 1
    tr = [0]; trnames = []
    def trace_pt(name):
        if not trace: return
        k = tr[0]; tr[0] += 1; trnames.append(name)
        e("s_memrealtime s[%d:%d]" % (sST + 2, sST + 3))
        e("s_waitcnt lgkmcnt(0)")
        e("v_writelane_b32 v%d, s%d, %d" % (88 + k // 64, sST + 2, k % 64))
    def mfma(d, a, b, c): e("v_mfma_f32_16x16x32_bf16 %s, %s, %s, %s" % (d, a, b, c))
    def afrag(dst, src):
        for r in range(4): e("v_and_b32 v%d, v%d, v%d" % (dst + r, src, vM + r))
    def tagit(dst, src):
        e("v_add_u32 v%d, 0x80, v%d" % (dst, src))
        e("v_bfi_b32 v%d, s%d, v%d, v%d" % (dst, sFF, vTAG, dst))
    def untag(dst, src): e("v_and_b32 v%d, 0xffffff00, v%d" % (dst, src))
    def piece_bad(p, t0, t1, dst):
        e("v_perm_b32 v%d, v%d, v%d, s%d" % (t0, p + 1, p, sSEL))
        e("v_perm_b32 v%d, v%d, v%d, s%d" % (t1, p + 3, p + 2, sSEL))
        e("v_lshl_or_b32 v%d, v%d, 16, v%d" % (t0, t1, t0))
        e("v_cmp_ne_u32 %s, v%d, v%d" % (dst, t0, vTAG + 1))
    def poll(name, pieces, t0, t1, reload, sleep=4):
        if nocheck: return
        lab = e.newlab(name + "ok"); lp = e.newlab(name + "loop")
        e("s_mov_b32 s%d, %d" % (sCNT, tmo))
        e.label(lp)
        for k, p in enumerate(pieces):
            piece_bad(p, t0, t1, "vcc" if k == 0 else sr(sEX, 2))
            if k: e("s_or_b64 vcc, vcc, %s" % sr(sEX, 2))
        e("s_nop 1")
        e("s_cbranch_vccz %s" % lab)
        e("s_sub_u32 s%d, s%d, 1" % (sCNT, sCNT)); e("s_cbranch_scc1 %s" % lab)
        if sleep: e("s_sleep %d" % sleep)
        reload()
        e("s_waitcnt vmcnt(0)")
        e("s_branch %s" % lp)
        e.label(lab)
    def mpoll(name, loads, t0, t1, sleep):
        lab = e.newlab(name + "ok"); lp = e.newlab(name + "loop")
        e("s_mov_b32 s%d, %d" % (sCNT, 16 * tmo))
        e.label(lp)
        for k, (p, _) in enumerate(loads): piece_bad(p, t0, t1, sr(sMK + 2 * k, 2))
        e("s_nop 0")
        e("s_or_b64 vcc, %s, %s" % (sr(sMK, 2), sr(sMK + 2, 2)))
        for k in range(2, len(loads)): e("s_or_b64 vcc, vcc, %s" % sr(sMK + 2 * k, 2))
        e("s_cbranch_scc0 %s" % lab)
        e("s_sub_u32 s%d, s%d, 1" % (sCNT, sCNT)); e("s_cbranch_scc1 %s" % lab)
        for k, (p, txt) in enumerate(loads):
            sk = e.newlab(name + "sk")
            e("s_mov_b64 exec, %s" % sr(sMK + 2 * k, 2))
            e("s_cbranch_execz %s" % sk)
            e(txt)
            e.label(sk)
        e("s_mov_b64 exec, -1")
        e("s_waitcnt vmcnt(%d)" % pdepth)
        if sleep: e("s_sleep %d" % sleep)
        e("s_branch %s" % lp)
        e.label(lab)

    e.raw("; @launch grid=(256,1,1) block=(256,1,1) lds=%d" % L_END)
    e.raw('.amdgcn_target "amdgcn-amd-amdhsa--gfx950"')
    e.raw(".text"); e.raw(".globl %s_kernel" % NAME); e.raw(".p2align 8"); e.raw(".type %s_kernel,@function" % NAME)
    e.label("%s_kernel" % NAME)
    e("s_cmp_ge_u32 s2, 256"); e("s_cbranch_scc1 L_end")
    e("s_load_dwordx16 s[4:19], s[0:1], 0")
    e("s_load_dwordx8 s[20:27], s[0:1], 64")
    if stamps or trace or calib:
        e("s_memrealtime s[%d:%d]" % (sST, sST + 1)); nst[0] = 1
    e("v_and_b32 v%d, 63, v0" % vL)
    e("v_lshrrev_b32 v%d, 6, v0" % T0)
    e("v_lshrrev_b32 v%d, 3, v%d" % (T1, vL))
    e("v_and_b32 v%d, 7, v%d" % (T2, vL))
    e("v_readfirstlane_b32 s%d, v%d" % (sW, T0))
    e("v_mul_u32_u24 v%d, 384, v%d" % (vKV, T1))
    e("v_lshl_add_u32 v%d, v%d, 4, v%d" % (vKV, T2, vKV))
    e("v_mul_u32_u24 v%d, 3072, v%d" % (T3, T0))
    e("v_add_u32 v%d, v%d, v%d" % (vKV, vKV, T3))
    e("v_lshl_add_u32 v%d, v%d, 3, v%d" % (vWQ, T0, T1))
    e("v_mul_u32_u24 v%d, 12288, v%d" % (vWQ, vWQ))
    e("v_lshl_add_u32 v%d, v%d, 4, v%d" % (vWQ, T2, vWQ))
    e("v_lshrrev_b32 v%d, 5, v%d" % (T3, vL))
    e("v_mul_u32_u24 v%d, 1280, v%d" % (T3, T3))
    e("v_and_b32 v%d, 31, v%d" % (T5, vL))
    e("v_lshl_add_u32 v%d, v%d, 4, v%d" % (T4, T5, T3))
    e("v_lshl_add_u32 v%d, v%d, 3, v%d" % (T5, T5, T3))
    e("v_lshrrev_b32 v%d, 4, v%d" % (T3, vL))
    e("v_lshl_add_u32 v%d, v%d, 2, v%d" % (vF1, T0, T3))
    e("v_mul_u32_u24 v%d, 3072, v%d" % (vF1, vF1))
    e("v_and_b32 v%d, 15, v%d" % (T1, vL))
    e("v_lshl_add_u32 v%d, v%d, 4, v%d" % (vF1, T1, vF1))
    e("s_and_b32 s%d, s2, 7" % sT0)
    e("s_lshr_b32 s%d, s2, 3" % sT1)
    e("s_lshr_b32 s%d, s%d, 3" % (sT2, sT1))
    e("s_lshl_b32 s%d, s%d, 2" % (sH, sT0))
    e("s_add_u32 s%d, s%d, s%d" % (sH, sH, sT2))
    e("s_and_b32 s%d, s%d, 7" % (sU, sT1))
    e("s_lshr_b32 s%d, s%d, 2" % (sB, sU))
    e("s_and_b32 s%d, s%d, 3" % (sT1, sT1))
    e("s_lshl_b32 s%d, s%d, 2" % (sP, sH))
    e("s_add_u32 s%d, s%d, s%d" % (sP, sP, sT1))
    e("s_lshl_b32 s%d, s%d, 7" % (sT0, sB))
    e("s_add_u32 s%d, s%d, s%d" % (sT0, sT0, sP))
    e("s_mul_i32 s%d, s%d, 393216" % (sT0, sT0))
    e("s_mov_b32 s%d, 393216" % (sK + 2)); e("s_mov_b32 s%d, 0x20000" % (sK + 3))
    e("s_mov_b32 s%d, 2560" % (sX + 2)); e("s_mov_b32 s%d, 0x20000" % (sX + 3))
    e("s_cmp_ge_u32 s%d, 3" % sU); e("s_cselect_b32 s%d, 1, 0" % sKH)
    e("s_mul_i32 s%d, s%d, 3" % (sT1, sKH)); e("s_sub_u32 s%d, s%d, s%d" % (sNT, sU, sT1))
    e("s_mul_i32 s%d, s%d, %d" % (sCI, sKH, 320 * 12288))
    e("s_mul_i32 s%d, s%d, 384" % (sT1, sH)); e("s_add_u32 s%d, s%d, s%d" % (sCI, sCI, sT1))
    e("s_lshl_b32 s%d, s%d, 7" % (sT1, sNT)); e("s_add_u32 s%d, s%d, s%d" % (sCI, sCI, sT1))
    e("s_lshl_b32 s%d, s%d, 1" % (sT1, sH)); e("s_add_u32 s%d, s%d, s%d" % (sT1, sT1, sU)); e("s_sub_u32 s%d, s%d, 6" % (sT1, sT1))
    e("s_and_b32 s%d, s%d, 63" % (sT1, sT1))
    e("s_mul_i32 s%d, s%d, 43" % (sKR, sT1)); e("s_lshr_b32 s%d, s%d, 9" % (sKR, sKR))
    e("s_mul_i32 s%d, s%d, 12" % (sT2, sKR)); e("s_sub_u32 s%d, s%d, s%d" % (sFS, sT1, sT2))
    e("s_cmp_lt_u32 s%d, 60" % sT1); e("s_cselect_b32 s%d, %d, 0" % (sFACT, 127 * 3072 + 256))
    e("s_min_u32 s%d, s%d, 4" % (sKR, sKR))
    e("s_mul_i32 s%d, s%d, %d" % (sCNT, sKR, 128 * 3072))
    e("s_lshl_b32 s%d, s%d, 8" % (sT2, sFS)); e("s_add_u32 s%d, s%d, s%d" % (sCNT, sCNT, sT2))
    e("s_mov_b32 s%d, 0x20000" % (sRE + 3)); e("s_mov_b32 s%d, 0x20000" % (sRO + 3))
    e("s_mov_b32 s%d, 786432" % sS2)
    e("s_cmp_ge_u32 s%d, 6" % sU)
    e("s_cselect_b32 s%d, s%d, %d" % (sRE + 2, sFACT, 319 * 12288 + 128))
    e("s_cselect_b32 s%d, s%d, %d" % (sRO + 2, sFACT, 319 * 12288 + 128))
    e("s_cselect_b32 s%d, 0, 393216" % sS1)
    e("s_cselect_b32 s%d, 49152, s%d" % (sS2, sS2))
    e("s_cselect_b32 s%d, s%d, s%d" % (sCI, sCNT, sCI))
    e("s_cselect_b64 vcc, -1, 0")
    e("s_waitcnt lgkmcnt(0)")
    e("s_cselect_b32 s%d, s16, s10" % sRE); e("s_cselect_b32 s%d, s17, s11" % (sRE + 1))
    e("s_cselect_b32 s%d, s18, s10" % sRO); e("s_cselect_b32 s%d, s19, s11" % (sRO + 1))
    e("s_mov_b32 s%d, s4" % sX); e("s_mov_b32 s%d, s5" % (sX + 1))
    e("v_cndmask_b32 v%d, v%d, v%d, vcc" % (vWQ, vWQ, vF1))
    e.vmem("buffer_load_dwordx4 %s, v%d, %s, 0 offen" % (vr(18), T4, sr(sX)), "x")
    e.vmem("buffer_load_dwordx4 %s, v%d, %s, 0 offen offset:512" % (vr(22), T4, sr(sX)), "x")
    e.vmem("buffer_load_dwordx2 %s, v%d, %s, 0 offen offset:1024" % (vr(26, 2), T5, sr(sX)), "x")
    e("s_add_u32 s%d, s%d, s%d" % (sRE, sRE, sCI)); e("s_addc_u32 s%d, s%d, 0" % (sRE + 1, sRE + 1))
    e("s_add_u32 s%d, s%d, s%d" % (sRO, sRO, sCI)); e("s_addc_u32 s%d, s%d, 0" % (sRO + 1, sRO + 1))
    e("s_add_u32 s%d, s6, s%d" % (sK, sT0)); e("s_addc_u32 s%d, s7, 0" % (sK + 1))
    e("s_add_u32 s%d, s8, s%d" % (sV, sT0)); e("s_addc_u32 s%d, s9, 0" % (sV + 1))

    ring = {}
    curwin = [0]
    def throttle(n=3):
        if curwin[0] and len(e.vm) + n > curwin[0]: e("s_waitcnt vmcnt(%d)" % (curwin[0] - n))
    def issue_kv(kind, g, rs):
        throttle()
        ring[(kind, g)] = rs
        srd = sK if kind == "K" else sV
        if g == 0: so = "0"
        else:
            e("s_mov_b32 s%d, %d" % (sSO, g * 12288)); so = "s%d" % sSO
        for t in range(3):
            e.vmem("buffer_load_dwordx4 %s, v%d, %s, %s offen offset:%d %s" % (reg_of(rs, t), vKV, sr(srd), so, t * 128, kvf), "%s%d" % (kind, g))
    def reg_of(rs, t):
        return ar(rs[1] + 4 * t) if isinstance(rs, tuple) else vr(rslot(rs, t))
    def issue_wo(n):
        throttle()
        last = None
        for t in range(3):
            q = 3 * n + t; i, seg = q // 5, q % 5
            if i == 0: so = "0"
            else:
                if last != i: e("s_mov_b32 s%d, %d" % (sSO, i * 5120))
                so = "s%d" % sSO
            last = i
            e.vmem("buffer_load_dwordx4 %s, v%d, %s, %s offen offset:%d %s" % (ar(4 * q), vWO, sr(sWO), so, seg * 256, wf), "O%d" % n)
    e("s_mov_b32 s%d, 0" % sCNT)
    for m in range(8):
        e.vmem("buffer_load_dwordx4 %s, v%d, %s, s%d offen %s" % (ar(8 * m), vWQ, sr(sRE), sCNT, qf), "R")
        e("s_add_u32 s%d, s%d, s%d" % (sSO, sCNT, sS1))
        e.vmem("buffer_load_dwordx4 %s, v%d, %s, s%d offen %s" % (ar(8 * m + 4), vWQ, sr(sRO), sSO, qf), "R")
        if m < 7: e("s_add_u32 s%d, s%d, s%d" % (sCNT, sCNT, sS2))
    if cpf:
        e("s_getpc_b64 s[6:7]")
        e.label("L_pc")
        e("s_sub_u32 s6, s6, L_pc-%s_kernel" % NAME); e("s_subb_u32 s7, s7, 0")
        e("s_lshr_b32 s8, s2, 3"); e("s_lshl_b32 s8, s8, 2"); e("s_add_u32 s8, s8, s%d" % sW)
        e("s_mul_i32 s8, s8, %d" % (64 * cpf)); e("s_min_u32 s8, s8, L_end-%s_kernel-%d" % (NAME, 64 * cpf))
        e("s_add_u32 s6, s6, s8"); e("s_addc_u32 s7, s7, 0")
        for k in range(cpf): e("s_load_dword s8, s[6:7], %d" % (64 * k))
    e("s_add_u32 s%d, s26, %d" % (sEX, WS_EP)); e("s_addc_u32 s%d, s27, 0" % (sEX + 1))
    e("s_load_dword s%d, s[%d:%d], 0" % (sTAG, sEX, sEX + 1))
    e("s_mov_b32 s%d, 393216" % (sV + 2)); e("s_mov_b32 s%d, 0x20000" % (sV + 3))
    e("s_mul_i32 s%d, s%d, 245760" % (sT0, sH))
    e("s_add_u32 s%d, s12, s%d" % (sWO, sT0)); e("s_addc_u32 s%d, s13, 0" % (sWO + 1))
    e("s_mov_b32 s%d, 245760" % (sWO + 2)); e("s_mov_b32 s%d, 0x20000" % (sWO + 3))
    e("s_mov_b32 s%d, s26" % sWS); e("s_mov_b32 s%d, s27" % (sWS + 1))
    e("s_mov_b32 s%d, %d" % (sWS + 2, WS_SIZE)); e("s_mov_b32 s%d, 0x20000" % (sWS + 3))
    e("s_mov_b32 s%d, s22" % sOUT); e("s_mov_b32 s%d, s23" % (sOUT + 1))
    e("s_mov_b32 s%d, 2560" % (sOUT + 2)); e("s_mov_b32 s%d, 0x20000" % (sOUT + 3))
    e("s_lshl_b32 s%d, s%d, 2" % (sT0, sH)); e("s_add_u32 s%d, s%d, s%d" % (sT0, sT0, sU))
    e("s_mul_i32 s%d, s%d, 205" % (sRB, sT0)); e("s_lshr_b32 s%d, s%d, 10" % (sRB, sRB))
    e("s_mul_i32 s%d, s%d, 5" % (sT1, sRB)); e("s_sub_u32 s%d, s%d, s%d" % (sC5, sT0, sT1))
    e("s_cmp_lt_u32 s%d, 4" % sU); e("s_cselect_b32 s%d, s%d, 255" % (sT0, sT0))
    e("s_cmp_lt_u32 s%d, 120" % sT0)
    e("s_cselect_b32 s%d, %d, 0" % (sWD + 2, 1536 * 1280))
    e("s_cselect_b32 s%d, %d, 0" % (sWSF + 2, WS_Y))
    e("s_cselect_b32 s%d, 1, 0" % sACT)
    e("s_mov_b32 s%d, s20" % sWD); e("s_mov_b32 s%d, s21" % (sWD + 1)); e("s_mov_b32 s%d, 0x20000" % (sWD + 3))
    e("s_mov_b32 s%d, s26" % sWSF); e("s_mov_b32 s%d, s27" % (sWSF + 1)); e("s_mov_b32 s%d, 0x20000" % (sWSF + 3))
    e("s_mov_b32 s%d, 0x00ff00ff" % sVAL); e("s_mov_b32 s%d, 0xff00ff00" % (sVAL + 1))
    e("v_mul_u32_u24 v%d, 1280, v%d" % (vWO, T3))
    e("v_lshl_add_u32 v%d, v%d, 4, v%d" % (vWO, T1, vWO))
    e("s_mul_i32 s%d, s%d, 61440" % (sT0, sW))
    e("v_add_u32 v%d, s%d, v%d" % (vWO, sT0, vWO))
    e("v_lshrrev_b32 v%d, 5, v%d" % (T0, vL))
    e("v_and_b32 v%d, 16, v%d" % (T3, vL))
    e("v_lshl_add_u32 v%d, v%d, 5, v%d" % (vP1O, T2, T3))
    e("v_mul_u32_u24 v%d, %d, v%d" % (vQA, PSTR, T0)); e("v_add_u32 v%d, v%d, v%d" % (vQA, vQA, vP1O))
    e("s_mul_i32 s%d, s%d, %d" % (sT0, sW, 2 * PSTR))
    e("v_add_u32 v%d, s%d, v%d" % (vQA, sT0, vQA))
    e("v_mul_u32_u24 v%d, %d, v%d" % (vF1, PS2, T0)); e("v_add_u32 v%d, v%d, v%d" % (vF1, vF1, vP1O))
    e("s_mul_i32 s%d, s%d, %d" % (sT0, sW, 2 * PS2))
    e("v_add_u32 v%d, s%d, v%d" % (vF1, sT0, vF1))
    e("v_lshlrev_b32 v%d, 9, v%d" % (vFA, T0)); e("v_lshl_add_u32 v%d, v%d, 5, v%d" % (vFA, T1, vFA))
    e("v_add_u32 v%d, v%d, v%d" % (vFA, vFA, T3))
    e("v_lshrrev_b32 v%d, 3, v0" % T0); e("v_lshlrev_b32 v%d, 14, v%d" % (T0, T0))
    e("v_lshl_add_u32 v%d, v%d, 4, v%d" % (T0, T2, T0))
    e("s_mul_i32 s%d, s%d, %d" % (sT0, sB, 20 * 16384))
    e("s_lshl_b32 s%d, s%d, 7" % (sT1, sP))
    e("s_add_u32 s%d, s%d, s%d" % (sT0, sT0, sT1)); e("s_add_u32 s%d, s%d, %d" % (sT0, sT0, WS_Y))
    e("v_cmp_gt_u32 vcc, 160, v0")
    e("v_add_u32 v%d, s%d, v%d" % (T0, sT0, T0))
    e("v_mov_b32 v%d, %d" % (vPY, OOB))
    e("v_cndmask_b32 v%d, v%d, v%d, vcc" % (vPY, vPY, T0))
    e("s_mov_b32 s%d, 0xff" % sFF); e("s_mov_b32 s%d, 0x0c0c0400" % sSEL)
    e("v_and_b32 v%d, 1, v%d" % (T0, vL))
    e("v_lshlrev_b32 v%d, 4, v%d" % (T0, T0))
    e("v_mov_b32 v%d, 0xffff" % T1)
    e("v_lshlrev_b32 v%d, v%d, v%d" % (T0, T0, T1))
    e("v_bfe_u32 v%d, v%d, 1, 2" % (T1, vL))
    for r in range(4):
        e("v_cmp_eq_u32 vcc, %d, v%d" % (r, T1))
        e("s_nop 1")
        e("v_cndmask_b32 v%d, 0, v%d, vcc" % (vM + r, T0))
    kn = [0]
    def more_k(n):
        for _ in range(n):
            if kn[0] < RING: issue_kv("K", kn[0], kn[0]); trace_pt("ik%d" % kn[0]); kn[0] += 1
    more_k(k_pre)
    stamp('iss')
    e.wait_vm("x")
    X = 28
    for r in range(10):
        e("v_lshlrev_b32 v%d, 16, v%d" % (X + 2 * r, 18 + r))
        e("v_and_b32 v%d, 0xffff0000, v%d" % (X + 2 * r + 1, 18 + r))
    def half_allreduce(v, t, op="v_add_f32"):
        for pat in (X1, X2, HM, RM):
            e("s_nop 1")
            e("%s_dpp v%d, v%d, v%d %s %s" % (op, v, v, v, pat, DPP))
        e("v_mov_b32 v%d, v%d" % (t, v))
        e("s_nop 1")
        e("v_permlane16_swap_b32 v%d, v%d" % (v, t))
        e("s_nop 1")
        e("%s v%d, v%d, v%d" % (op, v, v, t))
    for r in range(4): e("v_add_f32 v%d, v%d, v%d" % (48 + r, X + r, X + 4 + r))
    for k in range(8, 20): e("v_add_f32 v%d, v%d, v%d" % (48 + k % 4, 48 + k % 4, X + k))
    e("v_add_f32 v48, v48, v49"); e("v_add_f32 v50, v50, v51"); e("v_add_f32 v48, v48, v50")
    half_allreduce(48, 49)
    e("v_mul_f32 v48, %s, v48" % hx(f2u(1.0 / 640)))
    for k in range(20):
        e("v_sub_f32 v%d, v%d, v48" % (18 + k % 4, X + k))
        if k < 4: e("v_mul_f32 v%d, v%d, v%d" % (52 + k, 18 + k, 18 + k))
        else: e("v_fmac_f32 v%d, v%d, v%d" % (52 + k % 4, 18 + k % 4, 18 + k % 4))
    e("v_add_f32 v52, v52, v53"); e("v_add_f32 v54, v54, v55"); e("v_add_f32 v52, v52, v54")
    half_allreduce(52, 53)
    e("v_mul_f32 v52, %s, v52" % hx(f2u(1.0 / 640)))
    e("v_cvt_pk_bf16_f32 v48, v48, v52")
    e("v_and_b32 v52, 0xffff0000, v48")
    e("v_lshlrev_b32 v48, 16, v48")
    e("v_add_f32 v52, %s, v52" % hx(f2u(1e-5)))
    e("v_cvt_pk_bf16_f32 v52, v52, v52")
    e("v_and_b32 v52, 0xffff0000, v52")
    e("v_sqrt_f32 v52, v52")
    e("s_nop 0")
    e("v_cvt_pk_bf16_f32 v52, v52, v52")
    e("v_and_b32 v52, 0xffff0000, v52")
    e("v_rcp_f32 v53, v52")
    for k in range(0, 20, 2):
        a, b2 = X + k, X + k + 1
        e("v_sub_f32 v%d, v%d, v48" % (a, a)); e("v_sub_f32 v%d, v%d, v48" % (b2, b2))
        e("v_cvt_pk_bf16_f32 v18, v%d, v%d" % (a, b2))
        e("v_lshlrev_b32 v%d, 16, v18" % a); e("v_and_b32 v%d, 0xffff0000, v18" % b2)
        e("v_mul_f32 v19, v%d, v53" % a); e("v_mul_f32 v20, v%d, v53" % b2)
        e("v_fma_f32 v%d, -v19, v52, v%d" % (a, a)); e("v_fma_f32 v%d, -v20, v52, v%d" % (b2, b2))
        e("v_fmac_f32 v19, v%d, v53" % a); e("v_fmac_f32 v20, v%d, v53" % b2)
        e("v_cvt_pk_bf16_f32 v%d, v19, v19" % a); e("v_cvt_pk_bf16_f32 v%d, v20, v20" % b2)
    e("v_lshlrev_b32 v%d, 1, v%d" % (T4, T4)); e("v_lshlrev_b32 v%d, 1, v%d" % (T5, T5))
    e("ds_write_b128 v%d, %s offset:%d" % (T4, vr(X), L_XN))
    e("ds_write_b128 v%d, %s offset:%d" % (T4, vr(X + 4), L_XN + 16))
    e("ds_write_b128 v%d, %s offset:%d" % (T4, vr(X + 8), L_XN + 1024))
    e("ds_write_b128 v%d, %s offset:%d" % (T4, vr(X + 12), L_XN + 1024 + 16))
    e("ds_write_b128 v%d, %s offset:%d" % (T5, vr(X + 16), L_XN + 2048))
    e("v_mov_b32 v%d, %d" % (T4, L_CNT)); e("v_mov_b32 v%d, 0" % T5)
    e("s_waitcnt lgkmcnt(0)")
    e("s_add_u32 s%d, s%d, 1" % (sTAG, sTAG))
    e("s_and_b32 s%d, s%d, 0xff" % (sT0, sTAG)); e("s_mul_i32 s%d, s%d, 0x01010101" % (sT1, sT0))
    e("ds_write_b32 v%d, v%d" % (T4, T5))
    e("v_mov_b32 v%d, s%d" % (vTAG, sT0)); e("v_mov_b32 v%d, s%d" % (vTAG + 1, sT1))
    more_k(k_mid)
    stamp('ln')
    e("s_cmp_ge_u32 s%d, 6" % sU); e("s_cbranch_scc1 L_frole")
    e("s_mul_i32 s%d, s%d, 1280" % (sT0, sKH)); e("s_lshl_b32 s%d, s%d, 5" % (sT1, sW)); e("s_add_u32 s%d, s%d, s%d" % (sT0, sT0, sT1))
    e("v_lshrrev_b32 v%d, 3, v%d" % (T0, vL)); e("v_lshlrev_b32 v%d, 2, v%d" % (T1, T0))
    e("v_add_u32 v%d, s%d, v%d" % (T1, sT0, T1))
    for n in range(10):
        e("ds_read_b32 v%d, v%d offset:%d" % (vS + 2 * n, T1, 128 * n))
        e("ds_read_b32 v%d, v%d offset:%d" % (vS + 2 * n + 1, T1, 128 * n + 2560))
        if n == 6: e("s_waitcnt lgkmcnt(8)")
    e("s_waitcnt lgkmcnt(0)")
    for n in range(10):
        afrag(vA0, vS + 2 * n); afrag(vA1, vS + 2 * n + 1)
        if n == 0: e.wait_vm("R")
        else: e("s_nop 0")
        mfma(vr(vACC), vr(vA0), ar(4 * n), "0" if n == 0 else vr(vACC))
        mfma(vr(vACC + 4), vr(vA1), ar(4 * n), "0" if n == 0 else vr(vACC + 4))
    e("v_and_b32 v%d, 31, v%d" % (T1, vL)); e("v_lshlrev_b32 v%d, 4, v%d" % (T1, T1))
    e("v_bfe_u32 v%d, v%d, 4, 1" % (T3, vL)); e("v_mul_u32_u24 v%d, 3072, v%d" % (T3, T3))
    e("v_and_b32 v%d, 15, v%d" % (T4, vL)); e("v_lshl_add_u32 v%d, v%d, 4, v%d" % (T3, T4, T3))
    e("v_lshrrev_b32 v%d, 5, v%d" % (T4, vL)); e("v_mul_u32_u24 v%d, 768, v%d" % (T4, T4)); e("v_add_u32 v%d, v%d, v%d" % (T3, T3, T4))
    e("s_mul_i32 s%d, s%d, 6144" % (sT0, sH)); e("s_mul_i32 s%d, s%d, 1536" % (sT1, sKH)); e("s_add_u32 s%d, s%d, s%d" % (sT0, sT0, sT1))
    e("s_lshl_b32 s%d, s%d, 8" % (sT1, sNT)); e("s_add_u32 s%d, s%d, s%d" % (sT0, sT0, sT1))
    e("s_mov_b64 exec, %s" % sr(sVAL, 2))
    e("ds_write_b128 v%d, %s offset:%d" % (vF1, vr(vACC), L_Q1))
    e("ds_write_b128 v%d, %s offset:%d" % (vF1, vr(vACC + 4), L_Q1 + 256))
    e("s_mov_b64 exec, -1")
    e("s_waitcnt lgkmcnt(0)")
    e("s_barrier")
    e("s_cmp_lg_u32 s%d, 0" % sW); e("s_cbranch_scc1 L_rdone")
    for pp in range(8): e("ds_read_b128 %s, v%d offset:%d" % (vr(vS + 4 * pp), T1, L_Q1 + pp * PS2))
    e("s_waitcnt lgkmcnt(6)")
    for r in range(4): e("v_add_f32 v%d, v%d, v%d" % (18 + r, vS + r, vS + 4 + r))
    for pp in range(2, 8):
        e("s_waitcnt lgkmcnt(%d)" % (7 - pp))
        for r in range(4): e("v_add_f32 v%d, v%d, v%d" % (18 + r, 18 + r, vS + 4 * pp + r))
    e("s_mov_b32 exec_lo, 0")
    for r in range(4): untag(22 + r, 18 + r)
    for r in range(4): e("v_sub_f32 v%d, v%d, v%d" % (18 + r, 18 + r, 22 + r))
    e("s_mov_b64 exec, -1")
    for r in range(4): e("v_bfi_b32 v%d, s%d, v%d, v%d" % (18 + r, sFF, vTAG, 18 + r))
    e.vmem("buffer_store_dwordx4 v[18:21], v%d, %s, s%d offen %s" % (T3, sr(sWS), sT0, stf), counted=False)
    e("s_branch L_rdone")
    e.label("L_frole")
    e("v_bfe_u32 v%d, v%d, 3, 1" % (T0, vL)); e("v_mul_u32_u24 v%d, 2560, v%d" % (T0, T0))
    e("v_lshrrev_b32 v%d, 4, v%d" % (T3, vL)); e("v_lshl_add_u32 v%d, v%d, 2, v%d" % (T0, T3, T0))
    e("s_lshl_b32 s%d, s%d, 9" % (sT0, sKR)); e("s_lshl_b32 s%d, s%d, 4" % (sT1, sW)); e("s_add_u32 s%d, s%d, s%d" % (sT0, sT0, sT1))
    e("v_add_u32 v%d, s%d, v%d" % (T0, sT0, T0))
    for m in range(0, 8, 2): e("ds_read2_b32 v[%d:%d], v%d offset0:%d offset1:%d" % (vS + m, vS + m + 1, T0, 16 * m, 16 * m + 16))
    e("s_waitcnt lgkmcnt(0)")
    for m in range(8):
        A = vA0 if m % 2 == 0 else vA1
        afrag(A, vS + m)
        e("s_nop 0")
        if m == 0: e.wait_vm("R")
        else: e("s_nop 0")
        mfma(vr(vACC), vr(A), ar(8 * m), "0" if m == 0 else vr(vACC))
        mfma(vr(vACC + 4), vr(A), ar(8 * m + 4), "0" if m == 0 else vr(vACC + 4))
    e("s_lshl_b32 s%d, s%d, 11" % (sT0, sW))
    e("v_add_u32 v%d, s%d, v%d" % (T0, sT0, vFA))
    e("v_bfe_u32 v%d, v0, 1, 2" % T2); e("v_lshlrev_b32 v%d, 9, v%d" % (T2, T2))
    e("v_bfe_u32 v%d, v0, 3, 4" % T3); e("v_lshl_add_u32 v%d, v%d, 5, v%d" % (T2, T3, T2))
    e("v_and_b32 v%d, 1, v0" % T4); e("v_lshl_add_u32 v%d, v%d, 4, v%d" % (T2, T4, T2))
    e("v_and_b32 v%d, 127, v0" % T3); e("v_lshlrev_b32 v%d, 4, v%d" % (T3, T3))
    e("s_mul_i32 s%d, s%d, 24576" % (sT0, sKR)); e("s_lshl_b32 s%d, s%d, 11" % (sT1, sFS))
    e("s_add_u32 s%d, s%d, s%d" % (sT0, sT0, sT1)); e("s_add_u32 s%d, s%d, %d" % (sT0, sT0, WS_P1))
    e("ds_write_b128 v%d, %s offset:%d" % (T0, vr(vACC), L_F1))
    e("ds_write_b128 v%d, %s offset:%d" % (T0, vr(vACC + 4), L_F1 + 1024))
    e("s_waitcnt lgkmcnt(0)")
    e("s_barrier")
    e("s_cmp_eq_u32 s%d, 0" % sFACT); e("s_cbranch_scc1 L_rdone")
    for pp in range(4): e("ds_read_b128 %s, v%d offset:%d" % (vr(vS + 4 * pp), T2, L_F1 + pp * 2048))
    e("s_waitcnt lgkmcnt(0)")
    for r in range(4): e("v_add_f32 v%d, v%d, v%d" % (18 + r, vS + r, vS + 4 + r))
    for pp in (2, 3):
        for r in range(4): e("v_add_f32 v%d, v%d, v%d" % (18 + r, 18 + r, vS + 4 * pp + r))
    if p1lo:
        lab = e.newlab("p1hi")
        e("s_cmp_lt_u32 s%d, 2" % sW); e("s_cbranch_scc1 %s" % lab)
        for r in range(4): untag(22 + r, 18 + r)
        for r in range(4): e("v_sub_f32 v%d, v%d, v%d" % (18 + r, 18 + r, 22 + r))
        e("s_add_u32 s%d, s%d, %d" % (sT0, sT0, P1_LO))
        e.label(lab)
        for r in range(4): e("v_bfi_b32 v%d, s%d, v%d, v%d" % (18 + r, sFF, vTAG, 18 + r))
    else:
        e("s_cmp_ge_u32 s%d, 2" % sW); e("s_cbranch_scc1 L_rdone")
        for r in range(4): tagit(18 + r, 18 + r)
    e.vmem("buffer_store_dwordx4 v[18:21], v%d, %s, s%d offen %s" % (T3, sr(sWS), sT0, stf), counted=False)
    e.label("L_rdone")
    stamp('q1')
    e("s_lshl_b32 s%d, s%d, 1" % (sT0, sH)); e("s_add_u32 s%d, s%d, s%d" % (sT0, sT0, sB)); e("s_mul_i32 s%d, s%d, 3072" % (sT0, sT0))
    e("s_mul_i32 s%d, s%d, 768" % (sT1, sW)); e("s_add_u32 s%d, s%d, s%d" % (sT0, sT0, sT1))
    e("v_lshlrev_b32 v%d, 4, v%d" % (T4, vL)); e("v_add_u32 v%d, s%d, v%d" % (vWQ, sT0, T4))
    vQC = vS
    def issue_qc(counted):
        e.vmem("buffer_load_dwordx4 %s, v%d, %s, 0 offen sc1" % (vr(vQC), vWQ, sr(sWS)), "QC", counted=counted)
    more_k(qc_after - kn[0])
    e("s_mov_b32 exec_hi, 0xffff")
    issue_qc(True)
    e("s_mov_b64 exec, -1")
    more_k(RING)
    for g in range(NE): issue_kv("V", g, ('a', AVE + 12 * g)); trace_pt("iv%d" % g)
    e("s_mul_i32 s%d, s%d, 768" % (sT0, sW)); e("s_add_u32 s%d, s%d, %d" % (sT0, sT0, L_QC))
    e("v_lshlrev_b32 v%d, 3, v%d" % (T2, vL)); e("v_add_u32 v%d, s%d, v%d" % (T3, sT0, T4))
    e("v_and_b32 v%d, 7, v%d" % (T5, vL)); e("v_lshlrev_b32 v%d, 4, v%d" % (T5, T5))
    stamp('iss2')
    e.wait_vm("QC")
    e("s_mov_b32 exec_hi, 0xffff")
    poll("qc", [vQC], T0, T1, lambda: issue_qc(False))
    for r in range(4): untag(vQC + r, vQC + r)
    e("ds_write_b128 v%d, %s" % (T3, vr(vQC)))
    e("s_mov_b64 exec, -1")
    e("s_waitcnt lgkmcnt(0)")
    e("s_barrier")
    stamp('b1')
    e("ds_read_b128 %s, v%d offset:%d" % (vr(vQF), T4, L_QC))
    e("ds_read_b128 %s, v%d offset:%d" % (vr(vQF + 4), T4, L_QC + 768))
    e("ds_read_b128 %s, v%d offset:%d" % (vr(vQF + 8), T4, L_QC + 1536))
    e("ds_read_b128 %s, v%d offset:%d" % (vr(vA0), T4, L_QC + 2304))
    for g in range(32): e("v_mov_b32 v%d, 0" % (vS + g))
    e("s_waitcnt lgkmcnt(0)")
    for r in range(4): e("v_add_f32 v%d, v%d, v%d" % (vQF + r, vQF + r, vQF + 4 + r))
    for r in range(4): e("v_add_f32 v%d, v%d, v%d" % (vQF + 8 + r, vQF + 8 + r, vA0 + r))
    for r in range(4): e("v_add_f32 v%d, v%d, v%d" % (vQF + r, vQF + r, vQF + 8 + r))
    e("v_cvt_pk_bf16_f32 v%d, v%d, v%d" % (vQF, vQF, vQF + 1))
    e("v_cvt_pk_bf16_f32 v%d, v%d, v%d" % (vQF + 1, vQF + 2, vQF + 3))
    e("ds_write_b64 v%d, %s offset:%d" % (T2, vr(vQF, 2), L_QB))
    e("s_waitcnt lgkmcnt(0)")
    for t in range(3): e("ds_read_b128 %s, v%d offset:%d" % (vr(vQF + 4 * t), T5, L_QB + t * 128))
    e("s_waitcnt lgkmcnt(0)")

    vP1 = 10
    def issue_p1(counted):
        e.vmem("buffer_load_dwordx4 %s, v%d, %s, 0 offen sc1" % (vr(vP1), vP1O, sr(sWSF)), "P1", counted=counted)
        e.vmem("buffer_load_dwordx4 %s, v%d, %s, 0 offen sc1" % (vr(vP1 + 4), vF1, sr(sWSF)), "P1", counted=counted)
        if not p1lo: return
        e("s_mov_b32 s%d, %d" % (sSO, P1_LO))
        e.vmem("buffer_load_dwordx4 %s, v%d, %s, s%d offen sc1" % (vr(vP1 + 8), vP1O, sr(sWSF), sSO), "P1", counted=counted)
        e.vmem("buffer_load_dwordx4 %s, v%d, %s, s%d offen sc1" % (vr(vP1 + 12), vF1, sr(sWSF), sSO), "P1", counted=counted)
    def start_p1():
        e("s_lshl_b32 s%d, s%d, 2" % (sT0, sRB)); e("s_add_u32 s%d, s%d, s%d" % (sT0, sT0, sW))
        e("s_lshl_b32 s%d, s%d, 8" % (sT1, sT0)); e("s_add_u32 s%d, s%d, %d" % (sT1, sT1, WS_P1))
        e("v_and_b32 v%d, 15, v%d" % (vF1, vL)); e("v_lshlrev_b32 v%d, 4, v%d" % (vF1, vF1)); e("v_add_u32 v%d, s%d, v%d" % (vF1, sT1, vF1))
        e("v_lshrrev_b32 v%d, 4, v%d" % (vP1O, vL)); e("v_mul_u32_u24 v%d, 24576, v%d" % (vP1O, vP1O)); e("v_add_u32 v%d, v%d, v%d" % (vP1O, vP1O, vF1))
        e("v_add_u32 v%d, %d, v%d" % (vF1, 4 * 24576, vF1))
        issue_p1(True)
        e("s_mul_i32 s%d, s%d, 20480" % (sT1, sT0))
        e("s_lshl_b32 s%d, s%d, 8" % (sT2, sC5)); e("s_add_u32 s%d, s%d, s%d" % (sT1, sT1, sT2))
        e("s_mul_i32 s%d, s%d, 61440" % (sT2, sW))
        e("v_subrev_u32 v%d, s%d, v%d" % (T1, sT2, vWO))
        for i in range(4):
            e.vmem("buffer_load_dwordx4 %s, v%d, %s, s%d offen %s" % (ar(240 + 4 * i), T1, sr(sWD), sT1, ff), "WD")
            if i < 3: e("s_add_u32 s%d, s%d, 5120" % (sT1, sT1))
    def stage2():
        skip = e.newlab("nost2")
        e("s_cmp_eq_u32 s%d, 0" % sACT); e("s_cbranch_scc1 %s" % skip)
        e.wait_vm("WD")
        poll("p1", [vP1, vP1 + 4, vP1 + 8, vP1 + 12][:4 if p1lo else 2], T1, T2, lambda: issue_p1(False))
        for r in range(16 if p1lo else 8): untag(10 + r, 10 + r)
        if p1lo:
            for r in range(8): e("v_add_f32 v%d, v%d, v%d" % (10 + r, 10 + r, 18 + r))
        e("s_mov_b64 exec, 0xffff")
        for r in range(4): e("v_add_f32 v%d, v%d, v%d" % (10 + r, 10 + r, 14 + r))
        e("s_mov_b64 exec, -1")
        for sw in ("v_permlane16_swap_b32", "v_permlane32_swap_b32"):
            for r in range(4): e("v_mov_b32 v%d, v%d" % (14 + r, 10 + r))
            e("s_nop 0")
            for r in range(4): e("%s v%d, v%d" % (sw, 10 + r, 14 + r))
            e("s_nop 0")
            for r in range(4): e("v_add_f32 v%d, v%d, v%d" % (10 + r, 10 + r, 14 + r))
        e("v_cvt_pk_bf16_f32 v14, v10, v11"); e("v_cvt_pk_bf16_f32 v15, v12, v13")
        e("v_lshlrev_b32 v10, 16, v14"); e("v_and_b32 v11, 0xffff0000, v14")
        e("v_lshlrev_b32 v12, 16, v15"); e("v_and_b32 v13, 0xffff0000, v15")
        e("s_nop 0")
        for r in range(4): e("v_mov_b32_dpp v%d, v%d row_shl:4 %s" % (14 + r, 10 + r, DPP))
        for k in range(4): e("v_mul_f32 v%d, v%d, v%d" % (18 + k, 10 + k, 10 + k))
        for k in range(4): e("v_mul_f32 v%d, %s, v%d" % (18 + k, hx(f2u(0.044715)), 18 + k))
        for k in range(4): e("v_fma_f32 v%d, v%d, v%d, v%d" % (18 + k, 18 + k, 10 + k, 10 + k))
        for k in range(4): e("v_mul_f32 v%d, %s, v%d" % (18 + k, hx(f2u(-2.0 * LOG2E * 0.7978845608028654)), 18 + k))
        for k in range(4): e("v_exp_f32 v%d, v%d" % (18 + k, 18 + k))
        for k in range(4): e("v_add_f32 v%d, 1.0, v%d" % (18 + k, 18 + k))
        for k in range(4): e("v_rcp_f32 v%d, v%d" % (18 + k, 18 + k))
        for k in range(4): e("v_mul_f32 v%d, v%d, v%d" % (18 + k, 10 + k, 18 + k))
        e("v_cvt_pk_bf16_f32 v10, v18, v19"); e("v_cvt_pk_bf16_f32 v11, v20, v21")
        e("v_lshlrev_b32 v18, 16, v10"); e("v_and_b32 v19, 0xffff0000, v10")
        e("v_lshlrev_b32 v20, 16, v11"); e("v_and_b32 v21, 0xffff0000, v11")
        for k in range(4): e("v_mul_f32 v%d, v%d, v%d" % (18 + k, 18 + k, 14 + k))
        e("v_cvt_pk_bf16_f32 v28, v18, v19"); e("v_cvt_pk_bf16_f32 v29, v20, v21")
        e("v_bfe_u32 v18, v%d, 3, 1" % vL); e("v_lshlrev_b32 v18, 3, v18")
        for i, off in enumerate((0, 4, 32, 36)):
            e("ds_bpermute_b32 v%d, v18, v28 offset:%d" % (10 + i, off)); e("ds_bpermute_b32 v%d, v18, v29 offset:%d" % (14 + i, off))
        e("v_lshrrev_b32 v19, 4, v%d" % vL); e("v_mul_u32_u24 v19, 0x0202, v19"); e("v_add_u32 v19, 0x0100, v19")
        e("v_lshl_or_b32 v19, v19, 16, v19")
        e("s_waitcnt lgkmcnt(0)")
        for i in range(4): e("v_perm_b32 v%d, v%d, v%d, v19" % (10 + i, 14 + i, 10 + i))
        for i in range(4):
            A = 20 if i % 2 == 0 else 24
            afrag(A, 10 + i)
            e("s_nop 1")
            mfma(vr(16), vr(A), ar(240 + 4 * i), "0" if i == 0 else vr(16))
        e("s_lshl_b32 s%d, s%d, 10" % (sT0, sW))
        e("v_add_u32 v10, s%d, v%d" % (sT0, vFA))
        e("v_mov_b32 v11, %d" % L_CNT); e("v_mov_b32 v12, 1")
        e("s_nop 5")
        e("ds_write_b128 v10, %s offset:%d" % (vr(16), L_F2))
        e("s_waitcnt lgkmcnt(0)")
        e("s_mov_b64 exec, 1")
        e("ds_add_rtn_u32 v12, v11, v12")
        e("s_mov_b64 exec, -1")
        e("s_waitcnt lgkmcnt(0)")
        e("v_readfirstlane_b32 s%d, v12" % sT0)
        e("s_nop 3")
        e("s_cmp_lg_u32 s%d, 3" % sT0); e("s_cbranch_scc1 %s" % skip)
        e("v_lshlrev_b32 v28, 4, v%d" % vL)
        for pp in range(4): e("ds_read_b128 %s, v28 offset:%d" % (vr(10 + 4 * pp), L_F2 + pp * 1024))
        e("v_lshrrev_b32 v28, 3, v%d" % vL); e("v_mul_u32_u24 v28, 3072, v28")
        e("v_and_b32 v29, 7, v%d" % vL); e("v_lshl_add_u32 v28, v29, 4, v28")
        e("s_mul_i32 s%d, s%d, %d" % (sT0, sC5, 8 * 3072))
        e("s_lshl_b32 s%d, s%d, 7" % (sT1, sRB))
        e("s_add_u32 s%d, s%d, s%d" % (sT0, sT0, sT1)); e("s_add_u32 s%d, s%d, %d" % (sT0, sT0, WS_P2))
        e("s_waitcnt lgkmcnt(0)")
        for pp in range(1, 4):
            for r in range(4): e("v_add_f32 v%d, v%d, v%d" % (10 + r, 10 + r, 10 + 4 * pp + r))
        for r in range(4): tagit(10 + r, 10 + r)
        e.vmem("buffer_store_dwordx4 %s, v28, %s, s%d offen %s" % (vr(10), sr(sWSF), sT0, stf), counted=False)
        e("s_nop 1")
        e.label(skip)

    curwin[0] = win
    sc = hx(f2u(192 ** -0.5))
    nwo = [0]
    NO1 = AVE // 12
    def finish_scores(g0):
        a, b2, t = vS + g0, vS + g0 + 1, T0
        for pat in (X1, X2, HM):
            e("v_add_f32_dpp v%d, v%d, v%d %s %s" % (a, a, a, pat, DPP))
            e("v_add_f32_dpp v%d, v%d, v%d %s %s" % (b2, b2, b2, pat, DPP))
            e("s_nop 0")
        e("v_cvt_pk_bf16_f32 v%d, v%d, v%d" % (t, a, b2))
        e("v_lshlrev_b32 v%d, 16, v%d" % (a, t)); e("v_and_b32 v%d, 0xffff0000, v%d" % (b2, t))
        e("v_mul_f32 v%d, %s, v%d" % (a, sc, a)); e("v_mul_f32 v%d, %s, v%d" % (b2, sc, b2))
        e("v_cvt_pk_bf16_f32 v%d, v%d, v%d" % (t, a, b2))
        e("v_lshlrev_b32 v%d, 16, v%d" % (a, t)); e("v_and_b32 v%d, 0xffff0000, v%d" % (b2, t))
        if g0 == 0: e("v_max_f32 v%d, v%d, v%d" % (vMW, a, b2))
        else: e("v_max3_f32 v%d, v%d, v%d, v%d" % (vMW, vMW, a, b2))
    vn = [NE]
    for g in range(32):
        e.wait_vm("K%d" % g)
        stamp('k%d' % g)
        rs = ring[("K", g)]
        for t in range(3):
            for r in range(4):
                e("v_dot2c_f32_bf16 v%d, v%d, v%d" % (vS + g, rslot(rs, t) + r, vQF + 4 * t + r))
        if g + RING < 32: issue_kv("K", g + RING, rs)
        else: issue_kv("V", vn[0], rs); vn[0] += 1
        if nwo[0] < NO1 and g >= ostart and (g - ostart) % ostep == 0:
            issue_wo(nwo[0]); nwo[0] += 1
        if g == p1_g: start_p1()
        if g == st2_g: stage2()
        if g % 2 == 1 and g >= 3: finish_scores(g - 3)
    e("s_nop 2")
    finish_scores(30)
    def group_allreduce(v, t, op):
        e("s_nop 1")
        e("%s_dpp v%d, v%d, v%d %s %s" % (op, v, v, v, R8, DPP))
        e("v_mov_b32 v%d, v%d" % (t, v)); e("s_nop 1")
        e("v_permlane16_swap_b32 v%d, v%d" % (v, t)); e("s_nop 1")
        e("%s v%d, v%d, v%d" % (op, v, v, t))
        e("v_mov_b32 v%d, v%d" % (t, v)); e("s_nop 1")
        e("v_permlane32_swap_b32 v%d, v%d" % (v, t)); e("s_nop 1")
        e("%s v%d, v%d, v%d" % (op, v, v, t))
    group_allreduce(vMW, T0, "v_max_f32")
    l2e = hx(f2u(LOG2E))
    for g in range(32): e("v_sub_f32 v%d, v%d, v%d" % (vS + g, vS + g, vMW))
    for g in range(32): e("v_mul_f32 v%d, %s, v%d" % (vS + g, l2e, vS + g))
    for g in range(32): e("v_exp_f32 v%d, v%d" % (vS + g, vS + g))
    e("v_add_f32 v%d, v%d, v%d" % (vLW, vS, vS + 1)); e("v_add_f32 v%d, v%d, v%d" % (T0, vS + 2, vS + 3))
    for g in range(4, 32, 2):
        e("v_add_f32 v%d, v%d, v%d" % (vLW, vLW, vS + g)); e("v_add_f32 v%d, v%d, v%d" % (T0, T0, vS + g + 1))
    e("v_add_f32 v%d, v%d, v%d" % (vLW, vLW, T0))
    group_allreduce(vLW, T0, "v_add_f32")
    e("s_lshl_b32 s%d, s%d, 3" % (sT0, sW)); e("s_add_u32 s%d, s%d, %d" % (sT0, sT0, L_ML)); e("v_mov_b32 v%d, s%d" % (T0, sT0))
    e("ds_write_b64 v%d, v[%d:%d]" % (T0, vMW, vLW))
    e("v_and_b32 v%d, 3, v%d" % (T0, vL)); e("v_lshlrev_b32 v%d, 3, v%d" % (T0, T0))
    e("s_waitcnt lgkmcnt(0)")
    e("s_barrier")
    e("ds_read_b64 v[30:31], v%d offset:%d" % (T0, L_ML))
    e("s_waitcnt lgkmcnt(0)")
    e("v_mov_b32 v32, v30")
    for pat in (X1, X2):
        e("s_nop 1"); e("v_max_f32_dpp v32, v32, v32 %s %s" % (pat, DPP))
    e("v_sub_f32 v30, v30, v32"); e("v_sub_f32 v33, v%d, v32" % vMW)
    e("v_mul_f32 v30, %s, v30" % l2e); e("v_mul_f32 v33, %s, v33" % l2e)
    e("v_exp_f32 v30, v30"); e("v_exp_f32 v33, v33")
    e("s_nop 0")
    e("v_mul_f32 v30, v30, v31")
    for pat in (X1, X2):
        e("s_nop 1"); e("v_add_f32_dpp v30, v30, v30 %s %s" % (pat, DPP))
    e("v_rcp_f32 v31, v30")
    tagit(34, 32); tagit(35, 30); tagit(36, 32); tagit(37, 30)
    vFAC = 41
    e("v_mul_f32 v%d, v33, v31" % vFAC)
    e("s_lshl_b32 s%d, s%d, 7" % (sT0, sB)); e("s_add_u32 s%d, s%d, s%d" % (sT0, sT0, sP))
    e("s_lshl_b32 s%d, s%d, 4" % (sT0, sT0)); e("s_add_u32 s%d, s%d, %d" % (sWQO, sT0, WS_ML))
    stamp('b2')

    for g in range(32):
        A = vA0 if g % 2 == 0 else vA1
        e("v_mul_f32 v%d, v%d, v%d" % (vS + g, vS + g, vFAC))
        e("v_cvt_pk_bf16_f32 v%d, v%d, v%d" % (vS + g, vS + g, vS + g))
        afrag(A, vS + g)
        e("s_nop 0")
        e.wait_vm("V%d" % g)
        stamp('v%d' % g)
        if g == ml_g:
            lab = e.newlab("noml")
            e("s_cmp_lg_u32 s%d, 3" % sW); e("s_cbranch_scc1 %s" % lab)
            e("s_mov_b64 exec, 1")
            e.vmem("buffer_store_dwordx4 %s, off, %s, s%d sc1" % (vr(34), sr(sWS), sWQO), counted=False)
            e("s_mov_b64 exec, -1")
            e.label(lab)
        rs = ring[("V", g)]
        for t in range(3):
            mfma(vr(vACC + 4 * t), vr(A), reg_of(rs, t), "0" if g == 0 else vr(vACC + 4 * t))
        if not isinstance(rs, tuple) and vn[0] < 32:
            issue_kv("V", vn[0], rs); vn[0] += 1
        if nwo[0] < 20 and (nwo[0] < NO1 or g >= nwo[0] - NO1):
            issue_wo(nwo[0]); nwo[0] += 1
    assert nwo[0] == 20 and vn[0] == 32
    stamp('vend')
    e("v_and_b32 v%d, 7, v%d" % (T0, vL)); e("v_mul_u32_u24 v%d, %d, v%d" % (T0, PSTR, T0))
    e("v_lshrrev_b32 v%d, 4, v%d" % (T1, vL)); e("v_lshl_add_u32 v%d, v%d, 2, v%d" % (T0, T1, T0))
    e("v_bfe_u32 v%d, v%d, 3, 1" % (T1, vL)); e("v_mul_u32_u24 v%d, 96, v%d" % (T1, T1))
    e("s_mul_i32 s%d, s%d, 192" % (sT0, sW))
    e("s_add_u32 s%d, s%d, %d" % (sT0, sT0, L_OP))
    e("v_add3_u32 v%d, s%d, v%d, v%d" % (T0, sT0, T0, T1))
    e("s_mov_b64 exec, %s" % sr(sVAL, 2))
    for t in range(3): e("ds_write_b128 v%d, %s offset:%d" % (vQA, vr(vACC + 4 * t), L_OP + t * 256))
    e("s_mov_b64 exec, -1")
    e("s_waitcnt lgkmcnt(0)")
    e("s_barrier")
    stamp('b3')
    vO = 52
    for i in range(0, 6, 2): e("ds_read2_b32 v[%d:%d], v%d offset0:%d offset1:%d" % (vO + i, vO + i + 1, T0, 4 * i, 4 * i + 4))
    e("s_mul_i32 s%d, s%d, 2560" % (sT0, sW))
    e("v_add_u32 v%d, s%d, v%d" % (T1, sT0, vFA))
    e("v_lshlrev_b32 v%d, 4, v0" % T2)
    e("s_waitcnt lgkmcnt(0)")
    for pat in (X1, X2, HM):
        for i in range(6): e("v_add_f32_dpp v%d, v%d, v%d %s %s" % (vO + i, vO + i, vO + i, pat, DPP))
    for i in range(6): e("v_cvt_pk_bf16_f32 v%d, v%d, v%d" % (vO + i, vO + i, vO + i))
    assert e.vm[-1] == "V31"
    vY = 30
    afrag(vA0, vO)
    for i in range(12):
        A = vA0 if i % 2 == 0 else vA1
        An = vA1 if i % 2 == 0 else vA0
        if i == 0: e("s_nop 1")
        for seg in range(5):
            mfma(vr(vY + 4 * seg), vr(A), ar(4 * (5 * i + seg)), "0" if i == 0 else vr(vY + 4 * seg))
            if i < 11 and seg < 2:
                n = i + 1
                for r in (2 * seg, 2 * seg + 1):
                    if n >= 6: e("v_and_b32_dpp v%d, v%d, v%d %s %s" % (An + r, vO + n - 6, vM + r, R8, DPP))
                    else: e("v_and_b32 v%d, v%d, v%d" % (An + r, vO + n, vM + r))
    stamp('mf')
    e("s_mov_b32 exec_hi, 0")
    e("s_nop 3")
    for seg in range(5): e("ds_write_b128 v%d, %s offset:%d" % (T1, vr(vY + 4 * seg), L_YP + seg * 512))
    e("s_mov_b64 exec, -1")
    e("s_waitcnt lgkmcnt(0)")
    e("s_barrier")
    lab = e.newlab("noy")
    e("s_cmp_ge_u32 s%d, 3" % sW); e("s_cbranch_scc1 %s" % lab)
    for pp in range(4): e("ds_read_b128 %s, v%d offset:%d" % (vr(100 + 4 * pp), T2, L_YP + pp * 2560))
    e("s_waitcnt lgkmcnt(2)")
    for r in range(4): e("v_add_f32 v%d, v%d, v%d" % (100 + r, 100 + r, 104 + r))
    e("s_waitcnt lgkmcnt(0)")
    for r in range(4): e("v_add_f32 v%d, v%d, v%d" % (108 + r, 108 + r, 112 + r))
    for r in range(4): e("v_add_f32 v%d, v%d, v%d" % (100 + r, 100 + r, 108 + r))
    for r in range(4): tagit(100 + r, 100 + r)
    e.vmem("buffer_store_dwordx4 v[100:103], v%d, %s, 0 offen %s" % (vPY, sr(sWS), yf), counted=False)
    e.label(lab)
    stamp('pub')
    if nopoll: e("s_branch L_fin")
    e("s_cmp_eq_u32 s2, 1"); e("s_cbranch_scc1 L_epoch")
    e("s_and_b32 s%d, s2, 1" % sT0); e("s_cmp_lg_u32 s%d, 0" % sT0); e("s_cbranch_scc1 L_fin")
    e("s_cmp_ge_u32 s2, 80"); e("s_cbranch_scc1 L_fin")
    e("s_lshr_b32 s%d, s2, 1" % sCI)
    e("s_cmp_ge_u32 s%d, 20" % sCI); e("s_cselect_b32 s%d, 1, 0" % sB)
    e("s_mul_i32 s%d, s%d, 20" % (sT0, sB)); e("s_sub_u32 s%d, s%d, s%d" % (sH, sCI, sT0))
    e("v_lshlrev_b32 v10, 4, v%d" % vL)
    e("s_lshl_b32 s%d, s%d, 14" % (sT0, sCI)); e("s_lshl_b32 s%d, s%d, 12" % (sT1, sW))
    e("s_add_u32 s%d, s%d, s%d" % (sT0, sT0, sT1)); e("s_add_u32 s%d, s%d, %d" % (sT0, sT0, WS_Y))
    e("v_add_u32 v11, s%d, v10" % sT0)
    e("s_lshr_b32 s%d, s%d, 2" % (sT0, sH)); e("s_lshl_b32 s%d, s%d, 1" % (sT0, sT0)); e("s_add_u32 s%d, s%d, s%d" % (sT0, sT0, sB))
    e("s_lshl_b32 s%d, s%d, 2" % (sT0, sT0)); e("s_and_b32 s%d, s%d, 3" % (sT1, sH)); e("s_add_u32 s%d, s%d, s%d" % (sT0, sT0, sT1))
    e("s_mul_i32 s%d, s%d, 3072" % (sT0, sT0)); e("s_mul_i32 s%d, s%d, 768" % (sT1, sW))
    e("s_add_u32 s%d, s%d, s%d" % (sT0, sT0, sT1)); e("s_add_u32 s%d, s%d, %d" % (sT0, sT0, WS_P2))
    e("v_min_u32 v12, 752, v10"); e("v_add_u32 v12, s%d, v12" % sT0)
    e("v_lshrrev_b32 v13, 3, v%d" % vL); e("v_lshlrev_b32 v13, 4, v13")
    e("s_lshl_b32 s%d, s%d, 11" % (sT0, sB)); e("s_lshl_b32 s%d, s%d, 9" % (sT1, sW))
    e("s_add_u32 s%d, s%d, s%d" % (sT0, sT0, sT1)); e("s_add_u32 s%d, s%d, %d" % (sT0, sT0, WS_ML))
    e("v_add_u32 v13, s%d, v13" % sT0)
    e("v_and_b32 v14, 31, v%d" % vL); e("v_lshlrev_b32 v14, 1, v14")
    e("s_lshl_b32 s%d, s%d, 6" % (sT0, sCI)); e("v_add_u32 v14, s%d, v14" % sT0)
    ML0, Y0, F0 = 16, 32, 48
    mlds = [(ML0 + 4 * i, "buffer_load_dwordx4 %s, v13, %s, 0 offen offset:%d sc1" % (vr(ML0 + 4 * i), sr(sWS), 128 * i)) for i in range(4)]
    ylds = [(Y0 + 4 * i, "buffer_load_dwordx4 %s, v11, %s, 0 offen offset:%d sc1" % (vr(Y0 + 4 * i), sr(sWS), 1024 * i)) for i in range(4)]
    ylds.append((F0, "buffer_load_dwordx4 %s, v12, %s, 0 offen sc1" % (vr(F0), sr(sWS))))
    for _, t in mlds: e(t)
    e("buffer_load_ushort v15, v14, %s, 0 offen" % sr(sX))
    for _, t in ylds: e(t)
    e("v_and_b32 v60, 7, v%d" % vL); e("v_lshlrev_b32 v60, 4, v60")
    e("v_and_b32 v61, 8, v%d" % vL); e("v_add_u32 v60, v60, v61")
    e("v_cmp_ne_u32 %s, 0, v61" % sr(sVAL, 2))
    e("v_bfe_u32 v61, v%d, 4, 1" % vL); e("v_lshl_add_u32 v60, v61, 2, v60")
    e("v_lshrrev_b32 v61, 5, v%d" % vL); e("v_lshl_add_u32 v60, v61, 7, v60")
    e("s_lshl_b32 s%d, s%d, 8" % (sT0, sW)); e("v_add_u32 v60, s%d, v60" % sT0)
    e("v_lshlrev_b32 v61, 2, v%d" % vL)
    e("s_waitcnt vmcnt(0)")
    mpoll("ml", mlds, 56, 57, mlsleep)
    stamp('mlok')
    def sib_reduce(op):
        for i in range(4): e("%s_dpp v%d, v%d, v%d %s %s" % (op, 56 + i, 56 + i, 56 + i, R8, DPP))
        for i in range(4): e("v_mov_b32 v%d, v%d" % (64 + i, 56 + i))
        e("s_nop 0")
        for i in range(4): e("v_permlane16_swap_b32 v%d, v%d" % (56 + i, 64 + i))
        e("s_nop 0")
        for i in range(4): e("%s v%d, v%d, v%d" % (op, 56 + i, 56 + i, 64 + i))
    W0 = 68
    for i in range(4): e("v_and_b32 v%d, 0xffffff00, v%d" % (W0 + i, ML0 + 4 * i))
    for i in range(4): e("v_mov_b32 v%d, v%d" % (56 + i, W0 + i))
    sib_reduce("v_max_f32")
    for i in range(4): e("v_sub_f32 v%d, v%d, v%d" % (W0 + i, W0 + i, 56 + i))
    for i in range(4): e("v_mul_f32 v%d, %s, v%d" % (W0 + i, l2e, W0 + i))
    for i in range(4): e("v_exp_f32 v%d, v%d" % (W0 + i, W0 + i))
    for i in range(4): untag(64 + i, ML0 + 4 * i + 1)
    for i in range(4): e("v_mul_f32 v%d, v%d, v%d" % (W0 + i, W0 + i, 64 + i))
    for i in range(4): e("v_mov_b32 v%d, v%d" % (56 + i, W0 + i))
    sib_reduce("v_add_f32")
    for i in range(4): e("v_rcp_f32 v%d, v%d" % (56 + i, 56 + i))
    for i in range(4): e("v_mul_f32 v%d, v%d, v%d" % (W0 + i, W0 + i, 56 + i))
    mpoll("y", ylds, 56, 57, ysleep)
    stamp('yok')
    R0, G0 = 80, 84
    for r in range(4): untag(R0 + r, Y0 + r)
    for r in range(4): untag(G0 + r, F0 + r)
    for r in range(4): e("v_mul_f32 v%d, v%d, v%d" % (R0 + r, R0 + r, W0))
    for i in range(1, 4):
        for r in range(4): untag(56 + r, Y0 + 4 * i + r)
        for r in range(4): e("v_fmac_f32 v%d, v%d, v%d" % (R0 + r, 56 + r, W0 + i))
    e("s_mov_b32 exec_lo, 0"); e("s_mov_b32 exec_hi, 0xffff0000")
    for r in range(4): e("v_mov_b32 v%d, 0" % (G0 + r))
    e("s_mov_b64 exec, -1")
    e("s_nop 0")
    for r in range(4): e("v_permlane32_swap_b32 v%d, v%d" % (R0 + r, G0 + r))
    e("s_nop 0")
    for r in range(4): e("v_add_f32 v%d, v%d, v%d" % (R0 + r, R0 + r, G0 + r))
    e("s_nop 0")
    e("v_permlane16_swap_b32 v%d, v%d" % (R0, R0 + 1)); e("s_nop 0"); e("v_permlane16_swap_b32 v%d, v%d" % (R0 + 2, R0 + 3)); e("s_nop 0")
    e("v_add_f32 v%d, v%d, v%d" % (R0, R0, R0 + 1)); e("v_add_f32 v%d, v%d, v%d" % (R0 + 2, R0 + 2, R0 + 3)); e("s_nop 0")
    e("v_add_f32_dpp v%d, v%d, v%d %s %s" % (R0, R0, R0, R8, DPP)); e("v_add_f32_dpp v%d, v%d, v%d %s %s" % (R0 + 2, R0 + 2, R0 + 2, R8, DPP))
    e("s_nop 0")
    e("v_cndmask_b32 v%d, v%d, v%d, %s" % (R0, R0, R0 + 2, sr(sVAL, 2)))
    e("ds_write_b32 v60, v%d offset:%d" % (R0, L_CO))
    e("s_waitcnt lgkmcnt(0)")
    e("s_barrier")
    stamp('b5')
    e("s_cmp_lg_u32 s%d, 0" % sW); e("s_cbranch_scc1 L_fin")
    assert L_CO % 256 == 0
    for k in range(2): e("ds_read2st64_b32 v[%d:%d], v61 offset0:%d offset1:%d" % (72 + 2 * k, 73 + 2 * k, L_CO // 256 + 2 * k, L_CO // 256 + 2 * k + 1))
    e("v_lshlrev_b32 v15, 16, v15")
    e("s_waitcnt lgkmcnt(0)")
    e("v_add_f32 v72, v72, v73"); e("v_add_f32 v74, v74, v75"); e("v_add_f32 v72, v72, v74")
    e("v_cvt_pk_bf16_f32 v72, v72, v72"); e("v_and_b32 v72, 0xffff0000, v72")
    e("v_mul_f32 v73, %s, v72" % hx(f2u(-LOG2E)))
    e("v_exp_f32 v73, v73"); e("s_nop 0")
    e("v_add_f32 v73, 1.0, v73")
    e("v_rcp_f32 v73, v73"); e("s_nop 0")
    e("v_mul_f32 v73, v72, v73")
    e("v_cvt_pk_bf16_f32 v73, v73, v73"); e("v_and_b32 v73, 0xffff0000, v73")
    e("v_mov_b32 v74, v73"); e("s_nop 1")
    e("v_permlane32_swap_b32 v73, v74"); e("s_nop 1")
    e("v_mul_f32 v72, v72, v74")
    e("v_cvt_pk_bf16_f32 v72, v72, v72"); e("v_and_b32 v72, 0xffff0000, v72")
    e("v_add_f32 v72, v72, v15")
    e("v_cvt_pk_bf16_f32 v72, v72, v72")
    e("s_mov_b32 exec_hi, 0")
    e("buffer_store_short v72, v14, %s, 0 offen" % sr(sOUT))
    e("s_mov_b64 exec, -1")
    e("s_branch L_fin")
    e.label("L_epoch")
    e("s_cmp_lg_u32 s%d, 0" % sW); e("s_cbranch_scc1 L_fin")
    e("v_lshlrev_b32 v13, 4, v%d" % vL); e("v_add_u32 v13, %d, v13" % WS_ML)
    def ld_all():
        for i in range(4): e("buffer_load_dwordx4 %s, v13, %s, 0 offen offset:%d sc1" % (vr(16 + 4 * i), sr(sWS), 1024 * i))
    ld_all()
    e("s_waitcnt vmcnt(0)")
    poll("ep", [16 + 4 * k for k in range(4)], 56, 57, ld_all, sleep=epsleep)
    e("v_mov_b32 v16, s%d" % sTAG)
    e("s_mov_b32 s%d, %d" % (sT0, WS_EP))
    e("s_mov_b64 exec, 1")
    e("buffer_store_dword v16, off, %s, s%d" % (sr(sWS), sT0))
    e("s_mov_b64 exec, -1")
    e.label("L_fin")
    if calib:
        e.label("L_cal")
        e("s_memrealtime s[98:99]"); e("s_waitcnt lgkmcnt(0)")
        e("s_sub_u32 s98, s98, s%d" % sST); e("s_cmp_lt_u32 s98, %d" % calib); e("s_cbranch_scc1 L_cal")
    if trace:
        trace_pt('fin')
        e("v_writelane_b32 v89, s%d, 63" % sST)
        e("s_add_u32 s92, s26, %d" % STAMP_OFF); e("s_addc_u32 s93, s27, 0"); e("s_mov_b32 s94, 0x100000"); e("s_mov_b32 s95, 0x20000")
        e("s_lshl_b32 s%d, s2, 2" % sT0); e("s_add_u32 s%d, s%d, s%d" % (sT0, sT0, sW)); e("s_lshl_b32 s%d, s%d, 9" % (sT0, sT0))
        e("v_lshlrev_b32 v10, 2, v%d" % vL); e("v_add_u32 v10, s%d, v10" % sT0)
        e("buffer_store_dword v88, v10, s[92:95], 0 offen")
        e("buffer_store_dword v89, v10, s[92:95], 0 offen offset:256")
        open("trace_names.txt", "w").write(" ".join(trnames))
    if stamps:
        stamp('fin')
        n = nst[0]
        e("s_add_u32 s92, s26, %d" % STAMP_OFF); e("s_addc_u32 s93, s27, 0"); e("s_mov_b32 s94, 0x100000"); e("s_mov_b32 s95, 0x20000")
        if allw:
            e("s_lshl_b32 s%d, s2, 2" % sT0); e("s_add_u32 s%d, s%d, s%d" % (sT0, sT0, sW)); e("s_mul_i32 s%d, s%d, %d" % (sT0, sT0, 8 * n))
        else:
            e("s_cmp_lg_u32 s%d, 0" % sW); e("s_cbranch_scc1 L_end")
            e("s_mul_i32 s%d, s2, %d" % (sT0, 8 * n))
        e("v_mov_b32 v10, s%d" % sT0); e("v_mov_b32 v13, 0")
        e("s_mov_b64 exec, 1")
        for k in range(n):
            e("v_mov_b32 v12, s%d" % (sST + k))
            e("buffer_store_dwordx2 v[12:13], v10, s[92:95], 0 offen offset:%d" % (8 * k))
            e("s_nop 1")
    e.label("L_end")
    e("s_endpgm")
    e.raw('.section .rodata,"a"'); e.raw(".p2align 6"); e.raw(".amdhsa_kernel %s_kernel" % NAME)
    for s in (".amdhsa_next_free_vgpr 512", ".amdhsa_next_free_sgpr 102", ".amdhsa_accum_offset 256",
              ".amdhsa_group_segment_fixed_size 0", ".amdhsa_kernarg_size 96", ".amdhsa_user_sgpr_count 2",
              ".amdhsa_user_sgpr_kernarg_segment_ptr 1", ".amdhsa_system_sgpr_workgroup_id_x 1"):
        e(s)
    e.raw(".end_amdhsa_kernel")
    return "\n".join(e.L) + "\n", nst[0]

if __name__ == "__main__":
    import argparse
    ap = argparse.ArgumentParser()
    ap.add_argument("out"); ap.add_argument("--stamps", action="store_true")
    ap.add_argument("--opt", default="")
    a = ap.parse_args()
    kw = eval("dict(%s)" % a.opt)
    s, n = gen(stamps=a.stamps, **kw)
    hdr = open("cdna_kernels/%s.s.ref" % NAME).read().split("; Override launch")[0]
    open(a.out, "w").write(hdr + s)
    print("wrote", a.out, "stamps", n)
```

```python
import struct, sys
NAME = "recurrent_scan__gqa_block_cached__geglu_ffn__decode"

def f2u(x): return struct.unpack("<I", struct.pack("<f", x))[0]
def hx(x): return "0x%08x" % (x & 0xffffffff)
LOG2E = 1.4426950408889634

WS_Q1 = 0
WS_P1 = 0x30000
P1_LO = 5 * 24576
WS_P2 = 0x6C000
WS_Y  = 0x8A000
WS_ML = 0x12A000
WS_EP = 0x12B000
WS_SIZE = 0x12C000
STAMP_OFF = 300 << 20
OOB = 0x7ffffff0

L_XN = 0
L_Q1 = 5120
PS2 = 528
L_QC = 9472
L_QB = 24064
L_F1 = 24576
L_F2 = 32768
L_ML = 36864
L_CNT = 36928
L_OP = 37120
PSTR = 784
L_YP = 43520
L_CO = 53760
L_END = 54784

class Em:
    def __init__(self):
        self.L = []; self.vm = []; self.lab = 0
    def __call__(self, s): self.L.append("  " + s)
    def raw(self, s): self.L.append(s)
    def label(self, n): self.L.append(n + ":")
    def newlab(self, p):
        self.lab += 1; return "L_%s_%d" % (p, self.lab)
    def vmem(self, s, tag=None, counted=True):
        self.L.append("  " + s)
        if counted: self.vm.append(tag)
    def behind(self, tag):
        idx = max(i for i, t in enumerate(self.vm) if t == tag)
        return len(self.vm) - 1 - idx
    def wait_vm(self, tag):
        self("s_waitcnt vmcnt(%d)" % min(self.behind(tag), 63))

def vr(a, n=4): return "v[%d:%d]" % (a, a + n - 1)
def ar(a, n=4): return "a[%d:%d]" % (a, a + n - 1)
def sr(a, n=4): return "s[%d:%d]" % (a, a + n - 1)
DPP = "row_mask:0xf bank_mask:0xf"
X1, X2, HM, RM, R8 = "quad_perm:[1,0,3,2]", "quad_perm:[2,3,0,1]", "row_half_mirror", "row_mirror", "row_ror:8"

def gen(stamps=False, kvf="nt", wf="", qf="", ff="", RING=14, NE=5, st2_g=8, p1_g=0, ml_g=31, allw=False,
        sel=('b1', 'b2', 'vend', 'pub', 'fin'), ostep=2, ostart=0, k_pre=3, k_mid=3, qc_after=14, win=0, tmo=0x10000,
        trace=False, xspec=True, mlsleep=8, epsleep=8, nopoll=False, nocheck=False, stf='sc1', yf='sc1', cpf=0, calib=0, ysleep=1, pdepth=12, p1lo=False, ph=(1, 4, 8, 0), vrot=0):
    e = Em()
    vL, vKV, vWQ, vWO, vPY = 1, 2, 3, 4, 5
    vM = 6; vA0 = 10; vA1 = 14; vACC = 18; vQF = 30; vS = 42
    vMW, vLW, vTAG = 74, 75, 76
    vQA, vFA, vP1O, vF1 = 78, 79, 80, 81
    T0, T1, T2, T3, T4, T5 = 82, 83, 84, 85, 86, 87
    RB = 256 - 12 * RING
    assert RB >= 88
    def rslot(i, t): return RB + 12 * i + 4 * t
    AVE = 240 - 12 * NE
    sK, sV, sRE, sWO, sX, sRO, sWD, sWS, sOUT, sWSF = 28, 32, 36, 40, 44, 48, 56, 60, 64, 92
    sS1, sS2, sKH, sNT = 52, 53, 54, 55
    sTAG, sU, sACT, sFACT = 68, 69, 70, 71
    sW, sB, sH, sP, sFS, sKR, sC5, sRB, sSO, sT0, sT1, sT2 = 72, 73, 74, 75, 76, 77, 78, 79, 80, 81, 82, 83
    sEX = 84; sVAL = 86; sCNT = 88; sCI = 89; sFF = 90; sWQO = 91; sSEL = 24; sROT = 25; sMK = 4
    sST = 96
    nst = [0]
    def stamp(name):
        if trace: trace_pt(name); return
        if not stamps or name not in sel: return
        e("s_memrealtime s[%d:%d]" % (sEX, sEX + 1))
        e("s_waitcnt lgkmcnt(0)")
        e("s_mov_b32 s%d, s%d" % (sST + nst[0], sEX))
        nst[0] += 1
    tr = [0]; trnames = []
    def trace_pt(name):
        if not trace: return
        k = tr[0]; tr[0] += 1; trnames.append(name)
        e("s_memrealtime s[%d:%d]" % (sST + 2, sST + 3))
        e("s_waitcnt lgkmcnt(0)")
        e("v_writelane_b32 v%d, s%d, %d" % (88 + k // 64, sST + 2, k % 64))
    def mfma(d, a, b, c): e("v_mfma_f32_16x16x32_bf16 %s, %s, %s, %s" % (d, a, b, c))
    def afrag(dst, src):
        for r in range(4): e("v_and_b32 v%d, v%d, v%d" % (dst + r, src, vM + r))
    def tagit(dst, src):
        e("v_add_u32 v%d, 0x80, v%d" % (dst, src))
        e("v_bfi_b32 v%d, s%d, v%d, v%d" % (dst, sFF, vTAG, dst))
    def untag(dst, src): e("v_and_b32 v%d, 0xffffff00, v%d" % (dst, src))
    def piece_bad(p, t0, t1, dst):
        e("v_perm_b32 v%d, v%d, v%d, s%d" % (t0, p + 1, p, sSEL))
        e("v_perm_b32 v%d, v%d, v%d, s%d" % (t1, p + 3, p + 2, sSEL))
        e("v_lshl_or_b32 v%d, v%d, 16, v%d" % (t0, t1, t0))
        e("v_cmp_ne_u32 %s, v%d, v%d" % (dst, t0, vTAG + 1))
    def poll(name, pieces, t0, t1, reload, sleep=4):
        if nocheck: return
        lab = e.newlab(name + "ok"); lp = e.newlab(name + "loop")
        e("s_mov_b32 s%d, %d" % (sCNT, tmo))
        e.label(lp)
        for k, p in enumerate(pieces):
            piece_bad(p, t0, t1, "vcc" if k == 0 else sr(sEX, 2))
            if k: e("s_or_b64 vcc, vcc, %s" % sr(sEX, 2))
        e("s_nop 1")
        e("s_cbranch_vccz %s" % lab)
        e("s_sub_u32 s%d, s%d, 1" % (sCNT, sCNT)); e("s_cbranch_scc1 %s" % lab)
        if sleep: e("s_sleep %d" % sleep)
        reload()
        e("s_waitcnt vmcnt(0)")
        e("s_branch %s" % lp)
        e.label(lab)
    def mpoll(name, loads, t0, t1, sleep):
        lab = e.newlab(name + "ok"); lp = e.newlab(name + "loop")
        e("s_mov_b32 s%d, %d" % (sCNT, 16 * tmo))
        e.label(lp)
        for k, (p, _) in enumerate(loads): piece_bad(p, t0, t1, sr(sMK + 2 * k, 2))
        e("s_nop 0")
        e("s_or_b64 vcc, %s, %s" % (sr(sMK, 2), sr(sMK + 2, 2)))
        for k in range(2, len(loads)): e("s_or_b64 vcc, vcc, %s" % sr(sMK + 2 * k, 2))
        e("s_cbranch_scc0 %s" % lab)
        e("s_sub_u32 s%d, s%d, 1" % (sCNT, sCNT)); e("s_cbranch_scc1 %s" % lab)
        for k, (p, txt) in enumerate(loads):
            sk = e.newlab(name + "sk")
            e("s_mov_b64 exec, %s" % sr(sMK + 2 * k, 2))
            e("s_cbranch_execz %s" % sk)
            e(txt)
            e.label(sk)
        e("s_mov_b64 exec, -1")
        e("s_waitcnt vmcnt(%d)" % pdepth)
        if sleep: e("s_sleep %d" % sleep)
        e("s_branch %s" % lp)
        e.label(lab)

    e.raw("; @launch grid=(256,1,1) block=(256,1,1) lds=%d" % L_END)
    e.raw('.amdgcn_target "amdgcn-amd-amdhsa--gfx950"')
    e.raw(".text"); e.raw(".globl %s_kernel" % NAME); e.raw(".p2align 8"); e.raw(".type %s_kernel,@function" % NAME)
    e.label("%s_kernel" % NAME)
    e("s_cmp_ge_u32 s2, 256"); e("s_cbranch_scc1 L_end")
    e("s_load_dwordx16 s[4:19], s[0:1], 0")
    e("s_load_dwordx8 s[20:27], s[0:1], 64")
    if stamps or trace or calib:
        e("s_memrealtime s[%d:%d]" % (sST, sST + 1)); nst[0] = 1
    e("v_and_b32 v%d, 63, v0" % vL)
    e("v_lshrrev_b32 v%d, 6, v0" % T0)
    e("v_lshrrev_b32 v%d, 3, v%d" % (T1, vL))
    e("v_and_b32 v%d, 7, v%d" % (T2, vL))
    e("v_readfirstlane_b32 s%d, v%d" % (sW, T0))
    e("v_mul_u32_u24 v%d, 384, v%d" % (vKV, T1))
    e("v_lshl_add_u32 v%d, v%d, 4, v%d" % (vKV, T2, vKV))
    e("v_mul_u32_u24 v%d, 3072, v%d" % (T3, T0))
    e("v_add_u32 v%d, v%d, v%d" % (vKV, vKV, T3))
    e("v_lshl_add_u32 v%d, v%d, 3, v%d" % (vWQ, T0, T1))
    e("v_mul_u32_u24 v%d, 12288, v%d" % (vWQ, vWQ))
    e("v_lshl_add_u32 v%d, v%d, 4, v%d" % (vWQ, T2, vWQ))
    e("v_lshrrev_b32 v%d, 5, v%d" % (T3, vL))
    e("v_mul_u32_u24 v%d, 1280, v%d" % (T3, T3))
    e("v_and_b32 v%d, 31, v%d" % (T5, vL))
    e("v_lshl_add_u32 v%d, v%d, 4, v%d" % (T4, T5, T3))
    e("v_lshl_add_u32 v%d, v%d, 3, v%d" % (T5, T5, T3))
    e("v_lshrrev_b32 v%d, 4, v%d" % (T3, vL))
    e("v_lshl_add_u32 v%d, v%d, 2, v%d" % (vF1, T0, T3))
    e("v_mul_u32_u24 v%d, 3072, v%d" % (vF1, vF1))
    e("v_and_b32 v%d, 15, v%d" % (T1, vL))
    e("v_lshl_add_u32 v%d, v%d, 4, v%d" % (vF1, T1, vF1))
    e("s_and_b32 s%d, s2, 7" % sT0)
    e("s_lshr_b32 s%d, s2, 3" % sT1)
    e("s_lshr_b32 s%d, s%d, 3" % (sT2, sT1))
    e("s_lshl_b32 s%d, s%d, 2" % (sH, sT0))
    e("s_add_u32 s%d, s%d, s%d" % (sH, sH, sT2))
    e("s_and_b32 s%d, s%d, 7" % (sU, sT1))
    e("s_lshr_b32 s%d, s%d, 2" % (sB, sU))
    e("s_and_b32 s%d, s%d, 3" % (sT1, sT1))
    e("s_lshl_b32 s%d, s%d, 2" % (sP, sH))
    e("s_add_u32 s%d, s%d, s%d" % (sP, sP, sT1))
    e("s_lshl_b32 s%d, s%d, 7" % (sT0, sB))
    e("s_add_u32 s%d, s%d, s%d" % (sT0, sT0, sP))
    e("s_mul_i32 s%d, s%d, 393216" % (sT0, sT0))
    e("s_mov_b32 s%d, 393216" % (sK + 2)); e("s_mov_b32 s%d, 0x20000" % (sK + 3))
    e("s_mov_b32 s%d, 2560" % (sX + 2)); e("s_mov_b32 s%d, 0x20000" % (sX + 3))
    e("s_cmp_ge_u32 s%d, 3" % sU); e("s_cselect_b32 s%d, 1, 0" % sKH)
    e("s_mul_i32 s%d, s%d, 3" % (sT1, sKH)); e("s_sub_u32 s%d, s%d, s%d" % (sNT, sU, sT1))
    e("s_mul_i32 s%d, s%d, %d" % (sCI, sKH, 320 * 12288))
    e("s_mul_i32 s%d, s%d, 384" % (sT1, sH)); e("s_add_u32 s%d, s%d, s%d" % (sCI, sCI, sT1))
    e("s_lshl_b32 s%d, s%d, 7" % (sT1, sNT)); e("s_add_u32 s%d, s%d, s%d" % (sCI, sCI, sT1))
    e("s_lshl_b32 s%d, s%d, 1" % (sT1, sH)); e("s_add_u32 s%d, s%d, s%d" % (sT1, sT1, sU)); e("s_sub_u32 s%d, s%d, 6" % (sT1, sT1))
    e("s_and_b32 s%d, s%d, 63" % (sT1, sT1))
    e("s_mul_i32 s%d, s%d, 43" % (sKR, sT1)); e("s_lshr_b32 s%d, s%d, 9" % (sKR, sKR))
    e("s_mul_i32 s%d, s%d, 12" % (sT2, sKR)); e("s_sub_u32 s%d, s%d, s%d" % (sFS, sT1, sT2))
    e("s_cmp_lt_u32 s%d, 60" % sT1); e("s_cselect_b32 s%d, %d, 0" % (sFACT, 127 * 3072 + 256))
    e("s_min_u32 s%d, s%d, 4" % (sKR, sKR))
    e("s_mul_i32 s%d, s%d, %d" % (sCNT, sKR, 128 * 3072))
    e("s_lshl_b32 s%d, s%d, 8" % (sT2, sFS)); e("s_add_u32 s%d, s%d, s%d" % (sCNT, sCNT, sT2))
    e("s_mov_b32 s%d, 0x20000" % (sRE + 3)); e("s_mov_b32 s%d, 0x20000" % (sRO + 3))
    e("s_mov_b32 s%d, 786432" % sS2)
    e("s_cmp_ge_u32 s%d, 6" % sU)
    e("s_cselect_b32 s%d, s%d, %d" % (sRE + 2, sFACT, 319 * 12288 + 128))
    e("s_cselect_b32 s%d, s%d, %d" % (sRO + 2, sFACT, 319 * 12288 + 128))
    e("s_cselect_b32 s%d, 0, 393216" % sS1)
    e("s_cselect_b32 s%d, 49152, s%d" % (sS2, sS2))
    e("s_cselect_b32 s%d, s%d, s%d" % (sCI, sCNT, sCI))
    e("s_cselect_b64 vcc, -1, 0")
    e("s_waitcnt lgkmcnt(0)")
    e("s_cselect_b32 s%d, s16, s10" % sRE); e("s_cselect_b32 s%d, s17, s11" % (sRE + 1))
    e("s_cselect_b32 s%d, s18, s10" % sRO); e("s_cselect_b32 s%d, s19, s11" % (sRO + 1))
    e("s_mov_b32 s%d, s4" % sX); e("s_mov_b32 s%d, s5" % (sX + 1))
    e("v_cndmask_b32 v%d, v%d, v%d, vcc" % (vWQ, vWQ, vF1))
    e.vmem("buffer_load_dwordx4 %s, v%d, %s, 0 offen" % (vr(18), T4, sr(sX)), "x")
    e.vmem("buffer_load_dwordx4 %s, v%d, %s, 0 offen offset:512" % (vr(22), T4, sr(sX)), "x")
    e.vmem("buffer_load_dwordx2 %s, v%d, %s, 0 offen offset:1024" % (vr(26, 2), T5, sr(sX)), "x")
    e("s_add_u32 s%d, s%d, s%d" % (sRE, sRE, sCI)); e("s_addc_u32 s%d, s%d, 0" % (sRE + 1, sRE + 1))
    e("s_add_u32 s%d, s%d, s%d" % (sRO, sRO, sCI)); e("s_addc_u32 s%d, s%d, 0" % (sRO + 1, sRO + 1))
    e("s_add_u32 s%d, s6, s%d" % (sK, sT0)); e("s_addc_u32 s%d, s7, 0" % (sK + 1))
    e("s_add_u32 s%d, s8, s%d" % (sV, sT0)); e("s_addc_u32 s%d, s9, 0" % (sV + 1))

    ring = {}
    curwin = [0]
    def throttle(n=3):
        if curwin[0] and len(e.vm) + n > curwin[0]: e("s_waitcnt vmcnt(%d)" % (curwin[0] - n))
    def issue_kv(kind, g, rs):
        throttle()
        ring[(kind, g)] = rs
        srd = sK if kind == "K" else sV
        if ph:
            e("s_add_u32 s%d, s%d, %d" % (sSO, sROT, g)); e("s_and_b32 s%d, s%d, 31" % (sSO, sSO))
            e("s_mul_i32 s%d, s%d, 12288" % (sSO, sSO)); so = "s%d" % sSO
        elif g == 0: so = "0"
        else:
            e("s_mov_b32 s%d, %d" % (sSO, g * 12288)); so = "s%d" % sSO
        for t in range(3):
            e.vmem("buffer_load_dwordx4 %s, v%d, %s, %s offen offset:%d %s" % (reg_of(rs, t), vKV, sr(srd), so, t * 128, kvf), "%s%d" % (kind, g))
    def reg_of(rs, t):
        return ar(rs[1] + 4 * t) if isinstance(rs, tuple) else vr(rslot(rs, t))
    def issue_wo(n):
        throttle()
        last = None
        for t in range(3):
            z = 3 * n + t; i, seg = 2 * (z // 10) + (z & 1), (z % 10) >> 1
            if i == 0: so = "0"
            else:
                if last != i: e("s_mov_b32 s%d, %d" % (sSO, i * 5120))
                so = "s%d" % sSO
                last = i
            e.vmem("buffer_load_dwordx4 %s, v%d, %s, %s offen offset:%d %s" % (ar(4 * z), vWO, sr(sWO), so, seg * 256, wf), "O%d" % n)
    e("s_mov_b32 s%d, 0" % sCNT)
    for m in range(8):
        e.vmem("buffer_load_dwordx4 %s, v%d, %s, s%d offen %s" % (ar(8 * m), vWQ, sr(sRE), sCNT, qf), "R")
        e("s_add_u32 s%d, s%d, s%d" % (sSO, sCNT, sS1))
        e.vmem("buffer_load_dwordx4 %s, v%d, %s, s%d offen %s" % (ar(8 * m + 4), vWQ, sr(sRO), sSO, qf), "R")
        if m < 7: e("s_add_u32 s%d, s%d, s%d" % (sCNT, sCNT, sS2))
    if cpf:
        e("s_getpc_b64 s[6:7]")
        e.label("L_pc")
        e("s_sub_u32 s6, s6, L_pc-%s_kernel" % NAME); e("s_subb_u32 s7, s7, 0")
        e("s_lshr_b32 s8, s2, 3"); e("s_lshl_b32 s8, s8, 2"); e("s_add_u32 s8, s8, s%d" % sW)
        e("s_mul_i32 s8, s8, %d" % (64 * cpf)); e("s_min_u32 s8, s8, L_end-%s_kernel-%d" % (NAME, 64 * cpf))
        e("s_add_u32 s6, s6, s8"); e("s_addc_u32 s7, s7, 0")
        for k in range(cpf): e("s_load_dword s8, s[6:7], %d" % (64 * k))
    e("s_add_u32 s%d, s26, %d" % (sEX, WS_EP)); e("s_addc_u32 s%d, s27, 0" % (sEX + 1))
    e("s_load_dword s%d, s[%d:%d], 0" % (sTAG, sEX, sEX + 1))
    if ph:
        aj, ab, ah, ax = ph
        e("s_bfe_u32 s%d, s2, 0x20003" % sT0); e("s_mul_i32 s%d, s%d, %d" % (sROT, sT0, aj))
        e("s_mul_i32 s%d, s%d, %d" % (sT0, sB, ab)); e("s_add_u32 s%d, s%d, s%d" % (sROT, sROT, sT0))
        e("s_lshr_b32 s%d, s2, 6" % sT0); e("s_mul_i32 s%d, s%d, %d" % (sT0, sT0, ah)); e("s_add_u32 s%d, s%d, s%d" % (sROT, sROT, sT0))
        e("s_and_b32 s%d, s2, 7" % sT0); e("s_mul_i32 s%d, s%d, %d" % (sT0, sT0, ax)); e("s_add_u32 s%d, s%d, s%d" % (sROT, sROT, sT0))
    e("s_mov_b32 s%d, 393216" % (sV + 2)); e("s_mov_b32 s%d, 0x20000" % (sV + 3))
    e("s_mul_i32 s%d, s%d, 245760" % (sT0, sH))
    e("s_add_u32 s%d, s12, s%d" % (sWO, sT0)); e("s_addc_u32 s%d, s13, 0" % (sWO + 1))
    e("s_mov_b32 s%d, 245760" % (sWO + 2)); e("s_mov_b32 s%d, 0x20000" % (sWO + 3))
    e("s_mov_b32 s%d, s26" % sWS); e("s_mov_b32 s%d, s27" % (sWS + 1))
    e("s_mov_b32 s%d, %d" % (sWS + 2, WS_SIZE)); e("s_mov_b32 s%d, 0x20000" % (sWS + 3))
    e("s_mov_b32 s%d, s22" % sOUT); e("s_mov_b32 s%d, s23" % (sOUT + 1))
    e("s_mov_b32 s%d, 2560" % (sOUT + 2)); e("s_mov_b32 s%d, 0x20000" % (sOUT + 3))
    e("s_lshl_b32 s%d, s%d, 2" % (sT0, sH)); e("s_add_u32 s%d, s%d, s%d" % (sT0, sT0, sU))
    e("s_mul_i32 s%d, s%d, 205" % (sRB, sT0)); e("s_lshr_b32 s%d, s%d, 10" % (sRB, sRB))
    e("s_mul_i32 s%d, s%d, 5" % (sT1, sRB)); e("s_sub_u32 s%d, s%d, s%d" % (sC5, sT0, sT1))
    e("s_cmp_lt_u32 s%d, 4" % sU); e("s_cselect_b32 s%d, s%d, 255" % (sT0, sT0))
    e("s_cmp_lt_u32 s%d, 120" % sT0)
    e("s_cselect_b32 s%d, %d, 0" % (sWD + 2, 1536 * 1280))
    e("s_cselect_b32 s%d, %d, 0" % (sWSF + 2, WS_Y))
    e("s_cselect_b32 s%d, 1, 0" % sACT)
    e("s_mov_b32 s%d, s20" % sWD); e("s_mov_b32 s%d, s21" % (sWD + 1)); e("s_mov_b32 s%d, 0x20000" % (sWD + 3))
    e("s_mov_b32 s%d, s26" % sWSF); e("s_mov_b32 s%d, s27" % (sWSF + 1)); e("s_mov_b32 s%d, 0x20000" % (sWSF + 3))
    e("s_mov_b32 s%d, 0x00ff00ff" % sVAL); e("s_mov_b32 s%d, 0xff00ff00" % (sVAL + 1))
    e("v_mul_u32_u24 v%d, 1280, v%d" % (vWO, T3))
    e("v_lshl_add_u32 v%d, v%d, 4, v%d" % (vWO, T1, vWO))
    e("s_mul_i32 s%d, s%d, 61440" % (sT0, sW))
    e("v_add_u32 v%d, s%d, v%d" % (vWO, sT0, vWO))
    e("v_lshrrev_b32 v%d, 5, v%d" % (T0, vL))
    e("v_and_b32 v%d, 16, v%d" % (T3, vL))
    e("v_lshl_add_u32 v%d, v%d, 5, v%d" % (vP1O, T2, T3))
    e("v_mul_u32_u24 v%d, %d, v%d" % (vQA, PSTR, T0)); e("v_add_u32 v%d, v%d, v%d" % (vQA, vQA, vP1O))
    e("s_mul_i32 s%d, s%d, %d" % (sT0, sW, 2 * PSTR))
    e("v_add_u32 v%d, s%d, v%d" % (vQA, sT0, vQA))
    e("v_mul_u32_u24 v%d, %d, v%d" % (vF1, PS2, T0)); e("v_add_u32 v%d, v%d, v%d" % (vF1, vF1, vP1O))
    e("s_mul_i32 s%d, s%d, %d" % (sT0, sW, 2 * PS2))
    e("v_add_u32 v%d, s%d, v%d" % (vF1, sT0, vF1))
    e("v_lshlrev_b32 v%d, 9, v%d" % (vFA, T0)); e("v_lshl_add_u32 v%d, v%d, 5, v%d" % (vFA, T1, vFA))
    e("v_add_u32 v%d, v%d, v%d" % (vFA, vFA, T3))
    e("v_lshrrev_b32 v%d, 3, v0" % T0); e("v_lshlrev_b32 v%d, 14, v%d" % (T0, T0))
    e("v_lshl_add_u32 v%d, v%d, 4, v%d" % (T0, T2, T0))
    e("s_mul_i32 s%d, s%d, %d" % (sT0, sB, 20 * 16384))
    e("s_lshl_b32 s%d, s%d, 7" % (sT1, sP))
    e("s_add_u32 s%d, s%d, s%d" % (sT0, sT0, sT1)); e("s_add_u32 s%d, s%d, %d" % (sT0, sT0, WS_Y))
    e("v_cmp_gt_u32 vcc, 160, v0")
    e("v_add_u32 v%d, s%d, v%d" % (T0, sT0, T0))
    e("v_mov_b32 v%d, %d" % (vPY, OOB))
    e("v_cndmask_b32 v%d, v%d, v%d, vcc" % (vPY, vPY, T0))
    e("s_mov_b32 s%d, 0xff" % sFF); e("s_mov_b32 s%d, 0x0c0c0400" % sSEL)
    e("v_and_b32 v%d, 1, v%d" % (T0, vL))
    e("v_lshlrev_b32 v%d, 4, v%d" % (T0, T0))
    e("v_mov_b32 v%d, 0xffff" % T1)
    e("v_lshlrev_b32 v%d, v%d, v%d" % (T0, T0, T1))
    e("v_bfe_u32 v%d, v%d, 1, 2" % (T1, vL))
    for r in range(4):
        e("v_cmp_eq_u32 vcc, %d, v%d" % (r, T1))
        e("s_nop 1")
        e("v_cndmask_b32 v%d, 0, v%d, vcc" % (vM + r, T0))
    kn = [0]
    def more_k(n):
        for _ in range(n):
            if kn[0] < RING: issue_kv("K", kn[0], kn[0]); trace_pt("ik%d" % kn[0]); kn[0] += 1
    more_k(k_pre)
    stamp('iss')
    e.wait_vm("x")
    X = 28
    for r in range(10):
        e("v_lshlrev_b32 v%d, 16, v%d" % (X + 2 * r, 18 + r))
        e("v_and_b32 v%d, 0xffff0000, v%d" % (X + 2 * r + 1, 18 + r))
    def half_allreduce(v, t, op="v_add_f32"):
        for pat in (X1, X2, HM, RM):
            e("s_nop 1")
            e("%s_dpp v%d, v%d, v%d %s %s" % (op, v, v, v, pat, DPP))
        e("v_mov_b32 v%d, v%d" % (t, v))
        e("s_nop 1")
        e("v_permlane16_swap_b32 v%d, v%d" % (v, t))
        e("s_nop 1")
        e("%s v%d, v%d, v%d" % (op, v, v, t))
    for r in range(4): e("v_add_f32 v%d, v%d, v%d" % (48 + r, X + r, X + 4 + r))
    for k in range(8, 20): e("v_add_f32 v%d, v%d, v%d" % (48 + k % 4, 48 + k % 4, X + k))
    e("v_add_f32 v48, v48, v49"); e("v_add_f32 v50, v50, v51"); e("v_add_f32 v48, v48, v50")
    half_allreduce(48, 49)
    e("v_mul_f32 v48, %s, v48" % hx(f2u(1.0 / 640)))
    for k in range(20):
        e("v_sub_f32 v%d, v%d, v48" % (18 + k % 4, X + k))
        if k < 4: e("v_mul_f32 v%d, v%d, v%d" % (52 + k, 18 + k, 18 + k))
        else: e("v_fmac_f32 v%d, v%d, v%d" % (52 + k % 4, 18 + k % 4, 18 + k % 4))
    e("v_add_f32 v52, v52, v53"); e("v_add_f32 v54, v54, v55"); e("v_add_f32 v52, v52, v54")
    half_allreduce(52, 53)
    e("v_mul_f32 v52, %s, v52" % hx(f2u(1.0 / 640)))
    e("v_cvt_pk_bf16_f32 v48, v48, v52")
    e("v_and_b32 v52, 0xffff0000, v48")
    e("v_lshlrev_b32 v48, 16, v48")
    e("v_add_f32 v52, %s, v52" % hx(f2u(1e-5)))
    e("v_cvt_pk_bf16_f32 v52, v52, v52")
    e("v_and_b32 v52, 0xffff0000, v52")
    e("v_sqrt_f32 v52, v52")
    e("s_nop 0")
    e("v_cvt_pk_bf16_f32 v52, v52, v52")
    e("v_and_b32 v52, 0xffff0000, v52")
    e("v_rcp_f32 v53, v52")
    for k in range(0, 20, 2):
        a, b2 = X + k, X + k + 1
        e("v_sub_f32 v%d, v%d, v48" % (a, a)); e("v_sub_f32 v%d, v%d, v48" % (b2, b2))
        e("v_cvt_pk_bf16_f32 v18, v%d, v%d" % (a, b2))
        e("v_lshlrev_b32 v%d, 16, v18" % a); e("v_and_b32 v%d, 0xffff0000, v18" % b2)
        e("v_mul_f32 v19, v%d, v53" % a); e("v_mul_f32 v20, v%d, v53" % b2)
        e("v_fma_f32 v%d, -v19, v52, v%d" % (a, a)); e("v_fma_f32 v%d, -v20, v52, v%d" % (b2, b2))
        e("v_fmac_f32 v19, v%d, v53" % a); e("v_fmac_f32 v20, v%d, v53" % b2)
        e("v_cvt_pk_bf16_f32 v%d, v19, v19" % a); e("v_cvt_pk_bf16_f32 v%d, v20, v20" % b2)
    e("v_lshlrev_b32 v%d, 1, v%d" % (T4, T4)); e("v_lshlrev_b32 v%d, 1, v%d" % (T5, T5))
    e("ds_write_b128 v%d, %s offset:%d" % (T4, vr(X), L_XN))
    e("ds_write_b128 v%d, %s offset:%d" % (T4, vr(X + 4), L_XN + 16))
    e("ds_write_b128 v%d, %s offset:%d" % (T4, vr(X + 8), L_XN + 1024))
    e("ds_write_b128 v%d, %s offset:%d" % (T4, vr(X + 12), L_XN + 1024 + 16))
    e("ds_write_b128 v%d, %s offset:%d" % (T5, vr(X + 16), L_XN + 2048))
    e("v_mov_b32 v%d, %d" % (T4, L_CNT)); e("v_mov_b32 v%d, 0" % T5)
    e("s_waitcnt lgkmcnt(0)")
    e("s_add_u32 s%d, s%d, 1" % (sTAG, sTAG))
    e("s_and_b32 s%d, s%d, 0xff" % (sT0, sTAG)); e("s_mul_i32 s%d, s%d, 0x01010101" % (sT1, sT0))
    e("ds_write_b32 v%d, v%d" % (T4, T5))
    e("v_mov_b32 v%d, s%d" % (vTAG, sT0)); e("v_mov_b32 v%d, s%d" % (vTAG + 1, sT1))
    more_k(k_mid)
    stamp('ln')
    e("s_cmp_ge_u32 s%d, 6" % sU); e("s_cbranch_scc1 L_frole")
    e("s_mul_i32 s%d, s%d, 1280" % (sT0, sKH)); e("s_lshl_b32 s%d, s%d, 5" % (sT1, sW)); e("s_add_u32 s%d, s%d, s%d" % (sT0, sT0, sT1))
    e("v_lshrrev_b32 v%d, 3, v%d" % (T0, vL)); e("v_lshlrev_b32 v%d, 2, v%d" % (T1, T0))
    e("v_add_u32 v%d, s%d, v%d" % (T1, sT0, T1))
    for n in range(10):
        e("ds_read_b32 v%d, v%d offset:%d" % (vS + 2 * n, T1, 128 * n))
        e("ds_read_b32 v%d, v%d offset:%d" % (vS + 2 * n + 1, T1, 128 * n + 2560))
        if n == 6: e("s_waitcnt lgkmcnt(8)")
    e("s_waitcnt lgkmcnt(0)")
    for n in range(10):
        afrag(vA0, vS + 2 * n); afrag(vA1, vS + 2 * n + 1)
        if n == 0: e.wait_vm("R")
        else: e("s_nop 0")
        mfma(vr(vACC), vr(vA0), ar(4 * n), "0" if n == 0 else vr(vACC))
        mfma(vr(vACC + 4), vr(vA1), ar(4 * n), "0" if n == 0 else vr(vACC + 4))
    e("v_and_b32 v%d, 31, v%d" % (T1, vL)); e("v_lshlrev_b32 v%d, 4, v%d" % (T1, T1))
    e("v_bfe_u32 v%d, v%d, 4, 1" % (T3, vL)); e("v_mul_u32_u24 v%d, 3072, v%d" % (T3, T3))
    e("v_and_b32 v%d, 15, v%d" % (T4, vL)); e("v_lshl_add_u32 v%d, v%d, 4, v%d" % (T3, T4, T3))
    e("v_lshrrev_b32 v%d, 5, v%d" % (T4, vL)); e("v_mul_u32_u24 v%d, 768, v%d" % (T4, T4)); e("v_add_u32 v%d, v%d, v%d" % (T3, T3, T4))
    e("s_mul_i32 s%d, s%d, 6144" % (sT0, sH)); e("s_mul_i32 s%d, s%d, 1536" % (sT1, sKH)); e("s_add_u32 s%d, s%d, s%d" % (sT0, sT0, sT1))
    e("s_lshl_b32 s%d, s%d, 8" % (sT1, sNT)); e("s_add_u32 s%d, s%d, s%d" % (sT0, sT0, sT1))
    e("s_mov_b64 exec, %s" % sr(sVAL, 2))
    e("ds_write_b128 v%d, %s offset:%d" % (vF1, vr(vACC), L_Q1))
    e("ds_write_b128 v%d, %s offset:%d" % (vF1, vr(vACC + 4), L_Q1 + 256))
    e("s_mov_b64 exec, -1")
    e("s_waitcnt lgkmcnt(0)")
    e("s_barrier")
    e("s_cmp_lg_u32 s%d, 0" % sW); e("s_cbranch_scc1 L_rdone")
    for pp in range(8): e("ds_read_b128 %s, v%d offset:%d" % (vr(vS + 4 * pp), T1, L_Q1 + pp * PS2))
    e("s_waitcnt lgkmcnt(6)")
    for r in range(4): e("v_add_f32 v%d, v%d, v%d" % (18 + r, vS + r, vS + 4 + r))
    for pp in range(2, 8):
        e("s_waitcnt lgkmcnt(%d)" % (7 - pp))
        for r in range(4): e("v_add_f32 v%d, v%d, v%d" % (18 + r, 18 + r, vS + 4 * pp + r))
    e("s_mov_b32 exec_lo, 0")
    for r in range(4): untag(22 + r, 18 + r)
    for r in range(4): e("v_sub_f32 v%d, v%d, v%d" % (18 + r, 18 + r, 22 + r))
    e("s_mov_b64 exec, -1")
    for r in range(4): e("v_bfi_b32 v%d, s%d, v%d, v%d" % (18 + r, sFF, vTAG, 18 + r))
    e.vmem("buffer_store_dwordx4 v[18:21], v%d, %s, s%d offen %s" % (T3, sr(sWS), sT0, stf), counted=False)
    e("s_branch L_rdone")
    e.label("L_frole")
    e("v_bfe_u32 v%d, v%d, 3, 1" % (T0, vL)); e("v_mul_u32_u24 v%d, 2560, v%d" % (T0, T0))
    e("v_lshrrev_b32 v%d, 4, v%d" % (T3, vL)); e("v_lshl_add_u32 v%d, v%d, 2, v%d" % (T0, T3, T0))
    e("s_lshl_b32 s%d, s%d, 9" % (sT0, sKR)); e("s_lshl_b32 s%d, s%d, 4" % (sT1, sW)); e("s_add_u32 s%d, s%d, s%d" % (sT0, sT0, sT1))
    e("v_add_u32 v%d, s%d, v%d" % (T0, sT0, T0))
    for m in range(0, 8, 2): e("ds_read2_b32 v[%d:%d], v%d offset0:%d offset1:%d" % (vS + m, vS + m + 1, T0, 16 * m, 16 * m + 16))
    e("s_waitcnt lgkmcnt(0)")
    for m in range(8):
        A = vA0 if m % 2 == 0 else vA1
        afrag(A, vS + m)
        e("s_nop 0")
        if m == 0: e.wait_vm("R")
        else: e("s_nop 0")
        mfma(vr(vACC), vr(A), ar(8 * m), "0" if m == 0 else vr(vACC))
        mfma(vr(vACC + 4), vr(A), ar(8 * m + 4), "0" if m == 0 else vr(vACC + 4))
    e("s_lshl_b32 s%d, s%d, 11" % (sT0, sW))
    e("v_add_u32 v%d, s%d, v%d" % (T0, sT0, vFA))
    e("v_bfe_u32 v%d, v0, 1, 2" % T2); e("v_lshlrev_b32 v%d, 9, v%d" % (T2, T2))
    e("v_bfe_u32 v%d, v0, 3, 4" % T3); e("v_lshl_add_u32 v%d, v%d, 5, v%d" % (T2, T3, T2))
    e("v_and_b32 v%d, 1, v0" % T4); e("v_lshl_add_u32 v%d, v%d, 4, v%d" % (T2, T4, T2))
    e("v_and_b32 v%d, 127, v0" % T3); e("v_lshlrev_b32 v%d, 4, v%d" % (T3, T3))
    e("s_mul_i32 s%d, s%d, 24576" % (sT0, sKR)); e("s_lshl_b32 s%d, s%d, 11" % (sT1, sFS))
    e("s_add_u32 s%d, s%d, s%d" % (sT0, sT0, sT1)); e("s_add_u32 s%d, s%d, %d" % (sT0, sT0, WS_P1))
    e("ds_write_b128 v%d, %s offset:%d" % (T0, vr(vACC), L_F1))
    e("ds_write_b128 v%d, %s offset:%d" % (T0, vr(vACC + 4), L_F1 + 1024))
    e("s_waitcnt lgkmcnt(0)")
    e("s_barrier")
    e("s_cmp_eq_u32 s%d, 0" % sFACT); e("s_cbranch_scc1 L_rdone")
    for pp in range(4): e("ds_read_b128 %s, v%d offset:%d" % (vr(vS + 4 * pp), T2, L_F1 + pp * 2048))
    e("s_waitcnt lgkmcnt(0)")
    for r in range(4): e("v_add_f32 v%d, v%d, v%d" % (18 + r, vS + r, vS + 4 + r))
    for pp in (2, 3):
        for r in range(4): e("v_add_f32 v%d, v%d, v%d" % (18 + r, 18 + r, vS + 4 * pp + r))
    if p1lo:
        lab = e.newlab("p1hi")
        e("s_cmp_lt_u32 s%d, 2" % sW); e("s_cbranch_scc1 %s" % lab)
        for r in range(4): untag(22 + r, 18 + r)
        for r in range(4): e("v_sub_f32 v%d, v%d, v%d" % (18 + r, 18 + r, 22 + r))
        e("s_add_u32 s%d, s%d, %d" % (sT0, sT0, P1_LO))
        e.label(lab)
        for r in range(4): e("v_bfi_b32 v%d, s%d, v%d, v%d" % (18 + r, sFF, vTAG, 18 + r))
    else:
        e("s_cmp_ge_u32 s%d, 2" % sW); e("s_cbranch_scc1 L_rdone")
        for r in range(4): tagit(18 + r, 18 + r)
    e.vmem("buffer_store_dwordx4 v[18:21], v%d, %s, s%d offen %s" % (T3, sr(sWS), sT0, stf), counted=False)
    e.label("L_rdone")
    stamp('q1')
    e("s_lshl_b32 s%d, s%d, 1" % (sT0, sH)); e("s_add_u32 s%d, s%d, s%d" % (sT0, sT0, sB)); e("s_mul_i32 s%d, s%d, 3072" % (sT0, sT0))
    e("s_mul_i32 s%d, s%d, 768" % (sT1, sW)); e("s_add_u32 s%d, s%d, s%d" % (sT0, sT0, sT1))
    e("v_lshlrev_b32 v%d, 4, v%d" % (T4, vL)); e("v_add_u32 v%d, s%d, v%d" % (vWQ, sT0, T4))
    vQC = vS
    def issue_qc(counted):
        e.vmem("buffer_load_dwordx4 %s, v%d, %s, 0 offen sc1" % (vr(vQC), vWQ, sr(sWS)), "QC", counted=counted)
    more_k(qc_after - kn[0])
    e("s_mov_b32 exec_hi, 0xffff")
    issue_qc(True)
    e("s_mov_b64 exec, -1")
    more_k(RING)
    for g in range(NE): issue_kv("V", g, ('a', AVE + 12 * g)); trace_pt("iv%d" % g)
    e("s_mul_i32 s%d, s%d, 768" % (sT0, sW)); e("s_add_u32 s%d, s%d, %d" % (sT0, sT0, L_QC))
    e("v_lshlrev_b32 v%d, 3, v%d" % (T2, vL)); e("v_add_u32 v%d, s%d, v%d" % (T3, sT0, T4))
    e("v_and_b32 v%d, 7, v%d" % (T5, vL)); e("v_lshlrev_b32 v%d, 4, v%d" % (T5, T5))
    stamp('iss2')
    e.wait_vm("QC")
    e("s_mov_b32 exec_hi, 0xffff")
    poll("qc", [vQC], T0, T1, lambda: issue_qc(False))
    for r in range(4): untag(vQC + r, vQC + r)
    e("ds_write_b128 v%d, %s" % (T3, vr(vQC)))
    e("s_mov_b64 exec, -1")
    e("s_waitcnt lgkmcnt(0)")
    e("s_barrier")
    stamp('b1')
    e("ds_read_b128 %s, v%d offset:%d" % (vr(vQF), T4, L_QC))
    e("ds_read_b128 %s, v%d offset:%d" % (vr(vQF + 4), T4, L_QC + 768))
    e("ds_read_b128 %s, v%d offset:%d" % (vr(vQF + 8), T4, L_QC + 1536))
    e("ds_read_b128 %s, v%d offset:%d" % (vr(vA0), T4, L_QC + 2304))
    for g in range(32): e("v_mov_b32 v%d, 0" % (vS + g))
    e("s_waitcnt lgkmcnt(0)")
    for r in range(4): e("v_add_f32 v%d, v%d, v%d" % (vQF + r, vQF + r, vQF + 4 + r))
    for r in range(4): e("v_add_f32 v%d, v%d, v%d" % (vQF + 8 + r, vQF + 8 + r, vA0 + r))
    for r in range(4): e("v_add_f32 v%d, v%d, v%d" % (vQF + r, vQF + r, vQF + 8 + r))
    e("v_cvt_pk_bf16_f32 v%d, v%d, v%d" % (vQF, vQF, vQF + 1))
    e("v_cvt_pk_bf16_f32 v%d, v%d, v%d" % (vQF + 1, vQF + 2, vQF + 3))
    e("ds_write_b64 v%d, %s offset:%d" % (T2, vr(vQF, 2), L_QB))
    e("s_waitcnt lgkmcnt(0)")
    for t in range(3): e("ds_read_b128 %s, v%d offset:%d" % (vr(vQF + 4 * t), T5, L_QB + t * 128))
    e("s_waitcnt lgkmcnt(0)")

    vP1 = 10
    def issue_p1(counted):
        e.vmem("buffer_load_dwordx4 %s, v%d, %s, 0 offen sc1" % (vr(vP1), vP1O, sr(sWSF)), "P1", counted=counted)
        e.vmem("buffer_load_dwordx4 %s, v%d, %s, 0 offen sc1" % (vr(vP1 + 4), vF1, sr(sWSF)), "P1", counted=counted)
        if not p1lo: return
        e("s_mov_b32 s%d, %d" % (sSO, P1_LO))
        e.vmem("buffer_load_dwordx4 %s, v%d, %s, s%d offen sc1" % (vr(vP1 + 8), vP1O, sr(sWSF), sSO), "P1", counted=counted)
        e.vmem("buffer_load_dwordx4 %s, v%d, %s, s%d offen sc1" % (vr(vP1 + 12), vF1, sr(sWSF), sSO), "P1", counted=counted)
    def start_p1():
        e("s_lshl_b32 s%d, s%d, 2" % (sT0, sRB)); e("s_add_u32 s%d, s%d, s%d" % (sT0, sT0, sW))
        e("s_lshl_b32 s%d, s%d, 8" % (sT1, sT0)); e("s_add_u32 s%d, s%d, %d" % (sT1, sT1, WS_P1))
        e("v_and_b32 v%d, 15, v%d" % (vF1, vL)); e("v_lshlrev_b32 v%d, 4, v%d" % (vF1, vF1)); e("v_add_u32 v%d, s%d, v%d" % (vF1, sT1, vF1))
        e("v_lshrrev_b32 v%d, 4, v%d" % (vP1O, vL)); e("v_mul_u32_u24 v%d, 24576, v%d" % (vP1O, vP1O)); e("v_add_u32 v%d, v%d, v%d" % (vP1O, vP1O, vF1))
        e("v_add_u32 v%d, %d, v%d" % (vF1, 4 * 24576, vF1))
        issue_p1(True)
        e("s_mul_i32 s%d, s%d, 20480" % (sT1, sT0))
        e("s_lshl_b32 s%d, s%d, 8" % (sT2, sC5)); e("s_add_u32 s%d, s%d, s%d" % (sT1, sT1, sT2))
        e("s_mul_i32 s%d, s%d, 61440" % (sT2, sW))
        e("v_subrev_u32 v%d, s%d, v%d" % (T1, sT2, vWO))
        for i in range(4):
            e.vmem("buffer_load_dwordx4 %s, v%d, %s, s%d offen %s" % (ar(240 + 4 * i), T1, sr(sWD), sT1, ff), "WD")
            if i < 3: e("s_add_u32 s%d, s%d, 5120" % (sT1, sT1))
    def stage2():
        skip = e.newlab("nost2")
        e("s_cmp_eq_u32 s%d, 0" % sACT); e("s_cbranch_scc1 %s" % skip)
        e.wait_vm("WD")
        poll("p1", [vP1, vP1 + 4, vP1 + 8, vP1 + 12][:4 if p1lo else 2], T1, T2, lambda: issue_p1(False))
        for r in range(16 if p1lo else 8): untag(10 + r, 10 + r)
        if p1lo:
            for r in range(8): e("v_add_f32 v%d, v%d, v%d" % (10 + r, 10 + r, 18 + r))
        e("s_mov_b64 exec, 0xffff")
        for r in range(4): e("v_add_f32 v%d, v%d, v%d" % (10 + r, 10 + r, 14 + r))
        e("s_mov_b64 exec, -1")
        for sw in ("v_permlane16_swap_b32", "v_permlane32_swap_b32"):
            for r in range(4): e("v_mov_b32 v%d, v%d" % (14 + r, 10 + r))
            e("s_nop 0")
            for r in range(4): e("%s v%d, v%d" % (sw, 10 + r, 14 + r))
            e("s_nop 0")
            for r in range(4): e("v_add_f32 v%d, v%d, v%d" % (10 + r, 10 + r, 14 + r))
        e("v_cvt_pk_bf16_f32 v14, v10, v11"); e("v_cvt_pk_bf16_f32 v15, v12, v13")
        e("v_lshlrev_b32 v10, 16, v14"); e("v_and_b32 v11, 0xffff0000, v14")
        e("v_lshlrev_b32 v12, 16, v15"); e("v_and_b32 v13, 0xffff0000, v15")
        e("s_nop 0")
        for r in range(4): e("v_mov_b32_dpp v%d, v%d row_shl:4 %s" % (14 + r, 10 + r, DPP))
        for k in range(4): e("v_mul_f32 v%d, v%d, v%d" % (18 + k, 10 + k, 10 + k))
        for k in range(4): e("v_mul_f32 v%d, %s, v%d" % (18 + k, hx(f2u(0.044715)), 18 + k))
        for k in range(4): e("v_fma_f32 v%d, v%d, v%d, v%d" % (18 + k, 18 + k, 10 + k, 10 + k))
        for k in range(4): e("v_mul_f32 v%d, %s, v%d" % (18 + k, hx(f2u(-2.0 * LOG2E * 0.7978845608028654)), 18 + k))
        for k in range(4): e("v_exp_f32 v%d, v%d" % (18 + k, 18 + k))
        for k in range(4): e("v_add_f32 v%d, 1.0, v%d" % (18 + k, 18 + k))
        for k in range(4): e("v_rcp_f32 v%d, v%d" % (18 + k, 18 + k))
        for k in range(4): e("v_mul_f32 v%d, v%d, v%d" % (18 + k, 10 + k, 18 + k))
        e("v_cvt_pk_bf16_f32 v10, v18, v19"); e("v_cvt_pk_bf16_f32 v11, v20, v21")
        e("v_lshlrev_b32 v18, 16, v10"); e("v_and_b32 v19, 0xffff0000, v10")
        e("v_lshlrev_b32 v20, 16, v11"); e("v_and_b32 v21, 0xffff0000, v11")
        for k in range(4): e("v_mul_f32 v%d, v%d, v%d" % (18 + k, 18 + k, 14 + k))
        e("v_cvt_pk_bf16_f32 v28, v18, v19"); e("v_cvt_pk_bf16_f32 v29, v20, v21")
        e("v_bfe_u32 v18, v%d, 3, 1" % vL); e("v_lshlrev_b32 v18, 3, v18")
        for i, off in enumerate((0, 4, 32, 36)):
            e("ds_bpermute_b32 v%d, v18, v28 offset:%d" % (10 + i, off)); e("ds_bpermute_b32 v%d, v18, v29 offset:%d" % (14 + i, off))
        e("v_lshrrev_b32 v19, 4, v%d" % vL); e("v_mul_u32_u24 v19, 0x0202, v19"); e("v_add_u32 v19, 0x0100, v19")
        e("v_lshl_or_b32 v19, v19, 16, v19")
        e("s_waitcnt lgkmcnt(0)")
        for i in range(4): e("v_perm_b32 v%d, v%d, v%d, v19" % (10 + i, 14 + i, 10 + i))
        for i in range(4):
            A = 20 if i % 2 == 0 else 24
            afrag(A, 10 + i)
            e("s_nop 1")
            mfma(vr(16), vr(A), ar(240 + 4 * i), "0" if i == 0 else vr(16))
        e("s_lshl_b32 s%d, s%d, 10" % (sT0, sW))
        e("v_add_u32 v10, s%d, v%d" % (sT0, vFA))
        e("v_mov_b32 v11, %d" % L_CNT); e("v_mov_b32 v12, 1")
        e("s_nop 5")
        e("ds_write_b128 v10, %s offset:%d" % (vr(16), L_F2))
        e("s_waitcnt lgkmcnt(0)")
        e("s_mov_b64 exec, 1")
        e("ds_add_rtn_u32 v12, v11, v12")
        e("s_mov_b64 exec, -1")
        e("s_waitcnt lgkmcnt(0)")
        e("v_readfirstlane_b32 s%d, v12" % sT0)
        e("s_nop 3")
        e("s_cmp_lg_u32 s%d, 3" % sT0); e("s_cbranch_scc1 %s" % skip)
        e("v_lshlrev_b32 v28, 4, v%d" % vL)
        for pp in range(4): e("ds_read_b128 %s, v28 offset:%d" % (vr(10 + 4 * pp), L_F2 + pp * 1024))
        e("v_lshrrev_b32 v28, 3, v%d" % vL); e("v_mul_u32_u24 v28, 3072, v28")
        e("v_and_b32 v29, 7, v%d" % vL); e("v_lshl_add_u32 v28, v29, 4, v28")
        e("s_mul_i32 s%d, s%d, %d" % (sT0, sC5, 8 * 3072))
        e("s_lshl_b32 s%d, s%d, 7" % (sT1, sRB))
        e("s_add_u32 s%d, s%d, s%d" % (sT0, sT0, sT1)); e("s_add_u32 s%d, s%d, %d" % (sT0, sT0, WS_P2))
        e("s_waitcnt lgkmcnt(0)")
        for pp in range(1, 4):
            for r in range(4): e("v_add_f32 v%d, v%d, v%d" % (10 + r, 10 + r, 10 + 4 * pp + r))
        for r in range(4): tagit(10 + r, 10 + r)
        e.vmem("buffer_store_dwordx4 %s, v28, %s, s%d offen %s" % (vr(10), sr(sWSF), sT0, stf), counted=False)
        e("s_nop 1")
        e.label(skip)

    curwin[0] = win
    sc = hx(f2u(192 ** -0.5))
    nwo = [0]
    NO1 = AVE // 12
    def finish_scores(g0):
        a, b2, t = vS + g0, vS + g0 + 1, T0
        for pat in (X1, X2, HM):
            e("v_add_f32_dpp v%d, v%d, v%d %s %s" % (a, a, a, pat, DPP))
            e("v_add_f32_dpp v%d, v%d, v%d %s %s" % (b2, b2, b2, pat, DPP))
            e("s_nop 0")
        e("v_cvt_pk_bf16_f32 v%d, v%d, v%d" % (t, a, b2))
        e("v_lshlrev_b32 v%d, 16, v%d" % (a, t)); e("v_and_b32 v%d, 0xffff0000, v%d" % (b2, t))
        e("v_mul_f32 v%d, %s, v%d" % (a, sc, a)); e("v_mul_f32 v%d, %s, v%d" % (b2, sc, b2))
        e("v_cvt_pk_bf16_f32 v%d, v%d, v%d" % (t, a, b2))
        e("v_lshlrev_b32 v%d, 16, v%d" % (a, t)); e("v_and_b32 v%d, 0xffff0000, v%d" % (b2, t))
        if g0 == 0: e("v_max_f32 v%d, v%d, v%d" % (vMW, a, b2))
        else: e("v_max3_f32 v%d, v%d, v%d, v%d" % (vMW, vMW, a, b2))
    vn = [NE]
    for g in range(32):
        e.wait_vm("K%d" % g)
        stamp('k%d' % g)
        rs = ring[("K", g)]
        for t in range(3):
            for r in range(4):
                e("v_dot2c_f32_bf16 v%d, v%d, v%d" % (vS + g, rslot(rs, t) + r, vQF + 4 * t + r))
        if g + RING < 32: issue_kv("K", g + RING, rs)
        else: issue_kv("V", vn[0], rs); vn[0] += 1
        if nwo[0] < NO1 and g >= ostart and (g - ostart) % ostep == 0:
            issue_wo(nwo[0]); nwo[0] += 1
        if g == p1_g: start_p1()
        if g == st2_g: stage2()
        if g % 2 == 1 and g >= 3: finish_scores(g - 3)
    e("s_nop 2")
    finish_scores(30)
    def group_allreduce(v, t, op):
        e("s_nop 1")
        e("%s_dpp v%d, v%d, v%d %s %s" % (op, v, v, v, R8, DPP))
        e("v_mov_b32 v%d, v%d" % (t, v)); e("s_nop 1")
        e("v_permlane16_swap_b32 v%d, v%d" % (v, t)); e("s_nop 1")
        e("%s v%d, v%d, v%d" % (op, v, v, t))
        e("v_mov_b32 v%d, v%d" % (t, v)); e("s_nop 1")
        e("v_permlane32_swap_b32 v%d, v%d" % (v, t)); e("s_nop 1")
        e("%s v%d, v%d, v%d" % (op, v, v, t))
    group_allreduce(vMW, T0, "v_max_f32")
    l2e = hx(f2u(LOG2E))
    for g in range(32): e("v_sub_f32 v%d, v%d, v%d" % (vS + g, vS + g, vMW))
    for g in range(32): e("v_mul_f32 v%d, %s, v%d" % (vS + g, l2e, vS + g))
    for g in range(32): e("v_exp_f32 v%d, v%d" % (vS + g, vS + g))
    e("v_add_f32 v%d, v%d, v%d" % (vLW, vS, vS + 1)); e("v_add_f32 v%d, v%d, v%d" % (T0, vS + 2, vS + 3))
    for g in range(4, 32, 2):
        e("v_add_f32 v%d, v%d, v%d" % (vLW, vLW, vS + g)); e("v_add_f32 v%d, v%d, v%d" % (T0, T0, vS + g + 1))
    e("v_add_f32 v%d, v%d, v%d" % (vLW, vLW, T0))
    group_allreduce(vLW, T0, "v_add_f32")
    e("s_lshl_b32 s%d, s%d, 3" % (sT0, sW)); e("s_add_u32 s%d, s%d, %d" % (sT0, sT0, L_ML)); e("v_mov_b32 v%d, s%d" % (T0, sT0))
    e("ds_write_b64 v%d, v[%d:%d]" % (T0, vMW, vLW))
    e("v_and_b32 v%d, 3, v%d" % (T0, vL)); e("v_lshlrev_b32 v%d, 3, v%d" % (T0, T0))
    e("s_waitcnt lgkmcnt(0)")
    e("s_barrier")
    e("ds_read_b64 v[30:31], v%d offset:%d" % (T0, L_ML))
    e("s_waitcnt lgkmcnt(0)")
    e("v_mov_b32 v32, v30")
    for pat in (X1, X2):
        e("s_nop 1"); e("v_max_f32_dpp v32, v32, v32 %s %s" % (pat, DPP))
    e("v_sub_f32 v30, v30, v32"); e("v_sub_f32 v33, v%d, v32" % vMW)
    e("v_mul_f32 v30, %s, v30" % l2e); e("v_mul_f32 v33, %s, v33" % l2e)
    e("v_exp_f32 v30, v30"); e("v_exp_f32 v33, v33")
    e("s_nop 0")
    e("v_mul_f32 v30, v30, v31")
    for pat in (X1, X2):
        e("s_nop 1"); e("v_add_f32_dpp v30, v30, v30 %s %s" % (pat, DPP))
    e("v_rcp_f32 v31, v30")
    tagit(34, 32); tagit(35, 30); tagit(36, 32); tagit(37, 30)
    vFAC = 41
    e("v_mul_f32 v%d, v33, v31" % vFAC)
    e("s_lshl_b32 s%d, s%d, 7" % (sT0, sB)); e("s_add_u32 s%d, s%d, s%d" % (sT0, sT0, sP))
    e("s_lshl_b32 s%d, s%d, 4" % (sT0, sT0)); e("s_add_u32 s%d, s%d, %d" % (sWQO, sT0, WS_ML))
    stamp('b2')

    for g in range(32):
        A = vA0 if g % 2 == 0 else vA1
        e("v_mul_f32 v%d, v%d, v%d" % (vS + g, vS + g, vFAC))
        e("v_cvt_pk_bf16_f32 v%d, v%d, v%d" % (vS + g, vS + g, vS + g))
        afrag(A, vS + g)
        e("s_nop 0")
        e.wait_vm("V%d" % g)
        stamp('v%d' % g)
        if g == ml_g:
            lab = e.newlab("noml")
            e("s_cmp_lg_u32 s%d, 3" % sW); e("s_cbranch_scc1 %s" % lab)
            e("s_mov_b64 exec, 1")
            e.vmem("buffer_store_dwordx4 %s, off, %s, s%d sc1" % (vr(34), sr(sWS), sWQO), counted=False)
            e("s_mov_b64 exec, -1")
            e.label(lab)
        rs = ring[("V", g)]
        for t in range(3):
            mfma(vr(vACC + 4 * t), vr(A), reg_of(rs, t), "0" if g == 0 else vr(vACC + 4 * t))
        if not isinstance(rs, tuple) and vn[0] < 32:
            issue_kv("V", vn[0], rs); vn[0] += 1
        if nwo[0] < 20 and (nwo[0] < NO1 or g >= nwo[0] - NO1):
            issue_wo(nwo[0]); nwo[0] += 1
        if g == 24:
            free = sorted(ring[("V", k)] for k in range(19, 24))
            y0 = [k for k in free if k + 1 in free][0]
            vY = rslot(y0, 0)
            for r in range(20): e("v_mov_b32 v%d, 0" % (vY + r))
            e("v_and_b32 v%d, 7, v%d" % (T0, vL)); e("v_mul_u32_u24 v%d, %d, v%d" % (T0, PSTR, T0))
            e("v_lshrrev_b32 v%d, 4, v%d" % (T1, vL)); e("v_lshl_add_u32 v%d, v%d, 3, v%d" % (T0, T1, T0))
            e("v_bfe_u32 v%d, v%d, 3, 1" % (T1, vL)); e("v_mul_u32_u24 v%d, 96, v%d" % (T1, T1))
            e("s_mul_i32 s%d, s%d, 192" % (sT0, sW))
            e("v_add3_u32 v%d, s%d, v%d, v%d" % (T0, sT0, T0, T1))
            e("s_mul_i32 s%d, s%d, 2560" % (sT0, sW))
            e("v_add_u32 v%d, s%d, v%d" % (T1, sT0, vFA))
            e("v_lshlrev_b32 v%d, 4, v0" % T2)
            e("v_bfe_u32 v%d, v%d, 2, 1" % (T4, vL)); e("v_mul_u32_u24 v%d, 0xffff, v%d" % (T4, T4))
            e("v_xor_b32 v%d, 0xffff, v%d" % (T3, T4))
            e("v_and_b32 v%d, 3, v%d" % (T5, vL)); e("v_add_u32 v%d, 1, v%d" % (vP1O, T5)); e("v_and_b32 v%d, 3, v%d" % (vP1O, vP1O))
            e("v_lshl_or_b32 v%d, v%d, 2, v%d" % (T5, vP1O, T5)); e("v_mul_u32_u24 v%d, 0x1111, v%d" % (T5, T5))
    assert nwo[0] == 20 and vn[0] == 32
    stamp('vend')
    e("s_mov_b64 exec, %s" % sr(sVAL, 2))
    e("s_nop 4")
    for t in range(3): e("ds_write_b128 v%d, %s offset:%d" % (vQA, vr(vACC + 4 * t), L_OP + t * 256))
    e("s_mov_b64 exec, -1")
    e("s_waitcnt lgkmcnt(0)")
    e("s_barrier")
    stamp('b3')
    vO = 52
    for n in range(3): e("ds_read_b64 %s, v%d offset:%d" % (vr(vO + 2 * n, 2), T0, L_OP + 32 * n))
    e("s_waitcnt lgkmcnt(0)")
    for pat in (X1, X2, HM):
        for i in range(6): e("v_add_f32_dpp v%d, v%d, v%d %s %s" % (vO + i, vO + i, vO + i, pat, DPP))
    for i in range(6): e("v_cvt_pk_bf16_f32 v%d, v%d, v%d" % (vO + i, vO + i, vO + i))
    assert e.vm[-1] == "V31"
    def sfrag(dst, n, r):
        src = vO + 2 * (n % 3) + (r >> 1); m = T3 if r % 2 == 0 else T4
        if n >= 3: e("v_and_b32_dpp v%d, v%d, v%d %s %s" % (dst + r, src, m, R8, DPP))
        else: e("v_and_b32 v%d, v%d, v%d" % (dst + r, src, m))
    for r in range(4): sfrag(vA0, 0, r)
    for n in range(6):
        A = vA0 if n % 2 == 0 else vA1
        An = vA1 if n % 2 == 0 else vA0
        if n == 0: e("s_nop 1")
        for seg in range(5):
            e("v_smfmac_f32_16x16x64_bf16 %s, %s, %s, v%d" % (vr(vY + 4 * seg), vr(A), ar(8 * (5 * n + seg), 8), T5))
            if n < 5 and seg < 2:
                for r in (2 * seg, 2 * seg + 1): sfrag(An, n + 1, r)
    stamp('mf')
    e("s_mov_b32 exec_hi, 0")
    e("s_nop 3")
    for seg in range(5): e("ds_write_b128 v%d, %s offset:%d" % (T1, vr(vY + 4 * seg), L_YP + seg * 512))
    e("s_mov_b64 exec, -1")
    e("s_waitcnt lgkmcnt(0)")
    e("s_barrier")
    lab = e.newlab("noy")
    e("s_cmp_ge_u32 s%d, 3" % sW); e("s_cbranch_scc1 %s" % lab)
    for pp in range(4): e("ds_read_b128 %s, v%d offset:%d" % (vr(18 + 4 * pp), T2, L_YP + pp * 2560))
    e("s_waitcnt lgkmcnt(2)")
    for r in range(4): e("v_add_f32 v%d, v%d, v%d" % (18 + r, 18 + r, 22 + r))
    e("s_waitcnt lgkmcnt(0)")
    for r in range(4): e("v_add_f32 v%d, v%d, v%d" % (26 + r, 26 + r, 30 + r))
    for r in range(4): e("v_add_f32 v%d, v%d, v%d" % (52 + r, 18 + r, 26 + r))
    for r in range(4): tagit(52 + r, 52 + r)
    e.vmem("buffer_store_dwordx4 v[52:55], v%d, %s, 0 offen %s" % (vPY, sr(sWS), yf), counted=False)
    e.label(lab)
    stamp('pub')
    if nopoll: e("s_branch L_fin")
    e("s_cmp_eq_u32 s2, 1"); e("s_cbranch_scc1 L_epoch")
    e("s_and_b32 s%d, s2, 1" % sT0); e("s_cmp_lg_u32 s%d, 0" % sT0); e("s_cbranch_scc1 L_fin")
    e("s_cmp_ge_u32 s2, 80"); e("s_cbranch_scc1 L_fin")
    e("s_lshr_b32 s%d, s2, 1" % sCI)
    e("s_cmp_ge_u32 s%d, 20" % sCI); e("s_cselect_b32 s%d, 1, 0" % sB)
    e("s_mul_i32 s%d, s%d, 20" % (sT0, sB)); e("s_sub_u32 s%d, s%d, s%d" % (sH, sCI, sT0))
    e("v_lshlrev_b32 v10, 4, v%d" % vL)
    e("s_lshl_b32 s%d, s%d, 14" % (sT0, sCI)); e("s_lshl_b32 s%d, s%d, 12" % (sT1, sW))
    e("s_add_u32 s%d, s%d, s%d" % (sT0, sT0, sT1)); e("s_add_u32 s%d, s%d, %d" % (sT0, sT0, WS_Y))
    e("v_add_u32 v11, s%d, v10" % sT0)
    e("s_lshr_b32 s%d, s%d, 2" % (sT0, sH)); e("s_lshl_b32 s%d, s%d, 1" % (sT0, sT0)); e("s_add_u32 s%d, s%d, s%d" % (sT0, sT0, sB))
    e("s_lshl_b32 s%d, s%d, 2" % (sT0, sT0)); e("s_and_b32 s%d, s%d, 3" % (sT1, sH)); e("s_add_u32 s%d, s%d, s%d" % (sT0, sT0, sT1))
    e("s_mul_i32 s%d, s%d, 3072" % (sT0, sT0)); e("s_mul_i32 s%d, s%d, 768" % (sT1, sW))
    e("s_add_u32 s%d, s%d, s%d" % (sT0, sT0, sT1)); e("s_add_u32 s%d, s%d, %d" % (sT0, sT0, WS_P2))
    e("v_min_u32 v12, 752, v10"); e("v_add_u32 v12, s%d, v12" % sT0)
    e("v_lshrrev_b32 v13, 3, v%d" % vL); e("v_lshlrev_b32 v13, 4, v13")
    e("s_lshl_b32 s%d, s%d, 11" % (sT0, sB)); e("s_lshl_b32 s%d, s%d, 9" % (sT1, sW))
    e("s_add_u32 s%d, s%d, s%d" % (sT0, sT0, sT1)); e("s_add_u32 s%d, s%d, %d" % (sT0, sT0, WS_ML))
    e("v_add_u32 v13, s%d, v13" % sT0)
    e("v_and_b32 v14, 31, v%d" % vL); e("v_lshlrev_b32 v14, 1, v14")
    e("s_lshl_b32 s%d, s%d, 6" % (sT0, sCI)); e("v_add_u32 v14, s%d, v14" % sT0)
    ML0, Y0, F0 = 16, 32, 48
    mlds = [(ML0 + 4 * i, "buffer_load_dwordx4 %s, v13, %s, 0 offen offset:%d sc1" % (vr(ML0 + 4 * i), sr(sWS), 128 * i)) for i in range(4)]
    ylds = [(Y0 + 4 * i, "buffer_load_dwordx4 %s, v11, %s, 0 offen offset:%d sc1" % (vr(Y0 + 4 * i), sr(sWS), 1024 * i)) for i in range(4)]
    ylds.append((F0, "buffer_load_dwordx4 %s, v12, %s, 0 offen sc1" % (vr(F0), sr(sWS))))
    for _, t in mlds: e(t)
    e("buffer_load_ushort v15, v14, %s, 0 offen" % sr(sX))
    for _, t in ylds: e(t)
    e("v_and_b32 v60, 7, v%d" % vL); e("v_lshlrev_b32 v60, 4, v60")
    e("v_and_b32 v61, 8, v%d" % vL); e("v_add_u32 v60, v60, v61")
    e("v_cmp_ne_u32 %s, 0, v61" % sr(sVAL, 2))
    e("v_bfe_u32 v61, v%d, 4, 1" % vL); e("v_lshl_add_u32 v60, v61, 2, v60")
    e("v_lshrrev_b32 v61, 5, v%d" % vL); e("v_lshl_add_u32 v60, v61, 7, v60")
    e("s_lshl_b32 s%d, s%d, 8" % (sT0, sW)); e("v_add_u32 v60, s%d, v60" % sT0)
    e("v_lshlrev_b32 v61, 2, v%d" % vL)
    e("s_waitcnt vmcnt(0)")
    mpoll("ml", mlds, 56, 57, mlsleep)
    stamp('mlok')
    def sib_reduce(op):
        for i in range(4): e("%s_dpp v%d, v%d, v%d %s %s" % (op, 56 + i, 56 + i, 56 + i, R8, DPP))
        for i in range(4): e("v_mov_b32 v%d, v%d" % (64 + i, 56 + i))
        e("s_nop 0")
        for i in range(4): e("v_permlane16_swap_b32 v%d, v%d" % (56 + i, 64 + i))
        e("s_nop 0")
        for i in range(4): e("%s v%d, v%d, v%d" % (op, 56 + i, 56 + i, 64 + i))
    W0 = 68
    for i in range(4): e("v_and_b32 v%d, 0xffffff00, v%d" % (W0 + i, ML0 + 4 * i))
    for i in range(4): e("v_mov_b32 v%d, v%d" % (56 + i, W0 + i))
    sib_reduce("v_max_f32")
    for i in range(4): e("v_sub_f32 v%d, v%d, v%d" % (W0 + i, W0 + i, 56 + i))
    for i in range(4): e("v_mul_f32 v%d, %s, v%d" % (W0 + i, l2e, W0 + i))
    for i in range(4): e("v_exp_f32 v%d, v%d" % (W0 + i, W0 + i))
    for i in range(4): untag(64 + i, ML0 + 4 * i + 1)
    for i in range(4): e("v_mul_f32 v%d, v%d, v%d" % (W0 + i, W0 + i, 64 + i))
    for i in range(4): e("v_mov_b32 v%d, v%d" % (56 + i, W0 + i))
    sib_reduce("v_add_f32")
    for i in range(4): e("v_rcp_f32 v%d, v%d" % (56 + i, 56 + i))
    for i in range(4): e("v_mul_f32 v%d, v%d, v%d" % (W0 + i, W0 + i, 56 + i))
    mpoll("y", ylds, 56, 57, ysleep)
    stamp('yok')
    R0, G0 = 80, 84
    for r in range(4): untag(R0 + r, Y0 + r)
    for r in range(4): untag(G0 + r, F0 + r)
    for r in range(4): e("v_mul_f32 v%d, v%d, v%d" % (R0 + r, R0 + r, W0))
    for i in range(1, 4):
        for r in range(4): untag(56 + r, Y0 + 4 * i + r)
        for r in range(4): e("v_fmac_f32 v%d, v%d, v%d" % (R0 + r, 56 + r, W0 + i))
    e("s_mov_b32 exec_lo, 0"); e("s_mov_b32 exec_hi, 0xffff0000")
    for r in range(4): e("v_mov_b32 v%d, 0" % (G0 + r))
    e("s_mov_b64 exec, -1")
    e("s_nop 0")
    for r in range(4): e("v_permlane32_swap_b32 v%d, v%d" % (R0 + r, G0 + r))
    e("s_nop 0")
    for r in range(4): e("v_add_f32 v%d, v%d, v%d" % (R0 + r, R0 + r, G0 + r))
    e("s_nop 0")
    e("v_permlane16_swap_b32 v%d, v%d" % (R0, R0 + 1)); e("s_nop 0"); e("v_permlane16_swap_b32 v%d, v%d" % (R0 + 2, R0 + 3)); e("s_nop 0")
    e("v_add_f32 v%d, v%d, v%d" % (R0, R0, R0 + 1)); e("v_add_f32 v%d, v%d, v%d" % (R0 + 2, R0 + 2, R0 + 3)); e("s_nop 0")
    e("v_add_f32_dpp v%d, v%d, v%d %s %s" % (R0, R0, R0, R8, DPP)); e("v_add_f32_dpp v%d, v%d, v%d %s %s" % (R0 + 2, R0 + 2, R0 + 2, R8, DPP))
    e("s_nop 0")
    e("v_cndmask_b32 v%d, v%d, v%d, %s" % (R0, R0, R0 + 2, sr(sVAL, 2)))
    e("ds_write_b32 v60, v%d offset:%d" % (R0, L_CO))
    e("s_waitcnt lgkmcnt(0)")
    e("s_barrier")
    stamp('b5')
    e("s_cmp_lg_u32 s%d, 0" % sW); e("s_cbranch_scc1 L_fin")
    assert L_CO % 256 == 0
    for k in range(2): e("ds_read2st64_b32 v[%d:%d], v61 offset0:%d offset1:%d" % (72 + 2 * k, 73 + 2 * k, L_CO // 256 + 2 * k, L_CO // 256 + 2 * k + 1))
    e("v_lshlrev_b32 v15, 16, v15")
    e("s_waitcnt lgkmcnt(0)")
    e("v_add_f32 v72, v72, v73"); e("v_add_f32 v74, v74, v75"); e("v_add_f32 v72, v72, v74")
    e("v_cvt_pk_bf16_f32 v72, v72, v72"); e("v_and_b32 v72, 0xffff0000, v72")
    e("v_mul_f32 v73, %s, v72" % hx(f2u(-LOG2E)))
    e("v_exp_f32 v73, v73"); e("s_nop 0")
    e("v_add_f32 v73, 1.0, v73")
    e("v_rcp_f32 v73, v73"); e("s_nop 0")
    e("v_mul_f32 v73, v72, v73")
    e("v_cvt_pk_bf16_f32 v73, v73, v73"); e("v_and_b32 v73, 0xffff0000, v73")
    e("v_mov_b32 v74, v73"); e("s_nop 1")
    e("v_permlane32_swap_b32 v73, v74"); e("s_nop 1")
    e("v_mul_f32 v72, v72, v74")
    e("v_cvt_pk_bf16_f32 v72, v72, v72"); e("v_and_b32 v72, 0xffff0000, v72")
    e("v_add_f32 v72, v72, v15")
    e("v_cvt_pk_bf16_f32 v72, v72, v72")
    e("s_mov_b32 exec_hi, 0")
    e("buffer_store_short v72, v14, %s, 0 offen" % sr(sOUT))
    e("s_mov_b64 exec, -1")
    e("s_branch L_fin")
    e.label("L_epoch")
    e("s_cmp_lg_u32 s%d, 0" % sW); e("s_cbranch_scc1 L_fin")
    e("v_lshlrev_b32 v13, 4, v%d" % vL); e("v_add_u32 v13, %d, v13" % WS_ML)
    def ld_all():
        for i in range(4): e("buffer_load_dwordx4 %s, v13, %s, 0 offen offset:%d sc1" % (vr(16 + 4 * i), sr(sWS), 1024 * i))
    ld_all()
    e("s_waitcnt vmcnt(0)")
    poll("ep", [16 + 4 * k for k in range(4)], 56, 57, ld_all, sleep=epsleep)
    e("v_mov_b32 v16, s%d" % sTAG)
    e("s_mov_b32 s%d, %d" % (sT0, WS_EP))
    e("s_mov_b64 exec, 1")
    e("buffer_store_dword v16, off, %s, s%d" % (sr(sWS), sT0))
    e("s_mov_b64 exec, -1")
    e.label("L_fin")
    if calib:
        e.label("L_cal")
        e("s_memrealtime s[98:99]"); e("s_waitcnt lgkmcnt(0)")
        e("s_sub_u32 s98, s98, s%d" % sST); e("s_cmp_lt_u32 s98, %d" % calib); e("s_cbranch_scc1 L_cal")
    if trace:
        trace_pt('fin')
        e("v_writelane_b32 v89, s%d, 63" % sST)
        e("s_add_u32 s92, s26, %d" % STAMP_OFF); e("s_addc_u32 s93, s27, 0"); e("s_mov_b32 s94, 0x100000"); e("s_mov_b32 s95, 0x20000")
        e("s_lshl_b32 s%d, s2, 2" % sT0); e("s_add_u32 s%d, s%d, s%d" % (sT0, sT0, sW)); e("s_lshl_b32 s%d, s%d, 9" % (sT0, sT0))
        e("v_lshlrev_b32 v10, 2, v%d" % vL); e("v_add_u32 v10, s%d, v10" % sT0)
        e("buffer_store_dword v88, v10, s[92:95], 0 offen")
        e("buffer_store_dword v89, v10, s[92:95], 0 offen offset:256")
        open("trace_names.txt", "w").write(" ".join(trnames))
    if stamps:
        stamp('fin')
        n = nst[0]
        e("s_add_u32 s92, s26, %d" % STAMP_OFF); e("s_addc_u32 s93, s27, 0"); e("s_mov_b32 s94, 0x100000"); e("s_mov_b32 s95, 0x20000")
        if allw:
            e("s_lshl_b32 s%d, s2, 2" % sT0); e("s_add_u32 s%d, s%d, s%d" % (sT0, sT0, sW)); e("s_mul_i32 s%d, s%d, %d" % (sT0, sT0, 8 * n))
        else:
            e("s_cmp_lg_u32 s%d, 0" % sW); e("s_cbranch_scc1 L_end")
            e("s_mul_i32 s%d, s2, %d" % (sT0, 8 * n))
        e("v_mov_b32 v10, s%d" % sT0); e("v_mov_b32 v13, 0")
        e("s_mov_b64 exec, 1")
        for k in range(n):
            e("v_mov_b32 v12, s%d" % (sST + k))
            e("buffer_store_dwordx2 v[12:13], v10, s[92:95], 0 offen offset:%d" % (8 * k))
            e("s_nop 1")
    e.label("L_end")
    e("s_endpgm")
    e.raw('.section .rodata,"a"'); e.raw(".p2align 6"); e.raw(".amdhsa_kernel %s_kernel" % NAME)
    for s in (".amdhsa_next_free_vgpr 512", ".amdhsa_next_free_sgpr 102", ".amdhsa_accum_offset 256",
              ".amdhsa_group_segment_fixed_size 0", ".amdhsa_kernarg_size 96", ".amdhsa_user_sgpr_count 2",
              ".amdhsa_user_sgpr_kernarg_segment_ptr 1", ".amdhsa_system_sgpr_workgroup_id_x 1"):
        e(s)
    e.raw(".end_amdhsa_kernel")
    return "\n".join(e.L) + "\n", nst[0]

if __name__ == "__main__":
    import argparse
    ap = argparse.ArgumentParser()
    ap.add_argument("out"); ap.add_argument("--stamps", action="store_true")
    ap.add_argument("--opt", default="")
    a = ap.parse_args()
    kw = eval("dict(%s)" % a.opt)
    s, n = gen(stamps=a.stamps, **kw)
    hdr = open("cdna_kernels/%s.s.ref" % NAME).read().split("; Override launch")[0]
    open(a.out, "w").write(hdr + s)
    print("wrote", a.out, "stamps", n)
```

```python
import struct, sys
NAME = "recurrent_scan__gqa_block_cached__geglu_ffn__decode"

def f2u(x): return struct.unpack("<I", struct.pack("<f", x))[0]
def hx(x): return "0x%08x" % (x & 0xffffffff)
LOG2E = 1.4426950408889634

WS_Q1 = 0
WS_P1 = 0x30000
P1_LO = 5 * 24576
WS_P2 = 0x6C000
WS_Y  = 0x8A000
WS_ML = 0x12A000
WS_EP = 0x132000
WS_SIZE = 0x133000
STAMP_OFF = 300 << 20
OOB = 0x7ffffff0

L_XN = 0
L_Q1 = 5120
PS2 = 528
L_QC = 9472
L_QB = 24064
L_F1 = 24576
L_F2 = 32768
L_ML = 36864
L_CNT = 36928
L_OP = 37120
PSTR = 784
L_YP = 43520
L_CO = 53760
L_CF = 54272
L_END = 54784

class Em:
    def __init__(self):
        self.L = []; self.vm = []; self.lab = 0
    def __call__(self, s): self.L.append("  " + s)
    def raw(self, s): self.L.append(s)
    def label(self, n): self.L.append(n + ":")
    def newlab(self, p):
        self.lab += 1; return "L_%s_%d" % (p, self.lab)
    def vmem(self, s, tag=None, counted=True):
        self.L.append("  " + s)
        if counted: self.vm.append(tag)
    def behind(self, tag):
        idx = max(i for i, t in enumerate(self.vm) if t == tag)
        return len(self.vm) - 1 - idx
    def wait_vm(self, tag):
        self("s_waitcnt vmcnt(%d)" % min(self.behind(tag), 63))

def vr(a, n=4): return "v[%d:%d]" % (a, a + n - 1)
def ar(a, n=4): return "a[%d:%d]" % (a, a + n - 1)
def sr(a, n=4): return "s[%d:%d]" % (a, a + n - 1)
DPP = "row_mask:0xf bank_mask:0xf"
X1, X2, HM, RM, R8 = "quad_perm:[1,0,3,2]", "quad_perm:[2,3,0,1]", "row_half_mirror", "row_mirror", "row_ror:8"

def gen(stamps=False, kvf="nt", wf="", qf="", ff="", RING=14, NE=5, st2_g=8, p1_g=0, ml_g=31, allw=False,
        sel=('b1', 'b2', 'vend', 'pub', 'fin'), ostep=2, ostart=0, k_pre=3, k_mid=3, qc_after=14, win=0, tmo=0x10000,
        trace=False, xspec=True, mlsleep=2, epsleep=8, nopoll=False, nocheck=False, stf='sc1', yf='sc1', cpf=0, calib=0, ysleep=0, pdepth=6, p1lo=False, ph=(1, 4, 8, 0), vrot=0, cf_g=12, cf2_g=25, of='', elect=False, tk_g=27, early0=0, adapt=0, farsleep=16, yinA=True, wait0=None, mlfull=True, lightc=True, diag=0, plf='sc1'):
    e = Em()
    vL, vKV, vWQ, vWO, vPY = 1, 2, 3, 4, 5
    vM = 6; vA0 = 10; vA1 = 14; vACC = 18; vQF = 30; vS = 42
    vMW, vLW, vTAG = 74, 75, 76
    vQA, vFA, vP1O, vF1 = 78, 79, 80, 81
    T0, T1, T2, T3, T4, T5 = 82, 83, 84, 85, 86, 87
    RB = 256 - 12 * RING
    assert RB >= 88
    def rslot(i, t): return RB + 12 * i + 4 * t
    AVE = 240 - 12 * NE
    sK, sV, sRE, sWO, sX, sRO, sWD, sWS, sOUT, sWSF = 28, 32, 36, 40, 44, 48, 56, 60, 64, 92
    sS1, sS2, sKH, sNT = 52, 53, 54, 55
    sCONS = 52
    sTAG, sU, sACT, sFACT = 68, 69, 70, 71
    sW, sB, sH, sP, sFS, sKR, sC5, sRB, sSO, sT0, sT1, sT2 = 72, 73, 74, 75, 76, 77, 78, 79, 80, 81, 82, 83
    sEX = 84; sVAL = 86; sCNT = 88; sCI = 89; sFF = 90; sWQO = 91; sSEL = 14; sROT = 15; sMK = 28
    sST = 96
    nst = [0]
    def stamp(name):
        if trace: trace_pt(name); return
        if not stamps or name not in sel: return
        e("s_memrealtime s[%d:%d]" % (sEX, sEX + 1))
        e("s_waitcnt lgkmcnt(0)")
        e("s_mov_b32 s%d, s%d" % (sST + nst[0], sEX))
        nst[0] += 1
    tr = [0]; trnames = []
    def trace_pt(name):
        if not trace: return
        k = tr[0]; tr[0] += 1; trnames.append(name)
        e("s_memrealtime s[%d:%d]" % (sST + 2, sST + 3))
        e("s_waitcnt lgkmcnt(0)")
        e("v_writelane_b32 v%d, s%d, %d" % (88 + k // 64, sST + 2, k % 64))
    def mfma(d, a, b, c): e("v_mfma_f32_16x16x32_bf16 %s, %s, %s, %s" % (d, a, b, c))
    def afrag(dst, src):
        for r in range(4): e("v_and_b32 v%d, v%d, v%d" % (dst + r, src, vM + r))
    def tagit(dst, src):
        e("v_add_u32 v%d, 0x80, v%d" % (dst, src))
        e("v_bfi_b32 v%d, s%d, v%d, v%d" % (dst, sFF, vTAG, dst))
    def untag(dst, src): e("v_and_b32 v%d, 0xffffff00, v%d" % (dst, src))
    def piece_bad(p, t0, t1, dst):
        e("v_perm_b32 v%d, v%d, v%d, s%d" % (t0, p + 1, p, sSEL))
        e("v_perm_b32 v%d, v%d, v%d, s%d" % (t1, p + 3, p + 2, sSEL))
        e("v_lshl_or_b32 v%d, v%d, 16, v%d" % (t0, t1, t0))
        e("v_cmp_ne_u32 %s, v%d, v%d" % (dst, t0, vTAG + 1))
    def poll(name, pieces, t0, t1, reload, sleep=4):
        if nocheck: return
        lab = e.newlab(name + "ok"); lp = e.newlab(name + "loop")
        e("s_mov_b32 s%d, %d" % (sCNT, tmo))
        e.label(lp)
        for k, p in enumerate(pieces):
            piece_bad(p, t0, t1, "vcc" if k == 0 else sr(sEX, 2))
            if k: e("s_or_b64 vcc, vcc, %s" % sr(sEX, 2))
        e("s_nop 1")
        e("s_cbranch_vccz %s" % lab)
        e("s_sub_u32 s%d, s%d, 1" % (sCNT, sCNT)); e("s_cbranch_scc1 %s" % lab)
        if sleep: e("s_sleep %d" % sleep)
        reload()
        e("s_waitcnt vmcnt(0)")
        e("s_branch %s" % lp)
        e.label(lab)
    def mpoll(name, loads, t0, t1, sleep):
        lab = e.newlab(name + "ok"); lp = e.newlab(name + "loop")
        e("s_mov_b32 s%d, %d" % (sCNT, 16 * tmo))
        e.label(lp)
        for k, (p, _) in enumerate(loads): piece_bad(p, t0, t1, sr(sMK + 2 * k, 2))
        e("s_nop 0")
        e("s_or_b64 vcc, %s, %s" % (sr(sMK, 2), sr(sMK + 2, 2)))
        for k in range(2, len(loads)): e("s_or_b64 vcc, vcc, %s" % sr(sMK + 2 * k, 2))
        e("s_cbranch_scc0 %s" % lab)
        e("s_sub_u32 s%d, s%d, 1" % (sCNT, sCNT)); e("s_cbranch_scc1 %s" % lab)
        for k, (p, txt) in enumerate(loads):
            sk = e.newlab(name + "sk")
            e("s_mov_b64 exec, %s" % sr(sMK + 2 * k, 2))
            e("s_cbranch_execz %s" % sk)
            e(txt)
            e.label(sk)
        e("s_mov_b64 exec, -1")
        e("s_waitcnt vmcnt(%d)" % pdepth)
        if adapt:
            e("s_bcnt1_i32_b64 s%d, %s" % (sT0, sr(sMK, 2)))
            for k in range(1, len(loads)):
                e("s_bcnt1_i32_b64 s%d, %s" % (sT1, sr(sMK + 2 * k, 2))); e("s_add_u32 s%d, s%d, s%d" % (sT0, sT0, sT1))
            near = e.newlab("near")
            e("s_cmp_le_u32 s%d, %d" % (sT0, 8 * adapt)); e("s_cbranch_scc1 %s" % near)
            e("s_sleep %d" % farsleep)
            e.label(near)
        if sleep: e("s_sleep %d" % sleep)
        e("s_branch %s" % lp)
        e.label(lab)

    e.raw("; @launch grid=(256,1,1) block=(256,1,1) lds=%d" % L_END)
    e.raw('.amdgcn_target "amdgcn-amd-amdhsa--gfx950"')
    e.raw(".text"); e.raw(".globl %s_kernel" % NAME); e.raw(".p2align 8"); e.raw(".type %s_kernel,@function" % NAME)
    e.label("%s_kernel" % NAME)
    e("s_cmp_ge_u32 s2, 256"); e("s_cbranch_scc1 L_end")
    e("s_load_dwordx16 s[4:19], s[0:1], 0")
    e("s_load_dwordx8 s[20:27], s[0:1], 64")
    if stamps or trace or calib:
        e("s_memrealtime s[%d:%d]" % (sST, sST + 1)); nst[0] = 1
        for k in range(2, 6): e("s_mov_b32 s%d, 0" % (sST + k))
    e("v_and_b32 v%d, 63, v0" % vL)
    e("v_lshrrev_b32 v%d, 6, v0" % T0)
    e("v_lshrrev_b32 v%d, 3, v%d" % (T1, vL))
    e("v_and_b32 v%d, 7, v%d" % (T2, vL))
    e("v_readfirstlane_b32 s%d, v%d" % (sW, T0))
    e("v_mul_u32_u24 v%d, 384, v%d" % (vKV, T1))
    e("v_lshl_add_u32 v%d, v%d, 4, v%d" % (vKV, T2, vKV))
    e("v_mul_u32_u24 v%d, 3072, v%d" % (T3, T0))
    e("v_add_u32 v%d, v%d, v%d" % (vKV, vKV, T3))
    e("v_lshl_add_u32 v%d, v%d, 3, v%d" % (vWQ, T0, T1))
    e("v_mul_u32_u24 v%d, 12288, v%d" % (vWQ, vWQ))
    e("v_lshl_add_u32 v%d, v%d, 4, v%d" % (vWQ, T2, vWQ))
    e("v_lshrrev_b32 v%d, 5, v%d" % (T3, vL))
    e("v_mul_u32_u24 v%d, 1280, v%d" % (T3, T3))
    e("v_and_b32 v%d, 31, v%d" % (T5, vL))
    e("v_lshl_add_u32 v%d, v%d, 4, v%d" % (T4, T5, T3))
    e("v_lshl_add_u32 v%d, v%d, 3, v%d" % (T5, T5, T3))
    e("v_lshrrev_b32 v%d, 4, v%d" % (T3, vL))
    e("v_lshl_add_u32 v%d, v%d, 2, v%d" % (vF1, T0, T3))
    e("v_mul_u32_u24 v%d, 3072, v%d" % (vF1, vF1))
    e("v_and_b32 v%d, 15, v%d" % (T1, vL))
    e("v_lshl_add_u32 v%d, v%d, 4, v%d" % (vF1, T1, vF1))
    e("s_and_b32 s%d, s2, 7" % sT0)
    e("s_lshr_b32 s%d, s2, 3" % sT1)
    e("s_lshr_b32 s%d, s%d, 3" % (sT2, sT1))
    e("s_lshl_b32 s%d, s%d, 2" % (sH, sT0))
    e("s_add_u32 s%d, s%d, s%d" % (sH, sH, sT2))
    e("s_and_b32 s%d, s%d, 7" % (sU, sT1))
    e("s_lshr_b32 s%d, s%d, 2" % (sB, sU))
    e("s_and_b32 s%d, s%d, 3" % (sT1, sT1))
    e("s_lshl_b32 s%d, s%d, 2" % (sP, sH))
    e("s_add_u32 s%d, s%d, s%d" % (sP, sP, sT1))
    e("s_lshl_b32 s%d, s%d, 7" % (sT0, sB))
    e("s_add_u32 s%d, s%d, s%d" % (sT0, sT0, sP))
    e("s_mul_i32 s%d, s%d, 393216" % (sT0, sT0))
    e("s_mov_b32 s%d, 393216" % (sK + 2)); e("s_mov_b32 s%d, 0x20000" % (sK + 3))
    e("s_mov_b32 s%d, 2560" % (sX + 2)); e("s_mov_b32 s%d, 0x20000" % (sX + 3))
    e("s_cmp_ge_u32 s%d, 3" % sU); e("s_cselect_b32 s%d, 1, 0" % sKH)
    e("s_mul_i32 s%d, s%d, 3" % (sT1, sKH)); e("s_sub_u32 s%d, s%d, s%d" % (sNT, sU, sT1))
    e("s_mul_i32 s%d, s%d, %d" % (sCI, sKH, 320 * 12288))
    e("s_mul_i32 s%d, s%d, 384" % (sT1, sH)); e("s_add_u32 s%d, s%d, s%d" % (sCI, sCI, sT1))
    e("s_lshl_b32 s%d, s%d, 7" % (sT1, sNT)); e("s_add_u32 s%d, s%d, s%d" % (sCI, sCI, sT1))
    e("s_lshl_b32 s%d, s%d, 1" % (sT1, sH)); e("s_add_u32 s%d, s%d, s%d" % (sT1, sT1, sU)); e("s_sub_u32 s%d, s%d, 6" % (sT1, sT1))
    e("s_and_b32 s%d, s%d, 63" % (sT1, sT1))
    e("s_mul_i32 s%d, s%d, 43" % (sKR, sT1)); e("s_lshr_b32 s%d, s%d, 9" % (sKR, sKR))
    e("s_mul_i32 s%d, s%d, 12" % (sT2, sKR)); e("s_sub_u32 s%d, s%d, s%d" % (sFS, sT1, sT2))
    e("s_cmp_lt_u32 s%d, 60" % sT1); e("s_cselect_b32 s%d, %d, 0" % (sFACT, 127 * 3072 + 256))
    e("s_min_u32 s%d, s%d, 4" % (sKR, sKR))
    e("s_mul_i32 s%d, s%d, %d" % (sCNT, sKR, 128 * 3072))
    e("s_lshl_b32 s%d, s%d, 8" % (sT2, sFS)); e("s_add_u32 s%d, s%d, s%d" % (sCNT, sCNT, sT2))
    e("s_mov_b32 s%d, 0x20000" % (sRE + 3)); e("s_mov_b32 s%d, 0x20000" % (sRO + 3))
    e("s_mov_b32 s%d, 786432" % sS2)
    e("s_cmp_ge_u32 s%d, 6" % sU)
    e("s_cselect_b32 s%d, s%d, %d" % (sRE + 2, sFACT, 319 * 12288 + 128))
    e("s_cselect_b32 s%d, s%d, %d" % (sRO + 2, sFACT, 319 * 12288 + 128))
    e("s_cselect_b32 s%d, 0, 393216" % sS1)
    e("s_cselect_b32 s%d, 49152, s%d" % (sS2, sS2))
    e("s_cselect_b32 s%d, s%d, s%d" % (sCI, sCNT, sCI))
    e("s_cselect_b64 vcc, -1, 0")
    e("s_waitcnt lgkmcnt(0)")
    e("s_cselect_b32 s%d, s16, s10" % sRE); e("s_cselect_b32 s%d, s17, s11" % (sRE + 1))
    e("s_cselect_b32 s%d, s18, s10" % sRO); e("s_cselect_b32 s%d, s19, s11" % (sRO + 1))
    e("s_mov_b32 s%d, s4" % sX); e("s_mov_b32 s%d, s5" % (sX + 1))
    e("v_cndmask_b32 v%d, v%d, v%d, vcc" % (vWQ, vWQ, vF1))
    e.vmem("buffer_load_dwordx4 %s, v%d, %s, 0 offen" % (vr(18), T4, sr(sX)), "x")
    e.vmem("buffer_load_dwordx4 %s, v%d, %s, 0 offen offset:512" % (vr(22), T4, sr(sX)), "x")
    e.vmem("buffer_load_dwordx2 %s, v%d, %s, 0 offen offset:1024" % (vr(26, 2), T5, sr(sX)), "x")
    e("s_add_u32 s%d, s%d, s%d" % (sRE, sRE, sCI)); e("s_addc_u32 s%d, s%d, 0" % (sRE + 1, sRE + 1))
    e("s_add_u32 s%d, s%d, s%d" % (sRO, sRO, sCI)); e("s_addc_u32 s%d, s%d, 0" % (sRO + 1, sRO + 1))
    e("s_add_u32 s%d, s6, s%d" % (sK, sT0)); e("s_addc_u32 s%d, s7, 0" % (sK + 1))
    e("s_add_u32 s%d, s8, s%d" % (sV, sT0)); e("s_addc_u32 s%d, s9, 0" % (sV + 1))

    ring = {}
    curwin = [0]
    def throttle(n=3):
        if curwin[0] and len(e.vm) + n > curwin[0]: e("s_waitcnt vmcnt(%d)" % (curwin[0] - n))
    def issue_kv(kind, g, rs):
        throttle()
        ring[(kind, g)] = rs
        srd = sK if kind == "K" else sV
        if ph:
            e("s_add_u32 s%d, s%d, %d" % (sSO, sROT, g)); e("s_and_b32 s%d, s%d, 31" % (sSO, sSO))
            e("s_mul_i32 s%d, s%d, 12288" % (sSO, sSO)); so = "s%d" % sSO
        elif g == 0: so = "0"
        else:
            e("s_mov_b32 s%d, %d" % (sSO, g * 12288)); so = "s%d" % sSO
        for t in range(3):
            e.vmem("buffer_load_dwordx4 %s, v%d, %s, %s offen offset:%d %s" % (reg_of(rs, t), vKV, sr(srd), so, t * 128, kvf), "%s%d" % (kind, g))
    def reg_of(rs, t):
        return ar(rs[1] + 4 * t) if isinstance(rs, tuple) else vr(rslot(rs, t))
    def issue_wo(n):
        throttle()
        last = None
        for t in range(3):
            z = 3 * n + t; i, seg = 2 * (z // 10) + (z & 1), (z % 10) >> 1
            if i == 0: so = "0"
            else:
                if last != i: e("s_mov_b32 s%d, %d" % (sSO, i * 5120))
                so = "s%d" % sSO
                last = i
            e.vmem("buffer_load_dwordx4 %s, v%d, %s, %s offen offset:%d %s" % (ar(4 * z), vWO, sr(sWO), so, seg * 256, wf), "O%d" % n)
    e("s_mov_b32 s%d, 0" % sCNT)
    for m in range(8):
        e.vmem("buffer_load_dwordx4 %s, v%d, %s, s%d offen %s" % (ar(8 * m), vWQ, sr(sRE), sCNT, qf), "R")
        e("s_add_u32 s%d, s%d, s%d" % (sSO, sCNT, sS1))
        e.vmem("buffer_load_dwordx4 %s, v%d, %s, s%d offen %s" % (ar(8 * m + 4), vWQ, sr(sRO), sSO, qf), "R")
        if m < 7: e("s_add_u32 s%d, s%d, s%d" % (sCNT, sCNT, sS2))
    if cpf:
        e("s_getpc_b64 s[6:7]")
        e.label("L_pc")
        e("s_sub_u32 s6, s6, L_pc-%s_kernel" % NAME); e("s_subb_u32 s7, s7, 0")
        e("s_lshr_b32 s8, s2, 3"); e("s_lshl_b32 s8, s8, 2"); e("s_add_u32 s8, s8, s%d" % sW)
        e("s_mul_i32 s8, s8, %d" % (64 * cpf)); e("s_min_u32 s8, s8, L_end-%s_kernel-%d" % (NAME, 64 * cpf))
        e("s_add_u32 s6, s6, s8"); e("s_addc_u32 s7, s7, 0")
        for k in range(cpf): e("s_load_dword s8, s[6:7], %d" % (64 * k))
    e("s_add_u32 s%d, s26, %d" % (sEX, WS_EP)); e("s_addc_u32 s%d, s27, 0" % (sEX + 1))
    e("s_load_dword s%d, s[%d:%d], 0" % (sTAG, sEX, sEX + 1))
    if ph:
        aj, ab, ah, ax = ph
        e("s_bfe_u32 s%d, s2, 0x20003" % sT0); e("s_mul_i32 s%d, s%d, %d" % (sROT, sT0, aj))
        e("s_mul_i32 s%d, s%d, %d" % (sT0, sB, ab)); e("s_add_u32 s%d, s%d, s%d" % (sROT, sROT, sT0))
        e("s_lshr_b32 s%d, s2, 6" % sT0); e("s_mul_i32 s%d, s%d, %d" % (sT0, sT0, ah)); e("s_add_u32 s%d, s%d, s%d" % (sROT, sROT, sT0))
        e("s_and_b32 s%d, s2, 7" % sT0); e("s_mul_i32 s%d, s%d, %d" % (sT0, sT0, ax)); e("s_add_u32 s%d, s%d, s%d" % (sROT, sROT, sT0))
    e("s_mov_b32 s%d, 393216" % (sV + 2)); e("s_mov_b32 s%d, 0x20000" % (sV + 3))
    e("s_mul_i32 s%d, s%d, 245760" % (sT0, sH))
    e("s_add_u32 s%d, s12, s%d" % (sWO, sT0)); e("s_addc_u32 s%d, s13, 0" % (sWO + 1))
    e("s_mov_b32 s%d, 245760" % (sWO + 2)); e("s_mov_b32 s%d, 0x20000" % (sWO + 3))
    e("s_mov_b32 s%d, s26" % sWS); e("s_mov_b32 s%d, s27" % (sWS + 1))
    e("s_mov_b32 s%d, %d" % (sWS + 2, WS_SIZE)); e("s_mov_b32 s%d, 0x20000" % (sWS + 3))
    e("s_mov_b32 s%d, s22" % sOUT); e("s_mov_b32 s%d, s23" % (sOUT + 1))
    e("s_mov_b32 s%d, 2560" % (sOUT + 2)); e("s_mov_b32 s%d, 0x20000" % (sOUT + 3))
    e("s_lshl_b32 s%d, s%d, 2" % (sT0, sH)); e("s_add_u32 s%d, s%d, s%d" % (sT0, sT0, sU))
    e("s_mul_i32 s%d, s%d, 205" % (sRB, sT0)); e("s_lshr_b32 s%d, s%d, 10" % (sRB, sRB))
    e("s_mul_i32 s%d, s%d, 5" % (sT1, sRB)); e("s_sub_u32 s%d, s%d, s%d" % (sC5, sT0, sT1))
    e("s_cmp_lt_u32 s%d, 4" % sU); e("s_cselect_b32 s%d, s%d, 255" % (sT0, sT0))
    e("s_cmp_lt_u32 s%d, 120" % sT0)
    e("s_cselect_b32 s%d, %d, 0" % (sWD + 2, 1536 * 1280))
    e("s_cselect_b32 s%d, %d, 0" % (sWSF + 2, WS_Y))
    e("s_cselect_b32 s%d, 1, 0" % sACT)
    e("s_mov_b32 s%d, s20" % sWD); e("s_mov_b32 s%d, s21" % (sWD + 1)); e("s_mov_b32 s%d, 0x20000" % (sWD + 3))
    e("s_mov_b32 s%d, s26" % sWSF); e("s_mov_b32 s%d, s27" % (sWSF + 1)); e("s_mov_b32 s%d, 0x20000" % (sWSF + 3))
    e("s_mov_b32 s%d, 0x00ff00ff" % sVAL); e("s_mov_b32 s%d, 0xff00ff00" % (sVAL + 1))
    e("v_mul_u32_u24 v%d, 1280, v%d" % (vWO, T3))
    e("v_lshl_add_u32 v%d, v%d, 4, v%d" % (vWO, T1, vWO))
    e("s_mul_i32 s%d, s%d, 61440" % (sT0, sW))
    e("v_add_u32 v%d, s%d, v%d" % (vWO, sT0, vWO))
    e("v_lshrrev_b32 v%d, 5, v%d" % (T0, vL))
    e("v_and_b32 v%d, 16, v%d" % (T3, vL))
    e("v_lshl_add_u32 v%d, v%d, 5, v%d" % (vP1O, T2, T3))
    e("v_mul_u32_u24 v%d, %d, v%d" % (vQA, PSTR, T0)); e("v_add_u32 v%d, v%d, v%d" % (vQA, vQA, vP1O))
    e("s_mul_i32 s%d, s%d, %d" % (sT0, sW, 2 * PSTR))
    e("v_add_u32 v%d, s%d, v%d" % (vQA, sT0, vQA))
    e("v_mul_u32_u24 v%d, %d, v%d" % (vF1, PS2, T0)); e("v_add_u32 v%d, v%d, v%d" % (vF1, vF1, vP1O))
    e("s_mul_i32 s%d, s%d, %d" % (sT0, sW, 2 * PS2))
    e("v_add_u32 v%d, s%d, v%d" % (vF1, sT0, vF1))
    e("v_lshlrev_b32 v%d, 9, v%d" % (vFA, T0)); e("v_lshl_add_u32 v%d, v%d, 5, v%d" % (vFA, T1, vFA))
    e("v_add_u32 v%d, v%d, v%d" % (vFA, vFA, T3))
    e("v_lshrrev_b32 v%d, 3, v0" % T0); e("v_lshlrev_b32 v%d, 14, v%d" % (T0, T0))
    e("v_lshl_add_u32 v%d, v%d, 4, v%d" % (T0, T2, T0))
    e("s_mul_i32 s%d, s%d, %d" % (sT0, sB, 20 * 16384))
    e("s_lshl_b32 s%d, s%d, 7" % (sT1, sP))
    e("s_add_u32 s%d, s%d, s%d" % (sT0, sT0, sT1)); e("s_add_u32 s%d, s%d, %d" % (sT0, sT0, WS_Y))
    e("v_cmp_gt_u32 vcc, %d, v0" % (80 if diag == 2 else 160))
    e("v_add_u32 v%d, s%d, v%d" % (T0, sT0, T0))
    e("v_mov_b32 v%d, %d" % (vPY, OOB))
    e("v_cndmask_b32 v%d, v%d, v%d, vcc" % (vPY, vPY, T0))
    e("s_mov_b32 s%d, 0xff" % sFF); e("s_mov_b32 s%d, 0x0c0c0400" % sSEL)
    e("v_and_b32 v%d, 1, v%d" % (T0, vL))
    e("v_lshlrev_b32 v%d, 4, v%d" % (T0, T0))
    e("v_mov_b32 v%d, 0xffff" % T1)
    e("v_lshlrev_b32 v%d, v%d, v%d" % (T0, T0, T1))
    e("v_bfe_u32 v%d, v%d, 1, 2" % (T1, vL))
    for r in range(4):
        e("v_cmp_eq_u32 vcc, %d, v%d" % (r, T1))
        e("s_nop 1")
        e("v_cndmask_b32 v%d, 0, v%d, vcc" % (vM + r, T0))
    kn = [0]
    def more_k(n):
        for _ in range(n):
            if kn[0] < RING: issue_kv("K", kn[0], kn[0]); trace_pt("ik%d" % kn[0]); kn[0] += 1
    more_k(k_pre)
    stamp('iss')
    e.wait_vm("x")
    X = 28
    for r in range(10):
        e("v_lshlrev_b32 v%d, 16, v%d" % (X + 2 * r, 18 + r))
        e("v_and_b32 v%d, 0xffff0000, v%d" % (X + 2 * r + 1, 18 + r))
    def half_allreduce(v, t, op="v_add_f32"):
        for pat in (X1, X2, HM, RM):
            e("s_nop 1")
            e("%s_dpp v%d, v%d, v%d %s %s" % (op, v, v, v, pat, DPP))
        e("v_mov_b32 v%d, v%d" % (t, v))
        e("s_nop 1")
        e("v_permlane16_swap_b32 v%d, v%d" % (v, t))
        e("s_nop 1")
        e("%s v%d, v%d, v%d" % (op, v, v, t))
    for r in range(4): e("v_add_f32 v%d, v%d, v%d" % (48 + r, X + r, X + 4 + r))
    for k in range(8, 20): e("v_add_f32 v%d, v%d, v%d" % (48 + k % 4, 48 + k % 4, X + k))
    e("v_add_f32 v48, v48, v49"); e("v_add_f32 v50, v50, v51"); e("v_add_f32 v48, v48, v50")
    half_allreduce(48, 49)
    e("v_mul_f32 v48, %s, v48" % hx(f2u(1.0 / 640)))
    for k in range(20):
        e("v_sub_f32 v%d, v%d, v48" % (18 + k % 4, X + k))
        if k < 4: e("v_mul_f32 v%d, v%d, v%d" % (52 + k, 18 + k, 18 + k))
        else: e("v_fmac_f32 v%d, v%d, v%d" % (52 + k % 4, 18 + k % 4, 18 + k % 4))
    e("v_add_f32 v52, v52, v53"); e("v_add_f32 v54, v54, v55"); e("v_add_f32 v52, v52, v54")
    half_allreduce(52, 53)
    e("v_mul_f32 v52, %s, v52" % hx(f2u(1.0 / 640)))
    e("v_cvt_pk_bf16_f32 v48, v48, v52")
    e("v_and_b32 v52, 0xffff0000, v48")
    e("v_lshlrev_b32 v48, 16, v48")
    e("v_add_f32 v52, %s, v52" % hx(f2u(1e-5)))
    e("v_cvt_pk_bf16_f32 v52, v52, v52")
    e("v_and_b32 v52, 0xffff0000, v52")
    e("v_sqrt_f32 v52, v52")
    e("s_nop 0")
    e("v_cvt_pk_bf16_f32 v52, v52, v52")
    e("v_and_b32 v52, 0xffff0000, v52")
    e("v_rcp_f32 v53, v52")
    for k in range(0, 20, 2):
        a, b2 = X + k, X + k + 1
        e("v_sub_f32 v%d, v%d, v48" % (a, a)); e("v_sub_f32 v%d, v%d, v48" % (b2, b2))
        e("v_cvt_pk_bf16_f32 v18, v%d, v%d" % (a, b2))
        e("v_lshlrev_b32 v%d, 16, v18" % a); e("v_and_b32 v%d, 0xffff0000, v18" % b2)
        e("v_mul_f32 v19, v%d, v53" % a); e("v_mul_f32 v20, v%d, v53" % b2)
        e("v_fma_f32 v%d, -v19, v52, v%d" % (a, a)); e("v_fma_f32 v%d, -v20, v52, v%d" % (b2, b2))
        e("v_fmac_f32 v19, v%d, v53" % a); e("v_fmac_f32 v20, v%d, v53" % b2)
        e("v_cvt_pk_bf16_f32 v%d, v19, v19" % a); e("v_cvt_pk_bf16_f32 v%d, v20, v20" % b2)
    e("v_lshlrev_b32 v%d, 1, v%d" % (T4, T4)); e("v_lshlrev_b32 v%d, 1, v%d" % (T5, T5))
    e("ds_write_b128 v%d, %s offset:%d" % (T4, vr(X), L_XN))
    e("ds_write_b128 v%d, %s offset:%d" % (T4, vr(X + 4), L_XN + 16))
    e("ds_write_b128 v%d, %s offset:%d" % (T4, vr(X + 8), L_XN + 1024))
    e("ds_write_b128 v%d, %s offset:%d" % (T4, vr(X + 12), L_XN + 1024 + 16))
    e("ds_write_b128 v%d, %s offset:%d" % (T5, vr(X + 16), L_XN + 2048))
    e("v_mov_b32 v%d, %d" % (T4, L_CNT)); e("v_mov_b32 v%d, 0" % T5)
    e("s_waitcnt lgkmcnt(0)")
    e("s_add_u32 s%d, s%d, 1" % (sTAG, sTAG))
    e("s_and_b32 s%d, s%d, 0xff" % (sT0, sTAG)); e("s_mul_i32 s%d, s%d, 0x01010101" % (sT1, sT0))
    e("ds_write_b32 v%d, v%d" % (T4, T5))
    e("v_mov_b32 v%d, s%d" % (vTAG, sT0)); e("v_mov_b32 v%d, s%d" % (vTAG + 1, sT1))
    more_k(k_mid)
    stamp('ln')
    e("s_cmp_ge_u32 s%d, 6" % sU); e("s_cbranch_scc1 L_frole")
    e("s_mul_i32 s%d, s%d, 1280" % (sT0, sKH)); e("s_lshl_b32 s%d, s%d, 5" % (sT1, sW)); e("s_add_u32 s%d, s%d, s%d" % (sT0, sT0, sT1))
    e("v_lshrrev_b32 v%d, 3, v%d" % (T0, vL)); e("v_lshlrev_b32 v%d, 2, v%d" % (T1, T0))
    e("v_add_u32 v%d, s%d, v%d" % (T1, sT0, T1))
    for n in range(10):
        e("ds_read_b32 v%d, v%d offset:%d" % (vS + 2 * n, T1, 128 * n))
        e("ds_read_b32 v%d, v%d offset:%d" % (vS + 2 * n + 1, T1, 128 * n + 2560))
        if n == 6: e("s_waitcnt lgkmcnt(8)")
    e("s_waitcnt lgkmcnt(0)")
    for n in range(10):
        afrag(vA0, vS + 2 * n); afrag(vA1, vS + 2 * n + 1)
        if n == 0: e.wait_vm("R")
        else: e("s_nop 0")
        mfma(vr(vACC), vr(vA0), ar(4 * n), "0" if n == 0 else vr(vACC))
        mfma(vr(vACC + 4), vr(vA1), ar(4 * n), "0" if n == 0 else vr(vACC + 4))
    e("v_and_b32 v%d, 31, v%d" % (T1, vL)); e("v_lshlrev_b32 v%d, 4, v%d" % (T1, T1))
    e("v_bfe_u32 v%d, v%d, 4, 1" % (T3, vL)); e("v_mul_u32_u24 v%d, 3072, v%d" % (T3, T3))
    e("v_and_b32 v%d, 15, v%d" % (T4, vL)); e("v_lshl_add_u32 v%d, v%d, 4, v%d" % (T3, T4, T3))
    e("v_lshrrev_b32 v%d, 5, v%d" % (T4, vL)); e("v_mul_u32_u24 v%d, 768, v%d" % (T4, T4)); e("v_add_u32 v%d, v%d, v%d" % (T3, T3, T4))
    e("s_mul_i32 s%d, s%d, 6144" % (sT0, sH)); e("s_mul_i32 s%d, s%d, 1536" % (sT1, sKH)); e("s_add_u32 s%d, s%d, s%d" % (sT0, sT0, sT1))
    e("s_lshl_b32 s%d, s%d, 8" % (sT1, sNT)); e("s_add_u32 s%d, s%d, s%d" % (sT0, sT0, sT1))
    e("s_mov_b64 exec, %s" % sr(sVAL, 2))
    e("ds_write_b128 v%d, %s offset:%d" % (vF1, vr(vACC), L_Q1))
    e("ds_write_b128 v%d, %s offset:%d" % (vF1, vr(vACC + 4), L_Q1 + 256))
    e("s_mov_b64 exec, -1")
    e("s_waitcnt lgkmcnt(0)")
    e("s_barrier")
    e("s_cmp_lg_u32 s%d, 0" % sW); e("s_cbranch_scc1 L_rdone")
    for pp in range(8): e("ds_read_b128 %s, v%d offset:%d" % (vr(vS + 4 * pp), T1, L_Q1 + pp * PS2))
    e("s_waitcnt lgkmcnt(6)")
    for r in range(4): e("v_add_f32 v%d, v%d, v%d" % (18 + r, vS + r, vS + 4 + r))
    for pp in range(2, 8):
        e("s_waitcnt lgkmcnt(%d)" % (7 - pp))
        for r in range(4): e("v_add_f32 v%d, v%d, v%d" % (18 + r, 18 + r, vS + 4 * pp + r))
    e("s_mov_b32 exec_lo, 0")
    for r in range(4): untag(22 + r, 18 + r)
    for r in range(4): e("v_sub_f32 v%d, v%d, v%d" % (18 + r, 18 + r, 22 + r))
    e("s_mov_b64 exec, -1")
    for r in range(4): e("v_bfi_b32 v%d, s%d, v%d, v%d" % (18 + r, sFF, vTAG, 18 + r))
    e.vmem("buffer_store_dwordx4 v[18:21], v%d, %s, s%d offen %s" % (T3, sr(sWS), sT0, stf), counted=False)
    e("s_branch L_rdone")
    e.label("L_frole")
    e("v_bfe_u32 v%d, v%d, 3, 1" % (T0, vL)); e("v_mul_u32_u24 v%d, 2560, v%d" % (T0, T0))
    e("v_lshrrev_b32 v%d, 4, v%d" % (T3, vL)); e("v_lshl_add_u32 v%d, v%d, 2, v%d" % (T0, T3, T0))
    e("s_lshl_b32 s%d, s%d, 9" % (sT0, sKR)); e("s_lshl_b32 s%d, s%d, 4" % (sT1, sW)); e("s_add_u32 s%d, s%d, s%d" % (sT0, sT0, sT1))
    e("v_add_u32 v%d, s%d, v%d" % (T0, sT0, T0))
    for m in range(0, 8, 2): e("ds_read2_b32 v[%d:%d], v%d offset0:%d offset1:%d" % (vS + m, vS + m + 1, T0, 16 * m, 16 * m + 16))
    e("s_waitcnt lgkmcnt(0)")
    for m in range(8):
        A = vA0 if m % 2 == 0 else vA1
        afrag(A, vS + m)
        e("s_nop 0")
        if m == 0: e.wait_vm("R")
        else: e("s_nop 0")
        mfma(vr(vACC), vr(A), ar(8 * m), "0" if m == 0 else vr(vACC))
        mfma(vr(vACC + 4), vr(A), ar(8 * m + 4), "0" if m == 0 else vr(vACC + 4))
    e("s_lshl_b32 s%d, s%d, 11" % (sT0, sW))
    e("v_add_u32 v%d, s%d, v%d" % (T0, sT0, vFA))
    e("v_bfe_u32 v%d, v0, 1, 2" % T2); e("v_lshlrev_b32 v%d, 9, v%d" % (T2, T2))
    e("v_bfe_u32 v%d, v0, 3, 4" % T3); e("v_lshl_add_u32 v%d, v%d, 5, v%d" % (T2, T3, T2))
    e("v_and_b32 v%d, 1, v0" % T4); e("v_lshl_add_u32 v%d, v%d, 4, v%d" % (T2, T4, T2))
    e("v_and_b32 v%d, 127, v0" % T3); e("v_lshlrev_b32 v%d, 4, v%d" % (T3, T3))
    e("s_mul_i32 s%d, s%d, 24576" % (sT0, sKR)); e("s_lshl_b32 s%d, s%d, 11" % (sT1, sFS))
    e("s_add_u32 s%d, s%d, s%d" % (sT0, sT0, sT1)); e("s_add_u32 s%d, s%d, %d" % (sT0, sT0, WS_P1))
    e("ds_write_b128 v%d, %s offset:%d" % (T0, vr(vACC), L_F1))
    e("ds_write_b128 v%d, %s offset:%d" % (T0, vr(vACC + 4), L_F1 + 1024))
    e("s_waitcnt lgkmcnt(0)")
    e("s_barrier")
    e("s_cmp_eq_u32 s%d, 0" % sFACT); e("s_cbranch_scc1 L_rdone")
    for pp in range(4): e("ds_read_b128 %s, v%d offset:%d" % (vr(vS + 4 * pp), T2, L_F1 + pp * 2048))
    e("s_waitcnt lgkmcnt(0)")
    for r in range(4): e("v_add_f32 v%d, v%d, v%d" % (18 + r, vS + r, vS + 4 + r))
    for pp in (2, 3):
        for r in range(4): e("v_add_f32 v%d, v%d, v%d" % (18 + r, 18 + r, vS + 4 * pp + r))
    if p1lo:
        lab = e.newlab("p1hi")
        e("s_cmp_lt_u32 s%d, 2" % sW); e("s_cbranch_scc1 %s" % lab)
        for r in range(4): untag(22 + r, 18 + r)
        for r in range(4): e("v_sub_f32 v%d, v%d, v%d" % (18 + r, 18 + r, 22 + r))
        e("s_add_u32 s%d, s%d, %d" % (sT0, sT0, P1_LO))
        e.label(lab)
        for r in range(4): e("v_bfi_b32 v%d, s%d, v%d, v%d" % (18 + r, sFF, vTAG, 18 + r))
    else:
        e("s_cmp_ge_u32 s%d, 2" % sW); e("s_cbranch_scc1 L_rdone")
        for r in range(4): tagit(18 + r, 18 + r)
    e.vmem("buffer_store_dwordx4 v[18:21], v%d, %s, s%d offen %s" % (T3, sr(sWS), sT0, stf), counted=False)
    e.label("L_rdone")
    stamp('q1')
    e("s_lshl_b32 s%d, s%d, 1" % (sT0, sH)); e("s_add_u32 s%d, s%d, s%d" % (sT0, sT0, sB)); e("s_mul_i32 s%d, s%d, 3072" % (sT0, sT0))
    e("s_mul_i32 s%d, s%d, 768" % (sT1, sW)); e("s_add_u32 s%d, s%d, s%d" % (sT0, sT0, sT1))
    e("v_lshlrev_b32 v%d, 4, v%d" % (T4, vL)); e("v_add_u32 v%d, s%d, v%d" % (vWQ, sT0, T4))
    vQC = vS
    def issue_qc(counted):
        e.vmem("buffer_load_dwordx4 %s, v%d, %s, 0 offen sc1" % (vr(vQC), vWQ, sr(sWS)), "QC", counted=counted)
    more_k(qc_after - kn[0])
    e("s_mov_b32 exec_hi, 0xffff")
    issue_qc(True)
    e("s_mov_b64 exec, -1")
    more_k(RING)
    for g in range(NE): issue_kv("V", g, ('a', AVE + 12 * g)); trace_pt("iv%d" % g)
    e("s_mul_i32 s%d, s%d, 768" % (sT0, sW)); e("s_add_u32 s%d, s%d, %d" % (sT0, sT0, L_QC))
    e("v_lshlrev_b32 v%d, 3, v%d" % (T2, vL)); e("v_add_u32 v%d, s%d, v%d" % (T3, sT0, T4))
    e("v_and_b32 v%d, 7, v%d" % (T5, vL)); e("v_lshlrev_b32 v%d, 4, v%d" % (T5, T5))
    stamp('iss2')
    e.wait_vm("QC")
    e("s_mov_b32 exec_hi, 0xffff")
    poll("qc", [vQC], T0, T1, lambda: issue_qc(False))
    for r in range(4): untag(vQC + r, vQC + r)
    e("ds_write_b128 v%d, %s" % (T3, vr(vQC)))
    e("s_mov_b64 exec, -1")
    e("s_waitcnt lgkmcnt(0)")
    e("s_barrier")
    stamp('b1')
    e("ds_read_b128 %s, v%d offset:%d" % (vr(vQF), T4, L_QC))
    e("ds_read_b128 %s, v%d offset:%d" % (vr(vQF + 4), T4, L_QC + 768))
    e("ds_read_b128 %s, v%d offset:%d" % (vr(vQF + 8), T4, L_QC + 1536))
    e("ds_read_b128 %s, v%d offset:%d" % (vr(vA0), T4, L_QC + 2304))
    for g in range(32): e("v_mov_b32 v%d, 0" % (vS + g))
    e("s_waitcnt lgkmcnt(0)")
    for r in range(4): e("v_add_f32 v%d, v%d, v%d" % (vQF + r, vQF + r, vQF + 4 + r))
    for r in range(4): e("v_add_f32 v%d, v%d, v%d" % (vQF + 8 + r, vQF + 8 + r, vA0 + r))
    for r in range(4): e("v_add_f32 v%d, v%d, v%d" % (vQF + r, vQF + r, vQF + 8 + r))
    e("v_cvt_pk_bf16_f32 v%d, v%d, v%d" % (vQF, vQF, vQF + 1))
    e("v_cvt_pk_bf16_f32 v%d, v%d, v%d" % (vQF + 1, vQF + 2, vQF + 3))
    e("ds_write_b64 v%d, %s offset:%d" % (T2, vr(vQF, 2), L_QB))
    e("s_waitcnt lgkmcnt(0)")
    for t in range(3): e("ds_read_b128 %s, v%d offset:%d" % (vr(vQF + 4 * t), T5, L_QB + t * 128))
    e("s_waitcnt lgkmcnt(0)")

    vP1 = 10
    def issue_p1(counted):
        e.vmem("buffer_load_dwordx4 %s, v%d, %s, 0 offen sc1" % (vr(vP1), vP1O, sr(sWSF)), "P1", counted=counted)
        e.vmem("buffer_load_dwordx4 %s, v%d, %s, 0 offen sc1" % (vr(vP1 + 4), vF1, sr(sWSF)), "P1", counted=counted)
        if not p1lo: return
        e("s_mov_b32 s%d, %d" % (sSO, P1_LO))
        e.vmem("buffer_load_dwordx4 %s, v%d, %s, s%d offen sc1" % (vr(vP1 + 8), vP1O, sr(sWSF), sSO), "P1", counted=counted)
        e.vmem("buffer_load_dwordx4 %s, v%d, %s, s%d offen sc1" % (vr(vP1 + 12), vF1, sr(sWSF), sSO), "P1", counted=counted)
    def start_p1():
        e("s_lshl_b32 s%d, s%d, 2" % (sT0, sRB)); e("s_add_u32 s%d, s%d, s%d" % (sT0, sT0, sW))
        e("s_lshl_b32 s%d, s%d, 8" % (sT1, sT0)); e("s_add_u32 s%d, s%d, %d" % (sT1, sT1, WS_P1))
        e("v_and_b32 v%d, 15, v%d" % (vF1, vL)); e("v_lshlrev_b32 v%d, 4, v%d" % (vF1, vF1)); e("v_add_u32 v%d, s%d, v%d" % (vF1, sT1, vF1))
        e("v_lshrrev_b32 v%d, 4, v%d" % (vP1O, vL)); e("v_mul_u32_u24 v%d, 24576, v%d" % (vP1O, vP1O)); e("v_add_u32 v%d, v%d, v%d" % (vP1O, vP1O, vF1))
        e("v_add_u32 v%d, %d, v%d" % (vF1, 4 * 24576, vF1))
        issue_p1(True)
        e("s_mul_i32 s%d, s%d, 20480" % (sT1, sT0))
        e("s_lshl_b32 s%d, s%d, 8" % (sT2, sC5)); e("s_add_u32 s%d, s%d, s%d" % (sT1, sT1, sT2))
        e("s_mul_i32 s%d, s%d, 61440" % (sT2, sW))
        e("v_subrev_u32 v%d, s%d, v%d" % (T1, sT2, vWO))
        for i in range(4):
            e.vmem("buffer_load_dwordx4 %s, v%d, %s, s%d offen %s" % (ar(240 + 4 * i), T1, sr(sWD), sT1, ff), "WD")
            if i < 3: e("s_add_u32 s%d, s%d, 5120" % (sT1, sT1))
    def stage2():
        skip = e.newlab("nost2")
        e("s_cmp_eq_u32 s%d, 0" % sACT); e("s_cbranch_scc1 %s" % skip)
        e.wait_vm("WD")
        poll("p1", [vP1, vP1 + 4, vP1 + 8, vP1 + 12][:4 if p1lo else 2], T1, T2, lambda: issue_p1(False))
        for r in range(16 if p1lo else 8): untag(10 + r, 10 + r)
        if p1lo:
            for r in range(8): e("v_add_f32 v%d, v%d, v%d" % (10 + r, 10 + r, 18 + r))
        e("s_mov_b64 exec, 0xffff")
        for r in range(4): e("v_add_f32 v%d, v%d, v%d" % (10 + r, 10 + r, 14 + r))
        e("s_mov_b64 exec, -1")
        for sw in ("v_permlane16_swap_b32", "v_permlane32_swap_b32"):
            for r in range(4): e("v_mov_b32 v%d, v%d" % (14 + r, 10 + r))
            e("s_nop 0")
            for r in range(4): e("%s v%d, v%d" % (sw, 10 + r, 14 + r))
            e("s_nop 0")
            for r in range(4): e("v_add_f32 v%d, v%d, v%d" % (10 + r, 10 + r, 14 + r))
        e("v_cvt_pk_bf16_f32 v14, v10, v11"); e("v_cvt_pk_bf16_f32 v15, v12, v13")
        e("v_lshlrev_b32 v10, 16, v14"); e("v_and_b32 v11, 0xffff0000, v14")
        e("v_lshlrev_b32 v12, 16, v15"); e("v_and_b32 v13, 0xffff0000, v15")
        e("s_nop 0")
        for r in range(4): e("v_mov_b32_dpp v%d, v%d row_shl:4 %s" % (14 + r, 10 + r, DPP))
        for k in range(4): e("v_mul_f32 v%d, v%d, v%d" % (18 + k, 10 + k, 10 + k))
        for k in range(4): e("v_mul_f32 v%d, %s, v%d" % (18 + k, hx(f2u(0.044715)), 18 + k))
        for k in range(4): e("v_fma_f32 v%d, v%d, v%d, v%d" % (18 + k, 18 + k, 10 + k, 10 + k))
        for k in range(4): e("v_mul_f32 v%d, %s, v%d" % (18 + k, hx(f2u(-2.0 * LOG2E * 0.7978845608028654)), 18 + k))
        for k in range(4): e("v_exp_f32 v%d, v%d" % (18 + k, 18 + k))
        for k in range(4): e("v_add_f32 v%d, 1.0, v%d" % (18 + k, 18 + k))
        for k in range(4): e("v_rcp_f32 v%d, v%d" % (18 + k, 18 + k))
        for k in range(4): e("v_mul_f32 v%d, v%d, v%d" % (18 + k, 10 + k, 18 + k))
        e("v_cvt_pk_bf16_f32 v10, v18, v19"); e("v_cvt_pk_bf16_f32 v11, v20, v21")
        e("v_lshlrev_b32 v18, 16, v10"); e("v_and_b32 v19, 0xffff0000, v10")
        e("v_lshlrev_b32 v20, 16, v11"); e("v_and_b32 v21, 0xffff0000, v11")
        for k in range(4): e("v_mul_f32 v%d, v%d, v%d" % (18 + k, 18 + k, 14 + k))
        e("v_cvt_pk_bf16_f32 v28, v18, v19"); e("v_cvt_pk_bf16_f32 v29, v20, v21")
        e("v_bfe_u32 v18, v%d, 3, 1" % vL); e("v_lshlrev_b32 v18, 3, v18")
        for i, off in enumerate((0, 4, 32, 36)):
            e("ds_bpermute_b32 v%d, v18, v28 offset:%d" % (10 + i, off)); e("ds_bpermute_b32 v%d, v18, v29 offset:%d" % (14 + i, off))
        e("v_lshrrev_b32 v19, 4, v%d" % vL); e("v_mul_u32_u24 v19, 0x0202, v19"); e("v_add_u32 v19, 0x0100, v19")
        e("v_lshl_or_b32 v19, v19, 16, v19")
        e("s_waitcnt lgkmcnt(0)")
        for i in range(4): e("v_perm_b32 v%d, v%d, v%d, v19" % (10 + i, 14 + i, 10 + i))
        for i in range(4):
            A = 20 if i % 2 == 0 else 24
            afrag(A, 10 + i)
            e("s_nop 1")
            mfma(vr(16), vr(A), ar(240 + 4 * i), "0" if i == 0 else vr(16))
        e("s_lshl_b32 s%d, s%d, 10" % (sT0, sW))
        e("v_add_u32 v10, s%d, v%d" % (sT0, vFA))
        e("v_mov_b32 v11, %d" % L_CNT); e("v_mov_b32 v12, 1")
        e("s_nop 5")
        e("ds_write_b128 v10, %s offset:%d" % (vr(16), L_F2))
        e("s_waitcnt lgkmcnt(0)")
        e("s_mov_b64 exec, 1")
        e("ds_add_rtn_u32 v12, v11, v12")
        e("s_mov_b64 exec, -1")
        e("s_waitcnt lgkmcnt(0)")
        e("v_readfirstlane_b32 s%d, v12" % sT0)
        e("s_nop 3")
        e("s_cmp_lg_u32 s%d, 3" % sT0); e("s_cbranch_scc1 %s" % skip)
        e("v_lshlrev_b32 v28, 4, v%d" % vL)
        for pp in range(4): e("ds_read_b128 %s, v28 offset:%d" % (vr(10 + 4 * pp), L_F2 + pp * 1024))
        e("v_lshrrev_b32 v28, 3, v%d" % vL); e("v_mul_u32_u24 v28, 3072, v28")
        e("v_and_b32 v29, 7, v%d" % vL); e("v_lshl_add_u32 v28, v29, 4, v28")
        e("s_mul_i32 s%d, s%d, %d" % (sT0, sC5, 8 * 3072))
        e("s_lshl_b32 s%d, s%d, 7" % (sT1, sRB))
        e("s_add_u32 s%d, s%d, s%d" % (sT0, sT0, sT1)); e("s_add_u32 s%d, s%d, %d" % (sT0, sT0, WS_P2))
        e("s_waitcnt lgkmcnt(0)")
        for pp in range(1, 4):
            for r in range(4): e("v_add_f32 v%d, v%d, v%d" % (10 + r, 10 + r, 10 + 4 * pp + r))
        for r in range(4): tagit(10 + r, 10 + r)
        e.vmem("buffer_store_dwordx4 %s, v28, %s, s%d offen %s" % (vr(10), sr(sWSF), sT0, stf), counted=False)
        e("s_nop 1")
        e.label(skip)

    curwin[0] = win
    sc = hx(f2u(192 ** -0.5))
    nwo = [0]
    NO1 = AVE // 12
    def finish_scores(g0):
        a, b2, t = vS + g0, vS + g0 + 1, T0
        for pat in (X1, X2, HM):
            e("v_add_f32_dpp v%d, v%d, v%d %s %s" % (a, a, a, pat, DPP))
            e("v_add_f32_dpp v%d, v%d, v%d %s %s" % (b2, b2, b2, pat, DPP))
            e("s_nop 0")
        e("v_cvt_pk_bf16_f32 v%d, v%d, v%d" % (t, a, b2))
        e("v_lshlrev_b32 v%d, 16, v%d" % (a, t)); e("v_and_b32 v%d, 0xffff0000, v%d" % (b2, t))
        e("v_mul_f32 v%d, %s, v%d" % (a, sc, a)); e("v_mul_f32 v%d, %s, v%d" % (b2, sc, b2))
        e("v_cvt_pk_bf16_f32 v%d, v%d, v%d" % (t, a, b2))
        e("v_lshlrev_b32 v%d, 16, v%d" % (a, t)); e("v_and_b32 v%d, 0xffff0000, v%d" % (b2, t))
        if g0 == 0: e("v_max_f32 v%d, v%d, v%d" % (vMW, a, b2))
        else: e("v_max3_f32 v%d, v%d, v%d, v%d" % (vMW, vMW, a, b2))
    vn = [NE]
    for g in range(32):
        e.wait_vm("K%d" % g)
        stamp('k%d' % g)
        rs = ring[("K", g)]
        for t in range(3):
            for r in range(4):
                e("v_dot2c_f32_bf16 v%d, v%d, v%d" % (vS + g, rslot(rs, t) + r, vQF + 4 * t + r))
        if g + RING < 32: issue_kv("K", g + RING, rs)
        else: issue_kv("V", vn[0], rs); vn[0] += 1
        if nwo[0] < NO1 and g >= ostart and (g - ostart) % ostep == 0:
            issue_wo(nwo[0]); nwo[0] += 1
        if g == p1_g: start_p1()
        if g == st2_g: stage2()
        if g % 2 == 1 and g >= 3: finish_scores(g - 3)
    e("s_nop 2")
    finish_scores(30)
    def group_allreduce(v, t, op):
        e("s_nop 1")
        e("%s_dpp v%d, v%d, v%d %s %s" % (op, v, v, v, R8, DPP))
        e("v_mov_b32 v%d, v%d" % (t, v)); e("s_nop 1")
        e("v_permlane16_swap_b32 v%d, v%d" % (v, t)); e("s_nop 1")
        e("%s v%d, v%d, v%d" % (op, v, v, t))
        e("v_mov_b32 v%d, v%d" % (t, v)); e("s_nop 1")
        e("v_permlane32_swap_b32 v%d, v%d" % (v, t)); e("s_nop 1")
        e("%s v%d, v%d, v%d" % (op, v, v, t))
    group_allreduce(vMW, T0, "v_max_f32")
    l2e = hx(f2u(LOG2E))
    for g in range(32): e("v_sub_f32 v%d, v%d, v%d" % (vS + g, vS + g, vMW))
    for g in range(32): e("v_mul_f32 v%d, %s, v%d" % (vS + g, l2e, vS + g))
    for g in range(32): e("v_exp_f32 v%d, v%d" % (vS + g, vS + g))
    e("v_add_f32 v%d, v%d, v%d" % (vLW, vS, vS + 1)); e("v_add_f32 v%d, v%d, v%d" % (T0, vS + 2, vS + 3))
    for g in range(4, 32, 2):
        e("v_add_f32 v%d, v%d, v%d" % (vLW, vLW, vS + g)); e("v_add_f32 v%d, v%d, v%d" % (T0, T0, vS + g + 1))
    e("v_add_f32 v%d, v%d, v%d" % (vLW, vLW, T0))
    group_allreduce(vLW, T0, "v_add_f32")
    e("s_lshl_b32 s%d, s%d, 3" % (sT0, sW)); e("s_add_u32 s%d, s%d, %d" % (sT0, sT0, L_ML)); e("v_mov_b32 v%d, s%d" % (T0, sT0))
    e("ds_write_b64 v%d, v[%d:%d]" % (T0, vMW, vLW))
    e("v_and_b32 v%d, 3, v%d" % (T0, vL)); e("v_lshlrev_b32 v%d, 3, v%d" % (T0, T0))
    e("s_waitcnt lgkmcnt(0)")
    e("s_barrier")
    e("ds_read_b64 v[30:31], v%d offset:%d" % (T0, L_ML))
    e("s_waitcnt lgkmcnt(0)")
    e("v_mov_b32 v32, v30")
    for pat in (X1, X2):
        e("s_nop 1"); e("v_max_f32_dpp v32, v32, v32 %s %s" % (pat, DPP))
    e("v_sub_f32 v30, v30, v32"); e("v_sub_f32 v33, v%d, v32" % vMW)
    e("v_mul_f32 v30, %s, v30" % l2e); e("v_mul_f32 v33, %s, v33" % l2e)
    e("v_exp_f32 v30, v30"); e("v_exp_f32 v33, v33")
    e("s_nop 0")
    e("v_mul_f32 v30, v30, v31")
    for pat in (X1, X2):
        e("s_nop 1"); e("v_add_f32_dpp v30, v30, v30 %s %s" % (pat, DPP))
    e("v_rcp_f32 v31, v30")
    tagit(34, 32); tagit(35, 30); tagit(36, 32); tagit(37, 30)
    vFAC = 41
    e("v_mul_f32 v%d, v33, v31" % vFAC)
    e("s_lshl_b32 s%d, s%d, 7" % (sT0, sB)); e("s_add_u32 s%d, s%d, s%d" % (sT0, sT0, sP))
    e("s_lshl_b32 s%d, s%d, 7" % (sT0, sT0)); e("s_add_u32 s%d, s%d, %d" % (sWQO, sT0, WS_ML))
    e("v_mov_b32 v%d, v32" % vMW); e("v_mov_b32 v%d, v30" % vLW)
    e("v_lshlrev_b32 v%d, 4, v%d" % (vF1, vL))
    lab = e.newlab("noml")
    e("s_cmp_lg_u32 s%d, 3" % sW); e("s_cbranch_scc1 %s" % lab)
    e("s_mov_b64 exec, 0xff")
    e.vmem("buffer_store_dwordx4 %s, v%d, %s, s%d offen %s" % (vr(34), vF1, sr(sWS), sWQO, stf), counted=False)
    e("s_mov_b64 exec, -1")
    e.label(lab)
    e("s_and_b32 s%d, s%d, %d" % (sWQO, sWQO, ~511 & 0xffffffff))
    e("v_and_b32 v%d, 3, v%d" % (vF1, vL)); e("v_lshlrev_b32 v%d, 7, v%d" % (vF1, vF1))
    stamp('b2')

    aY, aML, cF, cX, aOUT, aCO, aCR, cG = 42, 43, 44, 48, 49, 50, 51, 52
    def quad_reduce(q):
        e("s_nop 0")
        e("v_permlane32_swap_b32 v%d, v%d" % (q, q + 1)); e("v_permlane32_swap_b32 v%d, v%d" % (q + 2, q + 3)); e("s_nop 0")
        e("v_add_f32 v%d, v%d, v%d" % (q, q, q + 1)); e("v_add_f32 v%d, v%d, v%d" % (q + 2, q + 2, q + 3)); e("s_nop 1")
        e("v_permlane16_swap_b32 v%d, v%d" % (q, q + 2)); e("s_nop 0")
        e("v_add_f32 v%d, v%d, v%d" % (q, q, q + 2)); e("s_nop 1")
        e("v_add_f32_dpp v%d, v%d, v%d %s %s" % (q, q, q, R8, DPP))
    def ld_f(counted): e.vmem("buffer_load_dwordx4 %s, v%d, %s, 0 offen sc1" % (vr(cF), 53, sr(sWSF)), "CF", counted=counted)
    vWJ = 38
    def ld_sib(counted): e.vmem("buffer_load_dwordx4 %s, v%d, %s, s%d offen sc1" % (vr(30), vF1, sr(sWS), sWQO), "SIB", counted=counted)
    def split_weight():
        e.wait_vm("SIB")
        poll("sib", [30], 54, 55, lambda: ld_sib(False))
        untag(30, 30); untag(31, 31)
        e("v_mov_b32 v32, v30")
        for pat in (X1, X2):
            e("s_nop 1"); e("v_max_f32_dpp v32, v32, v32 %s %s" % (pat, DPP))
        e("v_sub_f32 v30, v30, v32"); e("v_sub_f32 v33, v%d, v32" % vMW)
        e("v_mul_f32 v30, %s, v30" % l2e); e("v_mul_f32 v33, %s, v33" % l2e)
        e("v_exp_f32 v30, v30"); e("v_exp_f32 v33, v33")
        e("v_add_u32 v32, 0x80, v%d" % vLW); untag(32, 32)
        e("v_mul_f32 v30, v30, v31"); e("v_mul_f32 v33, v33, v32")
        for pat in (X1, X2):
            e("s_nop 1"); e("v_add_f32_dpp v30, v30, v30 %s %s" % (pat, DPP))
        e("v_rcp_f32 v30, v30"); e("s_nop 0")
        e("v_mul_f32 v%d, v33, v30" % vWJ)
    def consumer_setup():
        if elect:
            e("s_mov_b32 s%d, %d" % (sWSF + 2, WS_SIZE))
        elif lightc:
            e("s_lshr_b32 s%d, s2, 6" % sT0); e("s_lshl_b32 s%d, s%d, 1" % (sT0, sT0))
            e("s_sub_u32 s%d, s%d, 4" % (sT1, sU)); e("s_add_u32 s%d, s%d, s%d" % (sT0, sT0, sT1))
            e("s_cmp_lt_u32 s%d, 2" % sT1); e("s_cselect_b32 s%d, s%d, 99" % (sT0, sT0))
            e("s_and_b32 s%d, s2, 7" % sT1); e("s_mul_i32 s%d, s%d, 5" % (sCI, sT1)); e("s_add_u32 s%d, s%d, s%d" % (sCI, sCI, sT0))
            e("s_cmp_lt_u32 s%d, 5" % sT0)
            e("s_cselect_b32 s%d, 1, 0" % sCONS); e("s_cselect_b32 s%d, %d, 0" % (sWSF + 2, WS_SIZE))
        else:
            e("s_and_b32 s%d, s2, 1" % sT0); e("s_lshl_b32 s%d, s%d, 8" % (sT0, sT0)); e("s_add_u32 s%d, s%d, s2" % (sT0, sT0))
            e("s_cmp_lt_u32 s%d, 80" % sT0)
            e("s_cselect_b32 s%d, 1, 0" % sCONS); e("s_cselect_b32 s%d, %d, 0" % (sWSF + 2, WS_SIZE))
            e("s_lshr_b32 s%d, s2, 1" % sCI)
        e("s_cmp_ge_u32 s%d, 20" % sCI); e("s_cselect_b32 s%d, 1, 0" % sB)
        e("s_mul_i32 s%d, s%d, 20" % (sT0, sB)); e("s_sub_u32 s%d, s%d, s%d" % (sH, sCI, sT0))
        e("v_lshlrev_b32 v53, 4, v%d" % vL)
        e("s_lshl_b32 s%d, s%d, 14" % (sT0, sCI)); e("s_lshl_b32 s%d, s%d, 12" % (sT1, sW))
        e("s_add_u32 s%d, s%d, s%d" % (sT0, sT0, sT1)); e("s_add_u32 s%d, s%d, %d" % (sT0, sT0, WS_Y))
        e("v_add_u32 v%d, s%d, v53" % (aY, sT0))
        e("s_lshr_b32 s%d, s%d, 2" % (sT0, sH)); e("s_lshl_b32 s%d, s%d, 1" % (sT0, sT0)); e("s_add_u32 s%d, s%d, s%d" % (sT0, sT0, sB))
        e("s_lshl_b32 s%d, s%d, 2" % (sT0, sT0)); e("s_and_b32 s%d, s%d, 3" % (sT1, sH)); e("s_add_u32 s%d, s%d, s%d" % (sT0, sT0, sT1))
        e("s_mul_i32 s%d, s%d, 3072" % (sT0, sT0)); e("s_mul_i32 s%d, s%d, 768" % (sT1, sW))
        e("s_add_u32 s%d, s%d, s%d" % (sT0, sT0, sT1)); e("s_add_u32 s%d, s%d, %d" % (sT0, sT0, WS_P2))
        e("v_min_u32 v53, 752, v53"); e("v_add_u32 v53, s%d, v53" % sT0)
        e("v_lshrrev_b32 v%d, 3, v%d" % (aML, vL)); e("v_lshlrev_b32 v%d, 7, v%d" % (aML, aML))
        e("s_lshl_b32 s%d, s%d, 14" % (sT0, sB)); e("s_lshl_b32 s%d, s%d, 12" % (sT1, sW))
        e("s_add_u32 s%d, s%d, s%d" % (sT0, sT0, sT1)); e("s_add_u32 s%d, s%d, %d" % (sT0, sT0, WS_ML))
        e("v_add_u32 v%d, s%d, v%d" % (aML, sT0, aML))
        e("v_and_b32 v%d, 31, v%d" % (aCR, vL)); e("v_lshlrev_b32 v%d, 1, v%d" % (aOUT, aCR))
        e("s_lshl_b32 s%d, s%d, 6" % (sT0, sCI)); e("v_add_u32 v%d, s%d, v%d" % (aOUT, sT0, aOUT))
        e("v_lshlrev_b32 v%d, 2, v%d" % (aCR, aCR)); e("v_add_u32 v%d, %d, v%d" % (aCR, L_CO, aCR))
        ld_f(True)
        e.vmem("buffer_load_ushort v%d, v%d, %s, 0 offen" % (cX, aOUT, sr(sX)), "CF")
        e("v_and_b32 v%d, 7, v%d" % (aCO, vL)); e("v_lshlrev_b32 v%d, 4, v%d" % (aCO, aCO))
        e("v_bfe_u32 v%d, v%d, 4, 1" % (cG, vL)); e("v_lshl_add_u32 v%d, v%d, 3, v%d" % (aCO, cG, aCO))
        e("v_lshrrev_b32 v%d, 5, v%d" % (cG, vL)); e("v_lshl_add_u32 v%d, v%d, 2, v%d" % (aCO, cG, aCO))
        e("s_lshl_b32 s%d, s%d, 7" % (sT0, sW)); e("v_add_u32 v%d, s%d, v%d" % (aCO, sT0, aCO))
    def consumer_ffn():
        skip = e.newlab("nocf")
        if not elect: e("s_cmp_eq_u32 s%d, 0" % sCONS); e("s_cbranch_scc1 %s" % skip)
        e.wait_vm("CF")
        poll("cf", [cF], 54, 55, lambda: ld_f(False))
        for r in range(4): untag(cF + r, cF + r)
        e("s_mov_b32 exec_lo, 0"); e("s_mov_b32 exec_hi, 0xffff0000")
        for r in range(4): e("v_mov_b32 v%d, 0" % (cF + r))
        e("s_mov_b64 exec, -1")
        e("v_lshlrev_b32 v%d, 16, v%d" % (cX, cX))
        quad_reduce(cF)
        e("ds_write_b32 v%d, v%d offset:%d" % (aCO, cF, L_CF))
        e.label(skip)

    for g in range(32):
        A = vA0 if g % 2 == 0 else vA1
        e("v_mul_f32 v%d, v%d, v%d" % (vS + g, vS + g, vFAC))
        e("v_cvt_pk_bf16_f32 v%d, v%d, v%d" % (vS + g, vS + g, vS + g))
        afrag(A, vS + g)
        e("s_nop 0")
        e.wait_vm("V%d" % g)
        stamp('v%d' % g)
        rs = ring[("V", g)]
        for t in range(3):
            mfma(vr(vACC + 4 * t), vr(A), reg_of(rs, t), "0" if g == 0 else vr(vACC + 4 * t))
        if g == cf_g: ld_sib(True); consumer_setup()
        if not isinstance(rs, tuple) and vn[0] < 32:
            issue_kv("V", vn[0], rs); vn[0] += 1
        if nwo[0] < 20 and (nwo[0] < NO1 or g >= nwo[0] - NO1):
            issue_wo(nwo[0]); nwo[0] += 1
        if g == 24:
            free = sorted(ring[("V", k)] for k in range(19, 24))
            y0 = [k for k in free if k + 1 in free][0]
            vY = rslot(y0, 0)
            for r in range(20): e("v_mov_b32 v%d, 0" % (vY + r))
            e("v_and_b32 v%d, 7, v%d" % (T0, vL)); e("v_mul_u32_u24 v%d, %d, v%d" % (T0, PSTR, T0))
            e("v_lshrrev_b32 v%d, 4, v%d" % (T1, vL)); e("v_lshl_add_u32 v%d, v%d, 3, v%d" % (T0, T1, T0))
            e("v_bfe_u32 v%d, v%d, 3, 1" % (T1, vL)); e("v_mul_u32_u24 v%d, 96, v%d" % (T1, T1))
            e("s_mul_i32 s%d, s%d, 192" % (sT0, sW))
            e("v_add3_u32 v%d, s%d, v%d, v%d" % (T0, sT0, T0, T1))
            e("s_mul_i32 s%d, s%d, 2560" % (sT0, sW))
            e("v_add_u32 v%d, s%d, v%d" % (T1, sT0, vFA))
            e("v_lshlrev_b32 v%d, 4, v0" % T2)
            e("v_bfe_u32 v%d, v%d, 2, 1" % (T4, vL)); e("v_mul_u32_u24 v%d, 0xffff, v%d" % (T4, T4))
            e("v_xor_b32 v%d, 0xffff, v%d" % (T3, T4))
            e("v_and_b32 v%d, 3, v%d" % (T5, vL)); e("v_add_u32 v%d, 1, v%d" % (vP1O, T5)); e("v_and_b32 v%d, 3, v%d" % (vP1O, vP1O))
            e("v_lshl_or_b32 v%d, v%d, 2, v%d" % (T5, vP1O, T5)); e("v_mul_u32_u24 v%d, 0x1111, v%d" % (T5, T5))
            quads = [rslot(k, t) for k in free if k not in (y0, y0 + 1) for t in range(3)]
            cML, cY = quads[0:4], quads[4:8]
            for q in cY: e("v_xor_b32 v%d, 0xff, v%d" % (q, vTAG))
        if g == cf2_g: split_weight(); consumer_ffn()
    assert nwo[0] == 20 and vn[0] == 32
    stamp('vend')
    e("s_mov_b64 exec, %s" % sr(sVAL, 2))
    e("s_nop 4")
    for t in range(3): e("ds_write_b128 v%d, %s offset:%d" % (vQA, vr(vACC + 4 * t), L_OP + t * 256))
    e("s_mov_b64 exec, -1")
    e("s_waitcnt lgkmcnt(0)")
    e("s_barrier")
    stamp('b3')
    mlds = [(cML[i], "buffer_load_dwordx4 %s, v%d, %s, 0 offen offset:%d %s" % (vr(cML[i]), aML, sr(sWS), 1024 * i, plf)) for i in range(4)]
    ylds = [(cY[i], "buffer_load_dwordx4 %s, v%d, %s, 0 offen offset:%d %s" % (vr(cY[i]), aY, sr(sWS), 1024 * i, plf)) for i in range(4)]
    def first_reads():
        lab = e.newlab("nofr")
        e("s_cmp_eq_u32 s%d, 0" % sCONS); e("s_cbranch_scc1 %s" % lab)
        for _, t in ylds: e.vmem(t, counted=False)
        e.label(lab)
    vO = 58
    for n in range(3): e("ds_read_b64 %s, v%d offset:%d" % (vr(vO + 2 * n, 2), T0, L_OP + 32 * n))
    if early0 == 1 and not elect: first_reads()
    e("s_waitcnt lgkmcnt(0)")
    for pat in (X1, X2, HM):
        for i in range(6): e("v_add_f32_dpp v%d, v%d, v%d %s %s" % (vO + i, vO + i, vO + i, pat, DPP))
    for i in range(6): e("v_mul_f32 v%d, v%d, v%d" % (vO + i, vO + i, vWJ))
    for i in range(6): e("v_cvt_pk_bf16_f32 v%d, v%d, v%d" % (vO + i, vO + i, vO + i))
    assert e.vm[-1] == "V31"
    def sfrag(dst, n, r):
        src = vO + 2 * (n % 3) + (r >> 1); m = T3 if r % 2 == 0 else T4
        if n >= 3: e("v_and_b32_dpp v%d, v%d, v%d %s %s" % (dst + r, src, m, R8, DPP))
        else: e("v_and_b32 v%d, v%d, v%d" % (dst + r, src, m))
    for r in range(4): sfrag(vA0, 0, r)
    for n in range(6):
        A = vA0 if n % 2 == 0 else vA1
        An = vA1 if n % 2 == 0 else vA0
        if n == 0: e("s_nop 1")
        for seg in range(5):
            e("v_smfmac_f32_16x16x64_bf16 %s, %s, %s, v%d" % (vr(vY + 4 * seg), vr(A), ar(8 * (5 * n + seg), 8), T5))
            if n < 5 and seg < 2:
                for r in (2 * seg, 2 * seg + 1): sfrag(An, n + 1, r)
    stamp('mf')
    e("s_mov_b32 exec_hi, 0")
    e("s_nop 3")
    for seg in range(5): e("ds_write_b128 v%d, %s offset:%d" % (T1, vr(vY + 4 * seg), L_YP + seg * 512))
    e("s_mov_b64 exec, -1")
    if early0 == 2 and not elect: first_reads()
    e("s_waitcnt lgkmcnt(0)")
    e("s_barrier")
    lab = e.newlab("noy")
    e("s_cmp_ge_u32 s%d, 3" % sW); e("s_cbranch_scc1 %s" % lab)
    for pp in range(4): e("ds_read_b128 %s, v%d offset:%d" % (vr(18 + 4 * pp), T2, L_YP + pp * 2560))
    e("s_waitcnt lgkmcnt(2)")
    for r in range(4): e("v_add_f32 v%d, v%d, v%d" % (18 + r, 18 + r, 22 + r))
    e("s_waitcnt lgkmcnt(0)")
    for r in range(4): e("v_add_f32 v%d, v%d, v%d" % (26 + r, 26 + r, 30 + r))
    for r in range(4): e("v_add_f32 v%d, v%d, v%d" % (64 + r, 18 + r, 26 + r))
    for r in range(4): tagit(64 + r, 64 + r)
    e.vmem("buffer_store_dwordx4 v[64:67], v%d, %s, 0 offen %s" % (vPY, sr(sWS), yf), counted=False)
    lab2 = e.newlab("pubd")
    e("s_branch %s" % lab2)
    e.label(lab)
    def gate_calc():
        e("ds_read2_b32 v[54:55], v%d offset0:128 offset1:160" % aCR); e("ds_read2_b32 v[56:57], v%d offset0:192 offset1:224" % aCR)
        e("s_waitcnt lgkmcnt(0)")
        e("v_add_f32 v54, v54, v55"); e("v_add_f32 v56, v56, v57"); e("v_add_f32 v54, v54, v56")
        e("v_cvt_pk_bf16_f32 v54, v54, v54"); e("v_and_b32 v54, 0xffff0000, v54")
        e("v_mul_f32 v55, %s, v54" % hx(f2u(-LOG2E)))
        e("v_exp_f32 v55, v55"); e("s_nop 0")
        e("v_add_f32 v55, 1.0, v55")
        e("v_rcp_f32 v55, v55"); e("s_nop 0")
        e("v_mul_f32 v55, v54, v55")
        e("v_cvt_pk_bf16_f32 v55, v55, v55"); e("v_and_b32 v%d, 0xffff0000, v55" % cG)
    if elect:
        e("s_waitcnt vmcnt(0)")
        e("v_mov_b32 v42, %d" % (L_CNT + 4))
        e("s_mov_b64 exec, 1")
        e("ds_write_b32 v42, v44")
        e("s_mov_b64 exec, -1")
        e("s_waitcnt lgkmcnt(0)")
    else: gate_calc()
    e.label(lab2)
    stamp('pub')
    if diag:
        e("s_waitcnt vmcnt(0)")
        stamp('ack')
    if nopoll: e("s_branch L_fin")
    if elect:
        e("v_mov_b32 v42, %d" % (L_CNT + 4))
        e("s_barrier")
        e("ds_read_b32 v44, v42")
        e("s_waitcnt lgkmcnt(0)")
        e("v_readfirstlane_b32 s%d, v44" % sCI)
        e("s_nop 3")
        e("s_cmp_eq_u32 s%d, 40" % sCI); e("s_cbranch_scc1 L_epoch")
        e("s_cmp_gt_u32 s%d, 40" % sCI); e("s_cbranch_scc1 L_fin")
        e.vm = []
        consumer_setup()
    else:
        e("s_cmp_eq_u32 s2, %d" % (232 if lightc else 1)); e("s_cbranch_scc1 L_epoch")
    e("s_cmp_eq_u32 s%d, 0" % sCONS); e("s_cbranch_scc1 L_fin")
    if not early0:
        for _, t in ylds: e(t)
    if wait0 is not None: e("s_waitcnt vmcnt(%d)" % wait0)
    stamp('rd0')
    mpoll("y", ylds, 20, 21, ysleep)
    stamp('yok')
    R0 = 36
    for r in range(4): untag(R0 + r, cY[0] + r)
    for r in range(4): untag(24 + r, cY[1] + r)
    for r in range(4): untag(28 + r, cY[2] + r)
    for r in range(4): untag(32 + r, cY[3] + r)
    for r in range(4): e("v_add_f32 v%d, v%d, v%d" % (R0 + r, R0 + r, 24 + r))
    for r in range(4): e("v_add_f32 v%d, v%d, v%d" % (28 + r, 28 + r, 32 + r))
    for r in range(4): e("v_add_f32 v%d, v%d, v%d" % (R0 + r, R0 + r, 28 + r))
    e("s_nop 0")
    quad_reduce(R0)
    e("ds_write_b32 v%d, v%d offset:%d" % (aCO, R0, L_CO))
    e("s_waitcnt lgkmcnt(0)")
    e("s_barrier")
    stamp('b5')
    e("s_cmp_lg_u32 s%d, 3" % sW); e("s_cbranch_scc1 L_fin")
    e("ds_read2_b32 v[54:55], v%d offset0:0 offset1:32" % aCR); e("ds_read2_b32 v[56:57], v%d offset0:64 offset1:96" % aCR)
    e("s_mov_b32 exec_hi, 0")
    e("s_waitcnt lgkmcnt(0)")
    e("v_add_f32 v54, v54, v55"); e("v_add_f32 v56, v56, v57"); e("v_add_f32 v54, v54, v56")
    e("v_cvt_pk_bf16_f32 v54, v54, v54"); e("v_and_b32 v54, 0xffff0000, v54")
    e("v_mul_f32 v54, v54, v%d" % cG)
    e("v_cvt_pk_bf16_f32 v54, v54, v54"); e("v_and_b32 v54, 0xffff0000, v54")
    e("v_add_f32 v54, v54, v%d" % cX)
    e("v_cvt_pk_bf16_f32 v54, v54, v54")
    e("buffer_store_short v54, v%d, %s, 0 offen %s" % (aOUT, sr(sOUT), of))
    e("s_mov_b64 exec, -1")
    e("s_branch L_fin")
    e.label("L_epoch")
    e("s_cmp_lg_u32 s%d, 0" % sW); e("s_cbranch_scc1 L_fin")
    e("v_lshlrev_b32 v13, 7, v%d" % vL); e("v_add_u32 v13, %d, v13" % WS_ML)
    def ld_all():
        for i in range(4):
            e("s_mov_b32 s%d, %d" % (sT0, 8192 * i))
            e("buffer_load_dwordx4 %s, v13, %s, s%d offen sc1" % (vr(16 + 4 * i), sr(sWS), sT0))
    ld_all()
    e("s_waitcnt vmcnt(0)")
    poll("ep", [16 + 4 * k for k in range(4)], 56, 57, ld_all, sleep=epsleep)
    e("v_mov_b32 v16, s%d" % sTAG)
    e("s_mov_b32 s%d, %d" % (sT0, WS_EP))
    e("s_mov_b64 exec, 1")
    e("buffer_store_dword v16, off, %s, s%d" % (sr(sWS), sT0))
    e("s_mov_b64 exec, -1")
    e.label("L_fin")
    if calib:
        e.label("L_cal")
        e("s_memrealtime s[98:99]"); e("s_waitcnt lgkmcnt(0)")
        e("s_sub_u32 s98, s98, s%d" % sST); e("s_cmp_lt_u32 s98, %d" % calib); e("s_cbranch_scc1 L_cal")
    if trace:
        trace_pt('fin')
        e("v_writelane_b32 v89, s%d, 63" % sST)
        e("s_add_u32 s92, s26, %d" % STAMP_OFF); e("s_addc_u32 s93, s27, 0"); e("s_mov_b32 s94, 0x100000"); e("s_mov_b32 s95, 0x20000")
        e("s_lshl_b32 s%d, s2, 2" % sT0); e("s_add_u32 s%d, s%d, s%d" % (sT0, sT0, sW)); e("s_lshl_b32 s%d, s%d, 9" % (sT0, sT0))
        e("v_lshlrev_b32 v10, 2, v%d" % vL); e("v_add_u32 v10, s%d, v10" % sT0)
        e("buffer_store_dword v88, v10, s[92:95], 0 offen")
        e("buffer_store_dword v89, v10, s[92:95], 0 offen offset:256")
        open("trace_names.txt", "w").write(" ".join(trnames))
    if stamps:
        stamp('fin')
        n = nst[0]
        e("s_add_u32 s92, s26, %d" % STAMP_OFF); e("s_addc_u32 s93, s27, 0"); e("s_mov_b32 s94, 0x100000"); e("s_mov_b32 s95, 0x20000")
        if allw:
            e("s_lshl_b32 s%d, s2, 2" % sT0); e("s_add_u32 s%d, s%d, s%d" % (sT0, sT0, sW)); e("s_mul_i32 s%d, s%d, %d" % (sT0, sT0, 8 * n))
        else:
            e("s_cmp_lg_u32 s%d, 0" % sW); e("s_cbranch_scc1 L_end")
            e("s_mul_i32 s%d, s2, %d" % (sT0, 8 * n))
        e("v_mov_b32 v10, s%d" % sT0); e("v_mov_b32 v13, 0")
        e("s_mov_b64 exec, 1")
        for k in range(n):
            e("v_mov_b32 v12, s%d" % (sST + k))
            e("buffer_store_dwordx2 v[12:13], v10, s[92:95], 0 offen offset:%d" % (8 * k))
            e("s_nop 1")
    e.label("L_end")
    e("s_endpgm")
    e.raw('.section .rodata,"a"'); e.raw(".p2align 6"); e.raw(".amdhsa_kernel %s_kernel" % NAME)
    for s in (".amdhsa_next_free_vgpr 512", ".amdhsa_next_free_sgpr 102", ".amdhsa_accum_offset 256",
              ".amdhsa_group_segment_fixed_size 0", ".amdhsa_kernarg_size 96", ".amdhsa_user_sgpr_count 2",
              ".amdhsa_user_sgpr_kernarg_segment_ptr 1", ".amdhsa_system_sgpr_workgroup_id_x 1"):
        e(s)
    e.raw(".end_amdhsa_kernel")
    return "\n".join(e.L) + "\n", nst[0]

if __name__ == "__main__":
    import argparse
    ap = argparse.ArgumentParser()
    ap.add_argument("out"); ap.add_argument("--stamps", action="store_true")
    ap.add_argument("--opt", default="")
    a = ap.parse_args()
    kw = eval("dict(%s)" % a.opt)
    s, n = gen(stamps=a.stamps, **kw)
    hdr = open("cdna_kernels/%s.s.ref" % NAME).read().split("; Override launch")[0]
    open(a.out, "w").write(hdr + s)
    print("wrote", a.out, "stamps", n)
```

```python
import struct, sys
NAME = "recurrent_scan__gqa_block_cached__geglu_ffn__decode"

def f2u(x): return struct.unpack("<I", struct.pack("<f", x))[0]
def hx(x): return "0x%08x" % (x & 0xffffffff)
LOG2E = 1.4426950408889634

WS_Q1 = 0
WS_P1 = 0x30000
P1_LO = 5 * 24576
WS_P2 = 0x6C000
WS_Y  = 0x8A000
WS_ML = 0x12A000
WS_EP = 0x12B000
WS_SIZE = 0x12C000
STAMP_OFF = 300 << 20
OOB = 0x7ffffff0

L_XN = 0
L_Q1 = 5120
PS2 = 528
L_QC = 9472
L_QB = 24064
L_F1 = 24576
L_F2 = 32768
L_ML = 36864
L_CNT = 36928
L_OP = 37120
PSTR = 784
L_YP = 43520
L_CO = 53760
L_CF = 54272
L_END = 54784

class Em:
    def __init__(self):
        self.L = []; self.vm = []; self.lab = 0
    def __call__(self, s): self.L.append("  " + s)
    def raw(self, s): self.L.append(s)
    def label(self, n): self.L.append(n + ":")
    def newlab(self, p):
        self.lab += 1; return "L_%s_%d" % (p, self.lab)
    def vmem(self, s, tag=None, counted=True):
        self.L.append("  " + s)
        if counted: self.vm.append(tag)
    def behind(self, tag):
        idx = max(i for i, t in enumerate(self.vm) if t == tag)
        return len(self.vm) - 1 - idx
    def wait_vm(self, tag):
        self("s_waitcnt vmcnt(%d)" % min(self.behind(tag), 63))

def vr(a, n=4): return "v[%d:%d]" % (a, a + n - 1)
def ar(a, n=4): return "a[%d:%d]" % (a, a + n - 1)
def sr(a, n=4): return "s[%d:%d]" % (a, a + n - 1)
DPP = "row_mask:0xf bank_mask:0xf"
X1, X2, HM, RM, R8 = "quad_perm:[1,0,3,2]", "quad_perm:[2,3,0,1]", "row_half_mirror", "row_mirror", "row_ror:8"

def gen(stamps=False, kvf="nt", wf="", qf="", ff="", RING=14, NE=5, st2_g=8, p1_g=0, ml_g=31, allw=False,
        sel=('b1', 'b2', 'vend', 'pub', 'fin'), ostep=2, ostart=0, k_pre=3, k_mid=3, qc_after=14, win=0, tmo=0x10000,
        trace=False, xspec=True, mlsleep=8, epsleep=8, nopoll=False, nocheck=False, stf='sc1', yf='sc1', cpf=0, calib=0, ysleep=1, pdepth=12, p1lo=False, ph=(1, 4, 8, 0), vrot=0, cf_g=12, cf2_g=25, of=''):
    e = Em()
    vL, vKV, vWQ, vWO, vPY = 1, 2, 3, 4, 5
    vM = 6; vA0 = 10; vA1 = 14; vACC = 18; vQF = 30; vS = 42
    vMW, vLW, vTAG = 74, 75, 76
    vQA, vFA, vP1O, vF1 = 78, 79, 80, 81
    T0, T1, T2, T3, T4, T5 = 82, 83, 84, 85, 86, 87
    RB = 256 - 12 * RING
    assert RB >= 88
    def rslot(i, t): return RB + 12 * i + 4 * t
    AVE = 240 - 12 * NE
    sK, sV, sRE, sWO, sX, sRO, sWD, sWS, sOUT, sWSF = 28, 32, 36, 40, 44, 48, 56, 60, 64, 92
    sS1, sS2, sKH, sNT = 52, 53, 54, 55
    sCONS = 52
    sTAG, sU, sACT, sFACT = 68, 69, 70, 71
    sW, sB, sH, sP, sFS, sKR, sC5, sRB, sSO, sT0, sT1, sT2 = 72, 73, 74, 75, 76, 77, 78, 79, 80, 81, 82, 83
    sEX = 84; sVAL = 86; sCNT = 88; sCI = 89; sFF = 90; sWQO = 91; sSEL = 24; sROT = 25; sMK = 4
    sST = 96
    nst = [0]
    def stamp(name):
        if trace: trace_pt(name); return
        if not stamps or name not in sel: return
        e("s_memrealtime s[%d:%d]" % (sEX, sEX + 1))
        e("s_waitcnt lgkmcnt(0)")
        e("s_mov_b32 s%d, s%d" % (sST + nst[0], sEX))
        nst[0] += 1
    tr = [0]; trnames = []
    def trace_pt(name):
        if not trace: return
        k = tr[0]; tr[0] += 1; trnames.append(name)
        e("s_memrealtime s[%d:%d]" % (sST + 2, sST + 3))
        e("s_waitcnt lgkmcnt(0)")
        e("v_writelane_b32 v%d, s%d, %d" % (88 + k // 64, sST + 2, k % 64))
    def mfma(d, a, b, c): e("v_mfma_f32_16x16x32_bf16 %s, %s, %s, %s" % (d, a, b, c))
    def afrag(dst, src):
        for r in range(4): e("v_and_b32 v%d, v%d, v%d" % (dst + r, src, vM + r))
    def tagit(dst, src):
        e("v_add_u32 v%d, 0x80, v%d" % (dst, src))
        e("v_bfi_b32 v%d, s%d, v%d, v%d" % (dst, sFF, vTAG, dst))
    def untag(dst, src): e("v_and_b32 v%d, 0xffffff00, v%d" % (dst, src))
    def piece_bad(p, t0, t1, dst):
        e("v_perm_b32 v%d, v%d, v%d, s%d" % (t0, p + 1, p, sSEL))
        e("v_perm_b32 v%d, v%d, v%d, s%d" % (t1, p + 3, p + 2, sSEL))
        e("v_lshl_or_b32 v%d, v%d, 16, v%d" % (t0, t1, t0))
        e("v_cmp_ne_u32 %s, v%d, v%d" % (dst, t0, vTAG + 1))
    def poll(name, pieces, t0, t1, reload, sleep=4):
        if nocheck: return
        lab = e.newlab(name + "ok"); lp = e.newlab(name + "loop")
        e("s_mov_b32 s%d, %d" % (sCNT, tmo))
        e.label(lp)
        for k, p in enumerate(pieces):
            piece_bad(p, t0, t1, "vcc" if k == 0 else sr(sEX, 2))
            if k: e("s_or_b64 vcc, vcc, %s" % sr(sEX, 2))
        e("s_nop 1")
        e("s_cbranch_vccz %s" % lab)
        e("s_sub_u32 s%d, s%d, 1" % (sCNT, sCNT)); e("s_cbranch_scc1 %s" % lab)
        if sleep: e("s_sleep %d" % sleep)
        reload()
        e("s_waitcnt vmcnt(0)")
        e("s_branch %s" % lp)
        e.label(lab)
    def mpoll(name, loads, t0, t1, sleep):
        lab = e.newlab(name + "ok"); lp = e.newlab(name + "loop")
        e("s_mov_b32 s%d, %d" % (sCNT, 16 * tmo))
        e.label(lp)
        for k, (p, _) in enumerate(loads): piece_bad(p, t0, t1, sr(sMK + 2 * k, 2))
        e("s_nop 0")
        e("s_or_b64 vcc, %s, %s" % (sr(sMK, 2), sr(sMK + 2, 2)))
        for k in range(2, len(loads)): e("s_or_b64 vcc, vcc, %s" % sr(sMK + 2 * k, 2))
        e("s_cbranch_scc0 %s" % lab)
        e("s_sub_u32 s%d, s%d, 1" % (sCNT, sCNT)); e("s_cbranch_scc1 %s" % lab)
        for k, (p, txt) in enumerate(loads):
            sk = e.newlab(name + "sk")
            e("s_mov_b64 exec, %s" % sr(sMK + 2 * k, 2))
            e("s_cbranch_execz %s" % sk)
            e(txt)
            e.label(sk)
        e("s_mov_b64 exec, -1")
        e("s_waitcnt vmcnt(%d)" % pdepth)
        if sleep: e("s_sleep %d" % sleep)
        e("s_branch %s" % lp)
        e.label(lab)

    e.raw("; @launch grid=(256,1,1) block=(256,1,1) lds=%d" % L_END)
    e.raw('.amdgcn_target "amdgcn-amd-amdhsa--gfx950"')
    e.raw(".text"); e.raw(".globl %s_kernel" % NAME); e.raw(".p2align 8"); e.raw(".type %s_kernel,@function" % NAME)
    e.label("%s_kernel" % NAME)
    e("s_cmp_ge_u32 s2, 256"); e("s_cbranch_scc1 L_end")
    e("s_load_dwordx16 s[4:19], s[0:1], 0")
    e("s_load_dwordx8 s[20:27], s[0:1], 64")
    if stamps or trace or calib:
        e("s_memrealtime s[%d:%d]" % (sST, sST + 1)); nst[0] = 1
    e("v_and_b32 v%d, 63, v0" % vL)
    e("v_lshrrev_b32 v%d, 6, v0" % T0)
    e("v_lshrrev_b32 v%d, 3, v%d" % (T1, vL))
    e("v_and_b32 v%d, 7, v%d" % (T2, vL))
    e("v_readfirstlane_b32 s%d, v%d" % (sW, T0))
    e("v_mul_u32_u24 v%d, 384, v%d" % (vKV, T1))
    e("v_lshl_add_u32 v%d, v%d, 4, v%d" % (vKV, T2, vKV))
    e("v_mul_u32_u24 v%d, 3072, v%d" % (T3, T0))
    e("v_add_u32 v%d, v%d, v%d" % (vKV, vKV, T3))
    e("v_lshl_add_u32 v%d, v%d, 3, v%d" % (vWQ, T0, T1))
    e("v_mul_u32_u24 v%d, 12288, v%d" % (vWQ, vWQ))
    e("v_lshl_add_u32 v%d, v%d, 4, v%d" % (vWQ, T2, vWQ))
    e("v_lshrrev_b32 v%d, 5, v%d" % (T3, vL))
    e("v_mul_u32_u24 v%d, 1280, v%d" % (T3, T3))
    e("v_and_b32 v%d, 31, v%d" % (T5, vL))
    e("v_lshl_add_u32 v%d, v%d, 4, v%d" % (T4, T5, T3))
    e("v_lshl_add_u32 v%d, v%d, 3, v%d" % (T5, T5, T3))
    e("v_lshrrev_b32 v%d, 4, v%d" % (T3, vL))
    e("v_lshl_add_u32 v%d, v%d, 2, v%d" % (vF1, T0, T3))
    e("v_mul_u32_u24 v%d, 3072, v%d" % (vF1, vF1))
    e("v_and_b32 v%d, 15, v%d" % (T1, vL))
    e("v_lshl_add_u32 v%d, v%d, 4, v%d" % (vF1, T1, vF1))
    e("s_and_b32 s%d, s2, 7" % sT0)
    e("s_lshr_b32 s%d, s2, 3" % sT1)
    e("s_lshr_b32 s%d, s%d, 3" % (sT2, sT1))
    e("s_lshl_b32 s%d, s%d, 2" % (sH, sT0))
    e("s_add_u32 s%d, s%d, s%d" % (sH, sH, sT2))
    e("s_and_b32 s%d, s%d, 7" % (sU, sT1))
    e("s_lshr_b32 s%d, s%d, 2" % (sB, sU))
    e("s_and_b32 s%d, s%d, 3" % (sT1, sT1))
    e("s_lshl_b32 s%d, s%d, 2" % (sP, sH))
    e("s_add_u32 s%d, s%d, s%d" % (sP, sP, sT1))
    e("s_lshl_b32 s%d, s%d, 7" % (sT0, sB))
    e("s_add_u32 s%d, s%d, s%d" % (sT0, sT0, sP))
    e("s_mul_i32 s%d, s%d, 393216" % (sT0, sT0))
    e("s_mov_b32 s%d, 393216" % (sK + 2)); e("s_mov_b32 s%d, 0x20000" % (sK + 3))
    e("s_mov_b32 s%d, 2560" % (sX + 2)); e("s_mov_b32 s%d, 0x20000" % (sX + 3))
    e("s_cmp_ge_u32 s%d, 3" % sU); e("s_cselect_b32 s%d, 1, 0" % sKH)
    e("s_mul_i32 s%d, s%d, 3" % (sT1, sKH)); e("s_sub_u32 s%d, s%d, s%d" % (sNT, sU, sT1))
    e("s_mul_i32 s%d, s%d, %d" % (sCI, sKH, 320 * 12288))
    e("s_mul_i32 s%d, s%d, 384" % (sT1, sH)); e("s_add_u32 s%d, s%d, s%d" % (sCI, sCI, sT1))
    e("s_lshl_b32 s%d, s%d, 7" % (sT1, sNT)); e("s_add_u32 s%d, s%d, s%d" % (sCI, sCI, sT1))
    e("s_lshl_b32 s%d, s%d, 1" % (sT1, sH)); e("s_add_u32 s%d, s%d, s%d" % (sT1, sT1, sU)); e("s_sub_u32 s%d, s%d, 6" % (sT1, sT1))
    e("s_and_b32 s%d, s%d, 63" % (sT1, sT1))
    e("s_mul_i32 s%d, s%d, 43" % (sKR, sT1)); e("s_lshr_b32 s%d, s%d, 9" % (sKR, sKR))
    e("s_mul_i32 s%d, s%d, 12" % (sT2, sKR)); e("s_sub_u32 s%d, s%d, s%d" % (sFS, sT1, sT2))
    e("s_cmp_lt_u32 s%d, 60" % sT1); e("s_cselect_b32 s%d, %d, 0" % (sFACT, 127 * 3072 + 256))
    e("s_min_u32 s%d, s%d, 4" % (sKR, sKR))
    e("s_mul_i32 s%d, s%d, %d" % (sCNT, sKR, 128 * 3072))
    e("s_lshl_b32 s%d, s%d, 8" % (sT2, sFS)); e("s_add_u32 s%d, s%d, s%d" % (sCNT, sCNT, sT2))
    e("s_mov_b32 s%d, 0x20000" % (sRE + 3)); e("s_mov_b32 s%d, 0x20000" % (sRO + 3))
    e("s_mov_b32 s%d, 786432" % sS2)
    e("s_cmp_ge_u32 s%d, 6" % sU)
    e("s_cselect_b32 s%d, s%d, %d" % (sRE + 2, sFACT, 319 * 12288 + 128))
    e("s_cselect_b32 s%d, s%d, %d" % (sRO + 2, sFACT, 319 * 12288 + 128))
    e("s_cselect_b32 s%d, 0, 393216" % sS1)
    e("s_cselect_b32 s%d, 49152, s%d" % (sS2, sS2))
    e("s_cselect_b32 s%d, s%d, s%d" % (sCI, sCNT, sCI))
    e("s_cselect_b64 vcc, -1, 0")
    e("s_waitcnt lgkmcnt(0)")
    e("s_cselect_b32 s%d, s16, s10" % sRE); e("s_cselect_b32 s%d, s17, s11" % (sRE + 1))
    e("s_cselect_b32 s%d, s18, s10" % sRO); e("s_cselect_b32 s%d, s19, s11" % (sRO + 1))
    e("s_mov_b32 s%d, s4" % sX); e("s_mov_b32 s%d, s5" % (sX + 1))
    e("v_cndmask_b32 v%d, v%d, v%d, vcc" % (vWQ, vWQ, vF1))
    e.vmem("buffer_load_dwordx4 %s, v%d, %s, 0 offen" % (vr(18), T4, sr(sX)), "x")
    e.vmem("buffer_load_dwordx4 %s, v%d, %s, 0 offen offset:512" % (vr(22), T4, sr(sX)), "x")
    e.vmem("buffer_load_dwordx2 %s, v%d, %s, 0 offen offset:1024" % (vr(26, 2), T5, sr(sX)), "x")
    e("s_add_u32 s%d, s%d, s%d" % (sRE, sRE, sCI)); e("s_addc_u32 s%d, s%d, 0" % (sRE + 1, sRE + 1))
    e("s_add_u32 s%d, s%d, s%d" % (sRO, sRO, sCI)); e("s_addc_u32 s%d, s%d, 0" % (sRO + 1, sRO + 1))
    e("s_add_u32 s%d, s6, s%d" % (sK, sT0)); e("s_addc_u32 s%d, s7, 0" % (sK + 1))
    e("s_add_u32 s%d, s8, s%d" % (sV, sT0)); e("s_addc_u32 s%d, s9, 0" % (sV + 1))

    ring = {}
    curwin = [0]
    def throttle(n=3):
        if curwin[0] and len(e.vm) + n > curwin[0]: e("s_waitcnt vmcnt(%d)" % (curwin[0] - n))
    def issue_kv(kind, g, rs):
        throttle()
        ring[(kind, g)] = rs
        srd = sK if kind == "K" else sV
        if ph:
            e("s_add_u32 s%d, s%d, %d" % (sSO, sROT, g)); e("s_and_b32 s%d, s%d, 31" % (sSO, sSO))
            e("s_mul_i32 s%d, s%d, 12288" % (sSO, sSO)); so = "s%d" % sSO
        elif g == 0: so = "0"
        else:
            e("s_mov_b32 s%d, %d" % (sSO, g * 12288)); so = "s%d" % sSO
        for t in range(3):
            e.vmem("buffer_load_dwordx4 %s, v%d, %s, %s offen offset:%d %s" % (reg_of(rs, t), vKV, sr(srd), so, t * 128, kvf), "%s%d" % (kind, g))
    def reg_of(rs, t):
        return ar(rs[1] + 4 * t) if isinstance(rs, tuple) else vr(rslot(rs, t))
    def issue_wo(n):
        throttle()
        last = None
        for t in range(3):
            z = 3 * n + t; i, seg = 2 * (z // 10) + (z & 1), (z % 10) >> 1
            if i == 0: so = "0"
            else:
                if last != i: e("s_mov_b32 s%d, %d" % (sSO, i * 5120))
                so = "s%d" % sSO
                last = i
            e.vmem("buffer_load_dwordx4 %s, v%d, %s, %s offen offset:%d %s" % (ar(4 * z), vWO, sr(sWO), so, seg * 256, wf), "O%d" % n)
    e("s_mov_b32 s%d, 0" % sCNT)
    for m in range(8):
        e.vmem("buffer_load_dwordx4 %s, v%d, %s, s%d offen %s" % (ar(8 * m), vWQ, sr(sRE), sCNT, qf), "R")
        e("s_add_u32 s%d, s%d, s%d" % (sSO, sCNT, sS1))
        e.vmem("buffer_load_dwordx4 %s, v%d, %s, s%d offen %s" % (ar(8 * m + 4), vWQ, sr(sRO), sSO, qf), "R")
        if m < 7: e("s_add_u32 s%d, s%d, s%d" % (sCNT, sCNT, sS2))
    if cpf:
        e("s_getpc_b64 s[6:7]")
        e.label("L_pc")
        e("s_sub_u32 s6, s6, L_pc-%s_kernel" % NAME); e("s_subb_u32 s7, s7, 0")
        e("s_lshr_b32 s8, s2, 3"); e("s_lshl_b32 s8, s8, 2"); e("s_add_u32 s8, s8, s%d" % sW)
        e("s_mul_i32 s8, s8, %d" % (64 * cpf)); e("s_min_u32 s8, s8, L_end-%s_kernel-%d" % (NAME, 64 * cpf))
        e("s_add_u32 s6, s6, s8"); e("s_addc_u32 s7, s7, 0")
        for k in range(cpf): e("s_load_dword s8, s[6:7], %d" % (64 * k))
    e("s_add_u32 s%d, s26, %d" % (sEX, WS_EP)); e("s_addc_u32 s%d, s27, 0" % (sEX + 1))
    e("s_load_dword s%d, s[%d:%d], 0" % (sTAG, sEX, sEX + 1))
    if ph:
        aj, ab, ah, ax = ph
        e("s_bfe_u32 s%d, s2, 0x20003" % sT0); e("s_mul_i32 s%d, s%d, %d" % (sROT, sT0, aj))
        e("s_mul_i32 s%d, s%d, %d" % (sT0, sB, ab)); e("s_add_u32 s%d, s%d, s%d" % (sROT, sROT, sT0))
        e("s_lshr_b32 s%d, s2, 6" % sT0); e("s_mul_i32 s%d, s%d, %d" % (sT0, sT0, ah)); e("s_add_u32 s%d, s%d, s%d" % (sROT, sROT, sT0))
        e("s_and_b32 s%d, s2, 7" % sT0); e("s_mul_i32 s%d, s%d, %d" % (sT0, sT0, ax)); e("s_add_u32 s%d, s%d, s%d" % (sROT, sROT, sT0))
    e("s_mov_b32 s%d, 393216" % (sV + 2)); e("s_mov_b32 s%d, 0x20000" % (sV + 3))
    e("s_mul_i32 s%d, s%d, 245760" % (sT0, sH))
    e("s_add_u32 s%d, s12, s%d" % (sWO, sT0)); e("s_addc_u32 s%d, s13, 0" % (sWO + 1))
    e("s_mov_b32 s%d, 245760" % (sWO + 2)); e("s_mov_b32 s%d, 0x20000" % (sWO + 3))
    e("s_mov_b32 s%d, s26" % sWS); e("s_mov_b32 s%d, s27" % (sWS + 1))
    e("s_mov_b32 s%d, %d" % (sWS + 2, WS_SIZE)); e("s_mov_b32 s%d, 0x20000" % (sWS + 3))
    e("s_mov_b32 s%d, s22" % sOUT); e("s_mov_b32 s%d, s23" % (sOUT + 1))
    e("s_mov_b32 s%d, 2560" % (sOUT + 2)); e("s_mov_b32 s%d, 0x20000" % (sOUT + 3))
    e("s_lshl_b32 s%d, s%d, 2" % (sT0, sH)); e("s_add_u32 s%d, s%d, s%d" % (sT0, sT0, sU))
    e("s_mul_i32 s%d, s%d, 205" % (sRB, sT0)); e("s_lshr_b32 s%d, s%d, 10" % (sRB, sRB))
    e("s_mul_i32 s%d, s%d, 5" % (sT1, sRB)); e("s_sub_u32 s%d, s%d, s%d" % (sC5, sT0, sT1))
    e("s_cmp_lt_u32 s%d, 4" % sU); e("s_cselect_b32 s%d, s%d, 255" % (sT0, sT0))
    e("s_cmp_lt_u32 s%d, 120" % sT0)
    e("s_cselect_b32 s%d, %d, 0" % (sWD + 2, 1536 * 1280))
    e("s_cselect_b32 s%d, %d, 0" % (sWSF + 2, WS_Y))
    e("s_cselect_b32 s%d, 1, 0" % sACT)
    e("s_mov_b32 s%d, s20" % sWD); e("s_mov_b32 s%d, s21" % (sWD + 1)); e("s_mov_b32 s%d, 0x20000" % (sWD + 3))
    e("s_mov_b32 s%d, s26" % sWSF); e("s_mov_b32 s%d, s27" % (sWSF + 1)); e("s_mov_b32 s%d, 0x20000" % (sWSF + 3))
    e("s_mov_b32 s%d, 0x00ff00ff" % sVAL); e("s_mov_b32 s%d, 0xff00ff00" % (sVAL + 1))
    e("v_mul_u32_u24 v%d, 1280, v%d" % (vWO, T3))
    e("v_lshl_add_u32 v%d, v%d, 4, v%d" % (vWO, T1, vWO))
    e("s_mul_i32 s%d, s%d, 61440" % (sT0, sW))
    e("v_add_u32 v%d, s%d, v%d" % (vWO, sT0, vWO))
    e("v_lshrrev_b32 v%d, 5, v%d" % (T0, vL))
    e("v_and_b32 v%d, 16, v%d" % (T3, vL))
    e("v_lshl_add_u32 v%d, v%d, 5, v%d" % (vP1O, T2, T3))
    e("v_mul_u32_u24 v%d, %d, v%d" % (vQA, PSTR, T0)); e("v_add_u32 v%d, v%d, v%d" % (vQA, vQA, vP1O))
    e("s_mul_i32 s%d, s%d, %d" % (sT0, sW, 2 * PSTR))
    e("v_add_u32 v%d, s%d, v%d" % (vQA, sT0, vQA))
    e("v_mul_u32_u24 v%d, %d, v%d" % (vF1, PS2, T0)); e("v_add_u32 v%d, v%d, v%d" % (vF1, vF1, vP1O))
    e("s_mul_i32 s%d, s%d, %d" % (sT0, sW, 2 * PS2))
    e("v_add_u32 v%d, s%d, v%d" % (vF1, sT0, vF1))
    e("v_lshlrev_b32 v%d, 9, v%d" % (vFA, T0)); e("v_lshl_add_u32 v%d, v%d, 5, v%d" % (vFA, T1, vFA))
    e("v_add_u32 v%d, v%d, v%d" % (vFA, vFA, T3))
    e("v_lshrrev_b32 v%d, 3, v0" % T0); e("v_lshlrev_b32 v%d, 14, v%d" % (T0, T0))
    e("v_lshl_add_u32 v%d, v%d, 4, v%d" % (T0, T2, T0))
    e("s_mul_i32 s%d, s%d, %d" % (sT0, sB, 20 * 16384))
    e("s_lshl_b32 s%d, s%d, 7" % (sT1, sP))
    e("s_add_u32 s%d, s%d, s%d" % (sT0, sT0, sT1)); e("s_add_u32 s%d, s%d, %d" % (sT0, sT0, WS_Y))
    e("v_cmp_gt_u32 vcc, 160, v0")
    e("v_add_u32 v%d, s%d, v%d" % (T0, sT0, T0))
    e("v_mov_b32 v%d, %d" % (vPY, OOB))
    e("v_cndmask_b32 v%d, v%d, v%d, vcc" % (vPY, vPY, T0))
    e("s_mov_b32 s%d, 0xff" % sFF); e("s_mov_b32 s%d, 0x0c0c0400" % sSEL)
    e("v_and_b32 v%d, 1, v%d" % (T0, vL))
    e("v_lshlrev_b32 v%d, 4, v%d" % (T0, T0))
    e("v_mov_b32 v%d, 0xffff" % T1)
    e("v_lshlrev_b32 v%d, v%d, v%d" % (T0, T0, T1))
    e("v_bfe_u32 v%d, v%d, 1, 2" % (T1, vL))
    for r in range(4):
        e("v_cmp_eq_u32 vcc, %d, v%d" % (r, T1))
        e("s_nop 1")
        e("v_cndmask_b32 v%d, 0, v%d, vcc" % (vM + r, T0))
    kn = [0]
    def more_k(n):
        for _ in range(n):
            if kn[0] < RING: issue_kv("K", kn[0], kn[0]); trace_pt("ik%d" % kn[0]); kn[0] += 1
    more_k(k_pre)
    stamp('iss')
    e.wait_vm("x")
    X = 28
    for r in range(10):
        e("v_lshlrev_b32 v%d, 16, v%d" % (X + 2 * r, 18 + r))
        e("v_and_b32 v%d, 0xffff0000, v%d" % (X + 2 * r + 1, 18 + r))
    def half_allreduce(v, t, op="v_add_f32"):
        for pat in (X1, X2, HM, RM):
            e("s_nop 1")
            e("%s_dpp v%d, v%d, v%d %s %s" % (op, v, v, v, pat, DPP))
        e("v_mov_b32 v%d, v%d" % (t, v))
        e("s_nop 1")
        e("v_permlane16_swap_b32 v%d, v%d" % (v, t))
        e("s_nop 1")
        e("%s v%d, v%d, v%d" % (op, v, v, t))
    for r in range(4): e("v_add_f32 v%d, v%d, v%d" % (48 + r, X + r, X + 4 + r))
    for k in range(8, 20): e("v_add_f32 v%d, v%d, v%d" % (48 + k % 4, 48 + k % 4, X + k))
    e("v_add_f32 v48, v48, v49"); e("v_add_f32 v50, v50, v51"); e("v_add_f32 v48, v48, v50")
    half_allreduce(48, 49)
    e("v_mul_f32 v48, %s, v48" % hx(f2u(1.0 / 640)))
    for k in range(20):
        e("v_sub_f32 v%d, v%d, v48" % (18 + k % 4, X + k))
        if k < 4: e("v_mul_f32 v%d, v%d, v%d" % (52 + k, 18 + k, 18 + k))
        else: e("v_fmac_f32 v%d, v%d, v%d" % (52 + k % 4, 18 + k % 4, 18 + k % 4))
    e("v_add_f32 v52, v52, v53"); e("v_add_f32 v54, v54, v55"); e("v_add_f32 v52, v52, v54")
    half_allreduce(52, 53)
    e("v_mul_f32 v52, %s, v52" % hx(f2u(1.0 / 640)))
    e("v_cvt_pk_bf16_f32 v48, v48, v52")
    e("v_and_b32 v52, 0xffff0000, v48")
    e("v_lshlrev_b32 v48, 16, v48")
    e("v_add_f32 v52, %s, v52" % hx(f2u(1e-5)))
    e("v_cvt_pk_bf16_f32 v52, v52, v52")
    e("v_and_b32 v52, 0xffff0000, v52")
    e("v_sqrt_f32 v52, v52")
    e("s_nop 0")
    e("v_cvt_pk_bf16_f32 v52, v52, v52")
    e("v_and_b32 v52, 0xffff0000, v52")
    e("v_rcp_f32 v53, v52")
    for k in range(0, 20, 2):
        a, b2 = X + k, X + k + 1
        e("v_sub_f32 v%d, v%d, v48" % (a, a)); e("v_sub_f32 v%d, v%d, v48" % (b2, b2))
        e("v_cvt_pk_bf16_f32 v18, v%d, v%d" % (a, b2))
        e("v_lshlrev_b32 v%d, 16, v18" % a); e("v_and_b32 v%d, 0xffff0000, v18" % b2)
        e("v_mul_f32 v19, v%d, v53" % a); e("v_mul_f32 v20, v%d, v53" % b2)
        e("v_fma_f32 v%d, -v19, v52, v%d" % (a, a)); e("v_fma_f32 v%d, -v20, v52, v%d" % (b2, b2))
        e("v_fmac_f32 v19, v%d, v53" % a); e("v_fmac_f32 v20, v%d, v53" % b2)
        e("v_cvt_pk_bf16_f32 v%d, v19, v19" % a); e("v_cvt_pk_bf16_f32 v%d, v20, v20" % b2)
    e("v_lshlrev_b32 v%d, 1, v%d" % (T4, T4)); e("v_lshlrev_b32 v%d, 1, v%d" % (T5, T5))
    e("ds_write_b128 v%d, %s offset:%d" % (T4, vr(X), L_XN))
    e("ds_write_b128 v%d, %s offset:%d" % (T4, vr(X + 4), L_XN + 16))
    e("ds_write_b128 v%d, %s offset:%d" % (T4, vr(X + 8), L_XN + 1024))
    e("ds_write_b128 v%d, %s offset:%d" % (T4, vr(X + 12), L_XN + 1024 + 16))
    e("ds_write_b128 v%d, %s offset:%d" % (T5, vr(X + 16), L_XN + 2048))
    e("v_mov_b32 v%d, %d" % (T4, L_CNT)); e("v_mov_b32 v%d, 0" % T5)
    e("s_waitcnt lgkmcnt(0)")
    e("s_add_u32 s%d, s%d, 1" % (sTAG, sTAG))
    e("s_and_b32 s%d, s%d, 0xff" % (sT0, sTAG)); e("s_mul_i32 s%d, s%d, 0x01010101" % (sT1, sT0))
    e("ds_write_b32 v%d, v%d" % (T4, T5))
    e("v_mov_b32 v%d, s%d" % (vTAG, sT0)); e("v_mov_b32 v%d, s%d" % (vTAG + 1, sT1))
    more_k(k_mid)
    stamp('ln')
    e("s_cmp_ge_u32 s%d, 6" % sU); e("s_cbranch_scc1 L_frole")
    e("s_mul_i32 s%d, s%d, 1280" % (sT0, sKH)); e("s_lshl_b32 s%d, s%d, 5" % (sT1, sW)); e("s_add_u32 s%d, s%d, s%d" % (sT0, sT0, sT1))
    e("v_lshrrev_b32 v%d, 3, v%d" % (T0, vL)); e("v_lshlrev_b32 v%d, 2, v%d" % (T1, T0))
    e("v_add_u32 v%d, s%d, v%d" % (T1, sT0, T1))
    for n in range(10):
        e("ds_read_b32 v%d, v%d offset:%d" % (vS + 2 * n, T1, 128 * n))
        e("ds_read_b32 v%d, v%d offset:%d" % (vS + 2 * n + 1, T1, 128 * n + 2560))
        if n == 6: e("s_waitcnt lgkmcnt(8)")
    e("s_waitcnt lgkmcnt(0)")
    for n in range(10):
        afrag(vA0, vS + 2 * n); afrag(vA1, vS + 2 * n + 1)
        if n == 0: e.wait_vm("R")
        else: e("s_nop 0")
        mfma(vr(vACC), vr(vA0), ar(4 * n), "0" if n == 0 else vr(vACC))
        mfma(vr(vACC + 4), vr(vA1), ar(4 * n), "0" if n == 0 else vr(vACC + 4))
    e("v_and_b32 v%d, 31, v%d" % (T1, vL)); e("v_lshlrev_b32 v%d, 4, v%d" % (T1, T1))
    e("v_bfe_u32 v%d, v%d, 4, 1" % (T3, vL)); e("v_mul_u32_u24 v%d, 3072, v%d" % (T3, T3))
    e("v_and_b32 v%d, 15, v%d" % (T4, vL)); e("v_lshl_add_u32 v%d, v%d, 4, v%d" % (T3, T4, T3))
    e("v_lshrrev_b32 v%d, 5, v%d" % (T4, vL)); e("v_mul_u32_u24 v%d, 768, v%d" % (T4, T4)); e("v_add_u32 v%d, v%d, v%d" % (T3, T3, T4))
    e("s_mul_i32 s%d, s%d, 6144" % (sT0, sH)); e("s_mul_i32 s%d, s%d, 1536" % (sT1, sKH)); e("s_add_u32 s%d, s%d, s%d" % (sT0, sT0, sT1))
    e("s_lshl_b32 s%d, s%d, 8" % (sT1, sNT)); e("s_add_u32 s%d, s%d, s%d" % (sT0, sT0, sT1))
    e("s_mov_b64 exec, %s" % sr(sVAL, 2))
    e("ds_write_b128 v%d, %s offset:%d" % (vF1, vr(vACC), L_Q1))
    e("ds_write_b128 v%d, %s offset:%d" % (vF1, vr(vACC + 4), L_Q1 + 256))
    e("s_mov_b64 exec, -1")
    e("s_waitcnt lgkmcnt(0)")
    e("s_barrier")
    e("s_cmp_lg_u32 s%d, 0" % sW); e("s_cbranch_scc1 L_rdone")
    for pp in range(8): e("ds_read_b128 %s, v%d offset:%d" % (vr(vS + 4 * pp), T1, L_Q1 + pp * PS2))
    e("s_waitcnt lgkmcnt(6)")
    for r in range(4): e("v_add_f32 v%d, v%d, v%d" % (18 + r, vS + r, vS + 4 + r))
    for pp in range(2, 8):
        e("s_waitcnt lgkmcnt(%d)" % (7 - pp))
        for r in range(4): e("v_add_f32 v%d, v%d, v%d" % (18 + r, 18 + r, vS + 4 * pp + r))
    e("s_mov_b32 exec_lo, 0")
    for r in range(4): untag(22 + r, 18 + r)
    for r in range(4): e("v_sub_f32 v%d, v%d, v%d" % (18 + r, 18 + r, 22 + r))
    e("s_mov_b64 exec, -1")
    for r in range(4): e("v_bfi_b32 v%d, s%d, v%d, v%d" % (18 + r, sFF, vTAG, 18 + r))
    e.vmem("buffer_store_dwordx4 v[18:21], v%d, %s, s%d offen %s" % (T3, sr(sWS), sT0, stf), counted=False)
    e("s_branch L_rdone")
    e.label("L_frole")
    e("v_bfe_u32 v%d, v%d, 3, 1" % (T0, vL)); e("v_mul_u32_u24 v%d, 2560, v%d" % (T0, T0))
    e("v_lshrrev_b32 v%d, 4, v%d" % (T3, vL)); e("v_lshl_add_u32 v%d, v%d, 2, v%d" % (T0, T3, T0))
    e("s_lshl_b32 s%d, s%d, 9" % (sT0, sKR)); e("s_lshl_b32 s%d, s%d, 4" % (sT1, sW)); e("s_add_u32 s%d, s%d, s%d" % (sT0, sT0, sT1))
    e("v_add_u32 v%d, s%d, v%d" % (T0, sT0, T0))
    for m in range(0, 8, 2): e("ds_read2_b32 v[%d:%d], v%d offset0:%d offset1:%d" % (vS + m, vS + m + 1, T0, 16 * m, 16 * m + 16))
    e("s_waitcnt lgkmcnt(0)")
    for m in range(8):
        A = vA0 if m % 2 == 0 else vA1
        afrag(A, vS + m)
        e("s_nop 0")
        if m == 0: e.wait_vm("R")
        else: e("s_nop 0")
        mfma(vr(vACC), vr(A), ar(8 * m), "0" if m == 0 else vr(vACC))
        mfma(vr(vACC + 4), vr(A), ar(8 * m + 4), "0" if m == 0 else vr(vACC + 4))
    e("s_lshl_b32 s%d, s%d, 11" % (sT0, sW))
    e("v_add_u32 v%d, s%d, v%d" % (T0, sT0, vFA))
    e("v_bfe_u32 v%d, v0, 1, 2" % T2); e("v_lshlrev_b32 v%d, 9, v%d" % (T2, T2))
    e("v_bfe_u32 v%d, v0, 3, 4" % T3); e("v_lshl_add_u32 v%d, v%d, 5, v%d" % (T2, T3, T2))
    e("v_and_b32 v%d, 1, v0" % T4); e("v_lshl_add_u32 v%d, v%d, 4, v%d" % (T2, T4, T2))
    e("v_and_b32 v%d, 127, v0" % T3); e("v_lshlrev_b32 v%d, 4, v%d" % (T3, T3))
    e("s_mul_i32 s%d, s%d, 24576" % (sT0, sKR)); e("s_lshl_b32 s%d, s%d, 11" % (sT1, sFS))
    e("s_add_u32 s%d, s%d, s%d" % (sT0, sT0, sT1)); e("s_add_u32 s%d, s%d, %d" % (sT0, sT0, WS_P1))
    e("ds_write_b128 v%d, %s offset:%d" % (T0, vr(vACC), L_F1))
    e("ds_write_b128 v%d, %s offset:%d" % (T0, vr(vACC + 4), L_F1 + 1024))
    e("s_waitcnt lgkmcnt(0)")
    e("s_barrier")
    e("s_cmp_eq_u32 s%d, 0" % sFACT); e("s_cbranch_scc1 L_rdone")
    for pp in range(4): e("ds_read_b128 %s, v%d offset:%d" % (vr(vS + 4 * pp), T2, L_F1 + pp * 2048))
    e("s_waitcnt lgkmcnt(0)")
    for r in range(4): e("v_add_f32 v%d, v%d, v%d" % (18 + r, vS + r, vS + 4 + r))
    for pp in (2, 3):
        for r in range(4): e("v_add_f32 v%d, v%d, v%d" % (18 + r, 18 + r, vS + 4 * pp + r))
    if p1lo:
        lab = e.newlab("p1hi")
        e("s_cmp_lt_u32 s%d, 2" % sW); e("s_cbranch_scc1 %s" % lab)
        for r in range(4): untag(22 + r, 18 + r)
        for r in range(4): e("v_sub_f32 v%d, v%d, v%d" % (18 + r, 18 + r, 22 + r))
        e("s_add_u32 s%d, s%d, %d" % (sT0, sT0, P1_LO))
        e.label(lab)
        for r in range(4): e("v_bfi_b32 v%d, s%d, v%d, v%d" % (18 + r, sFF, vTAG, 18 + r))
    else:
        e("s_cmp_ge_u32 s%d, 2" % sW); e("s_cbranch_scc1 L_rdone")
        for r in range(4): tagit(18 + r, 18 + r)
    e.vmem("buffer_store_dwordx4 v[18:21], v%d, %s, s%d offen %s" % (T3, sr(sWS), sT0, stf), counted=False)
    e.label("L_rdone")
    stamp('q1')
    e("s_lshl_b32 s%d, s%d, 1" % (sT0, sH)); e("s_add_u32 s%d, s%d, s%d" % (sT0, sT0, sB)); e("s_mul_i32 s%d, s%d, 3072" % (sT0, sT0))
    e("s_mul_i32 s%d, s%d, 768" % (sT1, sW)); e("s_add_u32 s%d, s%d, s%d" % (sT0, sT0, sT1))
    e("v_lshlrev_b32 v%d, 4, v%d" % (T4, vL)); e("v_add_u32 v%d, s%d, v%d" % (vWQ, sT0, T4))
    vQC = vS
    def issue_qc(counted):
        e.vmem("buffer_load_dwordx4 %s, v%d, %s, 0 offen sc1" % (vr(vQC), vWQ, sr(sWS)), "QC", counted=counted)
    more_k(qc_after - kn[0])
    e("s_mov_b32 exec_hi, 0xffff")
    issue_qc(True)
    e("s_mov_b64 exec, -1")
    more_k(RING)
    for g in range(NE): issue_kv("V", g, ('a', AVE + 12 * g)); trace_pt("iv%d" % g)
    e("s_mul_i32 s%d, s%d, 768" % (sT0, sW)); e("s_add_u32 s%d, s%d, %d" % (sT0, sT0, L_QC))
    e("v_lshlrev_b32 v%d, 3, v%d" % (T2, vL)); e("v_add_u32 v%d, s%d, v%d" % (T3, sT0, T4))
    e("v_and_b32 v%d, 7, v%d" % (T5, vL)); e("v_lshlrev_b32 v%d, 4, v%d" % (T5, T5))
    stamp('iss2')
    e.wait_vm("QC")
    e("s_mov_b32 exec_hi, 0xffff")
    poll("qc", [vQC], T0, T1, lambda: issue_qc(False))
    for r in range(4): untag(vQC + r, vQC + r)
    e("ds_write_b128 v%d, %s" % (T3, vr(vQC)))
    e("s_mov_b64 exec, -1")
    e("s_waitcnt lgkmcnt(0)")
    e("s_barrier")
    stamp('b1')
    e("ds_read_b128 %s, v%d offset:%d" % (vr(vQF), T4, L_QC))
    e("ds_read_b128 %s, v%d offset:%d" % (vr(vQF + 4), T4, L_QC + 768))
    e("ds_read_b128 %s, v%d offset:%d" % (vr(vQF + 8), T4, L_QC + 1536))
    e("ds_read_b128 %s, v%d offset:%d" % (vr(vA0), T4, L_QC + 2304))
    for g in range(32): e("v_mov_b32 v%d, 0" % (vS + g))
    e("s_waitcnt lgkmcnt(0)")
    for r in range(4): e("v_add_f32 v%d, v%d, v%d" % (vQF + r, vQF + r, vQF + 4 + r))
    for r in range(4): e("v_add_f32 v%d, v%d, v%d" % (vQF + 8 + r, vQF + 8 + r, vA0 + r))
    for r in range(4): e("v_add_f32 v%d, v%d, v%d" % (vQF + r, vQF + r, vQF + 8 + r))
    e("v_cvt_pk_bf16_f32 v%d, v%d, v%d" % (vQF, vQF, vQF + 1))
    e("v_cvt_pk_bf16_f32 v%d, v%d, v%d" % (vQF + 1, vQF + 2, vQF + 3))
    e("ds_write_b64 v%d, %s offset:%d" % (T2, vr(vQF, 2), L_QB))
    e("s_waitcnt lgkmcnt(0)")
    for t in range(3): e("ds_read_b128 %s, v%d offset:%d" % (vr(vQF + 4 * t), T5, L_QB + t * 128))
    e("s_waitcnt lgkmcnt(0)")

    vP1 = 10
    def issue_p1(counted):
        e.vmem("buffer_load_dwordx4 %s, v%d, %s, 0 offen sc1" % (vr(vP1), vP1O, sr(sWSF)), "P1", counted=counted)
        e.vmem("buffer_load_dwordx4 %s, v%d, %s, 0 offen sc1" % (vr(vP1 + 4), vF1, sr(sWSF)), "P1", counted=counted)
        if not p1lo: return
        e("s_mov_b32 s%d, %d" % (sSO, P1_LO))
        e.vmem("buffer_load_dwordx4 %s, v%d, %s, s%d offen sc1" % (vr(vP1 + 8), vP1O, sr(sWSF), sSO), "P1", counted=counted)
        e.vmem("buffer_load_dwordx4 %s, v%d, %s, s%d offen sc1" % (vr(vP1 + 12), vF1, sr(sWSF), sSO), "P1", counted=counted)
    def start_p1():
        e("s_lshl_b32 s%d, s%d, 2" % (sT0, sRB)); e("s_add_u32 s%d, s%d, s%d" % (sT0, sT0, sW))
        e("s_lshl_b32 s%d, s%d, 8" % (sT1, sT0)); e("s_add_u32 s%d, s%d, %d" % (sT1, sT1, WS_P1))
        e("v_and_b32 v%d, 15, v%d" % (vF1, vL)); e("v_lshlrev_b32 v%d, 4, v%d" % (vF1, vF1)); e("v_add_u32 v%d, s%d, v%d" % (vF1, sT1, vF1))
        e("v_lshrrev_b32 v%d, 4, v%d" % (vP1O, vL)); e("v_mul_u32_u24 v%d, 24576, v%d" % (vP1O, vP1O)); e("v_add_u32 v%d, v%d, v%d" % (vP1O, vP1O, vF1))
        e("v_add_u32 v%d, %d, v%d" % (vF1, 4 * 24576, vF1))
        issue_p1(True)
        e("s_mul_i32 s%d, s%d, 20480" % (sT1, sT0))
        e("s_lshl_b32 s%d, s%d, 8" % (sT2, sC5)); e("s_add_u32 s%d, s%d, s%d" % (sT1, sT1, sT2))
        e("s_mul_i32 s%d, s%d, 61440" % (sT2, sW))
        e("v_subrev_u32 v%d, s%d, v%d" % (T1, sT2, vWO))
        for i in range(4):
            e.vmem("buffer_load_dwordx4 %s, v%d, %s, s%d offen %s" % (ar(240 + 4 * i), T1, sr(sWD), sT1, ff), "WD")
            if i < 3: e("s_add_u32 s%d, s%d, 5120" % (sT1, sT1))
    def stage2():
        skip = e.newlab("nost2")
        e("s_cmp_eq_u32 s%d, 0" % sACT); e("s_cbranch_scc1 %s" % skip)
        e.wait_vm("WD")
        poll("p1", [vP1, vP1 + 4, vP1 + 8, vP1 + 12][:4 if p1lo else 2], T1, T2, lambda: issue_p1(False))
        for r in range(16 if p1lo else 8): untag(10 + r, 10 + r)
        if p1lo:
            for r in range(8): e("v_add_f32 v%d, v%d, v%d" % (10 + r, 10 + r, 18 + r))
        e("s_mov_b64 exec, 0xffff")
        for r in range(4): e("v_add_f32 v%d, v%d, v%d" % (10 + r, 10 + r, 14 + r))
        e("s_mov_b64 exec, -1")
        for sw in ("v_permlane16_swap_b32", "v_permlane32_swap_b32"):
            for r in range(4): e("v_mov_b32 v%d, v%d" % (14 + r, 10 + r))
            e("s_nop 0")
            for r in range(4): e("%s v%d, v%d" % (sw, 10 + r, 14 + r))
            e("s_nop 0")
            for r in range(4): e("v_add_f32 v%d, v%d, v%d" % (10 + r, 10 + r, 14 + r))
        e("v_cvt_pk_bf16_f32 v14, v10, v11"); e("v_cvt_pk_bf16_f32 v15, v12, v13")
        e("v_lshlrev_b32 v10, 16, v14"); e("v_and_b32 v11, 0xffff0000, v14")
        e("v_lshlrev_b32 v12, 16, v15"); e("v_and_b32 v13, 0xffff0000, v15")
        e("s_nop 0")
        for r in range(4): e("v_mov_b32_dpp v%d, v%d row_shl:4 %s" % (14 + r, 10 + r, DPP))
        for k in range(4): e("v_mul_f32 v%d, v%d, v%d" % (18 + k, 10 + k, 10 + k))
        for k in range(4): e("v_mul_f32 v%d, %s, v%d" % (18 + k, hx(f2u(0.044715)), 18 + k))
        for k in range(4): e("v_fma_f32 v%d, v%d, v%d, v%d" % (18 + k, 18 + k, 10 + k, 10 + k))
        for k in range(4): e("v_mul_f32 v%d, %s, v%d" % (18 + k, hx(f2u(-2.0 * LOG2E * 0.7978845608028654)), 18 + k))
        for k in range(4): e("v_exp_f32 v%d, v%d" % (18 + k, 18 + k))
        for k in range(4): e("v_add_f32 v%d, 1.0, v%d" % (18 + k, 18 + k))
        for k in range(4): e("v_rcp_f32 v%d, v%d" % (18 + k, 18 + k))
        for k in range(4): e("v_mul_f32 v%d, v%d, v%d" % (18 + k, 10 + k, 18 + k))
        e("v_cvt_pk_bf16_f32 v10, v18, v19"); e("v_cvt_pk_bf16_f32 v11, v20, v21")
        e("v_lshlrev_b32 v18, 16, v10"); e("v_and_b32 v19, 0xffff0000, v10")
        e("v_lshlrev_b32 v20, 16, v11"); e("v_and_b32 v21, 0xffff0000, v11")
        for k in range(4): e("v_mul_f32 v%d, v%d, v%d" % (18 + k, 18 + k, 14 + k))
        e("v_cvt_pk_bf16_f32 v28, v18, v19"); e("v_cvt_pk_bf16_f32 v29, v20, v21")
        e("v_bfe_u32 v18, v%d, 3, 1" % vL); e("v_lshlrev_b32 v18, 3, v18")
        for i, off in enumerate((0, 4, 32, 36)):
            e("ds_bpermute_b32 v%d, v18, v28 offset:%d" % (10 + i, off)); e("ds_bpermute_b32 v%d, v18, v29 offset:%d" % (14 + i, off))
        e("v_lshrrev_b32 v19, 4, v%d" % vL); e("v_mul_u32_u24 v19, 0x0202, v19"); e("v_add_u32 v19, 0x0100, v19")
        e("v_lshl_or_b32 v19, v19, 16, v19")
        e("s_waitcnt lgkmcnt(0)")
        for i in range(4): e("v_perm_b32 v%d, v%d, v%d, v19" % (10 + i, 14 + i, 10 + i))
        for i in range(4):
            A = 20 if i % 2 == 0 else 24
            afrag(A, 10 + i)
            e("s_nop 1")
            mfma(vr(16), vr(A), ar(240 + 4 * i), "0" if i == 0 else vr(16))
        e("s_lshl_b32 s%d, s%d, 10" % (sT0, sW))
        e("v_add_u32 v10, s%d, v%d" % (sT0, vFA))
        e("v_mov_b32 v11, %d" % L_CNT); e("v_mov_b32 v12, 1")
        e("s_nop 5")
        e("ds_write_b128 v10, %s offset:%d" % (vr(16), L_F2))
        e("s_waitcnt lgkmcnt(0)")
        e("s_mov_b64 exec, 1")
        e("ds_add_rtn_u32 v12, v11, v12")
        e("s_mov_b64 exec, -1")
        e("s_waitcnt lgkmcnt(0)")
        e("v_readfirstlane_b32 s%d, v12" % sT0)
        e("s_nop 3")
        e("s_cmp_lg_u32 s%d, 3" % sT0); e("s_cbranch_scc1 %s" % skip)
        e("v_lshlrev_b32 v28, 4, v%d" % vL)
        for pp in range(4): e("ds_read_b128 %s, v28 offset:%d" % (vr(10 + 4 * pp), L_F2 + pp * 1024))
        e("v_lshrrev_b32 v28, 3, v%d" % vL); e("v_mul_u32_u24 v28, 3072, v28")
        e("v_and_b32 v29, 7, v%d" % vL); e("v_lshl_add_u32 v28, v29, 4, v28")
        e("s_mul_i32 s%d, s%d, %d" % (sT0, sC5, 8 * 3072))
        e("s_lshl_b32 s%d, s%d, 7" % (sT1, sRB))
        e("s_add_u32 s%d, s%d, s%d" % (sT0, sT0, sT1)); e("s_add_u32 s%d, s%d, %d" % (sT0, sT0, WS_P2))
        e("s_waitcnt lgkmcnt(0)")
        for pp in range(1, 4):
            for r in range(4): e("v_add_f32 v%d, v%d, v%d" % (10 + r, 10 + r, 10 + 4 * pp + r))
        for r in range(4): tagit(10 + r, 10 + r)
        e.vmem("buffer_store_dwordx4 %s, v28, %s, s%d offen %s" % (vr(10), sr(sWSF), sT0, stf), counted=False)
        e("s_nop 1")
        e.label(skip)

    curwin[0] = win
    sc = hx(f2u(192 ** -0.5))
    nwo = [0]
    NO1 = AVE // 12
    def finish_scores(g0):
        a, b2, t = vS + g0, vS + g0 + 1, T0
        for pat in (X1, X2, HM):
            e("v_add_f32_dpp v%d, v%d, v%d %s %s" % (a, a, a, pat, DPP))
            e("v_add_f32_dpp v%d, v%d, v%d %s %s" % (b2, b2, b2, pat, DPP))
            e("s_nop 0")
        e("v_cvt_pk_bf16_f32 v%d, v%d, v%d" % (t, a, b2))
        e("v_lshlrev_b32 v%d, 16, v%d" % (a, t)); e("v_and_b32 v%d, 0xffff0000, v%d" % (b2, t))
        e("v_mul_f32 v%d, %s, v%d" % (a, sc, a)); e("v_mul_f32 v%d, %s, v%d" % (b2, sc, b2))
        e("v_cvt_pk_bf16_f32 v%d, v%d, v%d" % (t, a, b2))
        e("v_lshlrev_b32 v%d, 16, v%d" % (a, t)); e("v_and_b32 v%d, 0xffff0000, v%d" % (b2, t))
        if g0 == 0: e("v_max_f32 v%d, v%d, v%d" % (vMW, a, b2))
        else: e("v_max3_f32 v%d, v%d, v%d, v%d" % (vMW, vMW, a, b2))
    vn = [NE]
    for g in range(32):
        e.wait_vm("K%d" % g)
        stamp('k%d' % g)
        rs = ring[("K", g)]
        for t in range(3):
            for r in range(4):
                e("v_dot2c_f32_bf16 v%d, v%d, v%d" % (vS + g, rslot(rs, t) + r, vQF + 4 * t + r))
        if g + RING < 32: issue_kv("K", g + RING, rs)
        else: issue_kv("V", vn[0], rs); vn[0] += 1
        if nwo[0] < NO1 and g >= ostart and (g - ostart) % ostep == 0:
            issue_wo(nwo[0]); nwo[0] += 1
        if g == p1_g: start_p1()
        if g == st2_g: stage2()
        if g % 2 == 1 and g >= 3: finish_scores(g - 3)
    e("s_nop 2")
    finish_scores(30)
    def group_allreduce(v, t, op):
        e("s_nop 1")
        e("%s_dpp v%d, v%d, v%d %s %s" % (op, v, v, v, R8, DPP))
        e("v_mov_b32 v%d, v%d" % (t, v)); e("s_nop 1")
        e("v_permlane16_swap_b32 v%d, v%d" % (v, t)); e("s_nop 1")
        e("%s v%d, v%d, v%d" % (op, v, v, t))
        e("v_mov_b32 v%d, v%d" % (t, v)); e("s_nop 1")
        e("v_permlane32_swap_b32 v%d, v%d" % (v, t)); e("s_nop 1")
        e("%s v%d, v%d, v%d" % (op, v, v, t))
    group_allreduce(vMW, T0, "v_max_f32")
    l2e = hx(f2u(LOG2E))
    for g in range(32): e("v_sub_f32 v%d, v%d, v%d" % (vS + g, vS + g, vMW))
    for g in range(32): e("v_mul_f32 v%d, %s, v%d" % (vS + g, l2e, vS + g))
    for g in range(32): e("v_exp_f32 v%d, v%d" % (vS + g, vS + g))
    e("v_add_f32 v%d, v%d, v%d" % (vLW, vS, vS + 1)); e("v_add_f32 v%d, v%d, v%d" % (T0, vS + 2, vS + 3))
    for g in range(4, 32, 2):
        e("v_add_f32 v%d, v%d, v%d" % (vLW, vLW, vS + g)); e("v_add_f32 v%d, v%d, v%d" % (T0, T0, vS + g + 1))
    e("v_add_f32 v%d, v%d, v%d" % (vLW, vLW, T0))
    group_allreduce(vLW, T0, "v_add_f32")
    e("s_lshl_b32 s%d, s%d, 3" % (sT0, sW)); e("s_add_u32 s%d, s%d, %d" % (sT0, sT0, L_ML)); e("v_mov_b32 v%d, s%d" % (T0, sT0))
    e("ds_write_b64 v%d, v[%d:%d]" % (T0, vMW, vLW))
    e("v_and_b32 v%d, 3, v%d" % (T0, vL)); e("v_lshlrev_b32 v%d, 3, v%d" % (T0, T0))
    e("s_waitcnt lgkmcnt(0)")
    e("s_barrier")
    e("ds_read_b64 v[30:31], v%d offset:%d" % (T0, L_ML))
    e("s_waitcnt lgkmcnt(0)")
    e("v_mov_b32 v32, v30")
    for pat in (X1, X2):
        e("s_nop 1"); e("v_max_f32_dpp v32, v32, v32 %s %s" % (pat, DPP))
    e("v_sub_f32 v30, v30, v32"); e("v_sub_f32 v33, v%d, v32" % vMW)
    e("v_mul_f32 v30, %s, v30" % l2e); e("v_mul_f32 v33, %s, v33" % l2e)
    e("v_exp_f32 v30, v30"); e("v_exp_f32 v33, v33")
    e("s_nop 0")
    e("v_mul_f32 v30, v30, v31")
    for pat in (X1, X2):
        e("s_nop 1"); e("v_add_f32_dpp v30, v30, v30 %s %s" % (pat, DPP))
    e("v_rcp_f32 v31, v30")
    tagit(34, 32); tagit(35, 30); tagit(36, 32); tagit(37, 30)
    vFAC = 41
    e("v_mul_f32 v%d, v33, v31" % vFAC)
    e("s_lshl_b32 s%d, s%d, 7" % (sT0, sB)); e("s_add_u32 s%d, s%d, s%d" % (sT0, sT0, sP))
    e("s_lshl_b32 s%d, s%d, 4" % (sT0, sT0)); e("s_add_u32 s%d, s%d, %d" % (sWQO, sT0, WS_ML))
    stamp('b2')

    aY, aML, cF, cX, aOUT, aCO, aCR, cG = 42, 43, 44, 48, 49, 50, 51, 52
    def quad_reduce(q):
        e("s_nop 0")
        e("v_permlane32_swap_b32 v%d, v%d" % (q, q + 1)); e("v_permlane32_swap_b32 v%d, v%d" % (q + 2, q + 3)); e("s_nop 0")
        e("v_add_f32 v%d, v%d, v%d" % (q, q, q + 1)); e("v_add_f32 v%d, v%d, v%d" % (q + 2, q + 2, q + 3)); e("s_nop 1")
        e("v_permlane16_swap_b32 v%d, v%d" % (q, q + 2)); e("s_nop 0")
        e("v_add_f32 v%d, v%d, v%d" % (q, q, q + 2)); e("s_nop 1")
        e("v_add_f32_dpp v%d, v%d, v%d %s %s" % (q, q, q, R8, DPP))
    def ld_f(counted): e.vmem("buffer_load_dwordx4 %s, v%d, %s, 0 offen sc1" % (vr(cF), 53, sr(sWSF)), "CF", counted=counted)
    def consumer_setup():
        e("s_and_b32 s%d, s2, 1" % sT0); e("s_lshl_b32 s%d, s%d, 8" % (sT0, sT0)); e("s_add_u32 s%d, s%d, s2" % (sT0, sT0))
        e("s_cmp_lt_u32 s%d, 80" % sT0)
        e("s_cselect_b32 s%d, 1, 0" % sCONS); e("s_cselect_b32 s%d, %d, 0" % (sWSF + 2, WS_SIZE))
        e("s_lshr_b32 s%d, s2, 1" % sCI)
        e("s_cmp_ge_u32 s%d, 20" % sCI); e("s_cselect_b32 s%d, 1, 0" % sB)
        e("s_mul_i32 s%d, s%d, 20" % (sT0, sB)); e("s_sub_u32 s%d, s%d, s%d" % (sH, sCI, sT0))
        e("v_lshlrev_b32 v53, 4, v%d" % vL)
        e("s_lshl_b32 s%d, s%d, 14" % (sT0, sCI)); e("s_lshl_b32 s%d, s%d, 12" % (sT1, sW))
        e("s_add_u32 s%d, s%d, s%d" % (sT0, sT0, sT1)); e("s_add_u32 s%d, s%d, %d" % (sT0, sT0, WS_Y))
        e("v_add_u32 v%d, s%d, v53" % (aY, sT0))
        e("s_lshr_b32 s%d, s%d, 2" % (sT0, sH)); e("s_lshl_b32 s%d, s%d, 1" % (sT0, sT0)); e("s_add_u32 s%d, s%d, s%d" % (sT0, sT0, sB))
        e("s_lshl_b32 s%d, s%d, 2" % (sT0, sT0)); e("s_and_b32 s%d, s%d, 3" % (sT1, sH)); e("s_add_u32 s%d, s%d, s%d" % (sT0, sT0, sT1))
        e("s_mul_i32 s%d, s%d, 3072" % (sT0, sT0)); e("s_mul_i32 s%d, s%d, 768" % (sT1, sW))
        e("s_add_u32 s%d, s%d, s%d" % (sT0, sT0, sT1)); e("s_add_u32 s%d, s%d, %d" % (sT0, sT0, WS_P2))
        e("v_min_u32 v53, 752, v53"); e("v_add_u32 v53, s%d, v53" % sT0)
        e("v_lshrrev_b32 v%d, 3, v%d" % (aML, vL)); e("v_lshlrev_b32 v%d, 4, v%d" % (aML, aML))
        e("s_lshl_b32 s%d, s%d, 11" % (sT0, sB)); e("s_lshl_b32 s%d, s%d, 9" % (sT1, sW))
        e("s_add_u32 s%d, s%d, s%d" % (sT0, sT0, sT1)); e("s_add_u32 s%d, s%d, %d" % (sT0, sT0, WS_ML))
        e("v_add_u32 v%d, s%d, v%d" % (aML, sT0, aML))
        e("v_and_b32 v%d, 31, v%d" % (aCR, vL)); e("v_lshlrev_b32 v%d, 1, v%d" % (aOUT, aCR))
        e("s_lshl_b32 s%d, s%d, 6" % (sT0, sCI)); e("v_add_u32 v%d, s%d, v%d" % (aOUT, sT0, aOUT))
        e("v_lshlrev_b32 v%d, 2, v%d" % (aCR, aCR)); e("v_add_u32 v%d, %d, v%d" % (aCR, L_CO, aCR))
        ld_f(True)
        e.vmem("buffer_load_ushort v%d, v%d, %s, 0 offen" % (cX, aOUT, sr(sX)), "CF")
        e("v_and_b32 v%d, 7, v%d" % (aCO, vL)); e("v_lshlrev_b32 v%d, 4, v%d" % (aCO, aCO))
        e("v_bfe_u32 v%d, v%d, 4, 1" % (cG, vL)); e("v_lshl_add_u32 v%d, v%d, 3, v%d" % (aCO, cG, aCO))
        e("v_lshrrev_b32 v%d, 5, v%d" % (cG, vL)); e("v_lshl_add_u32 v%d, v%d, 2, v%d" % (aCO, cG, aCO))
        e("s_lshl_b32 s%d, s%d, 7" % (sT0, sW)); e("v_add_u32 v%d, s%d, v%d" % (aCO, sT0, aCO))
    def consumer_ffn():
        skip = e.newlab("nocf")
        e("s_cmp_eq_u32 s%d, 0" % sCONS); e("s_cbranch_scc1 %s" % skip)
        e.wait_vm("CF")
        poll("cf", [cF], 54, 55, lambda: ld_f(False))
        for r in range(4): untag(cF + r, cF + r)
        e("s_mov_b32 exec_lo, 0"); e("s_mov_b32 exec_hi, 0xffff0000")
        for r in range(4): e("v_mov_b32 v%d, 0" % (cF + r))
        e("s_mov_b64 exec, -1")
        e("v_lshlrev_b32 v%d, 16, v%d" % (cX, cX))
        quad_reduce(cF)
        e("ds_write_b32 v%d, v%d offset:%d" % (aCO, cF, L_CF))
        e.label(skip)

    for g in range(32):
        A = vA0 if g % 2 == 0 else vA1
        e("v_mul_f32 v%d, v%d, v%d" % (vS + g, vS + g, vFAC))
        e("v_cvt_pk_bf16_f32 v%d, v%d, v%d" % (vS + g, vS + g, vS + g))
        afrag(A, vS + g)
        e("s_nop 0")
        e.wait_vm("V%d" % g)
        stamp('v%d' % g)
        if g == ml_g:
            lab = e.newlab("noml")
            e("s_cmp_lg_u32 s%d, 3" % sW); e("s_cbranch_scc1 %s" % lab)
            e("s_mov_b64 exec, 1")
            e.vmem("buffer_store_dwordx4 %s, off, %s, s%d sc1" % (vr(34), sr(sWS), sWQO), counted=False)
            e("s_mov_b64 exec, -1")
            e.label(lab)
        rs = ring[("V", g)]
        for t in range(3):
            mfma(vr(vACC + 4 * t), vr(A), reg_of(rs, t), "0" if g == 0 else vr(vACC + 4 * t))
        if g == cf_g: consumer_setup()
        if not isinstance(rs, tuple) and vn[0] < 32:
            issue_kv("V", vn[0], rs); vn[0] += 1
        if nwo[0] < 20 and (nwo[0] < NO1 or g >= nwo[0] - NO1):
            issue_wo(nwo[0]); nwo[0] += 1
        if g == 24:
            free = sorted(ring[("V", k)] for k in range(19, 24))
            y0 = [k for k in free if k + 1 in free][0]
            vY = rslot(y0, 0)
            for r in range(20): e("v_mov_b32 v%d, 0" % (vY + r))
            e("v_and_b32 v%d, 7, v%d" % (T0, vL)); e("v_mul_u32_u24 v%d, %d, v%d" % (T0, PSTR, T0))
            e("v_lshrrev_b32 v%d, 4, v%d" % (T1, vL)); e("v_lshl_add_u32 v%d, v%d, 3, v%d" % (T0, T1, T0))
            e("v_bfe_u32 v%d, v%d, 3, 1" % (T1, vL)); e("v_mul_u32_u24 v%d, 96, v%d" % (T1, T1))
            e("s_mul_i32 s%d, s%d, 192" % (sT0, sW))
            e("v_add3_u32 v%d, s%d, v%d, v%d" % (T0, sT0, T0, T1))
            e("s_mul_i32 s%d, s%d, 2560" % (sT0, sW))
            e("v_add_u32 v%d, s%d, v%d" % (T1, sT0, vFA))
            e("v_lshlrev_b32 v%d, 4, v0" % T2)
            e("v_bfe_u32 v%d, v%d, 2, 1" % (T4, vL)); e("v_mul_u32_u24 v%d, 0xffff, v%d" % (T4, T4))
            e("v_xor_b32 v%d, 0xffff, v%d" % (T3, T4))
            e("v_and_b32 v%d, 3, v%d" % (T5, vL)); e("v_add_u32 v%d, 1, v%d" % (vP1O, T5)); e("v_and_b32 v%d, 3, v%d" % (vP1O, vP1O))
            e("v_lshl_or_b32 v%d, v%d, 2, v%d" % (T5, vP1O, T5)); e("v_mul_u32_u24 v%d, 0x1111, v%d" % (T5, T5))
            quads = [rslot(k, t) for k in free if k not in (y0, y0 + 1) for t in range(3)]
            cML, cY = quads[0:4], quads[4:8]
            for q in cML + cY: e("v_xor_b32 v%d, 0xff, v%d" % (q, vTAG))
        if g == cf2_g: consumer_ffn()
    assert nwo[0] == 20 and vn[0] == 32
    stamp('vend')
    e("s_mov_b64 exec, %s" % sr(sVAL, 2))
    e("s_nop 4")
    for t in range(3): e("ds_write_b128 v%d, %s offset:%d" % (vQA, vr(vACC + 4 * t), L_OP + t * 256))
    e("s_mov_b64 exec, -1")
    e("s_waitcnt lgkmcnt(0)")
    e("s_barrier")
    stamp('b3')
    vO = 58
    for n in range(3): e("ds_read_b64 %s, v%d offset:%d" % (vr(vO + 2 * n, 2), T0, L_OP + 32 * n))
    e("s_waitcnt lgkmcnt(0)")
    for pat in (X1, X2, HM):
        for i in range(6): e("v_add_f32_dpp v%d, v%d, v%d %s %s" % (vO + i, vO + i, vO + i, pat, DPP))
    for i in range(6): e("v_cvt_pk_bf16_f32 v%d, v%d, v%d" % (vO + i, vO + i, vO + i))
    assert e.vm[-1] == "V31"
    def sfrag(dst, n, r):
        src = vO + 2 * (n % 3) + (r >> 1); m = T3 if r % 2 == 0 else T4
        if n >= 3: e("v_and_b32_dpp v%d, v%d, v%d %s %s" % (dst + r, src, m, R8, DPP))
        else: e("v_and_b32 v%d, v%d, v%d" % (dst + r, src, m))
    for r in range(4): sfrag(vA0, 0, r)
    for n in range(6):
        A = vA0 if n % 2 == 0 else vA1
        An = vA1 if n % 2 == 0 else vA0
        if n == 0: e("s_nop 1")
        for seg in range(5):
            e("v_smfmac_f32_16x16x64_bf16 %s, %s, %s, v%d" % (vr(vY + 4 * seg), vr(A), ar(8 * (5 * n + seg), 8), T5))
            if n < 5 and seg < 2:
                for r in (2 * seg, 2 * seg + 1): sfrag(An, n + 1, r)
    stamp('mf')
    e("s_mov_b32 exec_hi, 0")
    e("s_nop 3")
    for seg in range(5): e("ds_write_b128 v%d, %s offset:%d" % (T1, vr(vY + 4 * seg), L_YP + seg * 512))
    e("s_mov_b64 exec, -1")
    e("s_waitcnt lgkmcnt(0)")
    e("s_barrier")
    lab = e.newlab("noy")
    e("s_cmp_ge_u32 s%d, 3" % sW); e("s_cbranch_scc1 %s" % lab)
    for pp in range(4): e("ds_read_b128 %s, v%d offset:%d" % (vr(18 + 4 * pp), T2, L_YP + pp * 2560))
    e("s_waitcnt lgkmcnt(2)")
    for r in range(4): e("v_add_f32 v%d, v%d, v%d" % (18 + r, 18 + r, 22 + r))
    e("s_waitcnt lgkmcnt(0)")
    for r in range(4): e("v_add_f32 v%d, v%d, v%d" % (26 + r, 26 + r, 30 + r))
    for r in range(4): e("v_add_f32 v%d, v%d, v%d" % (64 + r, 18 + r, 26 + r))
    for r in range(4): tagit(64 + r, 64 + r)
    e.vmem("buffer_store_dwordx4 v[64:67], v%d, %s, 0 offen %s" % (vPY, sr(sWS), yf), counted=False)
    lab2 = e.newlab("pubd")
    e("s_branch %s" % lab2)
    e.label(lab)
    e("ds_read2_b32 v[54:55], v%d offset0:128 offset1:160" % aCR); e("ds_read2_b32 v[56:57], v%d offset0:192 offset1:224" % aCR)
    e("s_waitcnt lgkmcnt(0)")
    e("v_add_f32 v54, v54, v55"); e("v_add_f32 v56, v56, v57"); e("v_add_f32 v54, v54, v56")
    e("v_cvt_pk_bf16_f32 v54, v54, v54"); e("v_and_b32 v54, 0xffff0000, v54")
    e("v_mul_f32 v55, %s, v54" % hx(f2u(-LOG2E)))
    e("v_exp_f32 v55, v55"); e("s_nop 0")
    e("v_add_f32 v55, 1.0, v55")
    e("v_rcp_f32 v55, v55"); e("s_nop 0")
    e("v_mul_f32 v55, v54, v55")
    e("v_cvt_pk_bf16_f32 v55, v55, v55"); e("v_and_b32 v%d, 0xffff0000, v55" % cG)
    e.label(lab2)
    stamp('pub')
    if nopoll: e("s_branch L_fin")
    e("s_cmp_eq_u32 s2, 1"); e("s_cbranch_scc1 L_epoch")
    e("s_cmp_eq_u32 s%d, 0" % sCONS); e("s_cbranch_scc1 L_fin")
    mlds = [(cML[i], "buffer_load_dwordx4 %s, v%d, %s, 0 offen offset:%d sc1" % (vr(cML[i]), aML, sr(sWS), 128 * i)) for i in range(4)]
    ylds = [(cY[i], "buffer_load_dwordx4 %s, v%d, %s, 0 offen offset:%d sc1" % (vr(cY[i]), aY, sr(sWS), 1024 * i)) for i in range(4)]
    for _, t in mlds + ylds: e(t)
    lab = e.newlab("mlok"); lp = e.newlab("mlloop")
    e("s_mov_b32 s%d, %d" % (sCNT, 16 * tmo))
    e.label(lp)
    for k in range(4): piece_bad(cML[k], 20, 21, sr(sMK + 2 * k, 2))
    e("s_or_b64 vcc, %s, %s" % (sr(sMK, 2), sr(sMK + 2, 2)))
    e("s_or_b64 vcc, vcc, %s" % sr(sMK + 4, 2)); e("s_or_b64 vcc, vcc, %s" % sr(sMK + 6, 2))
    e("s_cbranch_scc0 %s" % lab)
    e("s_sub_u32 s%d, s%d, 1" % (sCNT, sCNT)); e("s_cbranch_scc1 %s" % lab)
    for k in range(4): piece_bad(cY[k], 20, 21, sr(sMK + 8 + 2 * k, 2))
    for k in range(4):
        sk = e.newlab("mlsk")
        e("s_mov_b64 exec, %s" % sr(sMK + 2 * k, 2)); e("s_cbranch_execz %s" % sk); e(mlds[k][1]); e.label(sk)
        sk = e.newlab("mysk")
        e("s_andn2_b64 exec, %s, %s" % (sr(sMK + 8 + 2 * k, 2), sr(sMK + 2 * k, 2))); e("s_cbranch_execz %s" % sk); e(ylds[k][1]); e.label(sk)
    e("s_mov_b64 exec, -1")
    e("s_waitcnt vmcnt(%d)" % pdepth)
    if mlsleep: e("s_sleep %d" % mlsleep)
    e("s_branch %s" % lp)
    e.label(lab)
    for k in range(4): piece_bad(cY[k], 20, 21, sr(sMK + 8 + 2 * k, 2))
    for k in range(4):
        sk = e.newlab("mysk")
        e("s_mov_b64 exec, %s" % sr(sMK + 8 + 2 * k, 2)); e("s_cbranch_execz %s" % sk); e(ylds[k][1]); e.label(sk)
    e("s_mov_b64 exec, -1")
    stamp('mlok')
    def sib_reduce(op):
        for i in range(4): e("%s_dpp v%d, v%d, v%d %s %s" % (op, 24 + i, 24 + i, 24 + i, R8, DPP))
        for i in range(4): e("v_mov_b32 v%d, v%d" % (28 + i, 24 + i))
        e("s_nop 0")
        for i in range(4): e("v_permlane16_swap_b32 v%d, v%d" % (24 + i, 28 + i))
        e("s_nop 0")
        for i in range(4): e("%s v%d, v%d, v%d" % (op, 24 + i, 24 + i, 28 + i))
    W0 = 32
    for i in range(4): untag(W0 + i, cML[i])
    for i in range(4): e("v_mov_b32 v%d, v%d" % (24 + i, W0 + i))
    sib_reduce("v_max_f32")
    for i in range(4): e("v_sub_f32 v%d, v%d, v%d" % (W0 + i, W0 + i, 24 + i))
    for i in range(4): e("v_mul_f32 v%d, %s, v%d" % (W0 + i, l2e, W0 + i))
    for i in range(4): e("v_exp_f32 v%d, v%d" % (W0 + i, W0 + i))
    for i in range(4): untag(28 + i, cML[i] + 1)
    for i in range(4): e("v_mul_f32 v%d, v%d, v%d" % (W0 + i, W0 + i, 28 + i))
    for i in range(4): e("v_mov_b32 v%d, v%d" % (24 + i, W0 + i))
    sib_reduce("v_add_f32")
    for i in range(4): e("v_rcp_f32 v%d, v%d" % (24 + i, 24 + i))
    for i in range(4): e("v_mul_f32 v%d, v%d, v%d" % (W0 + i, W0 + i, 24 + i))
    mpoll("y", ylds, 20, 21, ysleep)
    stamp('yok')
    R0 = 36
    for r in range(4): untag(R0 + r, cY[0] + r)
    for r in range(4): untag(24 + r, cY[1] + r)
    for r in range(4): e("v_mul_f32 v%d, v%d, v%d" % (R0 + r, R0 + r, W0))
    for r in range(4): untag(28 + r, cY[2] + r)
    for r in range(4): e("v_fmac_f32 v%d, v%d, v%d" % (R0 + r, 24 + r, W0 + 1))
    for r in range(4): untag(24 + r, cY[3] + r)
    for r in range(4): e("v_fmac_f32 v%d, v%d, v%d" % (R0 + r, 28 + r, W0 + 2))
    for r in range(4): e("v_fmac_f32 v%d, v%d, v%d" % (R0 + r, 24 + r, W0 + 3))
    e("s_nop 0")
    quad_reduce(R0)
    e("ds_write_b32 v%d, v%d offset:%d" % (aCO, R0, L_CO))
    e("s_waitcnt lgkmcnt(0)")
    e("s_barrier")
    stamp('b5')
    e("s_cmp_lg_u32 s%d, 3" % sW); e("s_cbranch_scc1 L_fin")
    e("ds_read2_b32 v[54:55], v%d offset0:0 offset1:32" % aCR); e("ds_read2_b32 v[56:57], v%d offset0:64 offset1:96" % aCR)
    e("s_mov_b32 exec_hi, 0")
    e("s_waitcnt lgkmcnt(0)")
    e("v_add_f32 v54, v54, v55"); e("v_add_f32 v56, v56, v57"); e("v_add_f32 v54, v54, v56")
    e("v_cvt_pk_bf16_f32 v54, v54, v54"); e("v_and_b32 v54, 0xffff0000, v54")
    e("v_mul_f32 v54, v54, v%d" % cG)
    e("v_cvt_pk_bf16_f32 v54, v54, v54"); e("v_and_b32 v54, 0xffff0000, v54")
    e("v_add_f32 v54, v54, v%d" % cX)
    e("v_cvt_pk_bf16_f32 v54, v54, v54")
    e("buffer_store_short v54, v%d, %s, 0 offen %s" % (aOUT, sr(sOUT), of))
    e("s_mov_b64 exec, -1")
    e("s_branch L_fin")
    e.label("L_epoch")
    e("s_cmp_lg_u32 s%d, 0" % sW); e("s_cbranch_scc1 L_fin")
    e("v_lshlrev_b32 v13, 4, v%d" % vL); e("v_add_u32 v13, %d, v13" % WS_ML)
    def ld_all():
        for i in range(4): e("buffer_load_dwordx4 %s, v13, %s, 0 offen offset:%d sc1" % (vr(16 + 4 * i), sr(sWS), 1024 * i))
    ld_all()
    e("s_waitcnt vmcnt(0)")
    poll("ep", [16 + 4 * k for k in range(4)], 56, 57, ld_all, sleep=epsleep)
    e("v_mov_b32 v16, s%d" % sTAG)
    e("s_mov_b32 s%d, %d" % (sT0, WS_EP))
    e("s_mov_b64 exec, 1")
    e("buffer_store_dword v16, off, %s, s%d" % (sr(sWS), sT0))
    e("s_mov_b64 exec, -1")
    e.label("L_fin")
    if calib:
        e.label("L_cal")
        e("s_memrealtime s[98:99]"); e("s_waitcnt lgkmcnt(0)")
        e("s_sub_u32 s98, s98, s%d" % sST); e("s_cmp_lt_u32 s98, %d" % calib); e("s_cbranch_scc1 L_cal")
    if trace:
        trace_pt('fin')
        e("v_writelane_b32 v89, s%d, 63" % sST)
        e("s_add_u32 s92, s26, %d" % STAMP_OFF); e("s_addc_u32 s93, s27, 0"); e("s_mov_b32 s94, 0x100000"); e("s_mov_b32 s95, 0x20000")
        e("s_lshl_b32 s%d, s2, 2" % sT0); e("s_add_u32 s%d, s%d, s%d" % (sT0, sT0, sW)); e("s_lshl_b32 s%d, s%d, 9" % (sT0, sT0))
        e("v_lshlrev_b32 v10, 2, v%d" % vL); e("v_add_u32 v10, s%d, v10" % sT0)
        e("buffer_store_dword v88, v10, s[92:95], 0 offen")
        e("buffer_store_dword v89, v10, s[92:95], 0 offen offset:256")
        open("trace_names.txt", "w").write(" ".join(trnames))
    if stamps:
        stamp('fin')
        n = nst[0]
        e("s_add_u32 s92, s26, %d" % STAMP_OFF); e("s_addc_u32 s93, s27, 0"); e("s_mov_b32 s94, 0x100000"); e("s_mov_b32 s95, 0x20000")
        if allw:
            e("s_lshl_b32 s%d, s2, 2" % sT0); e("s_add_u32 s%d, s%d, s%d" % (sT0, sT0, sW)); e("s_mul_i32 s%d, s%d, %d" % (sT0, sT0, 8 * n))
        else:
            e("s_cmp_lg_u32 s%d, 0" % sW); e("s_cbranch_scc1 L_end")
            e("s_mul_i32 s%d, s2, %d" % (sT0, 8 * n))
        e("v_mov_b32 v10, s%d" % sT0); e("v_mov_b32 v13, 0")
        e("s_mov_b64 exec, 1")
        for k in range(n):
            e("v_mov_b32 v12, s%d" % (sST + k))
            e("buffer_store_dwordx2 v[12:13], v10, s[92:95], 0 offen offset:%d" % (8 * k))
            e("s_nop 1")
    e.label("L_end")
    e("s_endpgm")
    e.raw('.section .rodata,"a"'); e.raw(".p2align 6"); e.raw(".amdhsa_kernel %s_kernel" % NAME)
    for s in (".amdhsa_next_free_vgpr 512", ".amdhsa_next_free_sgpr 102", ".amdhsa_accum_offset 256",
              ".amdhsa_group_segment_fixed_size 0", ".amdhsa_kernarg_size 96", ".amdhsa_user_sgpr_count 2",
              ".amdhsa_user_sgpr_kernarg_segment_ptr 1", ".amdhsa_system_sgpr_workgroup_id_x 1"):
        e(s)
    e.raw(".end_amdhsa_kernel")
    return "\n".join(e.L) + "\n", nst[0]

if __name__ == "__main__":
    import argparse
    ap = argparse.ArgumentParser()
    ap.add_argument("out"); ap.add_argument("--stamps", action="store_true")
    ap.add_argument("--opt", default="")
    a = ap.parse_args()
    kw = eval("dict(%s)" % a.opt)
    s, n = gen(stamps=a.stamps, **kw)
    hdr = open("cdna_kernels/%s.s.ref" % NAME).read().split("; Override launch")[0]
    open(a.out, "w").write(hdr + s)
    print("wrote", a.out, "stamps", n)
```

```python
import struct, sys
NAME = "recurrent_scan__gqa_block_cached__geglu_ffn__decode"

def f2u(x): return struct.unpack("<I", struct.pack("<f", x))[0]
def hx(x): return "0x%08x" % (x & 0xffffffff)
LOG2E = 1.4426950408889634

WS_Q1 = 0
WS_P1 = 0x30000
P1_LO = 5 * 24576
WS_P2 = 0x6C000
WS_Y  = 0x8A000
WS_ML = 0x12A000
WS_EP = 0x132000
WS_SIZE = 0x133000
STAMP_OFF = 300 << 20
OOB = 0x7ffffff0

L_XN = 0
L_Q1 = 5120
PS2 = 528
L_QC = 9472
L_QB = 24064
L_F1 = 24576
L_F2 = 32768
L_ML = 36864
L_CNT = 36928
L_OP = 37120
PSTR = 784
L_YP = 43520
L_CO = 53760
L_CF = 54272
L_END = 54784

class Em:
    def __init__(self):
        self.L = []; self.vm = []; self.lab = 0
    def __call__(self, s): self.L.append("  " + s)
    def raw(self, s): self.L.append(s)
    def label(self, n): self.L.append(n + ":")
    def newlab(self, p):
        self.lab += 1; return "L_%s_%d" % (p, self.lab)
    def vmem(self, s, tag=None, counted=True):
        self.L.append("  " + s)
        if counted: self.vm.append(tag)
    def behind(self, tag):
        idx = max(i for i, t in enumerate(self.vm) if t == tag)
        return len(self.vm) - 1 - idx
    def wait_vm(self, tag):
        self("s_waitcnt vmcnt(%d)" % min(self.behind(tag), 63))

def vr(a, n=4): return "v[%d:%d]" % (a, a + n - 1)
def ar(a, n=4): return "a[%d:%d]" % (a, a + n - 1)
def sr(a, n=4): return "s[%d:%d]" % (a, a + n - 1)
DPP = "row_mask:0xf bank_mask:0xf"
X1, X2, HM, RM, R8 = "quad_perm:[1,0,3,2]", "quad_perm:[2,3,0,1]", "row_half_mirror", "row_mirror", "row_ror:8"

def gen(stamps=False, kvf="nt", wf="", qf="", ff="", RING=14, NE=5, st2_g=8, p1_g=0, ml_g=31, allw=False,
        sel=('b1', 'b2', 'vend', 'pub', 'fin'), ostep=2, ostart=0, k_pre=3, k_mid=3, qc_after=14, win=0, tmo=0x10000,
        trace=False, xspec=True, mlsleep=2, epsleep=8, nopoll=False, nocheck=False, stf='sc1', yf='sc1', cpf=0, calib=0, ysleep=0, pdepth=6, p1lo=False, ph=(1, 4, 8, 0), vrot=0, cf_g=12, cf2_g=25, of='', elect=False, tk_g=27, early0=0, adapt=0, farsleep=16, yinA=True, wait0=None, mlfull=True, lightc=True, diag=0, plf='sc1', vilv=True):
    e = Em()
    vL, vKV, vWQ, vWO, vPY = 1, 2, 3, 4, 5
    vM = 6; vA0 = 10; vA1 = 14; vACC = 18; vQF = 30; vS = 42
    vMW, vLW, vTAG = 74, 75, 76
    vQA, vFA, vP1O, vF1 = 78, 79, 80, 81
    T0, T1, T2, T3, T4, T5 = 82, 83, 84, 85, 86, 87
    RB = 256 - 12 * RING
    assert RB >= 88
    def rslot(i, t): return RB + 12 * i + 4 * t
    AVE = 240 - 12 * NE
    sK, sV, sRE, sWO, sX, sRO, sWD, sWS, sOUT, sWSF = 28, 32, 36, 40, 44, 48, 56, 60, 64, 92
    sS1, sS2, sKH, sNT = 52, 53, 54, 55
    sCONS = 52
    sTAG, sU, sACT, sFACT = 68, 69, 70, 71
    sW, sB, sH, sP, sFS, sKR, sC5, sRB, sSO, sT0, sT1, sT2 = 72, 73, 74, 75, 76, 77, 78, 79, 80, 81, 82, 83
    sEX = 84; sVAL = 86; sCNT = 88; sCI = 89; sFF = 90; sWQO = 91; sSEL = 14; sROT = 15; sMK = 28
    sST = 96
    nst = [0]
    def stamp(name):
        if trace: trace_pt(name); return
        if not stamps or name not in sel: return
        e("s_memrealtime s[%d:%d]" % (sEX, sEX + 1))
        e("s_waitcnt lgkmcnt(0)")
        e("s_mov_b32 s%d, s%d" % (sST + nst[0], sEX))
        nst[0] += 1
    tr = [0]; trnames = []
    def trace_pt(name):
        if not trace: return
        k = tr[0]; tr[0] += 1; trnames.append(name)
        e("s_memrealtime s[%d:%d]" % (sST + 2, sST + 3))
        e("s_waitcnt lgkmcnt(0)")
        e("v_writelane_b32 v%d, s%d, %d" % (88 + k // 64, sST + 2, k % 64))
    def mfma(d, a, b, c): e("v_mfma_f32_16x16x32_bf16 %s, %s, %s, %s" % (d, a, b, c))
    def afrag(dst, src):
        for r in range(4): e("v_and_b32 v%d, v%d, v%d" % (dst + r, src, vM + r))
    def tagit(dst, src):
        e("v_add_u32 v%d, 0x80, v%d" % (dst, src))
        e("v_bfi_b32 v%d, s%d, v%d, v%d" % (dst, sFF, vTAG, dst))
    def untag(dst, src): e("v_and_b32 v%d, 0xffffff00, v%d" % (dst, src))
    def piece_bad(p, t0, t1, dst):
        e("v_perm_b32 v%d, v%d, v%d, s%d" % (t0, p + 1, p, sSEL))
        e("v_perm_b32 v%d, v%d, v%d, s%d" % (t1, p + 3, p + 2, sSEL))
        e("v_lshl_or_b32 v%d, v%d, 16, v%d" % (t0, t1, t0))
        e("v_cmp_ne_u32 %s, v%d, v%d" % (dst, t0, vTAG + 1))
    def poll(name, pieces, t0, t1, reload, sleep=4):
        if nocheck: return
        lab = e.newlab(name + "ok"); lp = e.newlab(name + "loop")
        e("s_mov_b32 s%d, %d" % (sCNT, tmo))
        e.label(lp)
        for k, p in enumerate(pieces):
            piece_bad(p, t0, t1, "vcc" if k == 0 else sr(sEX, 2))
            if k: e("s_or_b64 vcc, vcc, %s" % sr(sEX, 2))
        e("s_nop 1")
        e("s_cbranch_vccz %s" % lab)
        e("s_sub_u32 s%d, s%d, 1" % (sCNT, sCNT)); e("s_cbranch_scc1 %s" % lab)
        if sleep: e("s_sleep %d" % sleep)
        reload()
        e("s_waitcnt vmcnt(0)")
        e("s_branch %s" % lp)
        e.label(lab)
    def mpoll(name, loads, t0, t1, sleep):
        lab = e.newlab(name + "ok"); lp = e.newlab(name + "loop")
        e("s_mov_b32 s%d, %d" % (sCNT, 16 * tmo))
        e.label(lp)
        for k, (p, _) in enumerate(loads): piece_bad(p, t0, t1, sr(sMK + 2 * k, 2))
        e("s_nop 0")
        e("s_or_b64 vcc, %s, %s" % (sr(sMK, 2), sr(sMK + 2, 2)))
        for k in range(2, len(loads)): e("s_or_b64 vcc, vcc, %s" % sr(sMK + 2 * k, 2))
        e("s_cbranch_scc0 %s" % lab)
        e("s_sub_u32 s%d, s%d, 1" % (sCNT, sCNT)); e("s_cbranch_scc1 %s" % lab)
        for k, (p, txt) in enumerate(loads):
            sk = e.newlab(name + "sk")
            e("s_mov_b64 exec, %s" % sr(sMK + 2 * k, 2))
            e("s_cbranch_execz %s" % sk)
            e(txt)
            e.label(sk)
        e("s_mov_b64 exec, -1")
        e("s_waitcnt vmcnt(%d)" % pdepth)
        if adapt:
            e("s_bcnt1_i32_b64 s%d, %s" % (sT0, sr(sMK, 2)))
            for k in range(1, len(loads)):
                e("s_bcnt1_i32_b64 s%d, %s" % (sT1, sr(sMK + 2 * k, 2))); e("s_add_u32 s%d, s%d, s%d" % (sT0, sT0, sT1))
            near = e.newlab("near")
            e("s_cmp_le_u32 s%d, %d" % (sT0, 8 * adapt)); e("s_cbranch_scc1 %s" % near)
            e("s_sleep %d" % farsleep)
            e.label(near)
        if sleep: e("s_sleep %d" % sleep)
        e("s_branch %s" % lp)
        e.label(lab)

    e.raw("; @launch grid=(256,1,1) block=(256,1,1) lds=%d" % L_END)
    e.raw('.amdgcn_target "amdgcn-amd-amdhsa--gfx950"')
    e.raw(".text"); e.raw(".globl %s_kernel" % NAME); e.raw(".p2align 8"); e.raw(".type %s_kernel,@function" % NAME)
    e.label("%s_kernel" % NAME)
    e("s_cmp_ge_u32 s2, 256"); e("s_cbranch_scc1 L_end")
    e("s_load_dwordx16 s[4:19], s[0:1], 0")
    e("s_load_dwordx8 s[20:27], s[0:1], 64")
    if stamps or trace or calib:
        e("s_memrealtime s[%d:%d]" % (sST, sST + 1)); nst[0] = 1
        for k in range(2, 6): e("s_mov_b32 s%d, 0" % (sST + k))
    e("v_and_b32 v%d, 63, v0" % vL)
    e("v_lshrrev_b32 v%d, 6, v0" % T0)
    e("v_lshrrev_b32 v%d, 3, v%d" % (T1, vL))
    e("v_and_b32 v%d, 7, v%d" % (T2, vL))
    e("v_readfirstlane_b32 s%d, v%d" % (sW, T0))
    e("v_mul_u32_u24 v%d, 384, v%d" % (vKV, T1))
    e("v_lshl_add_u32 v%d, v%d, 4, v%d" % (vKV, T2, vKV))
    e("v_mul_u32_u24 v%d, 3072, v%d" % (T3, T0))
    e("v_add_u32 v%d, v%d, v%d" % (vKV, vKV, T3))
    e("v_lshl_add_u32 v%d, v%d, 3, v%d" % (vWQ, T0, T1))
    e("v_mul_u32_u24 v%d, 12288, v%d" % (vWQ, vWQ))
    e("v_lshl_add_u32 v%d, v%d, 4, v%d" % (vWQ, T2, vWQ))
    e("v_lshrrev_b32 v%d, 5, v%d" % (T3, vL))
    e("v_mul_u32_u24 v%d, 1280, v%d" % (T3, T3))
    e("v_and_b32 v%d, 31, v%d" % (T5, vL))
    e("v_lshl_add_u32 v%d, v%d, 4, v%d" % (T4, T5, T3))
    e("v_lshl_add_u32 v%d, v%d, 3, v%d" % (T5, T5, T3))
    e("v_lshrrev_b32 v%d, 4, v%d" % (T3, vL))
    e("v_lshl_add_u32 v%d, v%d, 2, v%d" % (vF1, T0, T3))
    e("v_mul_u32_u24 v%d, 3072, v%d" % (vF1, vF1))
    e("v_and_b32 v%d, 15, v%d" % (T1, vL))
    e("v_lshl_add_u32 v%d, v%d, 4, v%d" % (vF1, T1, vF1))
    e("s_and_b32 s%d, s2, 7" % sT0)
    e("s_lshr_b32 s%d, s2, 3" % sT1)
    e("s_lshr_b32 s%d, s%d, 3" % (sT2, sT1))
    e("s_lshl_b32 s%d, s%d, 2" % (sH, sT0))
    e("s_add_u32 s%d, s%d, s%d" % (sH, sH, sT2))
    e("s_and_b32 s%d, s%d, 7" % (sU, sT1))
    e("s_lshr_b32 s%d, s%d, 2" % (sB, sU))
    e("s_and_b32 s%d, s%d, 3" % (sT1, sT1))
    e("s_lshl_b32 s%d, s%d, 2" % (sP, sH))
    e("s_add_u32 s%d, s%d, s%d" % (sP, sP, sT1))
    e("s_lshl_b32 s%d, s%d, 7" % (sT0, sB))
    e("s_add_u32 s%d, s%d, s%d" % (sT0, sT0, sP))
    e("s_mul_i32 s%d, s%d, 393216" % (sT0, sT0))
    e("s_mov_b32 s%d, 393216" % (sK + 2)); e("s_mov_b32 s%d, 0x20000" % (sK + 3))
    e("s_mov_b32 s%d, 2560" % (sX + 2)); e("s_mov_b32 s%d, 0x20000" % (sX + 3))
    e("s_cmp_ge_u32 s%d, 3" % sU); e("s_cselect_b32 s%d, 1, 0" % sKH)
    e("s_mul_i32 s%d, s%d, 3" % (sT1, sKH)); e("s_sub_u32 s%d, s%d, s%d" % (sNT, sU, sT1))
    e("s_mul_i32 s%d, s%d, %d" % (sCI, sKH, 320 * 12288))
    e("s_mul_i32 s%d, s%d, 384" % (sT1, sH)); e("s_add_u32 s%d, s%d, s%d" % (sCI, sCI, sT1))
    e("s_lshl_b32 s%d, s%d, 7" % (sT1, sNT)); e("s_add_u32 s%d, s%d, s%d" % (sCI, sCI, sT1))
    e("s_lshl_b32 s%d, s%d, 1" % (sT1, sH)); e("s_add_u32 s%d, s%d, s%d" % (sT1, sT1, sU)); e("s_sub_u32 s%d, s%d, 6" % (sT1, sT1))
    e("s_and_b32 s%d, s%d, 63" % (sT1, sT1))
    e("s_mul_i32 s%d, s%d, 43" % (sKR, sT1)); e("s_lshr_b32 s%d, s%d, 9" % (sKR, sKR))
    e("s_mul_i32 s%d, s%d, 12" % (sT2, sKR)); e("s_sub_u32 s%d, s%d, s%d" % (sFS, sT1, sT2))
    e("s_cmp_lt_u32 s%d, 60" % sT1); e("s_cselect_b32 s%d, %d, 0" % (sFACT, 127 * 3072 + 256))
    e("s_min_u32 s%d, s%d, 4" % (sKR, sKR))
    e("s_mul_i32 s%d, s%d, %d" % (sCNT, sKR, 128 * 3072))
    e("s_lshl_b32 s%d, s%d, 8" % (sT2, sFS)); e("s_add_u32 s%d, s%d, s%d" % (sCNT, sCNT, sT2))
    e("s_mov_b32 s%d, 0x20000" % (sRE + 3)); e("s_mov_b32 s%d, 0x20000" % (sRO + 3))
    e("s_mov_b32 s%d, 786432" % sS2)
    e("s_cmp_ge_u32 s%d, 6" % sU)
    e("s_cselect_b32 s%d, s%d, %d" % (sRE + 2, sFACT, 319 * 12288 + 128))
    e("s_cselect_b32 s%d, s%d, %d" % (sRO + 2, sFACT, 319 * 12288 + 128))
    e("s_cselect_b32 s%d, 0, 393216" % sS1)
    e("s_cselect_b32 s%d, 49152, s%d" % (sS2, sS2))
    e("s_cselect_b32 s%d, s%d, s%d" % (sCI, sCNT, sCI))
    e("s_cselect_b64 vcc, -1, 0")
    e("s_waitcnt lgkmcnt(0)")
    e("s_cselect_b32 s%d, s16, s10" % sRE); e("s_cselect_b32 s%d, s17, s11" % (sRE + 1))
    e("s_cselect_b32 s%d, s18, s10" % sRO); e("s_cselect_b32 s%d, s19, s11" % (sRO + 1))
    e("s_mov_b32 s%d, s4" % sX); e("s_mov_b32 s%d, s5" % (sX + 1))
    e("v_cndmask_b32 v%d, v%d, v%d, vcc" % (vWQ, vWQ, vF1))
    e.vmem("buffer_load_dwordx4 %s, v%d, %s, 0 offen" % (vr(18), T4, sr(sX)), "x")
    e.vmem("buffer_load_dwordx4 %s, v%d, %s, 0 offen offset:512" % (vr(22), T4, sr(sX)), "x")
    e.vmem("buffer_load_dwordx2 %s, v%d, %s, 0 offen offset:1024" % (vr(26, 2), T5, sr(sX)), "x")
    e("s_add_u32 s%d, s%d, s%d" % (sRE, sRE, sCI)); e("s_addc_u32 s%d, s%d, 0" % (sRE + 1, sRE + 1))
    e("s_add_u32 s%d, s%d, s%d" % (sRO, sRO, sCI)); e("s_addc_u32 s%d, s%d, 0" % (sRO + 1, sRO + 1))
    e("s_add_u32 s%d, s6, s%d" % (sK, sT0)); e("s_addc_u32 s%d, s7, 0" % (sK + 1))
    e("s_add_u32 s%d, s8, s%d" % (sV, sT0)); e("s_addc_u32 s%d, s9, 0" % (sV + 1))

    ring = {}
    curwin = [0]
    def throttle(n=3):
        if curwin[0] and len(e.vm) + n > curwin[0]: e("s_waitcnt vmcnt(%d)" % (curwin[0] - n))
    def issue_kv(kind, g, rs):
        throttle()
        ring[(kind, g)] = rs
        srd = sK if kind == "K" else sV
        if ph:
            e("s_add_u32 s%d, s%d, %d" % (sSO, sROT, g)); e("s_and_b32 s%d, s%d, 31" % (sSO, sSO))
            e("s_mul_i32 s%d, s%d, 12288" % (sSO, sSO)); so = "s%d" % sSO
        elif g == 0: so = "0"
        else:
            e("s_mov_b32 s%d, %d" % (sSO, g * 12288)); so = "s%d" % sSO
        for t in range(3):
            e.vmem("buffer_load_dwordx4 %s, v%d, %s, %s offen offset:%d %s" % (reg_of(rs, t), vKV, sr(srd), so, t * 128, kvf), "%s%d" % (kind, g))
    def reg_of(rs, t):
        return ar(rs[1] + 4 * t) if isinstance(rs, tuple) else vr(rslot(rs, t))
    def issue_wo(n):
        throttle()
        last = None
        for t in range(3):
            z = 3 * n + t; i, seg = 2 * (z // 10) + (z & 1), (z % 10) >> 1
            if i == 0: so = "0"
            else:
                if last != i: e("s_mov_b32 s%d, %d" % (sSO, i * 5120))
                so = "s%d" % sSO
                last = i
            e.vmem("buffer_load_dwordx4 %s, v%d, %s, %s offen offset:%d %s" % (ar(4 * z), vWO, sr(sWO), so, seg * 256, wf), "O%d" % n)
    e("s_mov_b32 s%d, 0" % sCNT)
    for m in range(8):
        e.vmem("buffer_load_dwordx4 %s, v%d, %s, s%d offen %s" % (ar(8 * m), vWQ, sr(sRE), sCNT, qf), "R")
        e("s_add_u32 s%d, s%d, s%d" % (sSO, sCNT, sS1))
        e.vmem("buffer_load_dwordx4 %s, v%d, %s, s%d offen %s" % (ar(8 * m + 4), vWQ, sr(sRO), sSO, qf), "R")
        if m < 7: e("s_add_u32 s%d, s%d, s%d" % (sCNT, sCNT, sS2))
    if cpf:
        e("s_getpc_b64 s[6:7]")
        e.label("L_pc")
        e("s_sub_u32 s6, s6, L_pc-%s_kernel" % NAME); e("s_subb_u32 s7, s7, 0")
        e("s_lshr_b32 s8, s2, 3"); e("s_lshl_b32 s8, s8, 2"); e("s_add_u32 s8, s8, s%d" % sW)
        e("s_mul_i32 s8, s8, %d" % (64 * cpf)); e("s_min_u32 s8, s8, L_end-%s_kernel-%d" % (NAME, 64 * cpf))
        e("s_add_u32 s6, s6, s8"); e("s_addc_u32 s7, s7, 0")
        for k in range(cpf): e("s_load_dword s8, s[6:7], %d" % (64 * k))
    e("s_add_u32 s%d, s26, %d" % (sEX, WS_EP)); e("s_addc_u32 s%d, s27, 0" % (sEX + 1))
    e("s_load_dword s%d, s[%d:%d], 0" % (sTAG, sEX, sEX + 1))
    if ph:
        aj, ab, ah, ax = ph
        e("s_bfe_u32 s%d, s2, 0x20003" % sT0); e("s_mul_i32 s%d, s%d, %d" % (sROT, sT0, aj))
        e("s_mul_i32 s%d, s%d, %d" % (sT0, sB, ab)); e("s_add_u32 s%d, s%d, s%d" % (sROT, sROT, sT0))
        e("s_lshr_b32 s%d, s2, 6" % sT0); e("s_mul_i32 s%d, s%d, %d" % (sT0, sT0, ah)); e("s_add_u32 s%d, s%d, s%d" % (sROT, sROT, sT0))
        e("s_and_b32 s%d, s2, 7" % sT0); e("s_mul_i32 s%d, s%d, %d" % (sT0, sT0, ax)); e("s_add_u32 s%d, s%d, s%d" % (sROT, sROT, sT0))
    e("s_mov_b32 s%d, 393216" % (sV + 2)); e("s_mov_b32 s%d, 0x20000" % (sV + 3))
    e("s_mul_i32 s%d, s%d, 245760" % (sT0, sH))
    e("s_add_u32 s%d, s12, s%d" % (sWO, sT0)); e("s_addc_u32 s%d, s13, 0" % (sWO + 1))
    e("s_mov_b32 s%d, 245760" % (sWO + 2)); e("s_mov_b32 s%d, 0x20000" % (sWO + 3))
    e("s_mov_b32 s%d, s26" % sWS); e("s_mov_b32 s%d, s27" % (sWS + 1))
    e("s_mov_b32 s%d, %d" % (sWS + 2, WS_SIZE)); e("s_mov_b32 s%d, 0x20000" % (sWS + 3))
    e("s_mov_b32 s%d, s22" % sOUT); e("s_mov_b32 s%d, s23" % (sOUT + 1))
    e("s_mov_b32 s%d, 2560" % (sOUT + 2)); e("s_mov_b32 s%d, 0x20000" % (sOUT + 3))
    e("s_lshl_b32 s%d, s%d, 2" % (sT0, sH)); e("s_add_u32 s%d, s%d, s%d" % (sT0, sT0, sU))
    e("s_mul_i32 s%d, s%d, 205" % (sRB, sT0)); e("s_lshr_b32 s%d, s%d, 10" % (sRB, sRB))
    e("s_mul_i32 s%d, s%d, 5" % (sT1, sRB)); e("s_sub_u32 s%d, s%d, s%d" % (sC5, sT0, sT1))
    e("s_cmp_lt_u32 s%d, 4" % sU); e("s_cselect_b32 s%d, s%d, 255" % (sT0, sT0))
    e("s_cmp_lt_u32 s%d, 120" % sT0)
    e("s_cselect_b32 s%d, %d, 0" % (sWD + 2, 1536 * 1280))
    e("s_cselect_b32 s%d, %d, 0" % (sWSF + 2, WS_Y))
    e("s_cselect_b32 s%d, 1, 0" % sACT)
    e("s_mov_b32 s%d, s20" % sWD); e("s_mov_b32 s%d, s21" % (sWD + 1)); e("s_mov_b32 s%d, 0x20000" % (sWD + 3))
    e("s_mov_b32 s%d, s26" % sWSF); e("s_mov_b32 s%d, s27" % (sWSF + 1)); e("s_mov_b32 s%d, 0x20000" % (sWSF + 3))
    e("s_mov_b32 s%d, 0x00ff00ff" % sVAL); e("s_mov_b32 s%d, 0xff00ff00" % (sVAL + 1))
    e("v_mul_u32_u24 v%d, 1280, v%d" % (vWO, T3))
    e("v_lshl_add_u32 v%d, v%d, 4, v%d" % (vWO, T1, vWO))
    e("s_mul_i32 s%d, s%d, 61440" % (sT0, sW))
    e("v_add_u32 v%d, s%d, v%d" % (vWO, sT0, vWO))
    e("v_lshrrev_b32 v%d, 5, v%d" % (T0, vL))
    e("v_and_b32 v%d, 16, v%d" % (T3, vL))
    e("v_lshl_add_u32 v%d, v%d, 5, v%d" % (vP1O, T2, T3))
    e("v_mul_u32_u24 v%d, %d, v%d" % (vQA, PSTR, T0)); e("v_add_u32 v%d, v%d, v%d" % (vQA, vQA, vP1O))
    e("s_mul_i32 s%d, s%d, %d" % (sT0, sW, 2 * PSTR))
    e("v_add_u32 v%d, s%d, v%d" % (vQA, sT0, vQA))
    e("v_mul_u32_u24 v%d, %d, v%d" % (vF1, PS2, T0)); e("v_add_u32 v%d, v%d, v%d" % (vF1, vF1, vP1O))
    e("s_mul_i32 s%d, s%d, %d" % (sT0, sW, 2 * PS2))
    e("v_add_u32 v%d, s%d, v%d" % (vF1, sT0, vF1))
    e("v_lshlrev_b32 v%d, 9, v%d" % (vFA, T0)); e("v_lshl_add_u32 v%d, v%d, 5, v%d" % (vFA, T1, vFA))
    e("v_add_u32 v%d, v%d, v%d" % (vFA, vFA, T3))
    e("v_lshrrev_b32 v%d, 3, v0" % T0); e("v_lshlrev_b32 v%d, 14, v%d" % (T0, T0))
    e("v_lshl_add_u32 v%d, v%d, 4, v%d" % (T0, T2, T0))
    e("s_mul_i32 s%d, s%d, %d" % (sT0, sB, 20 * 16384))
    e("s_lshl_b32 s%d, s%d, 7" % (sT1, sP))
    e("s_add_u32 s%d, s%d, s%d" % (sT0, sT0, sT1)); e("s_add_u32 s%d, s%d, %d" % (sT0, sT0, WS_Y))
    e("v_cmp_gt_u32 vcc, %d, v0" % (80 if diag == 2 else 160))
    e("v_add_u32 v%d, s%d, v%d" % (T0, sT0, T0))
    e("v_mov_b32 v%d, %d" % (vPY, OOB))
    e("v_cndmask_b32 v%d, v%d, v%d, vcc" % (vPY, vPY, T0))
    e("s_mov_b32 s%d, 0xff" % sFF); e("s_mov_b32 s%d, 0x0c0c0400" % sSEL)
    e("v_and_b32 v%d, 1, v%d" % (T0, vL))
    e("v_lshlrev_b32 v%d, 4, v%d" % (T0, T0))
    e("v_mov_b32 v%d, 0xffff" % T1)
    e("v_lshlrev_b32 v%d, v%d, v%d" % (T0, T0, T1))
    e("v_bfe_u32 v%d, v%d, 1, 2" % (T1, vL))
    for r in range(4):
        e("v_cmp_eq_u32 vcc, %d, v%d" % (r, T1))
        e("s_nop 1")
        e("v_cndmask_b32 v%d, 0, v%d, vcc" % (vM + r, T0))
    kn = [0]
    def more_k(n):
        for _ in range(n):
            if kn[0] < RING: issue_kv("K", kn[0], kn[0]); trace_pt("ik%d" % kn[0]); kn[0] += 1
    more_k(k_pre)
    stamp('iss')
    e.wait_vm("x")
    X = 28
    for r in range(10):
        e("v_lshlrev_b32 v%d, 16, v%d" % (X + 2 * r, 18 + r))
        e("v_and_b32 v%d, 0xffff0000, v%d" % (X + 2 * r + 1, 18 + r))
    def half_allreduce(v, t, op="v_add_f32"):
        for pat in (X1, X2, HM, RM):
            e("s_nop 1")
            e("%s_dpp v%d, v%d, v%d %s %s" % (op, v, v, v, pat, DPP))
        e("v_mov_b32 v%d, v%d" % (t, v))
        e("s_nop 1")
        e("v_permlane16_swap_b32 v%d, v%d" % (v, t))
        e("s_nop 1")
        e("%s v%d, v%d, v%d" % (op, v, v, t))
    for r in range(4): e("v_add_f32 v%d, v%d, v%d" % (48 + r, X + r, X + 4 + r))
    for k in range(8, 20): e("v_add_f32 v%d, v%d, v%d" % (48 + k % 4, 48 + k % 4, X + k))
    e("v_add_f32 v48, v48, v49"); e("v_add_f32 v50, v50, v51"); e("v_add_f32 v48, v48, v50")
    half_allreduce(48, 49)
    e("v_mul_f32 v48, %s, v48" % hx(f2u(1.0 / 640)))
    for k in range(20):
        e("v_sub_f32 v%d, v%d, v48" % (18 + k % 4, X + k))
        if k < 4: e("v_mul_f32 v%d, v%d, v%d" % (52 + k, 18 + k, 18 + k))
        else: e("v_fmac_f32 v%d, v%d, v%d" % (52 + k % 4, 18 + k % 4, 18 + k % 4))
    e("v_add_f32 v52, v52, v53"); e("v_add_f32 v54, v54, v55"); e("v_add_f32 v52, v52, v54")
    half_allreduce(52, 53)
    e("v_mul_f32 v52, %s, v52" % hx(f2u(1.0 / 640)))
    e("v_cvt_pk_bf16_f32 v48, v48, v52")
    e("v_and_b32 v52, 0xffff0000, v48")
    e("v_lshlrev_b32 v48, 16, v48")
    e("v_add_f32 v52, %s, v52" % hx(f2u(1e-5)))
    e("v_cvt_pk_bf16_f32 v52, v52, v52")
    e("v_and_b32 v52, 0xffff0000, v52")
    e("v_sqrt_f32 v52, v52")
    e("s_nop 0")
    e("v_cvt_pk_bf16_f32 v52, v52, v52")
    e("v_and_b32 v52, 0xffff0000, v52")
    e("v_rcp_f32 v53, v52")
    for k in range(0, 20, 2):
        a, b2 = X + k, X + k + 1
        e("v_sub_f32 v%d, v%d, v48" % (a, a)); e("v_sub_f32 v%d, v%d, v48" % (b2, b2))
        e("v_cvt_pk_bf16_f32 v18, v%d, v%d" % (a, b2))
        e("v_lshlrev_b32 v%d, 16, v18" % a); e("v_and_b32 v%d, 0xffff0000, v18" % b2)
        e("v_mul_f32 v19, v%d, v53" % a); e("v_mul_f32 v20, v%d, v53" % b2)
        e("v_fma_f32 v%d, -v19, v52, v%d" % (a, a)); e("v_fma_f32 v%d, -v20, v52, v%d" % (b2, b2))
        e("v_fmac_f32 v19, v%d, v53" % a); e("v_fmac_f32 v20, v%d, v53" % b2)
        e("v_cvt_pk_bf16_f32 v%d, v19, v19" % a); e("v_cvt_pk_bf16_f32 v%d, v20, v20" % b2)
    e("v_lshlrev_b32 v%d, 1, v%d" % (T4, T4)); e("v_lshlrev_b32 v%d, 1, v%d" % (T5, T5))
    e("ds_write_b128 v%d, %s offset:%d" % (T4, vr(X), L_XN))
    e("ds_write_b128 v%d, %s offset:%d" % (T4, vr(X + 4), L_XN + 16))
    e("ds_write_b128 v%d, %s offset:%d" % (T4, vr(X + 8), L_XN + 1024))
    e("ds_write_b128 v%d, %s offset:%d" % (T4, vr(X + 12), L_XN + 1024 + 16))
    e("ds_write_b128 v%d, %s offset:%d" % (T5, vr(X + 16), L_XN + 2048))
    e("v_mov_b32 v%d, %d" % (T4, L_CNT)); e("v_mov_b32 v%d, 0" % T5)
    e("s_waitcnt lgkmcnt(0)")
    e("s_add_u32 s%d, s%d, 1" % (sTAG, sTAG))
    e("s_and_b32 s%d, s%d, 0xff" % (sT0, sTAG)); e("s_mul_i32 s%d, s%d, 0x01010101" % (sT1, sT0))
    e("ds_write_b32 v%d, v%d" % (T4, T5))
    e("v_mov_b32 v%d, s%d" % (vTAG, sT0)); e("v_mov_b32 v%d, s%d" % (vTAG + 1, sT1))
    more_k(k_mid)
    stamp('ln')
    e("s_cmp_ge_u32 s%d, 6" % sU); e("s_cbranch_scc1 L_frole")
    e("s_mul_i32 s%d, s%d, 1280" % (sT0, sKH)); e("s_lshl_b32 s%d, s%d, 5" % (sT1, sW)); e("s_add_u32 s%d, s%d, s%d" % (sT0, sT0, sT1))
    e("v_lshrrev_b32 v%d, 3, v%d" % (T0, vL)); e("v_lshlrev_b32 v%d, 2, v%d" % (T1, T0))
    e("v_add_u32 v%d, s%d, v%d" % (T1, sT0, T1))
    for n in range(10):
        e("ds_read_b32 v%d, v%d offset:%d" % (vS + 2 * n, T1, 128 * n))
        e("ds_read_b32 v%d, v%d offset:%d" % (vS + 2 * n + 1, T1, 128 * n + 2560))
        if n == 6: e("s_waitcnt lgkmcnt(8)")
    e("s_waitcnt lgkmcnt(0)")
    for n in range(10):
        afrag(vA0, vS + 2 * n); afrag(vA1, vS + 2 * n + 1)
        if n == 0: e.wait_vm("R")
        else: e("s_nop 0")
        mfma(vr(vACC), vr(vA0), ar(4 * n), "0" if n == 0 else vr(vACC))
        mfma(vr(vACC + 4), vr(vA1), ar(4 * n), "0" if n == 0 else vr(vACC + 4))
    e("v_and_b32 v%d, 31, v%d" % (T1, vL)); e("v_lshlrev_b32 v%d, 4, v%d" % (T1, T1))
    e("v_bfe_u32 v%d, v%d, 4, 1" % (T3, vL)); e("v_mul_u32_u24 v%d, 3072, v%d" % (T3, T3))
    e("v_and_b32 v%d, 15, v%d" % (T4, vL)); e("v_lshl_add_u32 v%d, v%d, 4, v%d" % (T3, T4, T3))
    e("v_lshrrev_b32 v%d, 5, v%d" % (T4, vL)); e("v_mul_u32_u24 v%d, 768, v%d" % (T4, T4)); e("v_add_u32 v%d, v%d, v%d" % (T3, T3, T4))
    e("s_mul_i32 s%d, s%d, 6144" % (sT0, sH)); e("s_mul_i32 s%d, s%d, 1536" % (sT1, sKH)); e("s_add_u32 s%d, s%d, s%d" % (sT0, sT0, sT1))
    e("s_lshl_b32 s%d, s%d, 8" % (sT1, sNT)); e("s_add_u32 s%d, s%d, s%d" % (sT0, sT0, sT1))
    e("s_mov_b64 exec, %s" % sr(sVAL, 2))
    e("ds_write_b128 v%d, %s offset:%d" % (vF1, vr(vACC), L_Q1))
    e("ds_write_b128 v%d, %s offset:%d" % (vF1, vr(vACC + 4), L_Q1 + 256))
    e("s_mov_b64 exec, -1")
    e("s_waitcnt lgkmcnt(0)")
    e("s_barrier")
    e("s_cmp_lg_u32 s%d, 0" % sW); e("s_cbranch_scc1 L_rdone")
    for pp in range(8): e("ds_read_b128 %s, v%d offset:%d" % (vr(vS + 4 * pp), T1, L_Q1 + pp * PS2))
    e("s_waitcnt lgkmcnt(6)")
    for r in range(4): e("v_add_f32 v%d, v%d, v%d" % (18 + r, vS + r, vS + 4 + r))
    for pp in range(2, 8):
        e("s_waitcnt lgkmcnt(%d)" % (7 - pp))
        for r in range(4): e("v_add_f32 v%d, v%d, v%d" % (18 + r, 18 + r, vS + 4 * pp + r))
    e("s_mov_b32 exec_lo, 0")
    for r in range(4): untag(22 + r, 18 + r)
    for r in range(4): e("v_sub_f32 v%d, v%d, v%d" % (18 + r, 18 + r, 22 + r))
    e("s_mov_b64 exec, -1")
    for r in range(4): e("v_bfi_b32 v%d, s%d, v%d, v%d" % (18 + r, sFF, vTAG, 18 + r))
    e.vmem("buffer_store_dwordx4 v[18:21], v%d, %s, s%d offen %s" % (T3, sr(sWS), sT0, stf), counted=False)
    e("s_branch L_rdone")
    e.label("L_frole")
    e("v_bfe_u32 v%d, v%d, 3, 1" % (T0, vL)); e("v_mul_u32_u24 v%d, 2560, v%d" % (T0, T0))
    e("v_lshrrev_b32 v%d, 4, v%d" % (T3, vL)); e("v_lshl_add_u32 v%d, v%d, 2, v%d" % (T0, T3, T0))
    e("s_lshl_b32 s%d, s%d, 9" % (sT0, sKR)); e("s_lshl_b32 s%d, s%d, 4" % (sT1, sW)); e("s_add_u32 s%d, s%d, s%d" % (sT0, sT0, sT1))
    e("v_add_u32 v%d, s%d, v%d" % (T0, sT0, T0))
    for m in range(0, 8, 2): e("ds_read2_b32 v[%d:%d], v%d offset0:%d offset1:%d" % (vS + m, vS + m + 1, T0, 16 * m, 16 * m + 16))
    e("s_waitcnt lgkmcnt(0)")
    for m in range(8):
        A = vA0 if m % 2 == 0 else vA1
        afrag(A, vS + m)
        e("s_nop 0")
        if m == 0: e.wait_vm("R")
        else: e("s_nop 0")
        mfma(vr(vACC), vr(A), ar(8 * m), "0" if m == 0 else vr(vACC))
        mfma(vr(vACC + 4), vr(A), ar(8 * m + 4), "0" if m == 0 else vr(vACC + 4))
    e("s_lshl_b32 s%d, s%d, 11" % (sT0, sW))
    e("v_add_u32 v%d, s%d, v%d" % (T0, sT0, vFA))
    e("v_bfe_u32 v%d, v0, 1, 2" % T2); e("v_lshlrev_b32 v%d, 9, v%d" % (T2, T2))
    e("v_bfe_u32 v%d, v0, 3, 4" % T3); e("v_lshl_add_u32 v%d, v%d, 5, v%d" % (T2, T3, T2))
    e("v_and_b32 v%d, 1, v0" % T4); e("v_lshl_add_u32 v%d, v%d, 4, v%d" % (T2, T4, T2))
    e("v_and_b32 v%d, 127, v0" % T3); e("v_lshlrev_b32 v%d, 4, v%d" % (T3, T3))
    e("s_mul_i32 s%d, s%d, 24576" % (sT0, sKR)); e("s_lshl_b32 s%d, s%d, 11" % (sT1, sFS))
    e("s_add_u32 s%d, s%d, s%d" % (sT0, sT0, sT1)); e("s_add_u32 s%d, s%d, %d" % (sT0, sT0, WS_P1))
    e("ds_write_b128 v%d, %s offset:%d" % (T0, vr(vACC), L_F1))
    e("ds_write_b128 v%d, %s offset:%d" % (T0, vr(vACC + 4), L_F1 + 1024))
    e("s_waitcnt lgkmcnt(0)")
    e("s_barrier")
    e("s_cmp_eq_u32 s%d, 0" % sFACT); e("s_cbranch_scc1 L_rdone")
    for pp in range(4): e("ds_read_b128 %s, v%d offset:%d" % (vr(vS + 4 * pp), T2, L_F1 + pp * 2048))
    e("s_waitcnt lgkmcnt(0)")
    for r in range(4): e("v_add_f32 v%d, v%d, v%d" % (18 + r, vS + r, vS + 4 + r))
    for pp in (2, 3):
        for r in range(4): e("v_add_f32 v%d, v%d, v%d" % (18 + r, 18 + r, vS + 4 * pp + r))
    if p1lo:
        lab = e.newlab("p1hi")
        e("s_cmp_lt_u32 s%d, 2" % sW); e("s_cbranch_scc1 %s" % lab)
        for r in range(4): untag(22 + r, 18 + r)
        for r in range(4): e("v_sub_f32 v%d, v%d, v%d" % (18 + r, 18 + r, 22 + r))
        e("s_add_u32 s%d, s%d, %d" % (sT0, sT0, P1_LO))
        e.label(lab)
        for r in range(4): e("v_bfi_b32 v%d, s%d, v%d, v%d" % (18 + r, sFF, vTAG, 18 + r))
    else:
        e("s_cmp_ge_u32 s%d, 2" % sW); e("s_cbranch_scc1 L_rdone")
        for r in range(4): tagit(18 + r, 18 + r)
    e.vmem("buffer_store_dwordx4 v[18:21], v%d, %s, s%d offen %s" % (T3, sr(sWS), sT0, stf), counted=False)
    e.label("L_rdone")
    stamp('q1')
    e("s_lshl_b32 s%d, s%d, 1" % (sT0, sH)); e("s_add_u32 s%d, s%d, s%d" % (sT0, sT0, sB)); e("s_mul_i32 s%d, s%d, 3072" % (sT0, sT0))
    e("s_mul_i32 s%d, s%d, 768" % (sT1, sW)); e("s_add_u32 s%d, s%d, s%d" % (sT0, sT0, sT1))
    e("v_lshlrev_b32 v%d, 4, v%d" % (T4, vL)); e("v_add_u32 v%d, s%d, v%d" % (vWQ, sT0, T4))
    vQC = vS
    def issue_qc(counted):
        e.vmem("buffer_load_dwordx4 %s, v%d, %s, 0 offen sc1" % (vr(vQC), vWQ, sr(sWS)), "QC", counted=counted)
    more_k(qc_after - kn[0])
    e("s_mov_b32 exec_hi, 0xffff")
    issue_qc(True)
    e("s_mov_b64 exec, -1")
    more_k(RING)
    for g in range(NE): issue_kv("V", g, ('a', AVE + 12 * g)); trace_pt("iv%d" % g)
    e("s_mul_i32 s%d, s%d, 768" % (sT0, sW)); e("s_add_u32 s%d, s%d, %d" % (sT0, sT0, L_QC))
    e("v_lshlrev_b32 v%d, 3, v%d" % (T2, vL)); e("v_add_u32 v%d, s%d, v%d" % (T3, sT0, T4))
    e("v_and_b32 v%d, 7, v%d" % (T5, vL)); e("v_lshlrev_b32 v%d, 4, v%d" % (T5, T5))
    stamp('iss2')
    e.wait_vm("QC")
    e("s_mov_b32 exec_hi, 0xffff")
    poll("qc", [vQC], T0, T1, lambda: issue_qc(False))
    for r in range(4): untag(vQC + r, vQC + r)
    e("ds_write_b128 v%d, %s" % (T3, vr(vQC)))
    e("s_mov_b64 exec, -1")
    e("s_waitcnt lgkmcnt(0)")
    e("s_barrier")
    stamp('b1')
    e("ds_read_b128 %s, v%d offset:%d" % (vr(vQF), T4, L_QC))
    e("ds_read_b128 %s, v%d offset:%d" % (vr(vQF + 4), T4, L_QC + 768))
    e("ds_read_b128 %s, v%d offset:%d" % (vr(vQF + 8), T4, L_QC + 1536))
    e("ds_read_b128 %s, v%d offset:%d" % (vr(vA0), T4, L_QC + 2304))
    for g in range(32): e("v_mov_b32 v%d, 0" % (vS + g))
    e("s_waitcnt lgkmcnt(0)")
    for r in range(4): e("v_add_f32 v%d, v%d, v%d" % (vQF + r, vQF + r, vQF + 4 + r))
    for r in range(4): e("v_add_f32 v%d, v%d, v%d" % (vQF + 8 + r, vQF + 8 + r, vA0 + r))
    for r in range(4): e("v_add_f32 v%d, v%d, v%d" % (vQF + r, vQF + r, vQF + 8 + r))
    e("v_cvt_pk_bf16_f32 v%d, v%d, v%d" % (vQF, vQF, vQF + 1))
    e("v_cvt_pk_bf16_f32 v%d, v%d, v%d" % (vQF + 1, vQF + 2, vQF + 3))
    e("ds_write_b64 v%d, %s offset:%d" % (T2, vr(vQF, 2), L_QB))
    e("s_waitcnt lgkmcnt(0)")
    for t in range(3): e("ds_read_b128 %s, v%d offset:%d" % (vr(vQF + 4 * t), T5, L_QB + t * 128))
    e("s_waitcnt lgkmcnt(0)")

    vP1 = 10
    def issue_p1(counted):
        e.vmem("buffer_load_dwordx4 %s, v%d, %s, 0 offen sc1" % (vr(vP1), vP1O, sr(sWSF)), "P1", counted=counted)
        e.vmem("buffer_load_dwordx4 %s, v%d, %s, 0 offen sc1" % (vr(vP1 + 4), vF1, sr(sWSF)), "P1", counted=counted)
        if not p1lo: return
        e("s_mov_b32 s%d, %d" % (sSO, P1_LO))
        e.vmem("buffer_load_dwordx4 %s, v%d, %s, s%d offen sc1" % (vr(vP1 + 8), vP1O, sr(sWSF), sSO), "P1", counted=counted)
        e.vmem("buffer_load_dwordx4 %s, v%d, %s, s%d offen sc1" % (vr(vP1 + 12), vF1, sr(sWSF), sSO), "P1", counted=counted)
    def start_p1():
        e("s_lshl_b32 s%d, s%d, 2" % (sT0, sRB)); e("s_add_u32 s%d, s%d, s%d" % (sT0, sT0, sW))
        e("s_lshl_b32 s%d, s%d, 8" % (sT1, sT0)); e("s_add_u32 s%d, s%d, %d" % (sT1, sT1, WS_P1))
        e("v_and_b32 v%d, 15, v%d" % (vF1, vL)); e("v_lshlrev_b32 v%d, 4, v%d" % (vF1, vF1)); e("v_add_u32 v%d, s%d, v%d" % (vF1, sT1, vF1))
        e("v_lshrrev_b32 v%d, 4, v%d" % (vP1O, vL)); e("v_mul_u32_u24 v%d, 24576, v%d" % (vP1O, vP1O)); e("v_add_u32 v%d, v%d, v%d" % (vP1O, vP1O, vF1))
        e("v_add_u32 v%d, %d, v%d" % (vF1, 4 * 24576, vF1))
        issue_p1(True)
        e("s_mul_i32 s%d, s%d, 20480" % (sT1, sT0))
        e("s_lshl_b32 s%d, s%d, 8" % (sT2, sC5)); e("s_add_u32 s%d, s%d, s%d" % (sT1, sT1, sT2))
        e("s_mul_i32 s%d, s%d, 61440" % (sT2, sW))
        e("v_subrev_u32 v%d, s%d, v%d" % (T1, sT2, vWO))
        for i in range(4):
            e.vmem("buffer_load_dwordx4 %s, v%d, %s, s%d offen %s" % (ar(240 + 4 * i), T1, sr(sWD), sT1, ff), "WD")
            if i < 3: e("s_add_u32 s%d, s%d, 5120" % (sT1, sT1))
    def stage2():
        skip = e.newlab("nost2")
        e("s_cmp_eq_u32 s%d, 0" % sACT); e("s_cbranch_scc1 %s" % skip)
        e.wait_vm("WD")
        poll("p1", [vP1, vP1 + 4, vP1 + 8, vP1 + 12][:4 if p1lo else 2], T1, T2, lambda: issue_p1(False))
        for r in range(16 if p1lo else 8): untag(10 + r, 10 + r)
        if p1lo:
            for r in range(8): e("v_add_f32 v%d, v%d, v%d" % (10 + r, 10 + r, 18 + r))
        e("s_mov_b64 exec, 0xffff")
        for r in range(4): e("v_add_f32 v%d, v%d, v%d" % (10 + r, 10 + r, 14 + r))
        e("s_mov_b64 exec, -1")
        for sw in ("v_permlane16_swap_b32", "v_permlane32_swap_b32"):
            for r in range(4): e("v_mov_b32 v%d, v%d" % (14 + r, 10 + r))
            e("s_nop 0")
            for r in range(4): e("%s v%d, v%d" % (sw, 10 + r, 14 + r))
            e("s_nop 0")
            for r in range(4): e("v_add_f32 v%d, v%d, v%d" % (10 + r, 10 + r, 14 + r))
        e("v_cvt_pk_bf16_f32 v14, v10, v11"); e("v_cvt_pk_bf16_f32 v15, v12, v13")
        e("v_lshlrev_b32 v10, 16, v14"); e("v_and_b32 v11, 0xffff0000, v14")
        e("v_lshlrev_b32 v12, 16, v15"); e("v_and_b32 v13, 0xffff0000, v15")
        e("s_nop 0")
        for r in range(4): e("v_mov_b32_dpp v%d, v%d row_shl:4 %s" % (14 + r, 10 + r, DPP))
        for k in range(4): e("v_mul_f32 v%d, v%d, v%d" % (18 + k, 10 + k, 10 + k))
        for k in range(4): e("v_mul_f32 v%d, %s, v%d" % (18 + k, hx(f2u(0.044715)), 18 + k))
        for k in range(4): e("v_fma_f32 v%d, v%d, v%d, v%d" % (18 + k, 18 + k, 10 + k, 10 + k))
        for k in range(4): e("v_mul_f32 v%d, %s, v%d" % (18 + k, hx(f2u(-2.0 * LOG2E * 0.7978845608028654)), 18 + k))
        for k in range(4): e("v_exp_f32 v%d, v%d" % (18 + k, 18 + k))
        for k in range(4): e("v_add_f32 v%d, 1.0, v%d" % (18 + k, 18 + k))
        for k in range(4): e("v_rcp_f32 v%d, v%d" % (18 + k, 18 + k))
        for k in range(4): e("v_mul_f32 v%d, v%d, v%d" % (18 + k, 10 + k, 18 + k))
        e("v_cvt_pk_bf16_f32 v10, v18, v19"); e("v_cvt_pk_bf16_f32 v11, v20, v21")
        e("v_lshlrev_b32 v18, 16, v10"); e("v_and_b32 v19, 0xffff0000, v10")
        e("v_lshlrev_b32 v20, 16, v11"); e("v_and_b32 v21, 0xffff0000, v11")
        for k in range(4): e("v_mul_f32 v%d, v%d, v%d" % (18 + k, 18 + k, 14 + k))
        e("v_cvt_pk_bf16_f32 v28, v18, v19"); e("v_cvt_pk_bf16_f32 v29, v20, v21")
        e("v_bfe_u32 v18, v%d, 3, 1" % vL); e("v_lshlrev_b32 v18, 3, v18")
        for i, off in enumerate((0, 4, 32, 36)):
            e("ds_bpermute_b32 v%d, v18, v28 offset:%d" % (10 + i, off)); e("ds_bpermute_b32 v%d, v18, v29 offset:%d" % (14 + i, off))
        e("v_lshrrev_b32 v19, 4, v%d" % vL); e("v_mul_u32_u24 v19, 0x0202, v19"); e("v_add_u32 v19, 0x0100, v19")
        e("v_lshl_or_b32 v19, v19, 16, v19")
        e("s_waitcnt lgkmcnt(0)")
        for i in range(4): e("v_perm_b32 v%d, v%d, v%d, v19" % (10 + i, 14 + i, 10 + i))
        for i in range(4):
            A = 20 if i % 2 == 0 else 24
            afrag(A, 10 + i)
            e("s_nop 1")
            mfma(vr(16), vr(A), ar(240 + 4 * i), "0" if i == 0 else vr(16))
        e("s_lshl_b32 s%d, s%d, 10" % (sT0, sW))
        e("v_add_u32 v10, s%d, v%d" % (sT0, vFA))
        e("v_mov_b32 v11, %d" % L_CNT); e("v_mov_b32 v12, 1")
        e("s_nop 5")
        e("ds_write_b128 v10, %s offset:%d" % (vr(16), L_F2))
        e("s_waitcnt lgkmcnt(0)")
        e("s_mov_b64 exec, 1")
        e("ds_add_rtn_u32 v12, v11, v12")
        e("s_mov_b64 exec, -1")
        e("s_waitcnt lgkmcnt(0)")
        e("v_readfirstlane_b32 s%d, v12" % sT0)
        e("s_nop 3")
        e("s_cmp_lg_u32 s%d, 3" % sT0); e("s_cbranch_scc1 %s" % skip)
        e("v_lshlrev_b32 v28, 4, v%d" % vL)
        for pp in range(4): e("ds_read_b128 %s, v28 offset:%d" % (vr(10 + 4 * pp), L_F2 + pp * 1024))
        e("v_lshrrev_b32 v28, 3, v%d" % vL); e("v_mul_u32_u24 v28, 3072, v28")
        e("v_and_b32 v29, 7, v%d" % vL); e("v_lshl_add_u32 v28, v29, 4, v28")
        e("s_mul_i32 s%d, s%d, %d" % (sT0, sC5, 8 * 3072))
        e("s_lshl_b32 s%d, s%d, 7" % (sT1, sRB))
        e("s_add_u32 s%d, s%d, s%d" % (sT0, sT0, sT1)); e("s_add_u32 s%d, s%d, %d" % (sT0, sT0, WS_P2))
        e("s_waitcnt lgkmcnt(0)")
        for pp in range(1, 4):
            for r in range(4): e("v_add_f32 v%d, v%d, v%d" % (10 + r, 10 + r, 10 + 4 * pp + r))
        for r in range(4): tagit(10 + r, 10 + r)
        e.vmem("buffer_store_dwordx4 %s, v28, %s, s%d offen %s" % (vr(10), sr(sWSF), sT0, stf), counted=False)
        e("s_nop 1")
        e.label(skip)

    curwin[0] = win
    sc = hx(f2u(192 ** -0.5))
    nwo = [0]
    NO1 = AVE // 12
    def finish_scores(g0):
        a, b2, t = vS + g0, vS + g0 + 1, T0
        for pat in (X1, X2, HM):
            e("v_add_f32_dpp v%d, v%d, v%d %s %s" % (a, a, a, pat, DPP))
            e("v_add_f32_dpp v%d, v%d, v%d %s %s" % (b2, b2, b2, pat, DPP))
            e("s_nop 0")
        e("v_cvt_pk_bf16_f32 v%d, v%d, v%d" % (t, a, b2))
        e("v_lshlrev_b32 v%d, 16, v%d" % (a, t)); e("v_and_b32 v%d, 0xffff0000, v%d" % (b2, t))
        e("v_mul_f32 v%d, %s, v%d" % (a, sc, a)); e("v_mul_f32 v%d, %s, v%d" % (b2, sc, b2))
        e("v_cvt_pk_bf16_f32 v%d, v%d, v%d" % (t, a, b2))
        e("v_lshlrev_b32 v%d, 16, v%d" % (a, t)); e("v_and_b32 v%d, 0xffff0000, v%d" % (b2, t))
        if g0 == 0: e("v_max_f32 v%d, v%d, v%d" % (vMW, a, b2))
        else: e("v_max3_f32 v%d, v%d, v%d, v%d" % (vMW, vMW, a, b2))
    vn = [NE]
    for g in range(32):
        e.wait_vm("K%d" % g)
        stamp('k%d' % g)
        rs = ring[("K", g)]
        for t in range(3):
            for r in range(4):
                e("v_dot2c_f32_bf16 v%d, v%d, v%d" % (vS + g, rslot(rs, t) + r, vQF + 4 * t + r))
        if g + RING < 32: issue_kv("K", g + RING, rs)
        else: issue_kv("V", vn[0], rs); vn[0] += 1
        if nwo[0] < NO1 and g >= ostart and (g - ostart) % ostep == 0:
            issue_wo(nwo[0]); nwo[0] += 1
        if g == p1_g: start_p1()
        if g == st2_g: stage2()
        if g % 2 == 1 and g >= 3: finish_scores(g - 3)
    e("s_nop 2")
    finish_scores(30)
    def group_allreduce(v, t, op):
        e("s_nop 1")
        e("%s_dpp v%d, v%d, v%d %s %s" % (op, v, v, v, R8, DPP))
        e("v_mov_b32 v%d, v%d" % (t, v)); e("s_nop 1")
        e("v_permlane16_swap_b32 v%d, v%d" % (v, t)); e("s_nop 1")
        e("%s v%d, v%d, v%d" % (op, v, v, t))
        e("v_mov_b32 v%d, v%d" % (t, v)); e("s_nop 1")
        e("v_permlane32_swap_b32 v%d, v%d" % (v, t)); e("s_nop 1")
        e("%s v%d, v%d, v%d" % (op, v, v, t))
    group_allreduce(vMW, T0, "v_max_f32")
    l2e = hx(f2u(LOG2E))
    for g in range(32): e("v_sub_f32 v%d, v%d, v%d" % (vS + g, vS + g, vMW))
    for g in range(32): e("v_mul_f32 v%d, %s, v%d" % (vS + g, l2e, vS + g))
    for g in range(32): e("v_exp_f32 v%d, v%d" % (vS + g, vS + g))
    e("v_add_f32 v%d, v%d, v%d" % (vLW, vS, vS + 1)); e("v_add_f32 v%d, v%d, v%d" % (T0, vS + 2, vS + 3))
    for g in range(4, 32, 2):
        e("v_add_f32 v%d, v%d, v%d" % (vLW, vLW, vS + g)); e("v_add_f32 v%d, v%d, v%d" % (T0, T0, vS + g + 1))
    e("v_add_f32 v%d, v%d, v%d" % (vLW, vLW, T0))
    group_allreduce(vLW, T0, "v_add_f32")
    e("s_lshl_b32 s%d, s%d, 3" % (sT0, sW)); e("s_add_u32 s%d, s%d, %d" % (sT0, sT0, L_ML)); e("v_mov_b32 v%d, s%d" % (T0, sT0))
    e("ds_write_b64 v%d, v[%d:%d]" % (T0, vMW, vLW))
    e("v_and_b32 v%d, 3, v%d" % (T0, vL)); e("v_lshlrev_b32 v%d, 3, v%d" % (T0, T0))
    e("s_waitcnt lgkmcnt(0)")
    e("s_barrier")
    e("ds_read_b64 v[30:31], v%d offset:%d" % (T0, L_ML))
    e("s_waitcnt lgkmcnt(0)")
    e("v_mov_b32 v32, v30")
    for pat in (X1, X2):
        e("s_nop 1"); e("v_max_f32_dpp v32, v32, v32 %s %s" % (pat, DPP))
    e("v_sub_f32 v30, v30, v32"); e("v_sub_f32 v33, v%d, v32" % vMW)
    e("v_mul_f32 v30, %s, v30" % l2e); e("v_mul_f32 v33, %s, v33" % l2e)
    e("v_exp_f32 v30, v30"); e("v_exp_f32 v33, v33")
    e("s_nop 0")
    e("v_mul_f32 v30, v30, v31")
    for pat in (X1, X2):
        e("s_nop 1"); e("v_add_f32_dpp v30, v30, v30 %s %s" % (pat, DPP))
    e("v_rcp_f32 v31, v30")
    tagit(34, 32); tagit(35, 30); tagit(36, 32); tagit(37, 30)
    vFAC = 41
    e("v_mul_f32 v%d, v33, v31" % vFAC)
    e("s_lshl_b32 s%d, s%d, 7" % (sT0, sB)); e("s_add_u32 s%d, s%d, s%d" % (sT0, sT0, sP))
    e("s_lshl_b32 s%d, s%d, 7" % (sT0, sT0)); e("s_add_u32 s%d, s%d, %d" % (sWQO, sT0, WS_ML))
    e("v_mov_b32 v%d, v32" % vMW); e("v_mov_b32 v%d, v30" % vLW)
    e("v_lshlrev_b32 v%d, 4, v%d" % (vF1, vL))
    lab = e.newlab("noml")
    e("s_cmp_lg_u32 s%d, 3" % sW); e("s_cbranch_scc1 %s" % lab)
    e("s_mov_b64 exec, 0xff")
    e.vmem("buffer_store_dwordx4 %s, v%d, %s, s%d offen %s" % (vr(34), vF1, sr(sWS), sWQO, stf), counted=False)
    e("s_mov_b64 exec, -1")
    e.label(lab)
    e("s_and_b32 s%d, s%d, %d" % (sWQO, sWQO, ~511 & 0xffffffff))
    e("v_and_b32 v%d, 3, v%d" % (vF1, vL)); e("v_lshlrev_b32 v%d, 7, v%d" % (vF1, vF1))
    stamp('b2')

    aY, aML, cF, cX, aOUT, aCO, aCR, cG = 42, 43, 44, 48, 49, 50, 51, 52
    def quad_reduce(q):
        e("s_nop 0")
        e("v_permlane32_swap_b32 v%d, v%d" % (q, q + 1)); e("v_permlane32_swap_b32 v%d, v%d" % (q + 2, q + 3)); e("s_nop 0")
        e("v_add_f32 v%d, v%d, v%d" % (q, q, q + 1)); e("v_add_f32 v%d, v%d, v%d" % (q + 2, q + 2, q + 3)); e("s_nop 1")
        e("v_permlane16_swap_b32 v%d, v%d" % (q, q + 2)); e("s_nop 0")
        e("v_add_f32 v%d, v%d, v%d" % (q, q, q + 2)); e("s_nop 1")
        e("v_add_f32_dpp v%d, v%d, v%d %s %s" % (q, q, q, R8, DPP))
    def ld_f(counted): e.vmem("buffer_load_dwordx4 %s, v%d, %s, 0 offen sc1" % (vr(cF), 53, sr(sWSF)), "CF", counted=counted)
    vWJ = 38
    def ld_sib(counted): e.vmem("buffer_load_dwordx4 %s, v%d, %s, s%d offen sc1" % (vr(30), vF1, sr(sWS), sWQO), "SIB", counted=counted)
    def split_weight():
        e.wait_vm("SIB")
        poll("sib", [30], 54, 55, lambda: ld_sib(False))
        untag(30, 30); untag(31, 31)
        e("v_mov_b32 v32, v30")
        for pat in (X1, X2):
            e("s_nop 1"); e("v_max_f32_dpp v32, v32, v32 %s %s" % (pat, DPP))
        e("v_sub_f32 v30, v30, v32"); e("v_sub_f32 v33, v%d, v32" % vMW)
        e("v_mul_f32 v30, %s, v30" % l2e); e("v_mul_f32 v33, %s, v33" % l2e)
        e("v_exp_f32 v30, v30"); e("v_exp_f32 v33, v33")
        e("v_add_u32 v32, 0x80, v%d" % vLW); untag(32, 32)
        e("v_mul_f32 v30, v30, v31"); e("v_mul_f32 v33, v33, v32")
        for pat in (X1, X2):
            e("s_nop 1"); e("v_add_f32_dpp v30, v30, v30 %s %s" % (pat, DPP))
        e("v_rcp_f32 v30, v30"); e("s_nop 0")
        e("v_mul_f32 v%d, v33, v30" % vWJ)
    def consumer_setup():
        if elect:
            e("s_mov_b32 s%d, %d" % (sWSF + 2, WS_SIZE))
        elif lightc:
            e("s_lshr_b32 s%d, s2, 6" % sT0); e("s_lshl_b32 s%d, s%d, 1" % (sT0, sT0))
            e("s_sub_u32 s%d, s%d, 4" % (sT1, sU)); e("s_add_u32 s%d, s%d, s%d" % (sT0, sT0, sT1))
            e("s_cmp_lt_u32 s%d, 2" % sT1); e("s_cselect_b32 s%d, s%d, 99" % (sT0, sT0))
            e("s_and_b32 s%d, s2, 7" % sT1); e("s_mul_i32 s%d, s%d, 5" % (sCI, sT1)); e("s_add_u32 s%d, s%d, s%d" % (sCI, sCI, sT0))
            e("s_cmp_lt_u32 s%d, 5" % sT0)
            e("s_cselect_b32 s%d, 1, 0" % sCONS); e("s_cselect_b32 s%d, %d, 0" % (sWSF + 2, WS_SIZE))
        else:
            e("s_and_b32 s%d, s2, 1" % sT0); e("s_lshl_b32 s%d, s%d, 8" % (sT0, sT0)); e("s_add_u32 s%d, s%d, s2" % (sT0, sT0))
            e("s_cmp_lt_u32 s%d, 80" % sT0)
            e("s_cselect_b32 s%d, 1, 0" % sCONS); e("s_cselect_b32 s%d, %d, 0" % (sWSF + 2, WS_SIZE))
            e("s_lshr_b32 s%d, s2, 1" % sCI)
        e("s_cmp_ge_u32 s%d, 20" % sCI); e("s_cselect_b32 s%d, 1, 0" % sB)
        e("s_mul_i32 s%d, s%d, 20" % (sT0, sB)); e("s_sub_u32 s%d, s%d, s%d" % (sH, sCI, sT0))
        e("v_lshlrev_b32 v53, 4, v%d" % vL)
        e("s_lshl_b32 s%d, s%d, 14" % (sT0, sCI)); e("s_lshl_b32 s%d, s%d, 12" % (sT1, sW))
        e("s_add_u32 s%d, s%d, s%d" % (sT0, sT0, sT1)); e("s_add_u32 s%d, s%d, %d" % (sT0, sT0, WS_Y))
        e("v_add_u32 v%d, s%d, v53" % (aY, sT0))
        e("s_lshr_b32 s%d, s%d, 2" % (sT0, sH)); e("s_lshl_b32 s%d, s%d, 1" % (sT0, sT0)); e("s_add_u32 s%d, s%d, s%d" % (sT0, sT0, sB))
        e("s_lshl_b32 s%d, s%d, 2" % (sT0, sT0)); e("s_and_b32 s%d, s%d, 3" % (sT1, sH)); e("s_add_u32 s%d, s%d, s%d" % (sT0, sT0, sT1))
        e("s_mul_i32 s%d, s%d, 3072" % (sT0, sT0)); e("s_mul_i32 s%d, s%d, 768" % (sT1, sW))
        e("s_add_u32 s%d, s%d, s%d" % (sT0, sT0, sT1)); e("s_add_u32 s%d, s%d, %d" % (sT0, sT0, WS_P2))
        e("v_min_u32 v53, 752, v53"); e("v_add_u32 v53, s%d, v53" % sT0)
        e("v_lshrrev_b32 v%d, 3, v%d" % (aML, vL)); e("v_lshlrev_b32 v%d, 7, v%d" % (aML, aML))
        e("s_lshl_b32 s%d, s%d, 14" % (sT0, sB)); e("s_lshl_b32 s%d, s%d, 12" % (sT1, sW))
        e("s_add_u32 s%d, s%d, s%d" % (sT0, sT0, sT1)); e("s_add_u32 s%d, s%d, %d" % (sT0, sT0, WS_ML))
        e("v_add_u32 v%d, s%d, v%d" % (aML, sT0, aML))
        e("v_and_b32 v%d, 31, v%d" % (aCR, vL)); e("v_lshlrev_b32 v%d, 1, v%d" % (aOUT, aCR))
        e("s_lshl_b32 s%d, s%d, 6" % (sT0, sCI)); e("v_add_u32 v%d, s%d, v%d" % (aOUT, sT0, aOUT))
        e("v_lshlrev_b32 v%d, 2, v%d" % (aCR, aCR)); e("v_add_u32 v%d, %d, v%d" % (aCR, L_CO, aCR))
        ld_f(True)
        e.vmem("buffer_load_ushort v%d, v%d, %s, 0 offen" % (cX, aOUT, sr(sX)), "CF")
        e("v_and_b32 v%d, 7, v%d" % (aCO, vL)); e("v_lshlrev_b32 v%d, 4, v%d" % (aCO, aCO))
        e("v_bfe_u32 v%d, v%d, 4, 1" % (cG, vL)); e("v_lshl_add_u32 v%d, v%d, 3, v%d" % (aCO, cG, aCO))
        e("v_lshrrev_b32 v%d, 5, v%d" % (cG, vL)); e("v_lshl_add_u32 v%d, v%d, 2, v%d" % (aCO, cG, aCO))
        e("s_lshl_b32 s%d, s%d, 7" % (sT0, sW)); e("v_add_u32 v%d, s%d, v%d" % (aCO, sT0, aCO))
    def consumer_ffn():
        skip = e.newlab("nocf")
        if not elect: e("s_cmp_eq_u32 s%d, 0" % sCONS); e("s_cbranch_scc1 %s" % skip)
        e.wait_vm("CF")
        poll("cf", [cF], 54, 55, lambda: ld_f(False))
        for r in range(4): untag(cF + r, cF + r)
        e("s_mov_b32 exec_lo, 0"); e("s_mov_b32 exec_hi, 0xffff0000")
        for r in range(4): e("v_mov_b32 v%d, 0" % (cF + r))
        e("s_mov_b64 exec, -1")
        e("v_lshlrev_b32 v%d, 16, v%d" % (cX, cX))
        quad_reduce(cF)
        e("ds_write_b32 v%d, v%d offset:%d" % (aCO, cF, L_CF))
        e.label(skip)

    order = list(range(32))
    if vilv:
        order = [x for k in range(NE) for x in (NE + k, k)] + list(range(2 * NE, 32))
    for g, vg in enumerate(order):
        A = vA0 if g % 2 == 0 else vA1
        e("v_mul_f32 v%d, v%d, v%d" % (vS + vg, vS + vg, vFAC))
        e("v_cvt_pk_bf16_f32 v%d, v%d, v%d" % (vS + vg, vS + vg, vS + vg))
        afrag(A, vS + vg)
        e("s_nop 0")
        e.wait_vm("V%d" % vg)
        stamp('v%d' % g)
        rs = ring[("V", vg)]
        for t in range(3):
            mfma(vr(vACC + 4 * t), vr(A), reg_of(rs, t), "0" if g == 0 else vr(vACC + 4 * t))
        if g == cf_g: ld_sib(True); consumer_setup()
        if not isinstance(rs, tuple) and vn[0] < 32:
            issue_kv("V", vn[0], rs); vn[0] += 1
        if nwo[0] < 20 and (nwo[0] < NO1 or (nwo[0] - NO1) in order[:g + 1]):
            issue_wo(nwo[0]); nwo[0] += 1
        if g == 24:
            free = sorted(ring[("V", k)] for k in range(19, 24))
            y0 = [k for k in free if k + 1 in free][0]
            vY = rslot(y0, 0)
            for r in range(20): e("v_mov_b32 v%d, 0" % (vY + r))
            e("v_and_b32 v%d, 7, v%d" % (T0, vL)); e("v_mul_u32_u24 v%d, %d, v%d" % (T0, PSTR, T0))
            e("v_lshrrev_b32 v%d, 4, v%d" % (T1, vL)); e("v_lshl_add_u32 v%d, v%d, 3, v%d" % (T0, T1, T0))
            e("v_bfe_u32 v%d, v%d, 3, 1" % (T1, vL)); e("v_mul_u32_u24 v%d, 96, v%d" % (T1, T1))
            e("s_mul_i32 s%d, s%d, 192" % (sT0, sW))
            e("v_add3_u32 v%d, s%d, v%d, v%d" % (T0, sT0, T0, T1))
            e("s_mul_i32 s%d, s%d, 2560" % (sT0, sW))
            e("v_add_u32 v%d, s%d, v%d" % (T1, sT0, vFA))
            e("v_lshlrev_b32 v%d, 4, v0" % T2)
            e("v_bfe_u32 v%d, v%d, 2, 1" % (T4, vL)); e("v_mul_u32_u24 v%d, 0xffff, v%d" % (T4, T4))
            e("v_xor_b32 v%d, 0xffff, v%d" % (T3, T4))
            e("v_and_b32 v%d, 3, v%d" % (T5, vL)); e("v_add_u32 v%d, 1, v%d" % (vP1O, T5)); e("v_and_b32 v%d, 3, v%d" % (vP1O, vP1O))
            e("v_lshl_or_b32 v%d, v%d, 2, v%d" % (T5, vP1O, T5)); e("v_mul_u32_u24 v%d, 0x1111, v%d" % (T5, T5))
            quads = [rslot(k, t) for k in free if k not in (y0, y0 + 1) for t in range(3)]
            cML, cY = quads[0:4], quads[4:8]
            for q in cY: e("v_xor_b32 v%d, 0xff, v%d" % (q, vTAG))
        if g == cf2_g: split_weight(); consumer_ffn()
    assert nwo[0] == 20 and vn[0] == 32
    stamp('vend')
    e("s_mov_b64 exec, %s" % sr(sVAL, 2))
    e("s_nop 4")
    for t in range(3): e("ds_write_b128 v%d, %s offset:%d" % (vQA, vr(vACC + 4 * t), L_OP + t * 256))
    e("s_mov_b64 exec, -1")
    e("s_waitcnt lgkmcnt(0)")
    e("s_barrier")
    stamp('b3')
    mlds = [(cML[i], "buffer_load_dwordx4 %s, v%d, %s, 0 offen offset:%d %s" % (vr(cML[i]), aML, sr(sWS), 1024 * i, plf)) for i in range(4)]
    ylds = [(cY[i], "buffer_load_dwordx4 %s, v%d, %s, 0 offen offset:%d %s" % (vr(cY[i]), aY, sr(sWS), 1024 * i, plf)) for i in range(4)]
    def first_reads():
        lab = e.newlab("nofr")
        e("s_cmp_eq_u32 s%d, 0" % sCONS); e("s_cbranch_scc1 %s" % lab)
        for _, t in ylds: e.vmem(t, counted=False)
        e.label(lab)
    vO = 58
    for n in range(3): e("ds_read_b64 %s, v%d offset:%d" % (vr(vO + 2 * n, 2), T0, L_OP + 32 * n))
    if early0 == 1 and not elect: first_reads()
    e("s_waitcnt lgkmcnt(0)")
    for pat in (X1, X2, HM):
        for i in range(6): e("v_add_f32_dpp v%d, v%d, v%d %s %s" % (vO + i, vO + i, vO + i, pat, DPP))
    for i in range(6): e("v_mul_f32 v%d, v%d, v%d" % (vO + i, vO + i, vWJ))
    for i in range(6): e("v_cvt_pk_bf16_f32 v%d, v%d, v%d" % (vO + i, vO + i, vO + i))
    assert e.vm[-1] == "V31"
    def sfrag(dst, n, r):
        src = vO + 2 * (n % 3) + (r >> 1); m = T3 if r % 2 == 0 else T4
        if n >= 3: e("v_and_b32_dpp v%d, v%d, v%d %s %s" % (dst + r, src, m, R8, DPP))
        else: e("v_and_b32 v%d, v%d, v%d" % (dst + r, src, m))
    for r in range(4): sfrag(vA0, 0, r)
    for n in range(6):
        A = vA0 if n % 2 == 0 else vA1
        An = vA1 if n % 2 == 0 else vA0
        if n == 0: e("s_nop 1")
        for seg in range(5):
            e("v_smfmac_f32_16x16x64_bf16 %s, %s, %s, v%d" % (vr(vY + 4 * seg), vr(A), ar(8 * (5 * n + seg), 8), T5))
            if n < 5 and seg < 2:
                for r in (2 * seg, 2 * seg + 1): sfrag(An, n + 1, r)
    stamp('mf')
    e("s_mov_b32 exec_hi, 0")
    e("s_nop 3")
    for seg in range(5): e("ds_write_b128 v%d, %s offset:%d" % (T1, vr(vY + 4 * seg), L_YP + seg * 512))
    e("s_mov_b64 exec, -1")
    if early0 == 2 and not elect: first_reads()
    e("s_waitcnt lgkmcnt(0)")
    e("s_barrier")
    lab = e.newlab("noy")
    e("s_cmp_ge_u32 s%d, 3" % sW); e("s_cbranch_scc1 %s" % lab)
    for pp in range(4): e("ds_read_b128 %s, v%d offset:%d" % (vr(18 + 4 * pp), T2, L_YP + pp * 2560))
    e("s_waitcnt lgkmcnt(2)")
    for r in range(4): e("v_add_f32 v%d, v%d, v%d" % (18 + r, 18 + r, 22 + r))
    e("s_waitcnt lgkmcnt(0)")
    for r in range(4): e("v_add_f32 v%d, v%d, v%d" % (26 + r, 26 + r, 30 + r))
    for r in range(4): e("v_add_f32 v%d, v%d, v%d" % (64 + r, 18 + r, 26 + r))
    for r in range(4): tagit(64 + r, 64 + r)
    e.vmem("buffer_store_dwordx4 v[64:67], v%d, %s, 0 offen %s" % (vPY, sr(sWS), yf), counted=False)
    lab2 = e.newlab("pubd")
    e("s_branch %s" % lab2)
    e.label(lab)
    def gate_calc():
        e("ds_read2_b32 v[54:55], v%d offset0:128 offset1:160" % aCR); e("ds_read2_b32 v[56:57], v%d offset0:192 offset1:224" % aCR)
        e("s_waitcnt lgkmcnt(0)")
        e("v_add_f32 v54, v54, v55"); e("v_add_f32 v56, v56, v57"); e("v_add_f32 v54, v54, v56")
        e("v_cvt_pk_bf16_f32 v54, v54, v54"); e("v_and_b32 v54, 0xffff0000, v54")
        e("v_mul_f32 v55, %s, v54" % hx(f2u(-LOG2E)))
        e("v_exp_f32 v55, v55"); e("s_nop 0")
        e("v_add_f32 v55, 1.0, v55")
        e("v_rcp_f32 v55, v55"); e("s_nop 0")
        e("v_mul_f32 v55, v54, v55")
        e("v_cvt_pk_bf16_f32 v55, v55, v55"); e("v_and_b32 v%d, 0xffff0000, v55" % cG)
    if elect:
        e("s_waitcnt vmcnt(0)")
        e("v_mov_b32 v42, %d" % (L_CNT + 4))
        e("s_mov_b64 exec, 1")
        e("ds_write_b32 v42, v44")
        e("s_mov_b64 exec, -1")
        e("s_waitcnt lgkmcnt(0)")
    else: gate_calc()
    e.label(lab2)
    stamp('pub')
    if diag:
        e("s_waitcnt vmcnt(0)")
        stamp('ack')
    if nopoll: e("s_branch L_fin")
    if elect:
        e("v_mov_b32 v42, %d" % (L_CNT + 4))
        e("s_barrier")
        e("ds_read_b32 v44, v42")
        e("s_waitcnt lgkmcnt(0)")
        e("v_readfirstlane_b32 s%d, v44" % sCI)
        e("s_nop 3")
        e("s_cmp_eq_u32 s%d, 40" % sCI); e("s_cbranch_scc1 L_epoch")
        e("s_cmp_gt_u32 s%d, 40" % sCI); e("s_cbranch_scc1 L_fin")
        e.vm = []
        consumer_setup()
    else:
        e("s_cmp_eq_u32 s2, %d" % (232 if lightc else 1)); e("s_cbranch_scc1 L_epoch")
    e("s_cmp_eq_u32 s%d, 0" % sCONS); e("s_cbranch_scc1 L_fin")
    if not early0:
        for _, t in ylds: e(t)
    if wait0 is not None: e("s_waitcnt vmcnt(%d)" % wait0)
    stamp('rd0')
    mpoll("y", ylds, 20, 21, ysleep)
    stamp('yok')
    R0 = 36
    for r in range(4): untag(R0 + r, cY[0] + r)
    for r in range(4): untag(24 + r, cY[1] + r)
    for r in range(4): untag(28 + r, cY[2] + r)
    for r in range(4): untag(32 + r, cY[3] + r)
    for r in range(4): e("v_add_f32 v%d, v%d, v%d" % (R0 + r, R0 + r, 24 + r))
    for r in range(4): e("v_add_f32 v%d, v%d, v%d" % (28 + r, 28 + r, 32 + r))
    for r in range(4): e("v_add_f32 v%d, v%d, v%d" % (R0 + r, R0 + r, 28 + r))
    e("s_nop 0")
    quad_reduce(R0)
    e("ds_write_b32 v%d, v%d offset:%d" % (aCO, R0, L_CO))
    e("s_waitcnt lgkmcnt(0)")
    e("s_barrier")
    stamp('b5')
    e("s_cmp_lg_u32 s%d, 3" % sW); e("s_cbranch_scc1 L_fin")
    e("ds_read2_b32 v[54:55], v%d offset0:0 offset1:32" % aCR); e("ds_read2_b32 v[56:57], v%d offset0:64 offset1:96" % aCR)
    e("s_mov_b32 exec_hi, 0")
    e("s_waitcnt lgkmcnt(0)")
    e("v_add_f32 v54, v54, v55"); e("v_add_f32 v56, v56, v57"); e("v_add_f32 v54, v54, v56")
    e("v_cvt_pk_bf16_f32 v54, v54, v54"); e("v_and_b32 v54, 0xffff0000, v54")
    e("v_mul_f32 v54, v54, v%d" % cG)
    e("v_cvt_pk_bf16_f32 v54, v54, v54"); e("v_and_b32 v54, 0xffff0000, v54")
    e("v_add_f32 v54, v54, v%d" % cX)
    e("v_cvt_pk_bf16_f32 v54, v54, v54")
    e("buffer_store_short v54, v%d, %s, 0 offen %s" % (aOUT, sr(sOUT), of))
    e("s_mov_b64 exec, -1")
    e("s_branch L_fin")
    e.label("L_epoch")
    e("s_cmp_lg_u32 s%d, 0" % sW); e("s_cbranch_scc1 L_fin")
    e("v_lshlrev_b32 v13, 7, v%d" % vL); e("v_add_u32 v13, %d, v13" % WS_ML)
    def ld_all():
        for i in range(4):
            e("s_mov_b32 s%d, %d" % (sT0, 8192 * i))
            e("buffer_load_dwordx4 %s, v13, %s, s%d offen sc1" % (vr(16 + 4 * i), sr(sWS), sT0))
    ld_all()
    e("s_waitcnt vmcnt(0)")
    poll("ep", [16 + 4 * k for k in range(4)], 56, 57, ld_all, sleep=epsleep)
    e("v_mov_b32 v16, s%d" % sTAG)
    e("s_mov_b32 s%d, %d" % (sT0, WS_EP))
    e("s_mov_b64 exec, 1")
    e("buffer_store_dword v16, off, %s, s%d" % (sr(sWS), sT0))
    e("s_mov_b64 exec, -1")
    e.label("L_fin")
    if calib:
        e.label("L_cal")
        e("s_memrealtime s[98:99]"); e("s_waitcnt lgkmcnt(0)")
        e("s_sub_u32 s98, s98, s%d" % sST); e("s_cmp_lt_u32 s98, %d" % calib); e("s_cbranch_scc1 L_cal")
    if trace:
        trace_pt('fin')
        e("v_writelane_b32 v89, s%d, 63" % sST)
        e("s_add_u32 s92, s26, %d" % STAMP_OFF); e("s_addc_u32 s93, s27, 0"); e("s_mov_b32 s94, 0x100000"); e("s_mov_b32 s95, 0x20000")
        e("s_lshl_b32 s%d, s2, 2" % sT0); e("s_add_u32 s%d, s%d, s%d" % (sT0, sT0, sW)); e("s_lshl_b32 s%d, s%d, 9" % (sT0, sT0))
        e("v_lshlrev_b32 v10, 2, v%d" % vL); e("v_add_u32 v10, s%d, v10" % sT0)
        e("buffer_store_dword v88, v10, s[92:95], 0 offen")
        e("buffer_store_dword v89, v10, s[92:95], 0 offen offset:256")
        open("trace_names.txt", "w").write(" ".join(trnames))
    if stamps:
        stamp('fin')
        n = nst[0]
        e("s_add_u32 s92, s26, %d" % STAMP_OFF); e("s_addc_u32 s93, s27, 0"); e("s_mov_b32 s94, 0x100000"); e("s_mov_b32 s95, 0x20000")
        if allw:
            e("s_lshl_b32 s%d, s2, 2" % sT0); e("s_add_u32 s%d, s%d, s%d" % (sT0, sT0, sW)); e("s_mul_i32 s%d, s%d, %d" % (sT0, sT0, 8 * n))
        else:
            e("s_cmp_lg_u32 s%d, 0" % sW); e("s_cbranch_scc1 L_end")
            e("s_mul_i32 s%d, s2, %d" % (sT0, 8 * n))
        e("v_mov_b32 v10, s%d" % sT0); e("v_mov_b32 v13, 0")
        e("s_mov_b64 exec, 1")
        for k in range(n):
            e("v_mov_b32 v12, s%d" % (sST + k))
            e("buffer_store_dwordx2 v[12:13], v10, s[92:95], 0 offen offset:%d" % (8 * k))
            e("s_nop 1")
    e.label("L_end")
    e("s_endpgm")
    e.raw('.section .rodata,"a"'); e.raw(".p2align 6"); e.raw(".amdhsa_kernel %s_kernel" % NAME)
    for s in (".amdhsa_next_free_vgpr 512", ".amdhsa_next_free_sgpr 102", ".amdhsa_accum_offset 256",
              ".amdhsa_group_segment_fixed_size 0", ".amdhsa_kernarg_size 96", ".amdhsa_user_sgpr_count 2",
              ".amdhsa_user_sgpr_kernarg_segment_ptr 1", ".amdhsa_system_sgpr_workgroup_id_x 1"):
        e(s)
    e.raw(".end_amdhsa_kernel")
    return "\n".join(e.L) + "\n", nst[0]

if __name__ == "__main__":
    import argparse
    ap = argparse.ArgumentParser()
    ap.add_argument("out"); ap.add_argument("--stamps", action="store_true")
    ap.add_argument("--opt", default="")
    a = ap.parse_args()
    kw = eval("dict(%s)" % a.opt)
    s, n = gen(stamps=a.stamps, **kw)
    hdr = open("cdna_kernels/%s.s.ref" % NAME).read().split("; Override launch")[0]
    open(a.out, "w").write(hdr + s)
    print("wrote", a.out, "stamps", n)
```

```python
import struct, sys
NAME = "recurrent_scan__gqa_block_cached__geglu_ffn__decode"

def f2u(x): return struct.unpack("<I", struct.pack("<f", x))[0]
def hx(x): return "0x%08x" % (x & 0xffffffff)
LOG2E = 1.4426950408889634

WS_Q1 = 0
WS_P1 = 0x30000
P1_LO = 5 * 24576
WS_P2 = 0x6C000
WS_Y  = 0x8A000
WS_ML = 0x12A000
WS_EP = 0x132000
WS_SIZE = 0x133000
STAMP_OFF = 300 << 20
OOB = 0x7ffffff0

L_XN = 0
L_Q1 = 5120
PS2 = 528
L_QC = 9472
L_QB = 24064
L_F1 = 24576
L_F2 = 32768
L_ML = 36864
L_CNT = 36928
L_OP = 37120
PSTR = 784
L_YP = 43520
L_CO = 53760
L_CF = 54272
L_END = 54784

class Em:
    def __init__(self):
        self.L = []; self.vm = []; self.lab = 0
    def __call__(self, s): self.L.append("  " + s)
    def raw(self, s): self.L.append(s)
    def label(self, n): self.L.append(n + ":")
    def newlab(self, p):
        self.lab += 1; return "L_%s_%d" % (p, self.lab)
    def vmem(self, s, tag=None, counted=True):
        self.L.append("  " + s)
        if counted: self.vm.append(tag)
    def behind(self, tag):
        idx = max(i for i, t in enumerate(self.vm) if t == tag)
        return len(self.vm) - 1 - idx
    def wait_vm(self, tag):
        self("s_waitcnt vmcnt(%d)" % min(self.behind(tag), 63))

def vr(a, n=4): return "v[%d:%d]" % (a, a + n - 1)
def ar(a, n=4): return "a[%d:%d]" % (a, a + n - 1)
def sr(a, n=4): return "s[%d:%d]" % (a, a + n - 1)
DPP = "row_mask:0xf bank_mask:0xf"
X1, X2, HM, RM, R8 = "quad_perm:[1,0,3,2]", "quad_perm:[2,3,0,1]", "row_half_mirror", "row_mirror", "row_ror:8"

def gen(stamps=False, kvf="nt", wf="", qf="", ff="", RING=14, NE=5, st2_g=8, p1_g=0, ml_g=31, allw=False,
        sel=('b1', 'b2', 'vend', 'pub', 'fin'), ostep=2, ostart=0, k_pre=3, k_mid=3, qc_after=14, win=0, tmo=0x10000,
        trace=False, xspec=True, mlsleep=2, epsleep=8, nopoll=False, nocheck=False, stf='sc1', yf='sc1', cpf=0, calib=0, ysleep=0, pdepth=6, p1lo=False, ph=(1, 4, 8, 0), vrot=0, cf_g=12, cf2_g=25, of='', elect=False, tk_g=27, early0=0, adapt=0, farsleep=16, yinA=True, wait0=None, mlfull=True, lightc=True, diag=0, plf='sc1', vilv=True, gaptest=0, ex_g=5, k_ln=0, k_role=0, ne_late=0):
    e = Em()
    vL, vKV, vWQ, vWO, vPY = 1, 2, 3, 4, 5
    vM = 6; vA0 = 10; vA1 = 14; vACC = 18; vQF = 30; vS = 42
    vMW, vLW, vTAG = 74, 75, 76
    vQA, vFA, vP1O, vF1 = 78, 79, 80, 81
    T0, T1, T2, T3, T4, T5 = 82, 83, 84, 85, 86, 87
    RB = 256 - 12 * RING
    assert RB >= 88
    def rslot(i, t): return RB + 12 * i + 4 * t
    AVE = 240 - 12 * NE
    sK, sV, sRE, sWO, sX, sRO, sWD, sWS, sOUT, sWSF = 28, 32, 36, 40, 44, 48, 56, 60, 64, 92
    sS1, sS2, sKH, sNT = 52, 53, 54, 55
    sCONS = 52
    sTAG, sU, sACT, sFACT = 68, 69, 70, 71
    sW, sB, sH, sP, sFS, sKR, sC5, sRB, sSO, sT0, sT1, sT2 = 72, 73, 74, 75, 76, 77, 78, 79, 80, 81, 82, 83
    sEX = 84; sVAL = 86; sCNT = 88; sCI = 89; sFF = 90; sWQO = 91; sSEL = 14; sROT = 15; sMK = 28
    sST = 96
    nst = [0]
    def stamp(name):
        if trace: trace_pt(name); return
        if not stamps or name not in sel: return
        e("s_memrealtime s[%d:%d]" % (sEX, sEX + 1))
        e("s_waitcnt lgkmcnt(0)")
        e("s_mov_b32 s%d, s%d" % (sST + nst[0], sEX))
        nst[0] += 1
    tr = [0]; trnames = []
    def trace_pt(name):
        if not trace: return
        k = tr[0]; tr[0] += 1; trnames.append(name)
        e("s_memrealtime s[%d:%d]" % (sST + 2, sST + 3))
        e("s_waitcnt lgkmcnt(0)")
        e("v_writelane_b32 v%d, s%d, %d" % (88 + k // 64, sST + 2, k % 64))
    def mfma(d, a, b, c): e("v_mfma_f32_16x16x32_bf16 %s, %s, %s, %s" % (d, a, b, c))
    def afrag(dst, src):
        for r in range(4): e("v_and_b32 v%d, v%d, v%d" % (dst + r, src, vM + r))
    def tagit(dst, src):
        e("v_add_u32 v%d, 0x80, v%d" % (dst, src))
        e("v_bfi_b32 v%d, s%d, v%d, v%d" % (dst, sFF, vTAG, dst))
    def untag(dst, src): e("v_and_b32 v%d, 0xffffff00, v%d" % (dst, src))
    def piece_bad(p, t0, t1, dst):
        e("v_perm_b32 v%d, v%d, v%d, s%d" % (t0, p + 1, p, sSEL))
        e("v_perm_b32 v%d, v%d, v%d, s%d" % (t1, p + 3, p + 2, sSEL))
        e("v_lshl_or_b32 v%d, v%d, 16, v%d" % (t0, t1, t0))
        e("v_cmp_ne_u32 %s, v%d, v%d" % (dst, t0, vTAG + 1))
    def poll(name, pieces, t0, t1, reload, sleep=4):
        if nocheck: return
        lab = e.newlab(name + "ok"); lp = e.newlab(name + "loop")
        e("s_mov_b32 s%d, %d" % (sCNT, tmo))
        e.label(lp)
        for k, p in enumerate(pieces):
            piece_bad(p, t0, t1, "vcc" if k == 0 else sr(sEX, 2))
            if k: e("s_or_b64 vcc, vcc, %s" % sr(sEX, 2))
        e("s_nop 1")
        e("s_cbranch_vccz %s" % lab)
        e("s_sub_u32 s%d, s%d, 1" % (sCNT, sCNT)); e("s_cbranch_scc1 %s" % lab)
        if sleep: e("s_sleep %d" % sleep)
        reload()
        e("s_waitcnt vmcnt(0)")
        e("s_branch %s" % lp)
        e.label(lab)
    def mpoll(name, loads, t0, t1, sleep):
        lab = e.newlab(name + "ok"); lp = e.newlab(name + "loop")
        e("s_mov_b32 s%d, %d" % (sCNT, 16 * tmo))
        e.label(lp)
        for k, (p, _) in enumerate(loads): piece_bad(p, t0, t1, sr(sMK + 2 * k, 2))
        e("s_nop 0")
        e("s_or_b64 vcc, %s, %s" % (sr(sMK, 2), sr(sMK + 2, 2)))
        for k in range(2, len(loads)): e("s_or_b64 vcc, vcc, %s" % sr(sMK + 2 * k, 2))
        e("s_cbranch_scc0 %s" % lab)
        e("s_sub_u32 s%d, s%d, 1" % (sCNT, sCNT)); e("s_cbranch_scc1 %s" % lab)
        for k, (p, txt) in enumerate(loads):
            sk = e.newlab(name + "sk")
            e("s_mov_b64 exec, %s" % sr(sMK + 2 * k, 2))
            e("s_cbranch_execz %s" % sk)
            e(txt)
            e.label(sk)
        e("s_mov_b64 exec, -1")
        e("s_waitcnt vmcnt(%d)" % pdepth)
        if adapt:
            e("s_bcnt1_i32_b64 s%d, %s" % (sT0, sr(sMK, 2)))
            for k in range(1, len(loads)):
                e("s_bcnt1_i32_b64 s%d, %s" % (sT1, sr(sMK + 2 * k, 2))); e("s_add_u32 s%d, s%d, s%d" % (sT0, sT0, sT1))
            near = e.newlab("near")
            e("s_cmp_le_u32 s%d, %d" % (sT0, 8 * adapt)); e("s_cbranch_scc1 %s" % near)
            e("s_sleep %d" % farsleep)
            e.label(near)
        if sleep: e("s_sleep %d" % sleep)
        e("s_branch %s" % lp)
        e.label(lab)

    e.raw("; @launch grid=(256,1,1) block=(256,1,1) lds=%d" % L_END)
    e.raw('.amdgcn_target "amdgcn-amd-amdhsa--gfx950"')
    e.raw(".text"); e.raw(".globl %s_kernel" % NAME); e.raw(".p2align 8"); e.raw(".type %s_kernel,@function" % NAME)
    e.label("%s_kernel" % NAME)
    e("s_cmp_ge_u32 s2, 256"); e("s_cbranch_scc1 L_end")
    e("s_load_dwordx16 s[4:19], s[0:1], 0")
    e("s_load_dwordx8 s[20:27], s[0:1], 64")
    if stamps or trace or calib:
        e("s_memrealtime s[%d:%d]" % (sST, sST + 1)); nst[0] = 1
        for k in range(2, 6): e("s_mov_b32 s%d, 0" % (sST + k))
    e("v_and_b32 v%d, 63, v0" % vL)
    e("v_lshrrev_b32 v%d, 6, v0" % T0)
    e("v_lshrrev_b32 v%d, 3, v%d" % (T1, vL))
    e("v_and_b32 v%d, 7, v%d" % (T2, vL))
    e("v_readfirstlane_b32 s%d, v%d" % (sW, T0))
    e("v_mul_u32_u24 v%d, 384, v%d" % (vKV, T1))
    e("v_lshl_add_u32 v%d, v%d, 4, v%d" % (vKV, T2, vKV))
    e("v_mul_u32_u24 v%d, 3072, v%d" % (T3, T0))
    e("v_add_u32 v%d, v%d, v%d" % (vKV, vKV, T3))
    e("v_lshl_add_u32 v%d, v%d, 3, v%d" % (vWQ, T0, T1))
    e("v_mul_u32_u24 v%d, 12288, v%d" % (vWQ, vWQ))
    e("v_lshl_add_u32 v%d, v%d, 4, v%d" % (vWQ, T2, vWQ))
    e("v_lshrrev_b32 v%d, 5, v%d" % (T3, vL))
    e("v_mul_u32_u24 v%d, 1280, v%d" % (T3, T3))
    e("v_and_b32 v%d, 31, v%d" % (T5, vL))
    e("v_lshl_add_u32 v%d, v%d, 4, v%d" % (T4, T5, T3))
    e("v_lshl_add_u32 v%d, v%d, 3, v%d" % (T5, T5, T3))
    e("v_lshrrev_b32 v%d, 4, v%d" % (T3, vL))
    e("v_lshl_add_u32 v%d, v%d, 2, v%d" % (vF1, T0, T3))
    e("v_mul_u32_u24 v%d, 3072, v%d" % (vF1, vF1))
    e("v_and_b32 v%d, 15, v%d" % (T1, vL))
    e("v_lshl_add_u32 v%d, v%d, 4, v%d" % (vF1, T1, vF1))
    e("s_and_b32 s%d, s2, 7" % sT0)
    e("s_lshr_b32 s%d, s2, 3" % sT1)
    e("s_lshr_b32 s%d, s%d, 3" % (sT2, sT1))
    e("s_lshl_b32 s%d, s%d, 2" % (sH, sT0))
    e("s_add_u32 s%d, s%d, s%d" % (sH, sH, sT2))
    e("s_and_b32 s%d, s%d, 7" % (sU, sT1))
    e("s_lshr_b32 s%d, s%d, 2" % (sB, sU))
    e("s_and_b32 s%d, s%d, 3" % (sT1, sT1))
    e("s_lshl_b32 s%d, s%d, 2" % (sP, sH))
    e("s_add_u32 s%d, s%d, s%d" % (sP, sP, sT1))
    e("s_lshl_b32 s%d, s%d, 7" % (sT0, sB))
    e("s_add_u32 s%d, s%d, s%d" % (sT0, sT0, sP))
    e("s_mul_i32 s%d, s%d, 393216" % (sT0, sT0))
    e("s_mov_b32 s%d, 393216" % (sK + 2)); e("s_mov_b32 s%d, 0x20000" % (sK + 3))
    e("s_mov_b32 s%d, 2560" % (sX + 2)); e("s_mov_b32 s%d, 0x20000" % (sX + 3))
    e("s_cmp_ge_u32 s%d, 3" % sU); e("s_cselect_b32 s%d, 1, 0" % sKH)
    e("s_mul_i32 s%d, s%d, 3" % (sT1, sKH)); e("s_sub_u32 s%d, s%d, s%d" % (sNT, sU, sT1))
    e("s_mul_i32 s%d, s%d, %d" % (sCI, sKH, 320 * 12288))
    e("s_mul_i32 s%d, s%d, 384" % (sT1, sH)); e("s_add_u32 s%d, s%d, s%d" % (sCI, sCI, sT1))
    e("s_lshl_b32 s%d, s%d, 7" % (sT1, sNT)); e("s_add_u32 s%d, s%d, s%d" % (sCI, sCI, sT1))
    e("s_lshl_b32 s%d, s%d, 1" % (sT1, sH)); e("s_add_u32 s%d, s%d, s%d" % (sT1, sT1, sU)); e("s_sub_u32 s%d, s%d, 6" % (sT1, sT1))
    e("s_and_b32 s%d, s%d, 63" % (sT1, sT1))
    e("s_mul_i32 s%d, s%d, 43" % (sKR, sT1)); e("s_lshr_b32 s%d, s%d, 9" % (sKR, sKR))
    e("s_mul_i32 s%d, s%d, 12" % (sT2, sKR)); e("s_sub_u32 s%d, s%d, s%d" % (sFS, sT1, sT2))
    e("s_cmp_lt_u32 s%d, 60" % sT1); e("s_cselect_b32 s%d, %d, 0" % (sFACT, 127 * 3072 + 256))
    e("s_min_u32 s%d, s%d, 4" % (sKR, sKR))
    e("s_mul_i32 s%d, s%d, %d" % (sCNT, sKR, 128 * 3072))
    e("s_lshl_b32 s%d, s%d, 8" % (sT2, sFS)); e("s_add_u32 s%d, s%d, s%d" % (sCNT, sCNT, sT2))
    e("s_mov_b32 s%d, 0x20000" % (sRE + 3)); e("s_mov_b32 s%d, 0x20000" % (sRO + 3))
    e("s_mov_b32 s%d, 786432" % sS2)
    e("s_cmp_ge_u32 s%d, 6" % sU)
    e("s_cselect_b32 s%d, s%d, %d" % (sRE + 2, sFACT, 319 * 12288 + 128))
    e("s_cselect_b32 s%d, s%d, %d" % (sRO + 2, sFACT, 319 * 12288 + 128))
    e("s_cselect_b32 s%d, 0, 393216" % sS1)
    e("s_cselect_b32 s%d, 49152, s%d" % (sS2, sS2))
    e("s_cselect_b32 s%d, s%d, s%d" % (sCI, sCNT, sCI))
    e("s_cselect_b64 vcc, -1, 0")
    e("s_waitcnt lgkmcnt(0)")
    if stamps and 'ka' in sel:
        e("s_memrealtime s[%d:%d]" % (sEX, sEX + 1)); e("s_waitcnt lgkmcnt(0)"); e("s_mov_b32 s%d, s%d" % (sST + nst[0], sEX)); nst[0] += 1
    e("s_cselect_b32 s%d, s16, s10" % sRE); e("s_cselect_b32 s%d, s17, s11" % (sRE + 1))
    e("s_cselect_b32 s%d, s18, s10" % sRO); e("s_cselect_b32 s%d, s19, s11" % (sRO + 1))
    e("s_mov_b32 s%d, s4" % sX); e("s_mov_b32 s%d, s5" % (sX + 1))
    e("v_cndmask_b32 v%d, v%d, v%d, vcc" % (vWQ, vWQ, vF1))
    e.vmem("buffer_load_dwordx4 %s, v%d, %s, 0 offen" % (vr(18), T4, sr(sX)), "x")
    e.vmem("buffer_load_dwordx4 %s, v%d, %s, 0 offen offset:512" % (vr(22), T4, sr(sX)), "x")
    e.vmem("buffer_load_dwordx2 %s, v%d, %s, 0 offen offset:1024" % (vr(26, 2), T5, sr(sX)), "x")
    e("s_add_u32 s%d, s%d, s%d" % (sRE, sRE, sCI)); e("s_addc_u32 s%d, s%d, 0" % (sRE + 1, sRE + 1))
    e("s_add_u32 s%d, s%d, s%d" % (sRO, sRO, sCI)); e("s_addc_u32 s%d, s%d, 0" % (sRO + 1, sRO + 1))
    e("s_add_u32 s%d, s6, s%d" % (sK, sT0)); e("s_addc_u32 s%d, s7, 0" % (sK + 1))
    e("s_add_u32 s%d, s8, s%d" % (sV, sT0)); e("s_addc_u32 s%d, s9, 0" % (sV + 1))

    ring = {}
    curwin = [0]
    def throttle(n=3):
        if curwin[0] and len(e.vm) + n > curwin[0]: e("s_waitcnt vmcnt(%d)" % (curwin[0] - n))
    def issue_kv(kind, g, rs):
        throttle()
        ring[(kind, g)] = rs
        srd = sK if kind == "K" else sV
        if ph:
            e("s_add_u32 s%d, s%d, %d" % (sSO, sROT, g)); e("s_and_b32 s%d, s%d, 31" % (sSO, sSO))
            e("s_mul_i32 s%d, s%d, 12288" % (sSO, sSO)); so = "s%d" % sSO
        elif g == 0: so = "0"
        else:
            e("s_mov_b32 s%d, %d" % (sSO, g * 12288)); so = "s%d" % sSO
        for t in range(3):
            e.vmem("buffer_load_dwordx4 %s, v%d, %s, %s offen offset:%d %s" % (reg_of(rs, t), vKV, sr(srd), so, t * 128, kvf), "%s%d" % (kind, g))
    def reg_of(rs, t):
        return ar(rs[1] + 4 * t) if isinstance(rs, tuple) else vr(rslot(rs, t))
    def issue_wo(n):
        throttle()
        last = None
        for t in range(3):
            z = 3 * n + t; i, seg = 2 * (z // 10) + (z & 1), (z % 10) >> 1
            if i == 0: so = "0"
            else:
                if last != i: e("s_mov_b32 s%d, %d" % (sSO, i * 5120))
                so = "s%d" % sSO
                last = i
            e.vmem("buffer_load_dwordx4 %s, v%d, %s, %s offen offset:%d %s" % (ar(4 * z), vWO, sr(sWO), so, seg * 256, wf), "O%d" % n)
    e("s_mov_b32 s%d, 0" % sCNT)
    for m in range(8):
        e.vmem("buffer_load_dwordx4 %s, v%d, %s, s%d offen %s" % (ar(8 * m), vWQ, sr(sRE), sCNT, qf), "R")
        e("s_add_u32 s%d, s%d, s%d" % (sSO, sCNT, sS1))
        e.vmem("buffer_load_dwordx4 %s, v%d, %s, s%d offen %s" % (ar(8 * m + 4), vWQ, sr(sRO), sSO, qf), "R")
        if m < 7: e("s_add_u32 s%d, s%d, s%d" % (sCNT, sCNT, sS2))
    stamp('rl')
    if cpf:
        e("s_getpc_b64 s[6:7]")
        e.label("L_pc")
        e("s_sub_u32 s6, s6, L_pc-%s_kernel" % NAME); e("s_subb_u32 s7, s7, 0")
        e("s_lshr_b32 s8, s2, 3"); e("s_lshl_b32 s8, s8, 2"); e("s_add_u32 s8, s8, s%d" % sW)
        e("s_mul_i32 s8, s8, %d" % (64 * cpf)); e("s_min_u32 s8, s8, L_end-%s_kernel-%d" % (NAME, 64 * cpf))
        e("s_add_u32 s6, s6, s8"); e("s_addc_u32 s7, s7, 0")
        for k in range(cpf): e("s_load_dword s8, s[6:7], %d" % (64 * k))
    e("s_add_u32 s%d, s26, %d" % (sEX, WS_EP)); e("s_addc_u32 s%d, s27, 0" % (sEX + 1))
    e("s_load_dword s%d, s[%d:%d], 0" % (sTAG, sEX, sEX + 1))
    if ph:
        aj, ab, ah, ax = ph
        e("s_bfe_u32 s%d, s2, 0x20003" % sT0); e("s_mul_i32 s%d, s%d, %d" % (sROT, sT0, aj))
        e("s_mul_i32 s%d, s%d, %d" % (sT0, sB, ab)); e("s_add_u32 s%d, s%d, s%d" % (sROT, sROT, sT0))
        e("s_lshr_b32 s%d, s2, 6" % sT0); e("s_mul_i32 s%d, s%d, %d" % (sT0, sT0, ah)); e("s_add_u32 s%d, s%d, s%d" % (sROT, sROT, sT0))
        e("s_and_b32 s%d, s2, 7" % sT0); e("s_mul_i32 s%d, s%d, %d" % (sT0, sT0, ax)); e("s_add_u32 s%d, s%d, s%d" % (sROT, sROT, sT0))
    e("s_mov_b32 s%d, 393216" % (sV + 2)); e("s_mov_b32 s%d, 0x20000" % (sV + 3))
    e("s_mul_i32 s%d, s%d, 245760" % (sT0, sH))
    e("s_add_u32 s%d, s12, s%d" % (sWO, sT0)); e("s_addc_u32 s%d, s13, 0" % (sWO + 1))
    e("s_mov_b32 s%d, 245760" % (sWO + 2)); e("s_mov_b32 s%d, 0x20000" % (sWO + 3))
    e("s_mov_b32 s%d, s26" % sWS); e("s_mov_b32 s%d, s27" % (sWS + 1))
    e("s_mov_b32 s%d, %d" % (sWS + 2, WS_SIZE)); e("s_mov_b32 s%d, 0x20000" % (sWS + 3))
    e("s_mov_b32 s%d, s22" % sOUT); e("s_mov_b32 s%d, s23" % (sOUT + 1))
    e("s_mov_b32 s%d, 2560" % (sOUT + 2)); e("s_mov_b32 s%d, 0x20000" % (sOUT + 3))
    e("s_lshl_b32 s%d, s%d, 2" % (sT0, sH)); e("s_add_u32 s%d, s%d, s%d" % (sT0, sT0, sU))
    e("s_mul_i32 s%d, s%d, 205" % (sRB, sT0)); e("s_lshr_b32 s%d, s%d, 10" % (sRB, sRB))
    e("s_mul_i32 s%d, s%d, 5" % (sT1, sRB)); e("s_sub_u32 s%d, s%d, s%d" % (sC5, sT0, sT1))
    e("s_cmp_lt_u32 s%d, 4" % sU); e("s_cselect_b32 s%d, s%d, 255" % (sT0, sT0))
    e("s_cmp_lt_u32 s%d, 120" % sT0)
    e("s_cselect_b32 s%d, %d, 0" % (sWD + 2, 1536 * 1280))
    e("s_cselect_b32 s%d, %d, 0" % (sWSF + 2, WS_Y))
    e("s_cselect_b32 s%d, 1, 0" % sACT)
    e("s_mov_b32 s%d, s20" % sWD); e("s_mov_b32 s%d, s21" % (sWD + 1)); e("s_mov_b32 s%d, 0x20000" % (sWD + 3))
    e("s_mov_b32 s%d, s26" % sWSF); e("s_mov_b32 s%d, s27" % (sWSF + 1)); e("s_mov_b32 s%d, 0x20000" % (sWSF + 3))
    e("s_mov_b32 s%d, 0x00ff00ff" % sVAL); e("s_mov_b32 s%d, 0xff00ff00" % (sVAL + 1))
    e("v_mul_u32_u24 v%d, 1280, v%d" % (vWO, T3))
    e("v_lshl_add_u32 v%d, v%d, 4, v%d" % (vWO, T1, vWO))
    e("s_mul_i32 s%d, s%d, 61440" % (sT0, sW))
    e("v_add_u32 v%d, s%d, v%d" % (vWO, sT0, vWO))
    e("v_lshrrev_b32 v%d, 5, v%d" % (T0, vL))
    e("v_and_b32 v%d, 16, v%d" % (T3, vL))
    e("v_lshl_add_u32 v%d, v%d, 5, v%d" % (vP1O, T2, T3))
    e("v_mul_u32_u24 v%d, %d, v%d" % (vQA, PSTR, T0)); e("v_add_u32 v%d, v%d, v%d" % (vQA, vQA, vP1O))
    e("s_mul_i32 s%d, s%d, %d" % (sT0, sW, 2 * PSTR))
    e("v_add_u32 v%d, s%d, v%d" % (vQA, sT0, vQA))
    e("v_mul_u32_u24 v%d, %d, v%d" % (vF1, PS2, T0)); e("v_add_u32 v%d, v%d, v%d" % (vF1, vF1, vP1O))
    e("s_mul_i32 s%d, s%d, %d" % (sT0, sW, 2 * PS2))
    e("v_add_u32 v%d, s%d, v%d" % (vF1, sT0, vF1))
    e("v_lshlrev_b32 v%d, 9, v%d" % (vFA, T0)); e("v_lshl_add_u32 v%d, v%d, 5, v%d" % (vFA, T1, vFA))
    e("v_add_u32 v%d, v%d, v%d" % (vFA, vFA, T3))
    e("v_lshrrev_b32 v%d, 3, v0" % T0); e("v_lshlrev_b32 v%d, 14, v%d" % (T0, T0))
    e("v_lshl_add_u32 v%d, v%d, 4, v%d" % (T0, T2, T0))
    e("s_mul_i32 s%d, s%d, %d" % (sT0, sB, 20 * 16384))
    e("s_lshl_b32 s%d, s%d, 7" % (sT1, sP))
    e("s_add_u32 s%d, s%d, s%d" % (sT0, sT0, sT1)); e("s_add_u32 s%d, s%d, %d" % (sT0, sT0, WS_Y))
    e("v_cmp_gt_u32 vcc, %d, v0" % (80 if diag == 2 else 160))
    e("v_add_u32 v%d, s%d, v%d" % (T0, sT0, T0))
    e("v_mov_b32 v%d, %d" % (vPY, OOB))
    e("v_cndmask_b32 v%d, v%d, v%d, vcc" % (vPY, vPY, T0))
    e("s_mov_b32 s%d, 0xff" % sFF); e("s_mov_b32 s%d, 0x0c0c0400" % sSEL)
    e("v_and_b32 v%d, 1, v%d" % (T0, vL))
    e("v_lshlrev_b32 v%d, 4, v%d" % (T0, T0))
    e("v_mov_b32 v%d, 0xffff" % T1)
    e("v_lshlrev_b32 v%d, v%d, v%d" % (T0, T0, T1))
    e("v_bfe_u32 v%d, v%d, 1, 2" % (T1, vL))
    for r in range(4):
        e("v_cmp_eq_u32 vcc, %d, v%d" % (r, T1))
        e("s_nop 1")
        e("v_cndmask_b32 v%d, 0, v%d, vcc" % (vM + r, T0))
    kn = [0]
    def more_k(n):
        for _ in range(n):
            if kn[0] < RING: issue_kv("K", kn[0], kn[0]); trace_pt("ik%d" % kn[0]); kn[0] += 1
    more_k(k_pre)
    stamp('iss')
    e.wait_vm("x")
    stamp('x')
    X = 28
    for r in range(10):
        e("v_lshlrev_b32 v%d, 16, v%d" % (X + 2 * r, 18 + r))
        e("v_and_b32 v%d, 0xffff0000, v%d" % (X + 2 * r + 1, 18 + r))
    def half_allreduce(v, t, op="v_add_f32"):
        for pat in (X1, X2, HM, RM):
            e("s_nop 1")
            e("%s_dpp v%d, v%d, v%d %s %s" % (op, v, v, v, pat, DPP))
        e("v_mov_b32 v%d, v%d" % (t, v))
        e("s_nop 1")
        e("v_permlane16_swap_b32 v%d, v%d" % (v, t))
        e("s_nop 1")
        e("%s v%d, v%d, v%d" % (op, v, v, t))
    for r in range(4): e("v_add_f32 v%d, v%d, v%d" % (48 + r, X + r, X + 4 + r))
    for k in range(8, 20): e("v_add_f32 v%d, v%d, v%d" % (48 + k % 4, 48 + k % 4, X + k))
    e("v_add_f32 v48, v48, v49"); e("v_add_f32 v50, v50, v51"); e("v_add_f32 v48, v48, v50")
    half_allreduce(48, 49)
    e("v_mul_f32 v48, %s, v48" % hx(f2u(1.0 / 640)))
    for k in range(20):
        e("v_sub_f32 v%d, v%d, v48" % (18 + k % 4, X + k))
        if k < 4: e("v_mul_f32 v%d, v%d, v%d" % (52 + k, 18 + k, 18 + k))
        else: e("v_fmac_f32 v%d, v%d, v%d" % (52 + k % 4, 18 + k % 4, 18 + k % 4))
    e("v_add_f32 v52, v52, v53"); e("v_add_f32 v54, v54, v55"); e("v_add_f32 v52, v52, v54")
    half_allreduce(52, 53)
    more_k(k_ln)
    e("v_mul_f32 v52, %s, v52" % hx(f2u(1.0 / 640)))
    e("v_cvt_pk_bf16_f32 v48, v48, v52")
    e("v_and_b32 v52, 0xffff0000, v48")
    e("v_lshlrev_b32 v48, 16, v48")
    e("v_add_f32 v52, %s, v52" % hx(f2u(1e-5)))
    e("v_cvt_pk_bf16_f32 v52, v52, v52")
    e("v_and_b32 v52, 0xffff0000, v52")
    e("v_sqrt_f32 v52, v52")
    e("s_nop 0")
    e("v_cvt_pk_bf16_f32 v52, v52, v52")
    e("v_and_b32 v52, 0xffff0000, v52")
    e("v_rcp_f32 v53, v52")
    for k in range(0, 20, 2):
        a, b2 = X + k, X + k + 1
        e("v_sub_f32 v%d, v%d, v48" % (a, a)); e("v_sub_f32 v%d, v%d, v48" % (b2, b2))
        e("v_cvt_pk_bf16_f32 v18, v%d, v%d" % (a, b2))
        e("v_lshlrev_b32 v%d, 16, v18" % a); e("v_and_b32 v%d, 0xffff0000, v18" % b2)
        e("v_mul_f32 v19, v%d, v53" % a); e("v_mul_f32 v20, v%d, v53" % b2)
        e("v_fma_f32 v%d, -v19, v52, v%d" % (a, a)); e("v_fma_f32 v%d, -v20, v52, v%d" % (b2, b2))
        e("v_fmac_f32 v19, v%d, v53" % a); e("v_fmac_f32 v20, v%d, v53" % b2)
        e("v_cvt_pk_bf16_f32 v%d, v19, v19" % a); e("v_cvt_pk_bf16_f32 v%d, v20, v20" % b2)
    e("v_lshlrev_b32 v%d, 1, v%d" % (T4, T4)); e("v_lshlrev_b32 v%d, 1, v%d" % (T5, T5))
    e("ds_write_b128 v%d, %s offset:%d" % (T4, vr(X), L_XN))
    e("ds_write_b128 v%d, %s offset:%d" % (T4, vr(X + 4), L_XN + 16))
    e("ds_write_b128 v%d, %s offset:%d" % (T4, vr(X + 8), L_XN + 1024))
    e("ds_write_b128 v%d, %s offset:%d" % (T4, vr(X + 12), L_XN + 1024 + 16))
    e("ds_write_b128 v%d, %s offset:%d" % (T5, vr(X + 16), L_XN + 2048))
    e("v_mov_b32 v%d, %d" % (T4, L_CNT)); e("v_mov_b32 v%d, 0" % T5)
    e("s_waitcnt lgkmcnt(0)")
    e("s_add_u32 s%d, s%d, 1" % (sTAG, sTAG))
    e("s_and_b32 s%d, s%d, 0xff" % (sT0, sTAG)); e("s_mul_i32 s%d, s%d, 0x01010101" % (sT1, sT0))
    e("ds_write_b32 v%d, v%d" % (T4, T5))
    e("v_mov_b32 v%d, s%d" % (vTAG, sT0)); e("v_mov_b32 v%d, s%d" % (vTAG + 1, sT1))
    more_k(k_mid)
    stamp('ln')
    e("s_cmp_ge_u32 s%d, 6" % sU); e("s_cbranch_scc1 L_frole")
    e("s_mul_i32 s%d, s%d, 1280" % (sT0, sKH)); e("s_lshl_b32 s%d, s%d, 5" % (sT1, sW)); e("s_add_u32 s%d, s%d, s%d" % (sT0, sT0, sT1))
    e("v_lshrrev_b32 v%d, 3, v%d" % (T0, vL)); e("v_lshlrev_b32 v%d, 2, v%d" % (T1, T0))
    e("v_add_u32 v%d, s%d, v%d" % (T1, sT0, T1))
    for n in range(10):
        e("ds_read_b32 v%d, v%d offset:%d" % (vS + 2 * n, T1, 128 * n))
        e("ds_read_b32 v%d, v%d offset:%d" % (vS + 2 * n + 1, T1, 128 * n + 2560))
        if n == 6: e("s_waitcnt lgkmcnt(8)")
    e("s_waitcnt lgkmcnt(0)")
    for n in range(10):
        afrag(vA0, vS + 2 * n); afrag(vA1, vS + 2 * n + 1)
        if n == 0: rwait = "s_waitcnt vmcnt(%d)" % min(e.behind("R"), 63); e(rwait)
        else: e("s_nop 0")
        mfma(vr(vACC), vr(vA0), ar(4 * n), "0" if n == 0 else vr(vACC))
        mfma(vr(vACC + 4), vr(vA1), ar(4 * n), "0" if n == 0 else vr(vACC + 4))
    mark0 = len(e.L); more_k(k_role); role_k = e.L[mark0:]
    e("v_and_b32 v%d, 31, v%d" % (T1, vL)); e("v_lshlrev_b32 v%d, 4, v%d" % (T1, T1))
    e("v_bfe_u32 v%d, v%d, 4, 1" % (T3, vL)); e("v_mul_u32_u24 v%d, 3072, v%d" % (T3, T3))
    e("v_and_b32 v%d, 15, v%d" % (T4, vL)); e("v_lshl_add_u32 v%d, v%d, 4, v%d" % (T3, T4, T3))
    e("v_lshrrev_b32 v%d, 5, v%d" % (T4, vL)); e("v_mul_u32_u24 v%d, 768, v%d" % (T4, T4)); e("v_add_u32 v%d, v%d, v%d" % (T3, T3, T4))
    e("s_mul_i32 s%d, s%d, 6144" % (sT0, sH)); e("s_mul_i32 s%d, s%d, 1536" % (sT1, sKH)); e("s_add_u32 s%d, s%d, s%d" % (sT0, sT0, sT1))
    e("s_lshl_b32 s%d, s%d, 8" % (sT1, sNT)); e("s_add_u32 s%d, s%d, s%d" % (sT0, sT0, sT1))
    e("s_mov_b64 exec, %s" % sr(sVAL, 2))
    e("ds_write_b128 v%d, %s offset:%d" % (vF1, vr(vACC), L_Q1))
    e("ds_write_b128 v%d, %s offset:%d" % (vF1, vr(vACC + 4), L_Q1 + 256))
    e("s_mov_b64 exec, -1")
    e("s_waitcnt lgkmcnt(0)")
    e("s_barrier")
    e("s_cmp_lg_u32 s%d, 0" % sW); e("s_cbranch_scc1 L_rdone")
    for pp in range(8): e("ds_read_b128 %s, v%d offset:%d" % (vr(vS + 4 * pp), T1, L_Q1 + pp * PS2))
    e("s_waitcnt lgkmcnt(6)")
    for r in range(4): e("v_add_f32 v%d, v%d, v%d" % (18 + r, vS + r, vS + 4 + r))
    for pp in range(2, 8):
        e("s_waitcnt lgkmcnt(%d)" % (7 - pp))
        for r in range(4): e("v_add_f32 v%d, v%d, v%d" % (18 + r, 18 + r, vS + 4 * pp + r))
    e("s_mov_b32 exec_lo, 0")
    for r in range(4): untag(22 + r, 18 + r)
    for r in range(4): e("v_sub_f32 v%d, v%d, v%d" % (18 + r, 18 + r, 22 + r))
    e("s_mov_b64 exec, -1")
    for r in range(4): e("v_bfi_b32 v%d, s%d, v%d, v%d" % (18 + r, sFF, vTAG, 18 + r))
    e.vmem("buffer_store_dwordx4 v[18:21], v%d, %s, s%d offen %s" % (T3, sr(sWS), sT0, stf), counted=False)
    e("s_branch L_rdone")
    e.label("L_frole")
    e("v_bfe_u32 v%d, v%d, 3, 1" % (T0, vL)); e("v_mul_u32_u24 v%d, 2560, v%d" % (T0, T0))
    e("v_lshrrev_b32 v%d, 4, v%d" % (T3, vL)); e("v_lshl_add_u32 v%d, v%d, 2, v%d" % (T0, T3, T0))
    e("s_lshl_b32 s%d, s%d, 9" % (sT0, sKR)); e("s_lshl_b32 s%d, s%d, 4" % (sT1, sW)); e("s_add_u32 s%d, s%d, s%d" % (sT0, sT0, sT1))
    e("v_add_u32 v%d, s%d, v%d" % (T0, sT0, T0))
    for m in range(0, 8, 2): e("ds_read2_b32 v[%d:%d], v%d offset0:%d offset1:%d" % (vS + m, vS + m + 1, T0, 16 * m, 16 * m + 16))
    e("s_waitcnt lgkmcnt(0)")
    for m in range(8):
        A = vA0 if m % 2 == 0 else vA1
        afrag(A, vS + m)
        e("s_nop 0")
        if m == 0: e(rwait)
        else: e("s_nop 0")
        mfma(vr(vACC), vr(A), ar(8 * m), "0" if m == 0 else vr(vACC))
        mfma(vr(vACC + 4), vr(A), ar(8 * m + 4), "0" if m == 0 else vr(vACC + 4))
    e.L += role_k
    e("s_lshl_b32 s%d, s%d, 11" % (sT0, sW))
    e("v_add_u32 v%d, s%d, v%d" % (T0, sT0, vFA))
    e("v_bfe_u32 v%d, v0, 1, 2" % T2); e("v_lshlrev_b32 v%d, 9, v%d" % (T2, T2))
    e("v_bfe_u32 v%d, v0, 3, 4" % T3); e("v_lshl_add_u32 v%d, v%d, 5, v%d" % (T2, T3, T2))
    e("v_and_b32 v%d, 1, v0" % T4); e("v_lshl_add_u32 v%d, v%d, 4, v%d" % (T2, T4, T2))
    e("v_and_b32 v%d, 127, v0" % T3); e("v_lshlrev_b32 v%d, 4, v%d" % (T3, T3))
    e("s_mul_i32 s%d, s%d, 24576" % (sT0, sKR)); e("s_lshl_b32 s%d, s%d, 11" % (sT1, sFS))
    e("s_add_u32 s%d, s%d, s%d" % (sT0, sT0, sT1)); e("s_add_u32 s%d, s%d, %d" % (sT0, sT0, WS_P1))
    e("ds_write_b128 v%d, %s offset:%d" % (T0, vr(vACC), L_F1))
    e("ds_write_b128 v%d, %s offset:%d" % (T0, vr(vACC + 4), L_F1 + 1024))
    e("s_waitcnt lgkmcnt(0)")
    e("s_barrier")
    e("s_cmp_eq_u32 s%d, 0" % sFACT); e("s_cbranch_scc1 L_rdone")
    for pp in range(4): e("ds_read_b128 %s, v%d offset:%d" % (vr(vS + 4 * pp), T2, L_F1 + pp * 2048))
    e("s_waitcnt lgkmcnt(0)")
    for r in range(4): e("v_add_f32 v%d, v%d, v%d" % (18 + r, vS + r, vS + 4 + r))
    for pp in (2, 3):
        for r in range(4): e("v_add_f32 v%d, v%d, v%d" % (18 + r, 18 + r, vS + 4 * pp + r))
    if p1lo:
        lab = e.newlab("p1hi")
        e("s_cmp_lt_u32 s%d, 2" % sW); e("s_cbranch_scc1 %s" % lab)
        for r in range(4): untag(22 + r, 18 + r)
        for r in range(4): e("v_sub_f32 v%d, v%d, v%d" % (18 + r, 18 + r, 22 + r))
        e("s_add_u32 s%d, s%d, %d" % (sT0, sT0, P1_LO))
        e.label(lab)
        for r in range(4): e("v_bfi_b32 v%d, s%d, v%d, v%d" % (18 + r, sFF, vTAG, 18 + r))
    else:
        e("s_cmp_ge_u32 s%d, 2" % sW); e("s_cbranch_scc1 L_rdone")
        for r in range(4): tagit(18 + r, 18 + r)
    e.vmem("buffer_store_dwordx4 v[18:21], v%d, %s, s%d offen %s" % (T3, sr(sWS), sT0, stf), counted=False)
    e.label("L_rdone")
    stamp('q1')
    e("s_lshl_b32 s%d, s%d, 1" % (sT0, sH)); e("s_add_u32 s%d, s%d, s%d" % (sT0, sT0, sB)); e("s_mul_i32 s%d, s%d, 3072" % (sT0, sT0))
    e("s_mul_i32 s%d, s%d, 768" % (sT1, sW)); e("s_add_u32 s%d, s%d, s%d" % (sT0, sT0, sT1))
    e("v_lshlrev_b32 v%d, 4, v%d" % (T4, vL)); e("v_add_u32 v%d, s%d, v%d" % (vWQ, sT0, T4))
    vQC = vS
    def issue_qc(counted):
        e.vmem("buffer_load_dwordx4 %s, v%d, %s, 0 offen sc1" % (vr(vQC), vWQ, sr(sWS)), "QC", counted=counted)
    more_k(qc_after - kn[0])
    e("s_mov_b32 exec_hi, 0xffff")
    issue_qc(True)
    e("s_mov_b64 exec, -1")
    more_k(RING)
    for g in range(NE - ne_late): issue_kv("V", g, ('a', AVE + 12 * g)); trace_pt("iv%d" % g)
    for g in range(4, 32): e("v_mov_b32 v%d, 0" % (vS + g))
    e("s_mul_i32 s%d, s%d, 768" % (sT0, sW)); e("s_add_u32 s%d, s%d, %d" % (sT0, sT0, L_QC))
    e("v_lshlrev_b32 v%d, 3, v%d" % (T2, vL)); e("v_add_u32 v%d, s%d, v%d" % (T3, sT0, T4))
    e("v_and_b32 v%d, 7, v%d" % (T5, vL)); e("v_lshlrev_b32 v%d, 4, v%d" % (T5, T5))
    stamp('iss2')
    e.wait_vm("QC")
    e("s_mov_b32 exec_hi, 0xffff")
    poll("qc", [vQC], T0, T1, lambda: issue_qc(False))
    for r in range(4): untag(vQC + r, vQC + r)
    e("ds_write_b128 v%d, %s" % (T3, vr(vQC)))
    e("s_mov_b64 exec, -1")
    e("s_waitcnt lgkmcnt(0)")
    e("s_barrier")
    stamp('b1')
    e("ds_read_b128 %s, v%d offset:%d" % (vr(vQF), T4, L_QC))
    e("ds_read_b128 %s, v%d offset:%d" % (vr(vQF + 4), T4, L_QC + 768))
    e("ds_read_b128 %s, v%d offset:%d" % (vr(vQF + 8), T4, L_QC + 1536))
    e("ds_read_b128 %s, v%d offset:%d" % (vr(vA0), T4, L_QC + 2304))
    for g in range(4): e("v_mov_b32 v%d, 0" % (vS + g))
    for g in range(NE - ne_late, NE): issue_kv("V", g, ('a', AVE + 12 * g))
    e("s_waitcnt lgkmcnt(0)")
    for r in range(4): e("v_add_f32 v%d, v%d, v%d" % (vQF + r, vQF + r, vQF + 4 + r))
    for r in range(4): e("v_add_f32 v%d, v%d, v%d" % (vQF + 8 + r, vQF + 8 + r, vA0 + r))
    for r in range(4): e("v_add_f32 v%d, v%d, v%d" % (vQF + r, vQF + r, vQF + 8 + r))
    e("v_cvt_pk_bf16_f32 v%d, v%d, v%d" % (vQF, vQF, vQF + 1))
    e("v_cvt_pk_bf16_f32 v%d, v%d, v%d" % (vQF + 1, vQF + 2, vQF + 3))
    e("ds_write_b64 v%d, %s offset:%d" % (T2, vr(vQF, 2), L_QB))
    e("s_waitcnt lgkmcnt(0)")
    for t in range(3): e("ds_read_b128 %s, v%d offset:%d" % (vr(vQF + 4 * t), T5, L_QB + t * 128))
    e("s_waitcnt lgkmcnt(0)")

    vP1 = 10
    def issue_p1(counted):
        e.vmem("buffer_load_dwordx4 %s, v%d, %s, 0 offen sc1" % (vr(vP1), vP1O, sr(sWSF)), "P1", counted=counted)
        e.vmem("buffer_load_dwordx4 %s, v%d, %s, 0 offen sc1" % (vr(vP1 + 4), vF1, sr(sWSF)), "P1", counted=counted)
        if not p1lo: return
        e("s_mov_b32 s%d, %d" % (sSO, P1_LO))
        e.vmem("buffer_load_dwordx4 %s, v%d, %s, s%d offen sc1" % (vr(vP1 + 8), vP1O, sr(sWSF), sSO), "P1", counted=counted)
        e.vmem("buffer_load_dwordx4 %s, v%d, %s, s%d offen sc1" % (vr(vP1 + 12), vF1, sr(sWSF), sSO), "P1", counted=counted)
    def start_p1():
        e("s_lshl_b32 s%d, s%d, 2" % (sT0, sRB)); e("s_add_u32 s%d, s%d, s%d" % (sT0, sT0, sW))
        e("s_lshl_b32 s%d, s%d, 8" % (sT1, sT0)); e("s_add_u32 s%d, s%d, %d" % (sT1, sT1, WS_P1))
        e("v_and_b32 v%d, 15, v%d" % (vF1, vL)); e("v_lshlrev_b32 v%d, 4, v%d" % (vF1, vF1)); e("v_add_u32 v%d, s%d, v%d" % (vF1, sT1, vF1))
        e("v_lshrrev_b32 v%d, 4, v%d" % (vP1O, vL)); e("v_mul_u32_u24 v%d, 24576, v%d" % (vP1O, vP1O)); e("v_add_u32 v%d, v%d, v%d" % (vP1O, vP1O, vF1))
        e("v_add_u32 v%d, %d, v%d" % (vF1, 4 * 24576, vF1))
        issue_p1(True)
        e("s_mul_i32 s%d, s%d, 20480" % (sT1, sT0))
        e("s_lshl_b32 s%d, s%d, 8" % (sT2, sC5)); e("s_add_u32 s%d, s%d, s%d" % (sT1, sT1, sT2))
        e("s_mul_i32 s%d, s%d, 61440" % (sT2, sW))
        e("v_subrev_u32 v%d, s%d, v%d" % (T1, sT2, vWO))
        for i in range(4):
            e.vmem("buffer_load_dwordx4 %s, v%d, %s, s%d offen %s" % (ar(240 + 4 * i), T1, sr(sWD), sT1, ff), "WD")
            if i < 3: e("s_add_u32 s%d, s%d, 5120" % (sT1, sT1))
    def stage2():
        skip = e.newlab("nost2")
        e("s_cmp_eq_u32 s%d, 0" % sACT); e("s_cbranch_scc1 %s" % skip)
        e.wait_vm("WD")
        poll("p1", [vP1, vP1 + 4, vP1 + 8, vP1 + 12][:4 if p1lo else 2], T1, T2, lambda: issue_p1(False))
        for r in range(16 if p1lo else 8): untag(10 + r, 10 + r)
        if p1lo:
            for r in range(8): e("v_add_f32 v%d, v%d, v%d" % (10 + r, 10 + r, 18 + r))
        e("s_mov_b64 exec, 0xffff")
        for r in range(4): e("v_add_f32 v%d, v%d, v%d" % (10 + r, 10 + r, 14 + r))
        e("s_mov_b64 exec, -1")
        for sw in ("v_permlane16_swap_b32", "v_permlane32_swap_b32"):
            for r in range(4): e("v_mov_b32 v%d, v%d" % (14 + r, 10 + r))
            e("s_nop 0")
            for r in range(4): e("%s v%d, v%d" % (sw, 10 + r, 14 + r))
            e("s_nop 0")
            for r in range(4): e("v_add_f32 v%d, v%d, v%d" % (10 + r, 10 + r, 14 + r))
        e("v_cvt_pk_bf16_f32 v14, v10, v11"); e("v_cvt_pk_bf16_f32 v15, v12, v13")
        e("v_lshlrev_b32 v10, 16, v14"); e("v_and_b32 v11, 0xffff0000, v14")
        e("v_lshlrev_b32 v12, 16, v15"); e("v_and_b32 v13, 0xffff0000, v15")
        e("s_nop 0")
        for r in range(4): e("v_mov_b32_dpp v%d, v%d row_shl:4 %s" % (14 + r, 10 + r, DPP))
        for k in range(4): e("v_mul_f32 v%d, v%d, v%d" % (18 + k, 10 + k, 10 + k))
        for k in range(4): e("v_mul_f32 v%d, %s, v%d" % (18 + k, hx(f2u(0.044715)), 18 + k))
        for k in range(4): e("v_fma_f32 v%d, v%d, v%d, v%d" % (18 + k, 18 + k, 10 + k, 10 + k))
        for k in range(4): e("v_mul_f32 v%d, %s, v%d" % (18 + k, hx(f2u(-2.0 * LOG2E * 0.7978845608028654)), 18 + k))
        for k in range(4): e("v_exp_f32 v%d, v%d" % (18 + k, 18 + k))
        for k in range(4): e("v_add_f32 v%d, 1.0, v%d" % (18 + k, 18 + k))
        for k in range(4): e("v_rcp_f32 v%d, v%d" % (18 + k, 18 + k))
        for k in range(4): e("v_mul_f32 v%d, v%d, v%d" % (18 + k, 10 + k, 18 + k))
        e("v_cvt_pk_bf16_f32 v10, v18, v19"); e("v_cvt_pk_bf16_f32 v11, v20, v21")
        e("v_lshlrev_b32 v18, 16, v10"); e("v_and_b32 v19, 0xffff0000, v10")
        e("v_lshlrev_b32 v20, 16, v11"); e("v_and_b32 v21, 0xffff0000, v11")
        for k in range(4): e("v_mul_f32 v%d, v%d, v%d" % (18 + k, 18 + k, 14 + k))
        e("v_cvt_pk_bf16_f32 v28, v18, v19"); e("v_cvt_pk_bf16_f32 v29, v20, v21")
        e("v_bfe_u32 v18, v%d, 3, 1" % vL); e("v_lshlrev_b32 v18, 3, v18")
        for i, off in enumerate((0, 4, 32, 36)):
            e("ds_bpermute_b32 v%d, v18, v28 offset:%d" % (10 + i, off)); e("ds_bpermute_b32 v%d, v18, v29 offset:%d" % (14 + i, off))
        e("v_lshrrev_b32 v19, 4, v%d" % vL); e("v_mul_u32_u24 v19, 0x0202, v19"); e("v_add_u32 v19, 0x0100, v19")
        e("v_lshl_or_b32 v19, v19, 16, v19")
        e("s_waitcnt lgkmcnt(0)")
        for i in range(4): e("v_perm_b32 v%d, v%d, v%d, v19" % (10 + i, 14 + i, 10 + i))
        for i in range(4):
            A = 20 if i % 2 == 0 else 24
            afrag(A, 10 + i)
            e("s_nop 1")
            mfma(vr(16), vr(A), ar(240 + 4 * i), "0" if i == 0 else vr(16))
        e("s_lshl_b32 s%d, s%d, 10" % (sT0, sW))
        e("v_add_u32 v10, s%d, v%d" % (sT0, vFA))
        e("v_mov_b32 v11, %d" % L_CNT); e("v_mov_b32 v12, 1")
        e("s_nop 5")
        e("ds_write_b128 v10, %s offset:%d" % (vr(16), L_F2))
        e("s_waitcnt lgkmcnt(0)")
        e("s_mov_b64 exec, 1")
        e("ds_add_rtn_u32 v12, v11, v12")
        e("s_mov_b64 exec, -1")
        e("s_waitcnt lgkmcnt(0)")
        e("v_readfirstlane_b32 s%d, v12" % sT0)
        e("s_nop 3")
        e("s_cmp_lg_u32 s%d, 3" % sT0); e("s_cbranch_scc1 %s" % skip)
        e("v_lshlrev_b32 v28, 4, v%d" % vL)
        for pp in range(4): e("ds_read_b128 %s, v28 offset:%d" % (vr(10 + 4 * pp), L_F2 + pp * 1024))
        e("v_lshrrev_b32 v28, 3, v%d" % vL); e("v_mul_u32_u24 v28, 3072, v28")
        e("v_and_b32 v29, 7, v%d" % vL); e("v_lshl_add_u32 v28, v29, 4, v28")
        e("s_mul_i32 s%d, s%d, %d" % (sT0, sC5, 8 * 3072))
        e("s_lshl_b32 s%d, s%d, 7" % (sT1, sRB))
        e("s_add_u32 s%d, s%d, s%d" % (sT0, sT0, sT1)); e("s_add_u32 s%d, s%d, %d" % (sT0, sT0, WS_P2))
        e("s_waitcnt lgkmcnt(0)")
        for pp in range(1, 4):
            for r in range(4): e("v_add_f32 v%d, v%d, v%d" % (10 + r, 10 + r, 10 + 4 * pp + r))
        for r in range(4): tagit(10 + r, 10 + r)
        e.vmem("buffer_store_dwordx4 %s, v28, %s, s%d offen %s" % (vr(10), sr(sWSF), sT0, stf), counted=False)
        e("s_nop 1")
        e.label(skip)

    curwin[0] = win
    sc = hx(f2u(192 ** -0.5))
    nwo = [0]
    NO1 = AVE // 12
    def finish_scores(g0):
        a, b2, t = vS + g0, vS + g0 + 1, T0
        for pat in (X1, X2, HM):
            e("v_add_f32_dpp v%d, v%d, v%d %s %s" % (a, a, a, pat, DPP))
            e("v_add_f32_dpp v%d, v%d, v%d %s %s" % (b2, b2, b2, pat, DPP))
            e("s_nop 0")
        e("v_cvt_pk_bf16_f32 v%d, v%d, v%d" % (t, a, b2))
        e("v_lshlrev_b32 v%d, 16, v%d" % (a, t)); e("v_and_b32 v%d, 0xffff0000, v%d" % (b2, t))
        e("v_mul_f32 v%d, %s, v%d" % (a, sc, a)); e("v_mul_f32 v%d, %s, v%d" % (b2, sc, b2))
        e("v_cvt_pk_bf16_f32 v%d, v%d, v%d" % (t, a, b2))
        e("v_lshlrev_b32 v%d, 16, v%d" % (a, t)); e("v_and_b32 v%d, 0xffff0000, v%d" % (b2, t))
        if g0 == 0: e("v_max_f32 v%d, v%d, v%d" % (vMW, a, b2))
        else: e("v_max3_f32 v%d, v%d, v%d, v%d" % (vMW, vMW, a, b2))
    def group_allreduce(v, t, op):
        e("s_nop 1")
        e("%s_dpp v%d, v%d, v%d %s %s" % (op, v, v, v, R8, DPP))
        e("v_mov_b32 v%d, v%d" % (t, v)); e("s_nop 1")
        e("v_permlane16_swap_b32 v%d, v%d" % (v, t)); e("s_nop 1")
        e("%s v%d, v%d, v%d" % (op, v, v, t))
        e("v_mov_b32 v%d, v%d" % (t, v)); e("s_nop 1")
        e("v_permlane32_swap_b32 v%d, v%d" % (v, t)); e("s_nop 1")
        e("%s v%d, v%d, v%d" % (op, v, v, t))
    l2e = hx(f2u(LOG2E))
    def exps(gs, m):
        for g in gs: e("v_sub_f32 v%d, v%d, v%d" % (vS + g, vS + g, m))
        for g in gs: e("v_mul_f32 v%d, %s, v%d" % (vS + g, l2e, vS + g))
        for g in gs: e("v_exp_f32 v%d, v%d" % (vS + g, vS + g))
    NEARLY = 28
    vM1, vL1 = T1, T2
    vn = [NE]
    for g in range(32):
        e.wait_vm("K%d" % g)
        stamp('k%d' % g)
        rs = ring[("K", g)]
        for t in range(3):
            for r in range(4):
                e("v_dot2c_f32_bf16 v%d, v%d, v%d" % (vS + g, rslot(rs, t) + r, vQF + 4 * t + r))
        if g + RING < 32: issue_kv("K", g + RING, rs)
        else: issue_kv("V", vn[0], rs); vn[0] += 1
        if nwo[0] < NO1 and g >= ostart and (g - ostart) % ostep == 0:
            issue_wo(nwo[0]); nwo[0] += 1
        if g == p1_g: start_p1()
        if g == st2_g: stage2()
        if g % 2 == 1 and 3 <= g < 31: finish_scores(g - 3)
        if g == 29:
            e("v_mov_b32 v%d, v%d" % (vM1, vMW))
            group_allreduce(vM1, T0, "v_max_f32")
            exps(range(0, 14), vM1)
        if g == 30:
            exps(range(14, 28), vM1)
            finish_scores(28)
            e("v_add_f32 v%d, v%d, v%d" % (vL1, vS, vS + 1)); e("v_add_f32 v%d, v%d, v%d" % (T0, vS + 2, vS + 3))
            for k in range(4, NEARLY, 2):
                e("v_add_f32 v%d, v%d, v%d" % (vL1, vL1, vS + k)); e("v_add_f32 v%d, v%d, v%d" % (T0, T0, vS + k + 1))
            e("v_add_f32 v%d, v%d, v%d" % (vL1, vL1, T0))
    finish_scores(30)
    group_allreduce(vMW, T0, "v_max_f32")
    vFAC, vLF = 41, 39
    e("v_sub_f32 v%d, v%d, v%d" % (vFAC, vM1, vMW)); e("v_mul_f32 v%d, %s, v%d" % (vFAC, l2e, vFAC)); e("v_exp_f32 v%d, v%d" % (vFAC, vFAC))
    exps(range(NEARLY, 32), vMW)
    stamp('b2')
    def wave_sum():
        e("v_mul_f32 v%d, v%d, v%d" % (vLW, vL1, vFAC))
        for k in range(NEARLY, 32): e("v_add_f32 v%d, v%d, v%d" % (vLW, vLW, vS + k))
        group_allreduce(vLW, T0, "v_add_f32")
        e("s_lshl_b32 s%d, s%d, 3" % (sT0, sW)); e("s_add_u32 s%d, s%d, %d" % (sT0, sT0, L_ML)); e("v_mov_b32 v%d, s%d" % (T0, sT0))
        e("ds_write_b64 v%d, v[%d:%d]" % (T0, vMW, vLW))
    def wg_exchange():
        e("v_bfe_u32 v%d, v%d, 1, 2" % (T0, vL)); e("v_lshlrev_b32 v%d, 3, v%d" % (T0, T0))
        e("s_waitcnt lgkmcnt(0)")
        e("s_barrier")
        e("ds_read_b64 v[30:31], v%d offset:%d" % (T0, L_ML))
        e("s_waitcnt lgkmcnt(0)")
        e("v_mov_b32 v32, v30")
        for pat in (X2, HM):
            e("s_nop 1"); e("v_max_f32_dpp v32, v32, v32 %s %s" % (pat, DPP))
        e("v_sub_f32 v33, v30, v32")
        e("v_mul_f32 v33, %s, v33" % l2e)
        e("v_exp_f32 v33, v33")
        e("s_nop 0")
        e("v_mul_f32 v30, v33, v31")
        for pat in (X2, HM):
            e("s_nop 1"); e("v_add_f32_dpp v30, v30, v30 %s %s" % (pat, DPP))
        e("v_rcp_f32 v31, v30")
        tagit(34, 32); tagit(35, 30); tagit(36, 32); tagit(37, 30)
        e("v_mul_f32 v%d, v33, v31" % vLF)
        e("s_lshl_b32 s%d, s%d, 7" % (sT0, sB)); e("s_add_u32 s%d, s%d, s%d" % (sT0, sT0, sP))
        e("s_lshl_b32 s%d, s%d, 7" % (sT0, sT0)); e("s_add_u32 s%d, s%d, %d" % (sWQO, sT0, WS_ML))
        e("v_mov_b32 v%d, v32" % vMW); e("v_mov_b32 v%d, v30" % vLW)
        e("v_lshlrev_b32 v%d, 4, v%d" % (vF1, vL))
        lab = e.newlab("noml")
        e("s_cmp_lg_u32 s%d, 3" % sW); e("s_cbranch_scc1 %s" % lab)
        e("s_mov_b64 exec, 0xff")
        e.vmem("buffer_store_dwordx4 %s, v%d, %s, s%d offen %s" % (vr(34), vF1, sr(sWS), sWQO, stf), counted=False)
        e("s_mov_b64 exec, -1")
        e.label(lab)
        e("s_and_b32 s%d, s%d, %d" % (sWQO, sWQO, ~511 & 0xffffffff))
        e("v_and_b32 v%d, 3, v%d" % (vF1, vL)); e("v_lshlrev_b32 v%d, 7, v%d" % (vF1, vF1))

    aY, aML, cF, cX, aOUT, aCO, aCR, cG = 42, 43, 44, 48, 49, 50, 51, 52
    def quad_reduce(q):
        e("s_nop 0")
        e("v_permlane32_swap_b32 v%d, v%d" % (q, q + 1)); e("v_permlane32_swap_b32 v%d, v%d" % (q + 2, q + 3)); e("s_nop 0")
        e("v_add_f32 v%d, v%d, v%d" % (q, q, q + 1)); e("v_add_f32 v%d, v%d, v%d" % (q + 2, q + 2, q + 3)); e("s_nop 1")
        e("v_permlane16_swap_b32 v%d, v%d" % (q, q + 2)); e("s_nop 0")
        e("v_add_f32 v%d, v%d, v%d" % (q, q, q + 2)); e("s_nop 1")
        e("v_add_f32_dpp v%d, v%d, v%d %s %s" % (q, q, q, R8, DPP))
    def ld_f(counted): e.vmem("buffer_load_dwordx4 %s, v%d, %s, 0 offen sc1" % (vr(cF), 53, sr(sWSF)), "CF", counted=counted)
    vWJ = 38
    def ld_sib(counted): e.vmem("buffer_load_dwordx4 %s, v%d, %s, s%d offen sc1" % (vr(30), vF1, sr(sWS), sWQO), "SIB", counted=counted)
    def split_weight():
        e.wait_vm("SIB")
        poll("sib", [30], 54, 55, lambda: ld_sib(False))
        untag(30, 30); untag(31, 31)
        e("v_mov_b32 v32, v30")
        for pat in (X1, X2):
            e("s_nop 1"); e("v_max_f32_dpp v32, v32, v32 %s %s" % (pat, DPP))
        e("v_sub_f32 v30, v30, v32"); e("v_sub_f32 v33, v%d, v32" % vMW)
        e("v_mul_f32 v30, %s, v30" % l2e); e("v_mul_f32 v33, %s, v33" % l2e)
        e("v_exp_f32 v30, v30"); e("v_exp_f32 v33, v33")
        e("v_add_u32 v32, 0x80, v%d" % vLW); untag(32, 32)
        e("v_mul_f32 v30, v30, v31"); e("v_mul_f32 v33, v33, v32")
        for pat in (X1, X2):
            e("s_nop 1"); e("v_add_f32_dpp v30, v30, v30 %s %s" % (pat, DPP))
        e("v_rcp_f32 v30, v30"); e("s_nop 0")
        e("v_mul_f32 v%d, v33, v30" % vWJ)
        e("v_mul_f32 v%d, v%d, v%d" % (vWJ, vWJ, vLF))
    def consumer_setup():
        if elect:
            e("s_mov_b32 s%d, %d" % (sWSF + 2, WS_SIZE))
        elif lightc:
            e("s_lshr_b32 s%d, s2, 6" % sT0); e("s_lshl_b32 s%d, s%d, 1" % (sT0, sT0))
            e("s_sub_u32 s%d, s%d, 4" % (sT1, sU)); e("s_add_u32 s%d, s%d, s%d" % (sT0, sT0, sT1))
            e("s_cmp_lt_u32 s%d, 2" % sT1); e("s_cselect_b32 s%d, s%d, 99" % (sT0, sT0))
            e("s_and_b32 s%d, s2, 7" % sT1); e("s_mul_i32 s%d, s%d, 5" % (sCI, sT1)); e("s_add_u32 s%d, s%d, s%d" % (sCI, sCI, sT0))
            e("s_cmp_lt_u32 s%d, 5" % sT0)
            e("s_cselect_b32 s%d, 1, 0" % sCONS); e("s_cselect_b32 s%d, %d, 0" % (sWSF + 2, WS_SIZE))
        else:
            e("s_and_b32 s%d, s2, 1" % sT0); e("s_lshl_b32 s%d, s%d, 8" % (sT0, sT0)); e("s_add_u32 s%d, s%d, s2" % (sT0, sT0))
            e("s_cmp_lt_u32 s%d, 80" % sT0)
            e("s_cselect_b32 s%d, 1, 0" % sCONS); e("s_cselect_b32 s%d, %d, 0" % (sWSF + 2, WS_SIZE))
            e("s_lshr_b32 s%d, s2, 1" % sCI)
        e("s_cmp_ge_u32 s%d, 20" % sCI); e("s_cselect_b32 s%d, 1, 0" % sB)
        e("s_mul_i32 s%d, s%d, 20" % (sT0, sB)); e("s_sub_u32 s%d, s%d, s%d" % (sH, sCI, sT0))
        e("v_lshlrev_b32 v53, 4, v%d" % vL)
        e("s_lshl_b32 s%d, s%d, 14" % (sT0, sCI)); e("s_lshl_b32 s%d, s%d, 12" % (sT1, sW))
        e("s_add_u32 s%d, s%d, s%d" % (sT0, sT0, sT1)); e("s_add_u32 s%d, s%d, %d" % (sT0, sT0, WS_Y))
        e("v_add_u32 v%d, s%d, v53" % (aY, sT0))
        e("s_lshr_b32 s%d, s%d, 2" % (sT0, sH)); e("s_lshl_b32 s%d, s%d, 1" % (sT0, sT0)); e("s_add_u32 s%d, s%d, s%d" % (sT0, sT0, sB))
        e("s_lshl_b32 s%d, s%d, 2" % (sT0, sT0)); e("s_and_b32 s%d, s%d, 3" % (sT1, sH)); e("s_add_u32 s%d, s%d, s%d" % (sT0, sT0, sT1))
        e("s_mul_i32 s%d, s%d, 3072" % (sT0, sT0)); e("s_mul_i32 s%d, s%d, 768" % (sT1, sW))
        e("s_add_u32 s%d, s%d, s%d" % (sT0, sT0, sT1)); e("s_add_u32 s%d, s%d, %d" % (sT0, sT0, WS_P2))
        e("v_min_u32 v53, 752, v53"); e("v_add_u32 v53, s%d, v53" % sT0)
        e("v_lshrrev_b32 v%d, 3, v%d" % (aML, vL)); e("v_lshlrev_b32 v%d, 7, v%d" % (aML, aML))
        e("s_lshl_b32 s%d, s%d, 14" % (sT0, sB)); e("s_lshl_b32 s%d, s%d, 12" % (sT1, sW))
        e("s_add_u32 s%d, s%d, s%d" % (sT0, sT0, sT1)); e("s_add_u32 s%d, s%d, %d" % (sT0, sT0, WS_ML))
        e("v_add_u32 v%d, s%d, v%d" % (aML, sT0, aML))
        e("v_and_b32 v%d, 31, v%d" % (aCR, vL)); e("v_lshlrev_b32 v%d, 1, v%d" % (aOUT, aCR))
        e("s_lshl_b32 s%d, s%d, 6" % (sT0, sCI)); e("v_add_u32 v%d, s%d, v%d" % (aOUT, sT0, aOUT))
        e("v_lshlrev_b32 v%d, 2, v%d" % (aCR, aCR)); e("v_add_u32 v%d, %d, v%d" % (aCR, L_CO, aCR))
        ld_f(True)
        e.vmem("buffer_load_ushort v%d, v%d, %s, 0 offen" % (cX, aOUT, sr(sX)), "CF")
        e("v_and_b32 v%d, 7, v%d" % (aCO, vL)); e("v_lshlrev_b32 v%d, 4, v%d" % (aCO, aCO))
        e("v_bfe_u32 v%d, v%d, 4, 1" % (cG, vL)); e("v_lshl_add_u32 v%d, v%d, 3, v%d" % (aCO, cG, aCO))
        e("v_lshrrev_b32 v%d, 5, v%d" % (cG, vL)); e("v_lshl_add_u32 v%d, v%d, 2, v%d" % (aCO, cG, aCO))
        e("s_lshl_b32 s%d, s%d, 7" % (sT0, sW)); e("v_add_u32 v%d, s%d, v%d" % (aCO, sT0, aCO))
    def consumer_ffn():
        skip = e.newlab("nocf")
        if not elect: e("s_cmp_eq_u32 s%d, 0" % sCONS); e("s_cbranch_scc1 %s" % skip)
        e.wait_vm("CF")
        poll("cf", [cF], 54, 55, lambda: ld_f(False))
        for r in range(4): untag(cF + r, cF + r)
        e("s_mov_b32 exec_lo, 0"); e("s_mov_b32 exec_hi, 0xffff0000")
        for r in range(4): e("v_mov_b32 v%d, 0" % (cF + r))
        e("s_mov_b64 exec, -1")
        e("v_lshlrev_b32 v%d, 16, v%d" % (cX, cX))
        quad_reduce(cF)
        e("ds_write_b32 v%d, v%d offset:%d" % (aCO, cF, L_CF))
        e.label(skip)

    order = list(range(32))
    if vilv:
        order = [x for k in range(NE) for x in (NE + k, k)] + list(range(2 * NE, 32))
    for g, vg in enumerate(order):
        A = vA0 if g % 2 == 0 else vA1
        if vg < NEARLY: e("v_mul_f32 v%d, v%d, v%d" % (vS + vg, vS + vg, vFAC))
        e("v_cvt_pk_bf16_f32 v%d, v%d, v%d" % (vS + vg, vS + vg, vS + vg))
        afrag(A, vS + vg)
        e("s_nop 0")
        e.wait_vm("V%d" % vg)
        stamp('v%d' % g)
        rs = ring[("V", vg)]
        for t in range(3):
            mfma(vr(vACC + 4 * t), vr(A), reg_of(rs, t), "0" if g == 0 else vr(vACC + 4 * t))
        if g == cf_g: ld_sib(True); consumer_setup()
        if not isinstance(rs, tuple) and vn[0] < 32:
            issue_kv("V", vn[0], rs); vn[0] += 1
        if nwo[0] < 20 and (nwo[0] < NO1 or (nwo[0] - NO1) in order[:g + 1]):
            issue_wo(nwo[0]); nwo[0] += 1
        if g == 0: wave_sum()
        if g == ex_g: wg_exchange()
        if g == 24:
            free = sorted(ring[("V", k)] for k in range(19, 24))
            y0 = [k for k in free if k + 1 in free][0]
            vY = rslot(y0, 0)
            for r in range(20): e("v_mov_b32 v%d, 0" % (vY + r))
            e("v_and_b32 v%d, 7, v%d" % (T0, vL)); e("v_mul_u32_u24 v%d, %d, v%d" % (T0, PSTR, T0))
            e("v_lshrrev_b32 v%d, 4, v%d" % (T1, vL)); e("v_lshl_add_u32 v%d, v%d, 3, v%d" % (T0, T1, T0))
            e("v_bfe_u32 v%d, v%d, 3, 1" % (T1, vL)); e("v_mul_u32_u24 v%d, 96, v%d" % (T1, T1))
            e("s_mul_i32 s%d, s%d, 192" % (sT0, sW))
            e("v_add3_u32 v%d, s%d, v%d, v%d" % (T0, sT0, T0, T1))
            e("s_mul_i32 s%d, s%d, 2560" % (sT0, sW))
            e("v_add_u32 v%d, s%d, v%d" % (T1, sT0, vFA))
            e("v_lshlrev_b32 v%d, 4, v0" % T2)
            e("v_bfe_u32 v%d, v%d, 2, 1" % (T4, vL)); e("v_mul_u32_u24 v%d, 0xffff, v%d" % (T4, T4))
            e("v_xor_b32 v%d, 0xffff, v%d" % (T3, T4))
            e("v_and_b32 v%d, 3, v%d" % (T5, vL)); e("v_add_u32 v%d, 1, v%d" % (vP1O, T5)); e("v_and_b32 v%d, 3, v%d" % (vP1O, vP1O))
            e("v_lshl_or_b32 v%d, v%d, 2, v%d" % (T5, vP1O, T5)); e("v_mul_u32_u24 v%d, 0x1111, v%d" % (T5, T5))
            quads = [rslot(k, t) for k in free if k not in (y0, y0 + 1) for t in range(3)]
            cML, cY = quads[0:4], quads[4:8]
            for q in cY: e("v_xor_b32 v%d, 0xff, v%d" % (q, vTAG))
        if g == cf2_g: split_weight(); consumer_ffn()
    assert nwo[0] == 20 and vn[0] == 32
    stamp('vend')
    e("s_mov_b64 exec, %s" % sr(sVAL, 2))
    e("s_nop 4")
    for t in range(3): e("ds_write_b128 v%d, %s offset:%d" % (vQA, vr(vACC + 4 * t), L_OP + t * 256))
    e("s_mov_b64 exec, -1")
    e("s_waitcnt lgkmcnt(0)")
    e("s_barrier")
    stamp('b3')
    mlds = [(cML[i], "buffer_load_dwordx4 %s, v%d, %s, 0 offen offset:%d %s" % (vr(cML[i]), aML, sr(sWS), 1024 * i, plf)) for i in range(4)]
    ylds = [(cY[i], "buffer_load_dwordx4 %s, v%d, %s, 0 offen offset:%d %s" % (vr(cY[i]), aY, sr(sWS), 1024 * i, plf)) for i in range(4)]
    def first_reads():
        lab = e.newlab("nofr")
        e("s_cmp_eq_u32 s%d, 0" % sCONS); e("s_cbranch_scc1 %s" % lab)
        for _, t in ylds: e.vmem(t, counted=False)
        e.label(lab)
    vO = 58
    for n in range(3): e("ds_read_b64 %s, v%d offset:%d" % (vr(vO + 2 * n, 2), T0, L_OP + 32 * n))
    if early0 == 1 and not elect: first_reads()
    e("s_waitcnt lgkmcnt(0)")
    for i in range(6): e("v_mul_f32 v%d, v%d, v%d" % (vO + i, vO + i, vWJ))
    for pat in (X1, X2, HM):
        for i in range(6): e("v_add_f32_dpp v%d, v%d, v%d %s %s" % (vO + i, vO + i, vO + i, pat, DPP))
    for i in range(6): e("v_cvt_pk_bf16_f32 v%d, v%d, v%d" % (vO + i, vO + i, vO + i))
    assert e.vm[-1] == "V31"
    def sfrag(dst, n, r):
        src = vO + 2 * (n % 3) + (r >> 1); m = T3 if r % 2 == 0 else T4
        if n >= 3: e("v_and_b32_dpp v%d, v%d, v%d %s %s" % (dst + r, src, m, R8, DPP))
        else: e("v_and_b32 v%d, v%d, v%d" % (dst + r, src, m))
    for r in range(4): sfrag(vA0, 0, r)
    for n in range(6):
        A = vA0 if n % 2 == 0 else vA1
        An = vA1 if n % 2 == 0 else vA0
        if n == 0: e("s_nop 1")
        for seg in range(5):
            e("v_smfmac_f32_16x16x64_bf16 %s, %s, %s, v%d" % (vr(vY + 4 * seg), vr(A), ar(8 * (5 * n + seg), 8), T5))
            if n < 5 and seg < 2:
                for r in (2 * seg, 2 * seg + 1): sfrag(An, n + 1, r)
    stamp('mf')
    e("s_mov_b32 exec_hi, 0")
    e("s_nop 3")
    for seg in range(5): e("ds_write_b128 v%d, %s offset:%d" % (T1, vr(vY + 4 * seg), L_YP + seg * 512))
    e("s_mov_b64 exec, -1")
    if early0 == 2 and not elect: first_reads()
    e("s_waitcnt lgkmcnt(0)")
    e("s_barrier")
    lab = e.newlab("noy")
    e("s_cmp_ge_u32 s%d, 3" % sW); e("s_cbranch_scc1 %s" % lab)
    for pp in range(4): e("ds_read_b128 %s, v%d offset:%d" % (vr(18 + 4 * pp), T2, L_YP + pp * 2560))
    e("s_waitcnt lgkmcnt(2)")
    for r in range(4): e("v_add_f32 v%d, v%d, v%d" % (18 + r, 18 + r, 22 + r))
    e("s_waitcnt lgkmcnt(0)")
    for r in range(4): e("v_add_f32 v%d, v%d, v%d" % (26 + r, 26 + r, 30 + r))
    for r in range(4): e("v_add_f32 v%d, v%d, v%d" % (64 + r, 18 + r, 26 + r))
    for r in range(4): tagit(64 + r, 64 + r)
    e.vmem("buffer_store_dwordx4 v[64:67], v%d, %s, 0 offen %s" % (vPY, sr(sWS), yf), counted=False)
    lab2 = e.newlab("pubd")
    e("s_branch %s" % lab2)
    e.label(lab)
    def gate_calc():
        e("ds_read2_b32 v[54:55], v%d offset0:128 offset1:160" % aCR); e("ds_read2_b32 v[56:57], v%d offset0:192 offset1:224" % aCR)
        e("s_waitcnt lgkmcnt(0)")
        e("v_add_f32 v54, v54, v55"); e("v_add_f32 v56, v56, v57"); e("v_add_f32 v54, v54, v56")
        e("v_cvt_pk_bf16_f32 v54, v54, v54"); e("v_and_b32 v54, 0xffff0000, v54")
        e("v_mul_f32 v55, %s, v54" % hx(f2u(-LOG2E)))
        e("v_exp_f32 v55, v55"); e("s_nop 0")
        e("v_add_f32 v55, 1.0, v55")
        e("v_rcp_f32 v55, v55"); e("s_nop 0")
        e("v_mul_f32 v55, v54, v55")
        e("v_cvt_pk_bf16_f32 v55, v55, v55"); e("v_and_b32 v%d, 0xffff0000, v55" % cG)
    if elect:
        e("s_waitcnt vmcnt(0)")
        e("v_mov_b32 v42, %d" % (L_CNT + 4))
        e("s_mov_b64 exec, 1")
        e("ds_write_b32 v42, v44")
        e("s_mov_b64 exec, -1")
        e("s_waitcnt lgkmcnt(0)")
    else: gate_calc()
    e.label(lab2)
    stamp('pub')
    if diag:
        e("s_waitcnt vmcnt(0)")
        stamp('ack')
    if nopoll: e("s_branch L_fin")
    if elect:
        e("v_mov_b32 v42, %d" % (L_CNT + 4))
        e("s_barrier")
        e("ds_read_b32 v44, v42")
        e("s_waitcnt lgkmcnt(0)")
        e("v_readfirstlane_b32 s%d, v44" % sCI)
        e("s_nop 3")
        e("s_cmp_eq_u32 s%d, 40" % sCI); e("s_cbranch_scc1 L_epoch")
        e("s_cmp_gt_u32 s%d, 40" % sCI); e("s_cbranch_scc1 L_fin")
        e.vm = []
        consumer_setup()
    else:
        e("s_cmp_eq_u32 s2, %d" % (232 if lightc else 1)); e("s_cbranch_scc1 L_epoch")
    e("s_cmp_eq_u32 s%d, 0" % sCONS); e("s_cbranch_scc1 L_fin")
    if not early0:
        for _, t in ylds: e(t)
    if wait0 is not None: e("s_waitcnt vmcnt(%d)" % wait0)
    stamp('rd0')
    mpoll("y", ylds, 20, 21, ysleep)
    stamp('yok')
    R0 = 36
    for r in range(4): untag(R0 + r, cY[0] + r)
    for r in range(4): untag(24 + r, cY[1] + r)
    for r in range(4): untag(28 + r, cY[2] + r)
    for r in range(4): untag(32 + r, cY[3] + r)
    for r in range(4): e("v_add_f32 v%d, v%d, v%d" % (R0 + r, R0 + r, 24 + r))
    for r in range(4): e("v_add_f32 v%d, v%d, v%d" % (28 + r, 28 + r, 32 + r))
    for r in range(4): e("v_add_f32 v%d, v%d, v%d" % (R0 + r, R0 + r, 28 + r))
    e("s_nop 0")
    quad_reduce(R0)
    e("ds_write_b32 v%d, v%d offset:%d" % (aCO, R0, L_CO))
    e("s_waitcnt lgkmcnt(0)")
    e("s_barrier")
    stamp('b5')
    e("s_cmp_lg_u32 s%d, 3" % sW); e("s_cbranch_scc1 L_fin")
    e("ds_read2_b32 v[54:55], v%d offset0:0 offset1:32" % aCR); e("ds_read2_b32 v[56:57], v%d offset0:64 offset1:96" % aCR)
    e("s_mov_b32 exec_hi, 0")
    e("s_waitcnt lgkmcnt(0)")
    e("v_add_f32 v54, v54, v55"); e("v_add_f32 v56, v56, v57"); e("v_add_f32 v54, v54, v56")
    e("v_cvt_pk_bf16_f32 v54, v54, v54"); e("v_and_b32 v54, 0xffff0000, v54")
    e("v_mul_f32 v54, v54, v%d" % cG)
    e("v_cvt_pk_bf16_f32 v54, v54, v54"); e("v_and_b32 v54, 0xffff0000, v54")
    e("v_add_f32 v54, v54, v%d" % cX)
    e("v_cvt_pk_bf16_f32 v54, v54, v54")
    e("buffer_store_short v54, v%d, %s, 0 offen %s" % (aOUT, sr(sOUT), of))
    e("s_mov_b64 exec, -1")
    e("s_branch L_fin")
    e.label("L_epoch")
    e("s_cmp_lg_u32 s%d, 0" % sW); e("s_cbranch_scc1 L_fin")
    e("v_lshlrev_b32 v13, 7, v%d" % vL); e("v_add_u32 v13, %d, v13" % WS_ML)
    def ld_all():
        for i in range(4):
            e("s_mov_b32 s%d, %d" % (sT0, 8192 * i))
            e("buffer_load_dwordx4 %s, v13, %s, s%d offen sc1" % (vr(16 + 4 * i), sr(sWS), sT0))
    ld_all()
    e("s_waitcnt vmcnt(0)")
    poll("ep", [16 + 4 * k for k in range(4)], 56, 57, ld_all, sleep=epsleep)
    e("v_mov_b32 v16, s%d" % sTAG)
    e("s_mov_b32 s%d, %d" % (sT0, WS_EP))
    e("s_mov_b64 exec, 1")
    e("buffer_store_dword v16, off, %s, s%d" % (sr(sWS), sT0))
    e("s_mov_b64 exec, -1")
    e.label("L_fin")
    if calib:
        e.label("L_cal")
        e("s_memrealtime s[98:99]"); e("s_waitcnt lgkmcnt(0)")
        e("s_sub_u32 s98, s98, s%d" % sST); e("s_cmp_lt_u32 s98, %d" % calib); e("s_cbranch_scc1 L_cal")
    if trace:
        trace_pt('fin')
        e("v_writelane_b32 v89, s%d, 63" % sST)
        e("s_add_u32 s92, s26, %d" % STAMP_OFF); e("s_addc_u32 s93, s27, 0"); e("s_mov_b32 s94, 0x100000"); e("s_mov_b32 s95, 0x20000")
        e("s_lshl_b32 s%d, s2, 2" % sT0); e("s_add_u32 s%d, s%d, s%d" % (sT0, sT0, sW)); e("s_lshl_b32 s%d, s%d, 9" % (sT0, sT0))
        e("v_lshlrev_b32 v10, 2, v%d" % vL); e("v_add_u32 v10, s%d, v10" % sT0)
        e("buffer_store_dword v88, v10, s[92:95], 0 offen")
        e("buffer_store_dword v89, v10, s[92:95], 0 offen offset:256")
        open("trace_names.txt", "w").write(" ".join(trnames))
    if stamps:
        stamp('fin')
        n = nst[0]
        e("s_add_u32 s92, s26, %d" % STAMP_OFF); e("s_addc_u32 s93, s27, 0"); e("s_mov_b32 s94, 0x100000"); e("s_mov_b32 s95, 0x20000")
        if allw:
            e("s_lshl_b32 s%d, s2, 2" % sT0); e("s_add_u32 s%d, s%d, s%d" % (sT0, sT0, sW)); e("s_mul_i32 s%d, s%d, %d" % (sT0, sT0, 8 * n))
        else:
            e("s_cmp_lg_u32 s%d, 0" % sW); e("s_cbranch_scc1 L_end")
            e("s_mul_i32 s%d, s2, %d" % (sT0, 8 * n))
        e("v_mov_b32 v10, s%d" % sT0); e("v_mov_b32 v13, 0")
        e("s_mov_b64 exec, 1")
        for k in range(n):
            e("v_mov_b32 v12, s%d" % (sST + k))
            e("buffer_store_dwordx2 v[12:13], v10, s[92:95], 0 offen offset:%d" % (8 * k))
            e("s_nop 1")
    e.label("L_end")
    e("s_endpgm")
    e.raw('.section .rodata,"a"'); e.raw(".p2align 6"); e.raw(".amdhsa_kernel %s_kernel" % NAME)
    for s in (".amdhsa_next_free_vgpr 512", ".amdhsa_next_free_sgpr 102", ".amdhsa_accum_offset 256",
              ".amdhsa_group_segment_fixed_size 0", ".amdhsa_kernarg_size 96", ".amdhsa_user_sgpr_count 2",
              ".amdhsa_user_sgpr_kernarg_segment_ptr 1", ".amdhsa_system_sgpr_workgroup_id_x 1"):
        e(s)
    e.raw(".end_amdhsa_kernel")
    return "\n".join(e.L) + "\n", nst[0]

if __name__ == "__main__":
    import argparse
    ap = argparse.ArgumentParser()
    ap.add_argument("out"); ap.add_argument("--stamps", action="store_true")
    ap.add_argument("--opt", default="")
    a = ap.parse_args()
    kw = eval("dict(%s)" % a.opt)
    s, n = gen(stamps=a.stamps, **kw)
    hdr = open("cdna_kernels/%s.s.ref" % NAME).read().split("; Override launch")[0]
    open(a.out, "w").write(hdr + s)
    print("wrote", a.out, "stamps", n)
```

```python
import struct, sys
NAME = "recurrent_scan__gqa_block_cached__geglu_ffn__decode"

def f2u(x): return struct.unpack("<I", struct.pack("<f", x))[0]
def hx(x): return "0x%08x" % (x & 0xffffffff)
LOG2E = 1.4426950408889634

WS_Q1 = 0
WS_P1 = 0x30000
P1_LO = 5 * 24576
WS_P2 = 0x6C000
WS_Y  = 0x8A000
WS_ML = 0x12A000
WS_EP = 0x132000
WS_SIZE = 0x133000
STAMP_OFF = 300 << 20
OOB = 0x7ffffff0

L_XN = 0
L_Q1 = 5120
PS2 = 528
L_QC = 9472
L_QB = 24064
L_F1 = 24576
L_F2 = 32768
L_ML = 36864
L_CNT = 36928
L_OP = 37120
PSTR = 784
L_YP = 43520
L_CO = 53760
L_CF = 54272
L_END = 54784

class Em:
    def __init__(self):
        self.L = []; self.vm = []; self.lab = 0
    def __call__(self, s): self.L.append("  " + s)
    def raw(self, s): self.L.append(s)
    def label(self, n): self.L.append(n + ":")
    def newlab(self, p):
        self.lab += 1; return "L_%s_%d" % (p, self.lab)
    def vmem(self, s, tag=None, counted=True):
        self.L.append("  " + s)
        if counted: self.vm.append(tag)
    def behind(self, tag):
        idx = max(i for i, t in enumerate(self.vm) if t == tag)
        return len(self.vm) - 1 - idx
    def wait_vm(self, tag):
        self("s_waitcnt vmcnt(%d)" % min(self.behind(tag), 63))

def vr(a, n=4): return "v[%d:%d]" % (a, a + n - 1)
def ar(a, n=4): return "a[%d:%d]" % (a, a + n - 1)
def sr(a, n=4): return "s[%d:%d]" % (a, a + n - 1)
DPP = "row_mask:0xf bank_mask:0xf"
X1, X2, HM, RM, R8 = "quad_perm:[1,0,3,2]", "quad_perm:[2,3,0,1]", "row_half_mirror", "row_mirror", "row_ror:8"

def role_table(nb, nsm, nf, ns, cons_x, ep_x):
    assert sum(nb) == 96 and sum(nsm) == 96 and sum(nf) == 60 and sum(ns) == 120 and all(a + b + c <= 32 for a, b, c in zip(nb, nsm, nf))
    W = [None] * 256
    big = [(h, qu) for h in range(32) for qu in range(3)]; small = [(h, qu) for h in range(32) for qu in range(3, 6)]
    fi = si = 0
    kind = {}
    for x in range(8):
        ids = [8 * i + x for i in range(32)]
        kinds = ["b"] * nb[x] + ["f"] * nf[x] + ["q"] * nsm[x]; kinds += ["n"] * (32 - len(kinds))
        kinds = [kinds[(k * 13 + 5) % 32] for k in range(32)]
        for wg, kd in zip(ids, kinds):
            kind[wg] = kd
            if kd == "b": qh, qu = big.pop(0); W[wg] = qh | qu << 5
            elif kd == "q": qh, qu = small.pop(0); W[wg] = qh | qu << 5
            elif kd == "f": W[wg] = fi << 8 | 1 << 14; fi += 1
            else: W[wg] = 63 << 8 | 1 << 14
        order = sorted(ids, key=lambda w: "nqbf".index(kind[w]))
        for k, wg in enumerate(order):
            if k < ns[x]: W[wg] |= si << 16; si += 1; kind[wg] += "s"
            else: W[wg] |= 127 << 16
    cand = [w for x in cons_x for w in range(x, 256, 8)]
    cand.sort(key=lambda w: (["n", "q", "ns", "qs", "b", "f", "bs", "fs"].index(kind[w]), w >> 3))
    cons = {w: i for i, w in enumerate(cand[:40])}
    ep = [w for w in range(ep_x, 256, 8) if w not in cons][-1]
    for w in range(256): W[w] |= cons.get(w, 63) << 23 | (1 << 29 if w == ep else 0)
    return W

def gen(stamps=False, kvf="nt", wf="", qf="", ff="", RING=14, NE=3, st2_g=8, p1_g=0, ml_g=31, allw=False,
        sel=('b1', 'b2', 'vend', 'pub', 'fin'), ostep=2, ostart=0, k_pre=0, k_mid=2, qc_after=12, win=0, tmo=0x10000,
        trace=False, xspec=True, mlsleep=2, epsleep=8, nopoll=False, nocheck=False, stf='sc1', yf='sc1', cpf=0, calib=0, ysleep=0, pdepth=6, p1lo=False, ph=(0, 3, 6, 0), vrot=0, cf_g=12, cf2_g=25, of='', elect=False, tk_g=27, early0=0, adapt=0, farsleep=16, yinA=True, wait0=None, mlfull=True, lightc=True, diag=0, plf='sc1', vilv=True, gaptest=0, ex_g=5, k_ln=1, k_role=1, ne_late=0, par=2, wine=0, wmask=0x55, tab=None, ilv4=True, rev=0, ks=320, k_l0=1, k_l2=1):
    e = Em()
    vL, vKV, vWQ, vWO, vPY = 1, 2, 3, 4, 5
    vM = 6; vA0 = 10; vA1 = 14; vACC = 18; vQF = 30; vS = 42
    vMW, vLW, vTAG = 74, 75, 76
    vQA, vFA, vP1O, vF1 = 78, 79, 80, 81
    T0, T1, T2, T3, T4, T5 = 82, 83, 84, 85, 86, 87
    RB = 256 - 12 * RING
    assert RB >= 88
    def rslot(i, t): return RB + 12 * i + 4 * t
    AVE = 240 - 12 * NE
    sK, sV, sRE, sWO, sX, sRO, sWD, sWS, sOUT, sWSF = 28, 32, 36, 40, 44, 48, 56, 60, 64, 92
    sS1, sS2, sKH, sNT = 52, 53, 54, 55
    sTHR = 53
    sCONS = 52
    sTAG, sU, sACT, sFACT = 68, 69, 70, 71
    sW, sB, sH, sP, sFS, sKR, sC5, sRB, sSO, sT0, sT1, sT2 = 72, 73, 74, 75, 76, 77, 78, 79, 80, 81, 82, 83
    sEX = 84; sVAL = 86; sCNT = 88; sCI = 89; sFF = 90; sWQO = 91; sSEL = 14; sROT = 15; sMK = 28
    sST = 96
    nst = [0]
    def stamp(name):
        if trace: trace_pt(name); return
        if not stamps or name not in sel: return
        e("s_memrealtime s[%d:%d]" % (sEX, sEX + 1))
        e("s_waitcnt lgkmcnt(0)")
        e("s_mov_b32 s%d, s%d" % (sST + nst[0], sEX))
        nst[0] += 1
    tr = [0]; trnames = []
    def trace_pt(name):
        if not trace: return
        k = tr[0]; tr[0] += 1; trnames.append(name)
        e("s_memrealtime s[%d:%d]" % (sST + 2, sST + 3))
        e("s_waitcnt lgkmcnt(0)")
        e("v_writelane_b32 v%d, s%d, %d" % (88 + k // 64, sST + 2, k % 64))
    def mfma(d, a, b, c): e("v_mfma_f32_16x16x32_bf16 %s, %s, %s, %s" % (d, a, b, c))
    def afrag(dst, src):
        for r in range(4): e("v_and_b32 v%d, v%d, v%d" % (dst + r, src, vM + r))
    def tagit(dst, src):
        e("v_add_u32 v%d, 0x80, v%d" % (dst, src))
        e("v_bfi_b32 v%d, s%d, v%d, v%d" % (dst, sFF, vTAG, dst))
    def untag(dst, src): e("v_and_b32 v%d, 0xffffff00, v%d" % (dst, src))
    def piece_bad(p, t0, t1, dst):
        e("v_perm_b32 v%d, v%d, v%d, s%d" % (t0, p + 1, p, sSEL))
        e("v_perm_b32 v%d, v%d, v%d, s%d" % (t1, p + 3, p + 2, sSEL))
        e("v_lshl_or_b32 v%d, v%d, 16, v%d" % (t0, t1, t0))
        e("v_cmp_ne_u32 %s, v%d, v%d" % (dst, t0, vTAG + 1))
    def poll(name, pieces, t0, t1, reload, sleep=4):
        if nocheck: return
        lab = e.newlab(name + "ok"); lp = e.newlab(name + "loop")
        e("s_mov_b32 s%d, %d" % (sCNT, tmo))
        e.label(lp)
        for k, p in enumerate(pieces):
            piece_bad(p, t0, t1, "vcc" if k == 0 else sr(sEX, 2))
            if k: e("s_or_b64 vcc, vcc, %s" % sr(sEX, 2))
        e("s_nop 1")
        e("s_cbranch_vccz %s" % lab)
        e("s_sub_u32 s%d, s%d, 1" % (sCNT, sCNT)); e("s_cbranch_scc1 %s" % lab)
        if sleep: e("s_sleep %d" % sleep)
        reload()
        e("s_waitcnt vmcnt(0)")
        e("s_branch %s" % lp)
        e.label(lab)
    def mpoll(name, loads, t0, t1, sleep):
        lab = e.newlab(name + "ok"); lp = e.newlab(name + "loop")
        e("s_mov_b32 s%d, %d" % (sCNT, 16 * tmo))
        e.label(lp)
        for k, (p, _) in enumerate(loads): piece_bad(p, t0, t1, sr(sMK + 2 * k, 2))
        e("s_nop 0")
        e("s_or_b64 vcc, %s, %s" % (sr(sMK, 2), sr(sMK + 2, 2)))
        for k in range(2, len(loads)): e("s_or_b64 vcc, vcc, %s" % sr(sMK + 2 * k, 2))
        e("s_cbranch_scc0 %s" % lab)
        e("s_sub_u32 s%d, s%d, 1" % (sCNT, sCNT)); e("s_cbranch_scc1 %s" % lab)
        for k, (p, txt) in enumerate(loads):
            sk = e.newlab(name + "sk")
            e("s_mov_b64 exec, %s" % sr(sMK + 2 * k, 2))
            e("s_cbranch_execz %s" % sk)
            e(txt)
            e.label(sk)
        e("s_mov_b64 exec, -1")
        e("s_waitcnt vmcnt(%d)" % pdepth)
        if adapt:
            e("s_bcnt1_i32_b64 s%d, %s" % (sT0, sr(sMK, 2)))
            for k in range(1, len(loads)):
                e("s_bcnt1_i32_b64 s%d, %s" % (sT1, sr(sMK + 2 * k, 2))); e("s_add_u32 s%d, s%d, s%d" % (sT0, sT0, sT1))
            near = e.newlab("near")
            e("s_cmp_le_u32 s%d, %d" % (sT0, 8 * adapt)); e("s_cbranch_scc1 %s" % near)
            e("s_sleep %d" % farsleep)
            e.label(near)
        if sleep: e("s_sleep %d" % sleep)
        e("s_branch %s" % lp)
        e.label(lab)

    e.raw("; @launch grid=(256,1,1) block=(256,1,1) lds=%d" % L_END)
    e.raw('.amdgcn_target "amdgcn-amd-amdhsa--gfx950"')
    e.raw(".text"); e.raw(".globl %s_kernel" % NAME); e.raw(".p2align 8"); e.raw(".type %s_kernel,@function" % NAME)
    e.label("%s_kernel" % NAME)
    e("s_cmp_ge_u32 s2, 256"); e("s_cbranch_scc1 L_end")
    e("s_load_dwordx16 s[4:19], s[0:1], 0")
    e("s_load_dwordx8 s[20:27], s[0:1], 64")
    sTB = 67
    if tab:
        e("s_getpc_b64 s[%d:%d]" % (sEX, sEX + 1))
        e.label("L_pc0")
        e("s_lshl_b32 s%d, s2, 2" % sTB); e("s_add_u32 s%d, s%d, role_table-L_pc0" % (sTB, sTB))
        e("s_add_u32 s%d, s%d, s%d" % (sEX, sEX, sTB)); e("s_addc_u32 s%d, s%d, 0" % (sEX + 1, sEX + 1))
        e("s_load_dword s%d, s[%d:%d], 0" % (sTB, sEX, sEX + 1))
    if stamps or trace or calib:
        e("s_memrealtime s[%d:%d]" % (sST, sST + 1)); nst[0] = 1
        for k in range(2, 6): e("s_mov_b32 s%d, 0" % (sST + k))
    e("v_and_b32 v%d, 63, v0" % vL)
    e("v_lshrrev_b32 v%d, 6, v0" % T0)
    e("v_lshrrev_b32 v%d, 3, v%d" % (T1, vL))
    e("v_and_b32 v%d, 7, v%d" % (T2, vL))
    e("v_readfirstlane_b32 s%d, v%d" % (sW, T0))
    e("v_mul_u32_u24 v%d, 384, v%d" % (vKV, T1))
    e("v_lshl_add_u32 v%d, v%d, 4, v%d" % (vKV, T2, vKV))
    e("v_mul_u32_u24 v%d, 3072, v%d" % (T3, T0))
    e("v_add_u32 v%d, v%d, v%d" % (vKV, vKV, T3))
    e("v_lshl_add_u32 v%d, v%d, 3, v%d" % (vWQ, T0, T1))
    e("v_mul_u32_u24 v%d, 12288, v%d" % (vWQ, vWQ))
    e("v_lshl_add_u32 v%d, v%d, 4, v%d" % (vWQ, T2, vWQ))
    e("v_lshrrev_b32 v%d, 5, v%d" % (T3, vL))
    e("v_mul_u32_u24 v%d, 1280, v%d" % (T3, T3))
    e("v_and_b32 v%d, 31, v%d" % (T5, vL))
    e("v_lshl_add_u32 v%d, v%d, 4, v%d" % (T4, T5, T3))
    e("v_lshl_add_u32 v%d, v%d, 3, v%d" % (T5, T5, T3))
    e("v_lshrrev_b32 v%d, 4, v%d" % (T3, vL))
    e("v_lshl_add_u32 v%d, v%d, 2, v%d" % (vF1, T0, T3))
    e("v_mul_u32_u24 v%d, 3072, v%d" % (vF1, vF1))
    e("v_and_b32 v%d, 15, v%d" % (T1, vL))
    e("v_lshl_add_u32 v%d, v%d, 4, v%d" % (vF1, T1, vF1))
    e("s_and_b32 s%d, s2, 7" % sT0)
    e("s_lshr_b32 s%d, s2, 3" % sT1)
    e("s_lshr_b32 s%d, s%d, 3" % (sT2, sT1))
    e("s_lshl_b32 s%d, s%d, 2" % (sH, sT0))
    e("s_add_u32 s%d, s%d, s%d" % (sH, sH, sT2))
    e("s_and_b32 s%d, s%d, 7" % (sU, sT1))
    e("s_lshr_b32 s%d, s%d, 2" % (sB, sU))
    e("s_and_b32 s%d, s%d, 3" % (sT1, sT1))
    e("s_lshl_b32 s%d, s%d, 2" % (sP, sH))
    e("s_add_u32 s%d, s%d, s%d" % (sP, sP, sT1))
    e("s_lshl_b32 s%d, s%d, 7" % (sT0, sB))
    e("s_add_u32 s%d, s%d, s%d" % (sT0, sT0, sP))
    if ilv4:
        e("s_and_b32 s%d, s%d, 252" % (sT0, sT0))
        e("s_mul_i32 s%d, s%d, 12288" % (sT1, sT1)); e("v_add_u32 v%d, s%d, v%d" % (vKV, sT1, vKV))
    KVSZ = 393216 * (4 if ilv4 else 1); STEP = 12288 * (4 if ilv4 else 1)
    e("s_mul_i32 s%d, s%d, 393216" % (sT0, sT0))
    e("s_mov_b32 s%d, %d" % (sK + 2, KVSZ)); e("s_mov_b32 s%d, 0x20000" % (sK + 3))
    e("s_mov_b32 s%d, 2560" % (sX + 2)); e("s_mov_b32 s%d, 0x20000" % (sX + 3))
    sQH = 3
    if tab:
        e("s_waitcnt lgkmcnt(0)")
        e("s_and_b32 s%d, s%d, 31" % (sQH, sTB)); e("s_bfe_u32 s%d, s%d, 0x30005" % (sNT, sTB))
        e("s_mov_b32 s%d, s%d" % (sWQO, sTB))
    elif par:
        e("s_lshl_b32 s%d, s2, 3" % sT1); e("s_and_b32 s%d, s%d, 8" % (sT1, sT1)); e("s_add_u32 s%d, s%d, s%d" % (sT1, sT1, sU))
        e("s_cmp_ge_u32 s%d, 14" % sT1)
        e("s_cselect_b32 s%d, 2, 0" % sT2); e("s_sub_u32 s%d, s%d, s%d" % (sNT, sU, sT2))
        e("s_lshl_b32 s%d, s%d, 1" % (sT2, sT2)); e("s_sub_u32 s%d, s%d, s%d" % (sQH, sH, sT2))
        e("s_sub_u32 s%d, s%d, 4" % (sS1, sT1))
    else:
        e("s_mov_b32 s%d, s%d" % (sNT, sU)); e("s_mov_b32 s%d, s%d" % (sQH, sH))
    e("s_cmp_ge_u32 s%d, 3" % sNT); e("s_cselect_b32 s%d, 1, 0" % sKH)
    e("s_mul_i32 s%d, s%d, 3" % (sT1, sKH)); e("s_sub_u32 s%d, s%d, s%d" % (sNT, sNT, sT1))
    e("s_mul_i32 s%d, s%d, %d" % (sCI, sKH, ks * 12288))
    e("s_mul_i32 s%d, s%d, %d" % (sSO, sKH, (2 * ks - 640) * 12288)); e("s_sub_u32 s%d, %d, s%d" % (sSO, (ks - 1) * 12288 + 128, sSO))
    e("s_mul_i32 s%d, s%d, 384" % (sT1, sQH)); e("s_add_u32 s%d, s%d, s%d" % (sCI, sCI, sT1))
    e("s_lshl_b32 s%d, s%d, 7" % (sT1, sNT)); e("s_add_u32 s%d, s%d, s%d" % (sCI, sCI, sT1))
    if tab:
        e("s_bfe_u32 s%d, s%d, 0x60008" % (sT1, sTB))
    elif par:
        e("s_bfe_u32 s%d, s2, 0x20001" % sT1); e("s_lshl_b32 s%d, s%d, 4" % (sT1, sT1))
        e("s_lshr_b32 s%d, s2, 6" % sT2); e("s_lshl_b32 s%d, s%d, 2" % (sT2, sT2))
        e("s_add_u32 s%d, s%d, s%d" % (sT1, sT1, sT2)); e("s_add_u32 s%d, s%d, s%d" % (sT1, sT1, sS1))
    else:
        e("s_lshl_b32 s%d, s%d, 1" % (sT1, sH)); e("s_add_u32 s%d, s%d, s%d" % (sT1, sT1, sU)); e("s_sub_u32 s%d, s%d, 6" % (sT1, sT1))
    e("s_and_b32 s%d, s%d, 63" % (sT1, sT1))
    e("s_mul_i32 s%d, s%d, 43" % (sKR, sT1)); e("s_lshr_b32 s%d, s%d, 9" % (sKR, sKR))
    e("s_mul_i32 s%d, s%d, 12" % (sT2, sKR)); e("s_sub_u32 s%d, s%d, s%d" % (sFS, sT1, sT2))
    e("s_cmp_lt_u32 s%d, 60" % sT1); e("s_cselect_b32 s%d, %d, 0" % (sFACT, 127 * 3072 + 256))
    e("s_min_u32 s%d, s%d, 4" % (sKR, sKR))
    e("s_mul_i32 s%d, s%d, %d" % (sCNT, sKR, 128 * 3072))
    e("s_lshl_b32 s%d, s%d, 8" % (sT2, sFS)); e("s_add_u32 s%d, s%d, s%d" % (sCNT, sCNT, sT2))
    e("s_mov_b32 s%d, 0x20000" % (sRE + 3)); e("s_mov_b32 s%d, 0x20000" % (sRO + 3))
    e("s_mov_b32 s%d, 786432" % sS2)
    if tab: e("s_bitcmp1_b32 s%d, 14" % sTB)
    elif par: e("s_cmp_lt_u32 s%d, 4" % sS1)
    else: e("s_cmp_ge_u32 s%d, 6" % sU)
    e("s_cselect_b32 s%d, s%d, s%d" % (sRE + 2, sFACT, sSO))
    e("s_cselect_b32 s%d, s%d, s%d" % (sRO + 2, sFACT, sSO))
    e("s_cselect_b32 s%d, 0, 393216" % sS1)
    e("s_cselect_b32 s%d, 49152, s%d" % (sS2, sS2))
    e("s_cselect_b32 s%d, s%d, s%d" % (sCI, sCNT, sCI))
    e("s_cselect_b64 vcc, -1, 0")
    e("s_waitcnt lgkmcnt(0)")
    if stamps and 'ka' in sel:
        e("s_memrealtime s[%d:%d]" % (sEX, sEX + 1)); e("s_waitcnt lgkmcnt(0)"); e("s_mov_b32 s%d, s%d" % (sST + nst[0], sEX)); nst[0] += 1
    e("s_cselect_b32 s%d, s16, s10" % sRE); e("s_cselect_b32 s%d, s17, s11" % (sRE + 1))
    e("s_cselect_b32 s%d, s18, s10" % sRO); e("s_cselect_b32 s%d, s19, s11" % (sRO + 1))
    e("s_mov_b32 s%d, s4" % sX); e("s_mov_b32 s%d, s5" % (sX + 1))
    e("v_cndmask_b32 v%d, v%d, v%d, vcc" % (vWQ, vWQ, vF1))
    e.vmem("buffer_load_dwordx4 %s, v%d, %s, 0 offen" % (vr(18), T4, sr(sX)), "x")
    e.vmem("buffer_load_dwordx4 %s, v%d, %s, 0 offen offset:512" % (vr(22), T4, sr(sX)), "x")
    e.vmem("buffer_load_dwordx2 %s, v%d, %s, 0 offen offset:1024" % (vr(26, 2), T5, sr(sX)), "x")
    e("s_add_u32 s%d, s%d, s%d" % (sRE, sRE, sCI)); e("s_addc_u32 s%d, s%d, 0" % (sRE + 1, sRE + 1))
    e("s_add_u32 s%d, s%d, s%d" % (sRO, sRO, sCI)); e("s_addc_u32 s%d, s%d, 0" % (sRO + 1, sRO + 1))
    e("s_add_u32 s%d, s6, s%d" % (sK, sT0)); e("s_addc_u32 s%d, s7, 0" % (sK + 1))
    e("s_add_u32 s%d, s8, s%d" % (sV, sT0)); e("s_addc_u32 s%d, s9, 0" % (sV + 1))

    ring = {}
    curwin = [0]
    def throttle(n=3):
        if wine and curwin[0] == -1:
            sk = e.newlab("thr")
            e("s_cmp_eq_u32 s%d, 0" % sTHR); e("s_cbranch_scc1 %s" % sk); e("s_waitcnt vmcnt(%d)" % (wine - n)); e.label(sk)
            return
        if curwin[0] and len(e.vm) + n > curwin[0]: e("s_waitcnt vmcnt(%d)" % (curwin[0] - n))
    def issue_kv(kind, g, rs):
        throttle()
        ring[(kind, g)] = rs
        srd = sK if kind == "K" else sV
        if ph:
            e("s_add_u32 s%d, s%d, %d" % (sSO, sROT, g)); e("s_and_b32 s%d, s%d, 31" % (sSO, sSO))
            if rev and (rev == 2 or kind == "V"): pass
            e("s_mul_i32 s%d, s%d, %d" % (sSO, sSO, STEP)); so = "s%d" % sSO
        elif g == 0: so = "0"
        else:
            e("s_mov_b32 s%d, %d" % (sSO, g * 12288)); so = "s%d" % sSO
        for t in range(3):
            e.vmem("buffer_load_dwordx4 %s, v%d, %s, %s offen offset:%d %s" % (reg_of(rs, t), vKV, sr(srd), so, t * 128, kvf), "%s%d" % (kind, g))
    def reg_of(rs, t):
        return ar(rs[1] + 4 * t) if isinstance(rs, tuple) else vr(rslot(rs, t))
    def issue_wo(n):
        throttle()
        last = None
        for t in range(3):
            z = 3 * n + t; i, seg = 2 * (z // 10) + (z & 1), (z % 10) >> 1
            if i == 0: so = "0"
            else:
                if last != i: e("s_mov_b32 s%d, %d" % (sSO, i * 5120))
                so = "s%d" % sSO
                last = i
            e.vmem("buffer_load_dwordx4 %s, v%d, %s, %s offen offset:%d %s" % (ar(4 * z), vWO, sr(sWO), so, seg * 256, wf), "O%d" % n)
    e("s_mov_b32 s%d, 0" % sCNT)
    for m in range(8):
        e.vmem("buffer_load_dwordx4 %s, v%d, %s, s%d offen %s" % (ar(8 * m), vWQ, sr(sRE), sCNT, qf), "R")
        e("s_add_u32 s%d, s%d, s%d" % (sSO, sCNT, sS1))
        e.vmem("buffer_load_dwordx4 %s, v%d, %s, s%d offen %s" % (ar(8 * m + 4), vWQ, sr(sRO), sSO, qf), "R")
        if m < 7: e("s_add_u32 s%d, s%d, s%d" % (sCNT, sCNT, sS2))
    stamp('rl')
    if cpf:
        e("s_getpc_b64 s[6:7]")
        e.label("L_pc")
        e("s_sub_u32 s6, s6, L_pc-%s_kernel" % NAME); e("s_subb_u32 s7, s7, 0")
        e("s_lshr_b32 s8, s2, 3"); e("s_lshl_b32 s8, s8, 2"); e("s_add_u32 s8, s8, s%d" % sW)
        e("s_mul_i32 s8, s8, %d" % (64 * cpf)); e("s_min_u32 s8, s8, L_end-%s_kernel-%d" % (NAME, 64 * cpf))
        e("s_add_u32 s6, s6, s8"); e("s_addc_u32 s7, s7, 0")
        for k in range(cpf): e("s_load_dword s8, s[6:7], %d" % (64 * k))
    e("s_add_u32 s%d, s26, %d" % (sEX, WS_EP)); e("s_addc_u32 s%d, s27, 0" % (sEX + 1))
    e("s_load_dword s%d, s[%d:%d], 0" % (sTAG, sEX, sEX + 1))
    if ph:
        aj, ab, ah, ax = ph
        e("s_bfe_u32 s%d, s2, 0x20003" % sT0); e("s_mul_i32 s%d, s%d, %d" % (sROT, sT0, aj))
        e("s_mul_i32 s%d, s%d, %d" % (sT0, sB, ab)); e("s_add_u32 s%d, s%d, s%d" % (sROT, sROT, sT0))
        e("s_lshr_b32 s%d, s2, 6" % sT0); e("s_mul_i32 s%d, s%d, %d" % (sT0, sT0, ah)); e("s_add_u32 s%d, s%d, s%d" % (sROT, sROT, sT0))
        e("s_and_b32 s%d, s2, 7" % sT0); e("s_mul_i32 s%d, s%d, %d" % (sT0, sT0, ax)); e("s_add_u32 s%d, s%d, s%d" % (sROT, sROT, sT0))
    e("s_mov_b32 s%d, %d" % (sV + 2, KVSZ)); e("s_mov_b32 s%d, 0x20000" % (sV + 3))
    e("s_mul_i32 s%d, s%d, 245760" % (sT0, sH))
    e("s_add_u32 s%d, s12, s%d" % (sWO, sT0)); e("s_addc_u32 s%d, s13, 0" % (sWO + 1))
    e("s_mov_b32 s%d, 245760" % (sWO + 2)); e("s_mov_b32 s%d, 0x20000" % (sWO + 3))
    e("s_mov_b32 s%d, s26" % sWS); e("s_mov_b32 s%d, s27" % (sWS + 1))
    e("s_mov_b32 s%d, %d" % (sWS + 2, WS_SIZE)); e("s_mov_b32 s%d, 0x20000" % (sWS + 3))
    e("s_mov_b32 s%d, s22" % sOUT); e("s_mov_b32 s%d, s23" % (sOUT + 1))
    e("s_mov_b32 s%d, 2560" % (sOUT + 2)); e("s_mov_b32 s%d, 0x20000" % (sOUT + 3))
    if tab:
        e("s_bfe_u32 s%d, s%d, 0x70010" % (sT0, sWQO))
        e("s_lshr_b32 s%d, s%d, 23" % (sTHR, sWQO))
    elif par == 2:
        e("s_bfe_u32 s%d, s2, 0x20001" % sT0); e("s_lshl_b32 s%d, s%d, 5" % (sT0, sT0)); e("s_lshr_b32 s%d, s2, 3" % sT1); e("s_add_u32 s%d, s%d, s%d" % (sT0, sT0, sT1))
    elif par == 3:
        pass
    else:
        e("s_lshl_b32 s%d, s%d, 2" % (sT0, sH)); e("s_add_u32 s%d, s%d, s%d" % (sT0, sT0, sU))
    e("s_mul_i32 s%d, s%d, 205" % (sRB, sT0)); e("s_lshr_b32 s%d, s%d, 10" % (sRB, sRB))
    e("s_mul_i32 s%d, s%d, 5" % (sT1, sRB)); e("s_sub_u32 s%d, s%d, s%d" % (sC5, sT0, sT1))
    if not tab:
        if par == 2: e("s_bitcmp0_b32 s2, 0")
        else: e("s_cmp_lt_u32 s%d, 4" % sU)
        e("s_cselect_b32 s%d, s%d, 255" % (sT0, sT0))
    e("s_cmp_lt_u32 s%d, 120" % sT0)
    e("s_cselect_b32 s%d, %d, 0" % (sWD + 2, 1536 * 1280))
    e("s_cselect_b32 s%d, %d, 0" % (sWSF + 2, WS_Y))
    e("s_cselect_b32 s%d, 1, 0" % sACT)
    e("s_mov_b32 s%d, s20" % sWD); e("s_mov_b32 s%d, s21" % (sWD + 1)); e("s_mov_b32 s%d, 0x20000" % (sWD + 3))
    e("s_mov_b32 s%d, s26" % sWSF); e("s_mov_b32 s%d, s27" % (sWSF + 1)); e("s_mov_b32 s%d, 0x20000" % (sWSF + 3))
    e("s_mov_b32 s%d, 0x00ff00ff" % sVAL); e("s_mov_b32 s%d, 0xff00ff00" % (sVAL + 1))
    e("v_mul_u32_u24 v%d, 1280, v%d" % (vWO, T3))
    e("v_lshl_add_u32 v%d, v%d, 4, v%d" % (vWO, T1, vWO))
    e("s_mul_i32 s%d, s%d, 61440" % (sT0, sW))
    e("v_add_u32 v%d, s%d, v%d" % (vWO, sT0, vWO))
    e("v_lshrrev_b32 v%d, 5, v%d" % (T0, vL))
    e("v_and_b32 v%d, 16, v%d" % (T3, vL))
    e("v_lshl_add_u32 v%d, v%d, 5, v%d" % (vP1O, T2, T3))
    e("v_mul_u32_u24 v%d, %d, v%d" % (vQA, PSTR, T0)); e("v_add_u32 v%d, v%d, v%d" % (vQA, vQA, vP1O))
    e("s_mul_i32 s%d, s%d, %d" % (sT0, sW, 2 * PSTR))
    e("v_add_u32 v%d, s%d, v%d" % (vQA, sT0, vQA))
    e("v_mul_u32_u24 v%d, %d, v%d" % (vF1, PS2, T0)); e("v_add_u32 v%d, v%d, v%d" % (vF1, vF1, vP1O))
    e("s_mul_i32 s%d, s%d, %d" % (sT0, sW, 2 * PS2))
    e("v_add_u32 v%d, s%d, v%d" % (vF1, sT0, vF1))
    e("v_lshlrev_b32 v%d, 9, v%d" % (vFA, T0)); e("v_lshl_add_u32 v%d, v%d, 5, v%d" % (vFA, T1, vFA))
    e("v_add_u32 v%d, v%d, v%d" % (vFA, vFA, T3))
    e("v_lshrrev_b32 v%d, 3, v0" % T0); e("v_lshlrev_b32 v%d, 14, v%d" % (T0, T0))
    e("v_lshl_add_u32 v%d, v%d, 4, v%d" % (T0, T2, T0))
    e("s_mul_i32 s%d, s%d, %d" % (sT0, sB, 20 * 16384))
    e("s_lshl_b32 s%d, s%d, 7" % (sT1, sP))
    e("s_add_u32 s%d, s%d, s%d" % (sT0, sT0, sT1)); e("s_add_u32 s%d, s%d, %d" % (sT0, sT0, WS_Y))
    e("v_cmp_gt_u32 vcc, %d, v0" % (80 if diag == 2 else 160))
    e("v_add_u32 v%d, s%d, v%d" % (T0, sT0, T0))
    e("v_mov_b32 v%d, %d" % (vPY, OOB))
    e("v_cndmask_b32 v%d, v%d, v%d, vcc" % (vPY, vPY, T0))
    e("s_mov_b32 s%d, 0xff" % sFF); e("s_mov_b32 s%d, 0x0c0c0400" % sSEL)
    e("v_and_b32 v%d, 1, v%d" % (T0, vL))
    e("v_lshlrev_b32 v%d, 4, v%d" % (T0, T0))
    e("v_mov_b32 v%d, 0xffff" % T1)
    e("v_lshlrev_b32 v%d, v%d, v%d" % (T0, T0, T1))
    e("v_bfe_u32 v%d, v%d, 1, 2" % (T1, vL))
    for r in range(4):
        e("v_cmp_eq_u32 vcc, %d, v%d" % (r, T1))
        e("s_nop 1")
        e("v_cndmask_b32 v%d, 0, v%d, vcc" % (vM + r, T0))
    kn = [0]
    def more_k(n):
        for _ in range(n):
            if kn[0] < RING: issue_kv("K", kn[0], kn[0]); trace_pt("ik%d" % kn[0]); kn[0] += 1
    more_k(k_pre)
    stamp('iss')
    e.wait_vm("x")
    stamp('x')
    X = 28
    for r in range(10):
        e("v_lshlrev_b32 v%d, 16, v%d" % (X + 2 * r, 18 + r))
        e("v_and_b32 v%d, 0xffff0000, v%d" % (X + 2 * r + 1, 18 + r))
    def half_allreduce(v, t, op="v_add_f32"):
        for pat in (X1, X2, HM, RM):
            e("s_nop 1")
            e("%s_dpp v%d, v%d, v%d %s %s" % (op, v, v, v, pat, DPP))
        e("v_mov_b32 v%d, v%d" % (t, v))
        e("s_nop 1")
        e("v_permlane16_swap_b32 v%d, v%d" % (v, t))
        e("s_nop 1")
        e("%s v%d, v%d, v%d" % (op, v, v, t))
    for r in range(4): e("v_add_f32 v%d, v%d, v%d" % (48 + r, X + r, X + 4 + r))
    for k in range(8, 20): e("v_add_f32 v%d, v%d, v%d" % (48 + k % 4, 48 + k % 4, X + k))
    e("v_add_f32 v48, v48, v49"); e("v_add_f32 v50, v50, v51"); e("v_add_f32 v48, v48, v50")
    half_allreduce(48, 49)
    more_k(k_l0)
    e("v_mul_f32 v48, %s, v48" % hx(f2u(1.0 / 640)))
    for k in range(20):
        e("v_sub_f32 v%d, v%d, v48" % (18 + k % 4, X + k))
        if k < 4: e("v_mul_f32 v%d, v%d, v%d" % (52 + k, 18 + k, 18 + k))
        else: e("v_fmac_f32 v%d, v%d, v%d" % (52 + k % 4, 18 + k % 4, 18 + k % 4))
    e("v_add_f32 v52, v52, v53"); e("v_add_f32 v54, v54, v55"); e("v_add_f32 v52, v52, v54")
    half_allreduce(52, 53)
    more_k(k_ln)
    e("v_mul_f32 v52, %s, v52" % hx(f2u(1.0 / 640)))
    e("v_cvt_pk_bf16_f32 v48, v48, v52")
    e("v_and_b32 v52, 0xffff0000, v48")
    e("v_lshlrev_b32 v48, 16, v48")
    e("v_add_f32 v52, %s, v52" % hx(f2u(1e-5)))
    e("v_cvt_pk_bf16_f32 v52, v52, v52")
    e("v_and_b32 v52, 0xffff0000, v52")
    e("v_sqrt_f32 v52, v52")
    e("s_nop 0")
    e("v_cvt_pk_bf16_f32 v52, v52, v52")
    e("v_and_b32 v52, 0xffff0000, v52")
    e("v_rcp_f32 v53, v52")
    for k in range(0, 20, 2):
        if k == 10: more_k(k_l2)
        a, b2 = X + k, X + k + 1
        e("v_sub_f32 v%d, v%d, v48" % (a, a)); e("v_sub_f32 v%d, v%d, v48" % (b2, b2))
        e("v_cvt_pk_bf16_f32 v18, v%d, v%d" % (a, b2))
        e("v_lshlrev_b32 v%d, 16, v18" % a); e("v_and_b32 v%d, 0xffff0000, v18" % b2)
        e("v_mul_f32 v19, v%d, v53" % a); e("v_mul_f32 v20, v%d, v53" % b2)
        e("v_fma_f32 v%d, -v19, v52, v%d" % (a, a)); e("v_fma_f32 v%d, -v20, v52, v%d" % (b2, b2))
        e("v_fmac_f32 v19, v%d, v53" % a); e("v_fmac_f32 v20, v%d, v53" % b2)
        e("v_cvt_pk_bf16_f32 v%d, v19, v19" % a); e("v_cvt_pk_bf16_f32 v%d, v20, v20" % b2)
    e("v_lshlrev_b32 v%d, 1, v%d" % (T4, T4)); e("v_lshlrev_b32 v%d, 1, v%d" % (T5, T5))
    e("ds_write_b128 v%d, %s offset:%d" % (T4, vr(X), L_XN))
    e("ds_write_b128 v%d, %s offset:%d" % (T4, vr(X + 4), L_XN + 16))
    e("ds_write_b128 v%d, %s offset:%d" % (T4, vr(X + 8), L_XN + 1024))
    e("ds_write_b128 v%d, %s offset:%d" % (T4, vr(X + 12), L_XN + 1024 + 16))
    e("ds_write_b128 v%d, %s offset:%d" % (T5, vr(X + 16), L_XN + 2048))
    e("v_mov_b32 v%d, %d" % (T4, L_CNT)); e("v_mov_b32 v%d, 0" % T5)
    e("s_waitcnt lgkmcnt(0)")
    e("s_add_u32 s%d, s%d, 1" % (sTAG, sTAG))
    e("s_and_b32 s%d, s%d, 0xff" % (sT0, sTAG)); e("s_mul_i32 s%d, s%d, 0x01010101" % (sT1, sT0))
    e("ds_write_b32 v%d, v%d" % (T4, T5))
    e("v_mov_b32 v%d, s%d" % (vTAG, sT0)); e("v_mov_b32 v%d, s%d" % (vTAG + 1, sT1))
    more_k(k_mid)
    stamp('ln')
    e("s_cmp_eq_u32 s%d, 0" % sS1); e("s_cbranch_scc1 L_frole")
    N0, N1 = ks // 32, (640 - ks) // 32
    e("s_mul_i32 s%d, s%d, %d" % (sT0, sKH, 4 * ks)); e("s_lshl_b32 s%d, s%d, 5" % (sT1, sW)); e("s_add_u32 s%d, s%d, s%d" % (sT0, sT0, sT1))
    e("v_lshrrev_b32 v%d, 3, v%d" % (T0, vL)); e("v_lshlrev_b32 v%d, 2, v%d" % (T1, T0))
    e("v_add_u32 v%d, s%d, v%d" % (T1, sT0, T1))
    for n in range(N0):
        e("ds_read_b32 v%d, v%d offset:%d" % (vS + 2 * n, T1, 128 * n))
        e("ds_read_b32 v%d, v%d offset:%d" % (vS + 2 * n + 1, T1, 128 * n + 2560))
        if n in (6, 9, 12): e("s_waitcnt lgkmcnt(8)")
    e("s_waitcnt lgkmcnt(0)")
    for n in range(N0):
        if n == N1:
            e("s_cmp_lg_u32 s%d, 0" % sKH); e("s_cbranch_scc1 L_qshort")
        afrag(vA0, vS + 2 * n); afrag(vA1, vS + 2 * n + 1)
        if n == 0: rwait = "s_waitcnt vmcnt(%d)" % min(e.behind("R"), 63); e(rwait)
        else: e("s_nop 0")
        mfma(vr(vACC), vr(vA0), ar(4 * n), "0" if n == 0 else vr(vACC))
        mfma(vr(vACC + 4), vr(vA1), ar(4 * n), "0" if n == 0 else vr(vACC + 4))
    e.label("L_qshort")
    mark0 = len(e.L); more_k(k_role); role_k = e.L[mark0:]
    e("v_and_b32 v%d, 31, v%d" % (T1, vL)); e("v_lshlrev_b32 v%d, 4, v%d" % (T1, T1))
    e("v_bfe_u32 v%d, v%d, 4, 1" % (T3, vL)); e("v_mul_u32_u24 v%d, 3072, v%d" % (T3, T3))
    e("v_and_b32 v%d, 15, v%d" % (T4, vL)); e("v_lshl_add_u32 v%d, v%d, 4, v%d" % (T3, T4, T3))
    e("v_lshrrev_b32 v%d, 5, v%d" % (T4, vL)); e("v_mul_u32_u24 v%d, 768, v%d" % (T4, T4)); e("v_add_u32 v%d, v%d, v%d" % (T3, T3, T4))
    e("s_mul_i32 s%d, s%d, 6144" % (sT0, sQH)); e("s_mul_i32 s%d, s%d, 1536" % (sT1, sKH)); e("s_add_u32 s%d, s%d, s%d" % (sT0, sT0, sT1))
    e("s_lshl_b32 s%d, s%d, 8" % (sT1, sNT)); e("s_add_u32 s%d, s%d, s%d" % (sT0, sT0, sT1))
    e("s_mov_b64 exec, %s" % sr(sVAL, 2))
    e("ds_write_b128 v%d, %s offset:%d" % (vF1, vr(vACC), L_Q1))
    e("ds_write_b128 v%d, %s offset:%d" % (vF1, vr(vACC + 4), L_Q1 + 256))
    e("s_mov_b64 exec, -1")
    e("s_waitcnt lgkmcnt(0)")
    e("s_barrier")
    e("s_cmp_lg_u32 s%d, 0" % sW); e("s_cbranch_scc1 L_rdone")
    for pp in range(8): e("ds_read_b128 %s, v%d offset:%d" % (vr(vS + 4 * pp), T1, L_Q1 + pp * PS2))
    e("s_waitcnt lgkmcnt(6)")
    for r in range(4): e("v_add_f32 v%d, v%d, v%d" % (18 + r, vS + r, vS + 4 + r))
    for pp in range(2, 8):
        e("s_waitcnt lgkmcnt(%d)" % (7 - pp))
        for r in range(4): e("v_add_f32 v%d, v%d, v%d" % (18 + r, 18 + r, vS + 4 * pp + r))
    e("s_mov_b32 exec_lo, 0")
    for r in range(4): untag(22 + r, 18 + r)
    for r in range(4): e("v_sub_f32 v%d, v%d, v%d" % (18 + r, 18 + r, 22 + r))
    e("s_mov_b64 exec, -1")
    for r in range(4): e("v_bfi_b32 v%d, s%d, v%d, v%d" % (18 + r, sFF, vTAG, 18 + r))
    e.vmem("buffer_store_dwordx4 v[18:21], v%d, %s, s%d offen %s" % (T3, sr(sWS), sT0, stf), counted=False)
    e("s_branch L_rdone")
    e.label("L_frole")
    e("v_bfe_u32 v%d, v%d, 3, 1" % (T0, vL)); e("v_mul_u32_u24 v%d, 2560, v%d" % (T0, T0))
    e("v_lshrrev_b32 v%d, 4, v%d" % (T3, vL)); e("v_lshl_add_u32 v%d, v%d, 2, v%d" % (T0, T3, T0))
    e("s_lshl_b32 s%d, s%d, 9" % (sT0, sKR)); e("s_lshl_b32 s%d, s%d, 4" % (sT1, sW)); e("s_add_u32 s%d, s%d, s%d" % (sT0, sT0, sT1))
    e("v_add_u32 v%d, s%d, v%d" % (T0, sT0, T0))
    for m in range(0, 8, 2): e("ds_read2_b32 v[%d:%d], v%d offset0:%d offset1:%d" % (vS + m, vS + m + 1, T0, 16 * m, 16 * m + 16))
    e("s_waitcnt lgkmcnt(0)")
    for m in range(8):
        A = vA0 if m % 2 == 0 else vA1
        afrag(A, vS + m)
        e("s_nop 0")
        if m == 0: e(rwait)
        else: e("s_nop 0")
        mfma(vr(vACC), vr(A), ar(8 * m), "0" if m == 0 else vr(vACC))
        mfma(vr(vACC + 4), vr(A), ar(8 * m + 4), "0" if m == 0 else vr(vACC + 4))
    e.L += role_k
    e("s_lshl_b32 s%d, s%d, 11" % (sT0, sW))
    e("v_add_u32 v%d, s%d, v%d" % (T0, sT0, vFA))
    e("v_bfe_u32 v%d, v0, 1, 2" % T2); e("v_lshlrev_b32 v%d, 9, v%d" % (T2, T2))
    e("v_bfe_u32 v%d, v0, 3, 4" % T3); e("v_lshl_add_u32 v%d, v%d, 5, v%d" % (T2, T3, T2))
    e("v_and_b32 v%d, 1, v0" % T4); e("v_lshl_add_u32 v%d, v%d, 4, v%d" % (T2, T4, T2))
    e("v_and_b32 v%d, 127, v0" % T3); e("v_lshlrev_b32 v%d, 4, v%d" % (T3, T3))
    e("s_mul_i32 s%d, s%d, 24576" % (sT0, sKR)); e("s_lshl_b32 s%d, s%d, 11" % (sT1, sFS))
    e("s_add_u32 s%d, s%d, s%d" % (sT0, sT0, sT1)); e("s_add_u32 s%d, s%d, %d" % (sT0, sT0, WS_P1))
    e("ds_write_b128 v%d, %s offset:%d" % (T0, vr(vACC), L_F1))
    e("ds_write_b128 v%d, %s offset:%d" % (T0, vr(vACC + 4), L_F1 + 1024))
    e("s_waitcnt lgkmcnt(0)")
    e("s_barrier")
    e("s_cmp_eq_u32 s%d, 0" % sFACT); e("s_cbranch_scc1 L_rdone")
    for pp in range(4): e("ds_read_b128 %s, v%d offset:%d" % (vr(vS + 4 * pp), T2, L_F1 + pp * 2048))
    e("s_waitcnt lgkmcnt(0)")
    for r in range(4): e("v_add_f32 v%d, v%d, v%d" % (18 + r, vS + r, vS + 4 + r))
    for pp in (2, 3):
        for r in range(4): e("v_add_f32 v%d, v%d, v%d" % (18 + r, 18 + r, vS + 4 * pp + r))
    if p1lo:
        lab = e.newlab("p1hi")
        e("s_cmp_lt_u32 s%d, 2" % sW); e("s_cbranch_scc1 %s" % lab)
        for r in range(4): untag(22 + r, 18 + r)
        for r in range(4): e("v_sub_f32 v%d, v%d, v%d" % (18 + r, 18 + r, 22 + r))
        e("s_add_u32 s%d, s%d, %d" % (sT0, sT0, P1_LO))
        e.label(lab)
        for r in range(4): e("v_bfi_b32 v%d, s%d, v%d, v%d" % (18 + r, sFF, vTAG, 18 + r))
    else:
        e("s_cmp_ge_u32 s%d, 2" % sW); e("s_cbranch_scc1 L_rdone")
        for r in range(4): tagit(18 + r, 18 + r)
    e.vmem("buffer_store_dwordx4 v[18:21], v%d, %s, s%d offen %s" % (T3, sr(sWS), sT0, stf), counted=False)
    e.label("L_rdone")
    stamp('q1')
    e("s_lshl_b32 s%d, s%d, 1" % (sT0, sH)); e("s_add_u32 s%d, s%d, s%d" % (sT0, sT0, sB)); e("s_mul_i32 s%d, s%d, 3072" % (sT0, sT0))
    e("s_mul_i32 s%d, s%d, 768" % (sT1, sW)); e("s_add_u32 s%d, s%d, s%d" % (sT0, sT0, sT1))
    e("v_lshlrev_b32 v%d, 4, v%d" % (T4, vL)); e("v_add_u32 v%d, s%d, v%d" % (vWQ, sT0, T4))
    vQC = vS
    def issue_qc(counted):
        e.vmem("buffer_load_dwordx4 %s, v%d, %s, 0 offen sc1" % (vr(vQC), vWQ, sr(sWS)), "QC", counted=counted)
    more_k(qc_after - kn[0])
    e("s_mov_b32 exec_hi, 0xffff")
    issue_qc(True)
    e("s_mov_b64 exec, -1")
    more_k(RING)
    for g in range(NE - ne_late): issue_kv("V", g, ('a', AVE + 12 * g)); trace_pt("iv%d" % g)
    for g in range(4, 32): e("v_mov_b32 v%d, 0" % (vS + g))
    e("s_mul_i32 s%d, s%d, 768" % (sT0, sW)); e("s_add_u32 s%d, s%d, %d" % (sT0, sT0, L_QC))
    e("v_lshlrev_b32 v%d, 3, v%d" % (T2, vL)); e("v_add_u32 v%d, s%d, v%d" % (T3, sT0, T4))
    e("v_and_b32 v%d, 7, v%d" % (T5, vL)); e("v_lshlrev_b32 v%d, 4, v%d" % (T5, T5))
    stamp('iss2')
    e.wait_vm("QC")
    e("s_mov_b32 exec_hi, 0xffff")
    poll("qc", [vQC], T0, T1, lambda: issue_qc(False))
    for r in range(4): untag(vQC + r, vQC + r)
    e("ds_write_b128 v%d, %s" % (T3, vr(vQC)))
    e("s_mov_b64 exec, -1")
    e("s_waitcnt lgkmcnt(0)")
    e("s_barrier")
    stamp('b1')
    e("ds_read_b128 %s, v%d offset:%d" % (vr(vQF), T4, L_QC))
    e("ds_read_b128 %s, v%d offset:%d" % (vr(vQF + 4), T4, L_QC + 768))
    e("ds_read_b128 %s, v%d offset:%d" % (vr(vQF + 8), T4, L_QC + 1536))
    e("ds_read_b128 %s, v%d offset:%d" % (vr(vA0), T4, L_QC + 2304))
    for g in range(4): e("v_mov_b32 v%d, 0" % (vS + g))
    for g in range(NE - ne_late, NE): issue_kv("V", g, ('a', AVE + 12 * g))
    e("s_waitcnt lgkmcnt(0)")
    for r in range(4): e("v_add_f32 v%d, v%d, v%d" % (vQF + r, vQF + r, vQF + 4 + r))
    for r in range(4): e("v_add_f32 v%d, v%d, v%d" % (vQF + 8 + r, vQF + 8 + r, vA0 + r))
    for r in range(4): e("v_add_f32 v%d, v%d, v%d" % (vQF + r, vQF + r, vQF + 8 + r))
    e("v_cvt_pk_bf16_f32 v%d, v%d, v%d" % (vQF, vQF, vQF + 1))
    e("v_cvt_pk_bf16_f32 v%d, v%d, v%d" % (vQF + 1, vQF + 2, vQF + 3))
    e("ds_write_b64 v%d, %s offset:%d" % (T2, vr(vQF, 2), L_QB))
    e("s_waitcnt lgkmcnt(0)")
    for t in range(3): e("ds_read_b128 %s, v%d offset:%d" % (vr(vQF + 4 * t), T5, L_QB + t * 128))
    e("s_waitcnt lgkmcnt(0)")

    vP1 = 10
    def issue_p1(counted):
        e.vmem("buffer_load_dwordx4 %s, v%d, %s, 0 offen sc1" % (vr(vP1), vP1O, sr(sWSF)), "P1", counted=counted)
        e.vmem("buffer_load_dwordx4 %s, v%d, %s, 0 offen sc1" % (vr(vP1 + 4), vF1, sr(sWSF)), "P1", counted=counted)
        if not p1lo: return
        e("s_mov_b32 s%d, %d" % (sSO, P1_LO))
        e.vmem("buffer_load_dwordx4 %s, v%d, %s, s%d offen sc1" % (vr(vP1 + 8), vP1O, sr(sWSF), sSO), "P1", counted=counted)
        e.vmem("buffer_load_dwordx4 %s, v%d, %s, s%d offen sc1" % (vr(vP1 + 12), vF1, sr(sWSF), sSO), "P1", counted=counted)
    def start_p1():
        e("s_lshl_b32 s%d, s%d, 2" % (sT0, sRB)); e("s_add_u32 s%d, s%d, s%d" % (sT0, sT0, sW))
        e("s_lshl_b32 s%d, s%d, 8" % (sT1, sT0)); e("s_add_u32 s%d, s%d, %d" % (sT1, sT1, WS_P1))
        e("v_and_b32 v%d, 15, v%d" % (vF1, vL)); e("v_lshlrev_b32 v%d, 4, v%d" % (vF1, vF1)); e("v_add_u32 v%d, s%d, v%d" % (vF1, sT1, vF1))
        e("v_lshrrev_b32 v%d, 4, v%d" % (vP1O, vL)); e("v_mul_u32_u24 v%d, 24576, v%d" % (vP1O, vP1O)); e("v_add_u32 v%d, v%d, v%d" % (vP1O, vP1O, vF1))
        e("v_add_u32 v%d, %d, v%d" % (vF1, 4 * 24576, vF1))
        issue_p1(True)
        e("s_mul_i32 s%d, s%d, 20480" % (sT1, sT0))
        e("s_lshl_b32 s%d, s%d, 8" % (sT2, sC5)); e("s_add_u32 s%d, s%d, s%d" % (sT1, sT1, sT2))
        e("s_mul_i32 s%d, s%d, 61440" % (sT2, sW))
        e("v_subrev_u32 v%d, s%d, v%d" % (T1, sT2, vWO))
        for i in range(4):
            e.vmem("buffer_load_dwordx4 %s, v%d, %s, s%d offen %s" % (ar(240 + 4 * i), T1, sr(sWD), sT1, ff), "WD")
            if i < 3: e("s_add_u32 s%d, s%d, 5120" % (sT1, sT1))
    def stage2():
        skip = e.newlab("nost2")
        e("s_cmp_eq_u32 s%d, 0" % sACT); e("s_cbranch_scc1 %s" % skip)
        e.wait_vm("WD")
        poll("p1", [vP1, vP1 + 4, vP1 + 8, vP1 + 12][:4 if p1lo else 2], T1, T2, lambda: issue_p1(False))
        for r in range(16 if p1lo else 8): untag(10 + r, 10 + r)
        if p1lo:
            for r in range(8): e("v_add_f32 v%d, v%d, v%d" % (10 + r, 10 + r, 18 + r))
        e("s_mov_b64 exec, 0xffff")
        for r in range(4): e("v_add_f32 v%d, v%d, v%d" % (10 + r, 10 + r, 14 + r))
        e("s_mov_b64 exec, -1")
        for sw in ("v_permlane16_swap_b32", "v_permlane32_swap_b32"):
            for r in range(4): e("v_mov_b32 v%d, v%d" % (14 + r, 10 + r))
            e("s_nop 0")
            for r in range(4): e("%s v%d, v%d" % (sw, 10 + r, 14 + r))
            e("s_nop 0")
            for r in range(4): e("v_add_f32 v%d, v%d, v%d" % (10 + r, 10 + r, 14 + r))
        e("v_cvt_pk_bf16_f32 v14, v10, v11"); e("v_cvt_pk_bf16_f32 v15, v12, v13")
        e("v_lshlrev_b32 v10, 16, v14"); e("v_and_b32 v11, 0xffff0000, v14")
        e("v_lshlrev_b32 v12, 16, v15"); e("v_and_b32 v13, 0xffff0000, v15")
        e("s_nop 0")
        for r in range(4): e("v_mov_b32_dpp v%d, v%d row_shl:4 %s" % (14 + r, 10 + r, DPP))
        for k in range(4): e("v_mul_f32 v%d, v%d, v%d" % (18 + k, 10 + k, 10 + k))
        for k in range(4): e("v_mul_f32 v%d, %s, v%d" % (18 + k, hx(f2u(0.044715)), 18 + k))
        for k in range(4): e("v_fma_f32 v%d, v%d, v%d, v%d" % (18 + k, 18 + k, 10 + k, 10 + k))
        for k in range(4): e("v_mul_f32 v%d, %s, v%d" % (18 + k, hx(f2u(-2.0 * LOG2E * 0.7978845608028654)), 18 + k))
        for k in range(4): e("v_exp_f32 v%d, v%d" % (18 + k, 18 + k))
        for k in range(4): e("v_add_f32 v%d, 1.0, v%d" % (18 + k, 18 + k))
        for k in range(4): e("v_rcp_f32 v%d, v%d" % (18 + k, 18 + k))
        for k in range(4): e("v_mul_f32 v%d, v%d, v%d" % (18 + k, 10 + k, 18 + k))
        e("v_cvt_pk_bf16_f32 v10, v18, v19"); e("v_cvt_pk_bf16_f32 v11, v20, v21")
        e("v_lshlrev_b32 v18, 16, v10"); e("v_and_b32 v19, 0xffff0000, v10")
        e("v_lshlrev_b32 v20, 16, v11"); e("v_and_b32 v21, 0xffff0000, v11")
        for k in range(4): e("v_mul_f32 v%d, v%d, v%d" % (18 + k, 18 + k, 14 + k))
        e("v_cvt_pk_bf16_f32 v28, v18, v19"); e("v_cvt_pk_bf16_f32 v29, v20, v21")
        e("v_bfe_u32 v18, v%d, 3, 1" % vL); e("v_lshlrev_b32 v18, 3, v18")
        for i, off in enumerate((0, 4, 32, 36)):
            e("ds_bpermute_b32 v%d, v18, v28 offset:%d" % (10 + i, off)); e("ds_bpermute_b32 v%d, v18, v29 offset:%d" % (14 + i, off))
        e("v_lshrrev_b32 v19, 4, v%d" % vL); e("v_mul_u32_u24 v19, 0x0202, v19"); e("v_add_u32 v19, 0x0100, v19")
        e("v_lshl_or_b32 v19, v19, 16, v19")
        e("s_waitcnt lgkmcnt(0)")
        for i in range(4): e("v_perm_b32 v%d, v%d, v%d, v19" % (10 + i, 14 + i, 10 + i))
        for i in range(4):
            A = 20 if i % 2 == 0 else 24
            afrag(A, 10 + i)
            e("s_nop 1")
            mfma(vr(16), vr(A), ar(240 + 4 * i), "0" if i == 0 else vr(16))
        e("s_lshl_b32 s%d, s%d, 10" % (sT0, sW))
        e("v_add_u32 v10, s%d, v%d" % (sT0, vFA))
        e("v_mov_b32 v11, %d" % L_CNT); e("v_mov_b32 v12, 1")
        e("s_nop 5")
        e("ds_write_b128 v10, %s offset:%d" % (vr(16), L_F2))
        e("s_waitcnt lgkmcnt(0)")
        e("s_mov_b64 exec, 1")
        e("ds_add_rtn_u32 v12, v11, v12")
        e("s_mov_b64 exec, -1")
        e("s_waitcnt lgkmcnt(0)")
        e("v_readfirstlane_b32 s%d, v12" % sT0)
        e("s_nop 3")
        e("s_cmp_lg_u32 s%d, 3" % sT0); e("s_cbranch_scc1 %s" % skip)
        e("v_lshlrev_b32 v28, 4, v%d" % vL)
        for pp in range(4): e("ds_read_b128 %s, v28 offset:%d" % (vr(10 + 4 * pp), L_F2 + pp * 1024))
        e("v_lshrrev_b32 v28, 3, v%d" % vL); e("v_mul_u32_u24 v28, 3072, v28")
        e("v_and_b32 v29, 7, v%d" % vL); e("v_lshl_add_u32 v28, v29, 4, v28")
        e("s_mul_i32 s%d, s%d, %d" % (sT0, sC5, 8 * 3072))
        e("s_lshl_b32 s%d, s%d, 7" % (sT1, sRB))
        e("s_add_u32 s%d, s%d, s%d" % (sT0, sT0, sT1)); e("s_add_u32 s%d, s%d, %d" % (sT0, sT0, WS_P2))
        e("s_waitcnt lgkmcnt(0)")
        for pp in range(1, 4):
            for r in range(4): e("v_add_f32 v%d, v%d, v%d" % (10 + r, 10 + r, 10 + 4 * pp + r))
        for r in range(4): tagit(10 + r, 10 + r)
        e.vmem("buffer_store_dwordx4 %s, v28, %s, s%d offen %s" % (vr(10), sr(sWSF), sT0, stf), counted=False)
        e("s_nop 1")
        e.label(skip)

    curwin[0] = -1 if wine else win
    if wine:
        e("s_and_b32 s%d, s2, 7" % sT0); e("s_lshr_b32 s%d, %d, s%d" % (sTHR, wmask, sT0)); e("s_and_b32 s%d, s%d, 1" % (sTHR, sTHR))
    sc = hx(f2u(192 ** -0.5))
    nwo = [0]
    NO1 = AVE // 12
    def finish_scores(g0):
        a, b2, t = vS + g0, vS + g0 + 1, T0
        for pat in (X1, X2, HM):
            e("v_add_f32_dpp v%d, v%d, v%d %s %s" % (a, a, a, pat, DPP))
            e("v_add_f32_dpp v%d, v%d, v%d %s %s" % (b2, b2, b2, pat, DPP))
            e("s_nop 0")
        e("v_cvt_pk_bf16_f32 v%d, v%d, v%d" % (t, a, b2))
        e("v_lshlrev_b32 v%d, 16, v%d" % (a, t)); e("v_and_b32 v%d, 0xffff0000, v%d" % (b2, t))
        e("v_mul_f32 v%d, %s, v%d" % (a, sc, a)); e("v_mul_f32 v%d, %s, v%d" % (b2, sc, b2))
        e("v_cvt_pk_bf16_f32 v%d, v%d, v%d" % (t, a, b2))
        e("v_lshlrev_b32 v%d, 16, v%d" % (a, t)); e("v_and_b32 v%d, 0xffff0000, v%d" % (b2, t))
        if g0 == 0: e("v_max_f32 v%d, v%d, v%d" % (vMW, a, b2))
        else: e("v_max3_f32 v%d, v%d, v%d, v%d" % (vMW, vMW, a, b2))
    def group_allreduce(v, t, op):
        e("s_nop 1")
        e("%s_dpp v%d, v%d, v%d %s %s" % (op, v, v, v, R8, DPP))
        e("v_mov_b32 v%d, v%d" % (t, v)); e("s_nop 1")
        e("v_permlane16_swap_b32 v%d, v%d" % (v, t)); e("s_nop 1")
        e("%s v%d, v%d, v%d" % (op, v, v, t))
        e("v_mov_b32 v%d, v%d" % (t, v)); e("s_nop 1")
        e("v_permlane32_swap_b32 v%d, v%d" % (v, t)); e("s_nop 1")
        e("%s v%d, v%d, v%d" % (op, v, v, t))
    l2e = hx(f2u(LOG2E))
    def exps(gs, m):
        for g in gs: e("v_sub_f32 v%d, v%d, v%d" % (vS + g, vS + g, m))
        for g in gs: e("v_mul_f32 v%d, %s, v%d" % (vS + g, l2e, vS + g))
        for g in gs: e("v_exp_f32 v%d, v%d" % (vS + g, vS + g))
    NEARLY = 28
    vM1, vL1 = T1, T2
    vn = [NE]
    for g in range(32):
        e.wait_vm("K%d" % g)
        stamp('k%d' % g)
        rs = ring[("K", g)]
        for t in range(3):
            for r in range(4):
                e("v_dot2c_f32_bf16 v%d, v%d, v%d" % (vS + g, rslot(rs, t) + r, vQF + 4 * t + r))
        if g + RING < 32: issue_kv("K", g + RING, rs)
        else: issue_kv("V", vn[0], rs); vn[0] += 1
        if nwo[0] < NO1 and g >= ostart and (g - ostart) % ostep == 0:
            issue_wo(nwo[0]); nwo[0] += 1
        if g == p1_g: start_p1()
        if g == st2_g: stage2()
        if g % 2 == 1 and 3 <= g < 31: finish_scores(g - 3)
        if g == 29:
            e("v_mov_b32 v%d, v%d" % (vM1, vMW))
            group_allreduce(vM1, T0, "v_max_f32")
            exps(range(0, 14), vM1)
        if g == 30:
            exps(range(14, 28), vM1)
            finish_scores(28)
            e("v_add_f32 v%d, v%d, v%d" % (vL1, vS, vS + 1)); e("v_add_f32 v%d, v%d, v%d" % (T0, vS + 2, vS + 3))
            for k in range(4, NEARLY, 2):
                e("v_add_f32 v%d, v%d, v%d" % (vL1, vL1, vS + k)); e("v_add_f32 v%d, v%d, v%d" % (T0, T0, vS + k + 1))
            e("v_add_f32 v%d, v%d, v%d" % (vL1, vL1, T0))
    finish_scores(30)
    group_allreduce(vMW, T0, "v_max_f32")
    vFAC, vLF = 41, 39
    e("v_sub_f32 v%d, v%d, v%d" % (vFAC, vM1, vMW)); e("v_mul_f32 v%d, %s, v%d" % (vFAC, l2e, vFAC)); e("v_exp_f32 v%d, v%d" % (vFAC, vFAC))
    exps(range(NEARLY, 32), vMW)
    stamp('b2')
    def wave_sum():
        e("v_mul_f32 v%d, v%d, v%d" % (vLW, vL1, vFAC))
        for k in range(NEARLY, 32): e("v_add_f32 v%d, v%d, v%d" % (vLW, vLW, vS + k))
        group_allreduce(vLW, T0, "v_add_f32")
        e("s_lshl_b32 s%d, s%d, 3" % (sT0, sW)); e("s_add_u32 s%d, s%d, %d" % (sT0, sT0, L_ML)); e("v_mov_b32 v%d, s%d" % (T0, sT0))
        e("ds_write_b64 v%d, v[%d:%d]" % (T0, vMW, vLW))
    def wg_exchange():
        e("v_bfe_u32 v%d, v%d, 1, 2" % (T0, vL)); e("v_lshlrev_b32 v%d, 3, v%d" % (T0, T0))
        e("s_waitcnt lgkmcnt(0)")
        e("s_barrier")
        e("ds_read_b64 v[30:31], v%d offset:%d" % (T0, L_ML))
        e("s_waitcnt lgkmcnt(0)")
        e("v_mov_b32 v32, v30")
        for pat in (X2, HM):
            e("s_nop 1"); e("v_max_f32_dpp v32, v32, v32 %s %s" % (pat, DPP))
        e("v_sub_f32 v33, v30, v32")
        e("v_mul_f32 v33, %s, v33" % l2e)
        e("v_exp_f32 v33, v33")
        e("s_nop 0")
        e("v_mul_f32 v30, v33, v31")
        for pat in (X2, HM):
            e("s_nop 1"); e("v_add_f32_dpp v30, v30, v30 %s %s" % (pat, DPP))
        e("v_rcp_f32 v31, v30")
        tagit(34, 32); tagit(35, 30); tagit(36, 32); tagit(37, 30)
        e("v_mul_f32 v%d, v33, v31" % vLF)
        e("s_lshl_b32 s%d, s%d, 7" % (sT0, sB)); e("s_add_u32 s%d, s%d, s%d" % (sT0, sT0, sP))
        e("s_lshl_b32 s%d, s%d, 7" % (sT0, sT0)); e("s_add_u32 s%d, s%d, %d" % (sWQO, sT0, WS_ML))
        e("v_mov_b32 v%d, v32" % vMW); e("v_mov_b32 v%d, v30" % vLW)
        e("v_lshlrev_b32 v%d, 4, v%d" % (vF1, vL))
        lab = e.newlab("noml")
        e("s_cmp_lg_u32 s%d, 3" % sW); e("s_cbranch_scc1 %s" % lab)
        e("s_mov_b64 exec, 0xff")
        e.vmem("buffer_store_dwordx4 %s, v%d, %s, s%d offen %s" % (vr(34), vF1, sr(sWS), sWQO, stf), counted=False)
        e("s_mov_b64 exec, -1")
        e.label(lab)
        e("s_and_b32 s%d, s%d, %d" % (sWQO, sWQO, ~511 & 0xffffffff))
        e("v_and_b32 v%d, 3, v%d" % (vF1, vL)); e("v_lshlrev_b32 v%d, 7, v%d" % (vF1, vF1))

    aY, aML, cF, cX, aOUT, aCO, aCR, cG = 42, 43, 44, 48, 49, 50, 51, 52
    def quad_reduce(q):
        e("s_nop 0")
        e("v_permlane32_swap_b32 v%d, v%d" % (q, q + 1)); e("v_permlane32_swap_b32 v%d, v%d" % (q + 2, q + 3)); e("s_nop 0")
        e("v_add_f32 v%d, v%d, v%d" % (q, q, q + 1)); e("v_add_f32 v%d, v%d, v%d" % (q + 2, q + 2, q + 3)); e("s_nop 1")
        e("v_permlane16_swap_b32 v%d, v%d" % (q, q + 2)); e("s_nop 0")
        e("v_add_f32 v%d, v%d, v%d" % (q, q, q + 2)); e("s_nop 1")
        e("v_add_f32_dpp v%d, v%d, v%d %s %s" % (q, q, q, R8, DPP))
    def ld_f(counted): e.vmem("buffer_load_dwordx4 %s, v%d, %s, 0 offen sc1" % (vr(cF), 53, sr(sWSF)), "CF", counted=counted)
    vWJ = 38
    def ld_sib(counted): e.vmem("buffer_load_dwordx4 %s, v%d, %s, s%d offen sc1" % (vr(30), vF1, sr(sWS), sWQO), "SIB", counted=counted)
    def split_weight():
        e.wait_vm("SIB")
        poll("sib", [30], 54, 55, lambda: ld_sib(False))
        untag(30, 30); untag(31, 31)
        e("v_mov_b32 v32, v30")
        for pat in (X1, X2):
            e("s_nop 1"); e("v_max_f32_dpp v32, v32, v32 %s %s" % (pat, DPP))
        e("v_sub_f32 v30, v30, v32"); e("v_sub_f32 v33, v%d, v32" % vMW)
        e("v_mul_f32 v30, %s, v30" % l2e); e("v_mul_f32 v33, %s, v33" % l2e)
        e("v_exp_f32 v30, v30"); e("v_exp_f32 v33, v33")
        e("v_add_u32 v32, 0x80, v%d" % vLW); untag(32, 32)
        e("v_mul_f32 v30, v30, v31"); e("v_mul_f32 v33, v33, v32")
        for pat in (X1, X2):
            e("s_nop 1"); e("v_add_f32_dpp v30, v30, v30 %s %s" % (pat, DPP))
        e("v_rcp_f32 v30, v30"); e("s_nop 0")
        e("v_mul_f32 v%d, v33, v30" % vWJ)
        e("v_mul_f32 v%d, v%d, v%d" % (vWJ, vWJ, vLF))
    def consumer_setup():
        if elect:
            e("s_mov_b32 s%d, %d" % (sWSF + 2, WS_SIZE))
        elif tab:
            e("s_and_b32 s%d, s%d, 63" % (sCI, sTHR))
            e("s_cmp_lt_u32 s%d, 40" % sCI)
            e("s_cselect_b32 s%d, 1, 0" % sCONS); e("s_cselect_b32 s%d, %d, 0" % (sWSF + 2, WS_SIZE))
        elif par:
            e("s_lshr_b32 s%d, s2, 6" % sT0); e("s_lshl_b32 s%d, s%d, 2" % (sT0, sT0))
            e("s_sub_u32 s%d, s%d, 4" % (sT1, sU)); e("s_add_u32 s%d, s%d, s%d" % (sT0, sT0, sT1))
            e("s_cmp_lt_u32 s%d, 4" % sT1); e("s_cselect_b32 s%d, s%d, 99" % (sT0, sT0))
            e("s_bitcmp1_b32 s2, 0"); e("s_cselect_b32 s%d, s%d, 99" % (sT0, sT0))
            e("s_bfe_u32 s%d, s2, 0x20001" % sT1); e("s_mul_i32 s%d, s%d, 10" % (sCI, sT1)); e("s_add_u32 s%d, s%d, s%d" % (sCI, sCI, sT0))
            e("s_cmp_lt_u32 s%d, 10" % sT0)
            e("s_cselect_b32 s%d, 1, 0" % sCONS); e("s_cselect_b32 s%d, %d, 0" % (sWSF + 2, WS_SIZE))
        elif lightc:
            e("s_lshr_b32 s%d, s2, 6" % sT0); e("s_lshl_b32 s%d, s%d, 1" % (sT0, sT0))
            e("s_sub_u32 s%d, s%d, 4" % (sT1, sU)); e("s_add_u32 s%d, s%d, s%d" % (sT0, sT0, sT1))
            e("s_cmp_lt_u32 s%d, 2" % sT1); e("s_cselect_b32 s%d, s%d, 99" % (sT0, sT0))
            e("s_and_b32 s%d, s2, 7" % sT1); e("s_mul_i32 s%d, s%d, 5" % (sCI, sT1)); e("s_add_u32 s%d, s%d, s%d" % (sCI, sCI, sT0))
            e("s_cmp_lt_u32 s%d, 5" % sT0)
            e("s_cselect_b32 s%d, 1, 0" % sCONS); e("s_cselect_b32 s%d, %d, 0" % (sWSF + 2, WS_SIZE))
        else:
            e("s_and_b32 s%d, s2, 1" % sT0); e("s_lshl_b32 s%d, s%d, 8" % (sT0, sT0)); e("s_add_u32 s%d, s%d, s2" % (sT0, sT0))
            e("s_cmp_lt_u32 s%d, 80" % sT0)
            e("s_cselect_b32 s%d, 1, 0" % sCONS); e("s_cselect_b32 s%d, %d, 0" % (sWSF + 2, WS_SIZE))
            e("s_lshr_b32 s%d, s2, 1" % sCI)
        e("s_cmp_ge_u32 s%d, 20" % sCI); e("s_cselect_b32 s%d, 1, 0" % sB)
        e("s_mul_i32 s%d, s%d, 20" % (sT0, sB)); e("s_sub_u32 s%d, s%d, s%d" % (sH, sCI, sT0))
        e("v_lshlrev_b32 v53, 4, v%d" % vL)
        e("s_lshl_b32 s%d, s%d, 14" % (sT0, sCI)); e("s_lshl_b32 s%d, s%d, 12" % (sT1, sW))
        e("s_add_u32 s%d, s%d, s%d" % (sT0, sT0, sT1)); e("s_add_u32 s%d, s%d, %d" % (sT0, sT0, WS_Y))
        e("v_add_u32 v%d, s%d, v53" % (aY, sT0))
        e("s_lshr_b32 s%d, s%d, 2" % (sT0, sH)); e("s_lshl_b32 s%d, s%d, 1" % (sT0, sT0)); e("s_add_u32 s%d, s%d, s%d" % (sT0, sT0, sB))
        e("s_lshl_b32 s%d, s%d, 2" % (sT0, sT0)); e("s_and_b32 s%d, s%d, 3" % (sT1, sH)); e("s_add_u32 s%d, s%d, s%d" % (sT0, sT0, sT1))
        e("s_mul_i32 s%d, s%d, 3072" % (sT0, sT0)); e("s_mul_i32 s%d, s%d, 768" % (sT1, sW))
        e("s_add_u32 s%d, s%d, s%d" % (sT0, sT0, sT1)); e("s_add_u32 s%d, s%d, %d" % (sT0, sT0, WS_P2))
        e("v_min_u32 v53, 752, v53"); e("v_add_u32 v53, s%d, v53" % sT0)
        e("v_lshrrev_b32 v%d, 3, v%d" % (aML, vL)); e("v_lshlrev_b32 v%d, 7, v%d" % (aML, aML))
        e("s_lshl_b32 s%d, s%d, 14" % (sT0, sB)); e("s_lshl_b32 s%d, s%d, 12" % (sT1, sW))
        e("s_add_u32 s%d, s%d, s%d" % (sT0, sT0, sT1)); e("s_add_u32 s%d, s%d, %d" % (sT0, sT0, WS_ML))
        e("v_add_u32 v%d, s%d, v%d" % (aML, sT0, aML))
        e("v_and_b32 v%d, 31, v%d" % (aCR, vL)); e("v_lshlrev_b32 v%d, 1, v%d" % (aOUT, aCR))
        e("s_lshl_b32 s%d, s%d, 6" % (sT0, sCI)); e("v_add_u32 v%d, s%d, v%d" % (aOUT, sT0, aOUT))
        e("v_lshlrev_b32 v%d, 2, v%d" % (aCR, aCR)); e("v_add_u32 v%d, %d, v%d" % (aCR, L_CO, aCR))
        ld_f(True)
        e.vmem("buffer_load_ushort v%d, v%d, %s, 0 offen" % (cX, aOUT, sr(sX)), "CF")
        e("v_and_b32 v%d, 7, v%d" % (aCO, vL)); e("v_lshlrev_b32 v%d, 4, v%d" % (aCO, aCO))
        e("v_bfe_u32 v%d, v%d, 4, 1" % (cG, vL)); e("v_lshl_add_u32 v%d, v%d, 3, v%d" % (aCO, cG, aCO))
        e("v_lshrrev_b32 v%d, 5, v%d" % (cG, vL)); e("v_lshl_add_u32 v%d, v%d, 2, v%d" % (aCO, cG, aCO))
        e("s_lshl_b32 s%d, s%d, 7" % (sT0, sW)); e("v_add_u32 v%d, s%d, v%d" % (aCO, sT0, aCO))
    def consumer_ffn():
        skip = e.newlab("nocf")
        if not elect: e("s_cmp_eq_u32 s%d, 0" % sCONS); e("s_cbranch_scc1 %s" % skip)
        e.wait_vm("CF")
        poll("cf", [cF], 54, 55, lambda: ld_f(False))
        for r in range(4): untag(cF + r, cF + r)
        e("s_mov_b32 exec_lo, 0"); e("s_mov_b32 exec_hi, 0xffff0000")
        for r in range(4): e("v_mov_b32 v%d, 0" % (cF + r))
        e("s_mov_b64 exec, -1")
        e("v_lshlrev_b32 v%d, 16, v%d" % (cX, cX))
        quad_reduce(cF)
        e("ds_write_b32 v%d, v%d offset:%d" % (aCO, cF, L_CF))
        e.label(skip)

    order = list(range(32))
    if vilv:
        order = [x for k in range(NE) for x in (NE + k, k)] + list(range(2 * NE, 32))
    for g, vg in enumerate(order):
        A = vA0 if g % 2 == 0 else vA1
        if vg < NEARLY: e("v_mul_f32 v%d, v%d, v%d" % (vS + vg, vS + vg, vFAC))
        e("v_cvt_pk_bf16_f32 v%d, v%d, v%d" % (vS + vg, vS + vg, vS + vg))
        afrag(A, vS + vg)
        e("s_nop 0")
        e.wait_vm("V%d" % vg)
        stamp('v%d' % g)
        rs = ring[("V", vg)]
        for t in range(3):
            mfma(vr(vACC + 4 * t), vr(A), reg_of(rs, t), "0" if g == 0 else vr(vACC + 4 * t))
        if g == cf_g: ld_sib(True); consumer_setup()
        if not isinstance(rs, tuple) and vn[0] < 32:
            issue_kv("V", vn[0], rs); vn[0] += 1
        if nwo[0] < 20 and (nwo[0] < NO1 or (nwo[0] - NO1) in order[:g + 1]):
            issue_wo(nwo[0]); nwo[0] += 1
        if g == 0: wave_sum()
        if g == ex_g: wg_exchange()
        if g == 24:
            free = sorted(ring[("V", k)] for k in range(19, 24))
            y0 = [k for k in free if k + 1 in free][0]
            vY = rslot(y0, 0)
            for r in range(20): e("v_mov_b32 v%d, 0" % (vY + r))
            e("v_and_b32 v%d, 7, v%d" % (T0, vL)); e("v_mul_u32_u24 v%d, %d, v%d" % (T0, PSTR, T0))
            e("v_lshrrev_b32 v%d, 4, v%d" % (T1, vL)); e("v_lshl_add_u32 v%d, v%d, 3, v%d" % (T0, T1, T0))
            e("v_bfe_u32 v%d, v%d, 3, 1" % (T1, vL)); e("v_mul_u32_u24 v%d, 96, v%d" % (T1, T1))
            e("s_mul_i32 s%d, s%d, 192" % (sT0, sW))
            e("v_add3_u32 v%d, s%d, v%d, v%d" % (T0, sT0, T0, T1))
            e("s_mul_i32 s%d, s%d, 2560" % (sT0, sW))
            e("v_add_u32 v%d, s%d, v%d" % (T1, sT0, vFA))
            e("v_lshlrev_b32 v%d, 4, v0" % T2)
            e("v_bfe_u32 v%d, v%d, 2, 1" % (T4, vL)); e("v_mul_u32_u24 v%d, 0xffff, v%d" % (T4, T4))
            e("v_xor_b32 v%d, 0xffff, v%d" % (T3, T4))
            e("v_and_b32 v%d, 3, v%d" % (T5, vL)); e("v_add_u32 v%d, 1, v%d" % (vP1O, T5)); e("v_and_b32 v%d, 3, v%d" % (vP1O, vP1O))
            e("v_lshl_or_b32 v%d, v%d, 2, v%d" % (T5, vP1O, T5)); e("v_mul_u32_u24 v%d, 0x1111, v%d" % (T5, T5))
            quads = [rslot(k, t) for k in free if k not in (y0, y0 + 1) for t in range(3)]
            cML, cY = quads[0:4], quads[4:8]
            for q in cY: e("v_xor_b32 v%d, 0xff, v%d" % (q, vTAG))
        if g == cf2_g: split_weight(); consumer_ffn()
    assert nwo[0] == 20 and vn[0] == 32
    stamp('vend')
    e("s_mov_b64 exec, %s" % sr(sVAL, 2))
    e("s_nop 4")
    for t in range(3): e("ds_write_b128 v%d, %s offset:%d" % (vQA, vr(vACC + 4 * t), L_OP + t * 256))
    e("s_mov_b64 exec, -1")
    e("s_waitcnt lgkmcnt(0)")
    e("s_barrier")
    stamp('b3')
    mlds = [(cML[i], "buffer_load_dwordx4 %s, v%d, %s, 0 offen offset:%d %s" % (vr(cML[i]), aML, sr(sWS), 1024 * i, plf)) for i in range(4)]
    ylds = [(cY[i], "buffer_load_dwordx4 %s, v%d, %s, 0 offen offset:%d %s" % (vr(cY[i]), aY, sr(sWS), 1024 * i, plf)) for i in range(4)]
    def first_reads():
        lab = e.newlab("nofr")
        e("s_cmp_eq_u32 s%d, 0" % sCONS); e("s_cbranch_scc1 %s" % lab)
        for _, t in ylds: e.vmem(t, counted=False)
        e.label(lab)
    vO = 58
    for n in range(3): e("ds_read_b64 %s, v%d offset:%d" % (vr(vO + 2 * n, 2), T0, L_OP + 32 * n))
    if early0 == 1 and not elect: first_reads()
    e("s_waitcnt lgkmcnt(0)")
    for i in range(6): e("v_mul_f32 v%d, v%d, v%d" % (vO + i, vO + i, vWJ))
    for pat in (X1, X2, HM):
        for i in range(6): e("v_add_f32_dpp v%d, v%d, v%d %s %s" % (vO + i, vO + i, vO + i, pat, DPP))
    for i in range(6): e("v_cvt_pk_bf16_f32 v%d, v%d, v%d" % (vO + i, vO + i, vO + i))
    assert e.vm[-1] == "V31"
    def sfrag(dst, n, r):
        src = vO + 2 * (n % 3) + (r >> 1); m = T3 if r % 2 == 0 else T4
        if n >= 3: e("v_and_b32_dpp v%d, v%d, v%d %s %s" % (dst + r, src, m, R8, DPP))
        else: e("v_and_b32 v%d, v%d, v%d" % (dst + r, src, m))
    for r in range(4): sfrag(vA0, 0, r)
    for n in range(6):
        A = vA0 if n % 2 == 0 else vA1
        An = vA1 if n % 2 == 0 else vA0
        if n == 0: e("s_nop 1")
        for seg in range(5):
            e("v_smfmac_f32_16x16x64_bf16 %s, %s, %s, v%d" % (vr(vY + 4 * seg), vr(A), ar(8 * (5 * n + seg), 8), T5))
            if n < 5 and seg < 2:
                for r in (2 * seg, 2 * seg + 1): sfrag(An, n + 1, r)
    stamp('mf')
    e("s_mov_b32 exec_hi, 0")
    e("s_nop 3")
    for seg in range(5): e("ds_write_b128 v%d, %s offset:%d" % (T1, vr(vY + 4 * seg), L_YP + seg * 512))
    e("s_mov_b64 exec, -1")
    if early0 == 2 and not elect: first_reads()
    e("s_waitcnt lgkmcnt(0)")
    e("s_barrier")
    lab = e.newlab("noy")
    e("s_cmp_ge_u32 s%d, 3" % sW); e("s_cbranch_scc1 %s" % lab)
    for pp in range(4): e("ds_read_b128 %s, v%d offset:%d" % (vr(18 + 4 * pp), T2, L_YP + pp * 2560))
    e("s_waitcnt lgkmcnt(2)")
    for r in range(4): e("v_add_f32 v%d, v%d, v%d" % (18 + r, 18 + r, 22 + r))
    e("s_waitcnt lgkmcnt(0)")
    for r in range(4): e("v_add_f32 v%d, v%d, v%d" % (26 + r, 26 + r, 30 + r))
    for r in range(4): e("v_add_f32 v%d, v%d, v%d" % (64 + r, 18 + r, 26 + r))
    for r in range(4): tagit(64 + r, 64 + r)
    e.vmem("buffer_store_dwordx4 v[64:67], v%d, %s, 0 offen %s" % (vPY, sr(sWS), yf), counted=False)
    lab2 = e.newlab("pubd")
    e("s_branch %s" % lab2)
    e.label(lab)
    def gate_calc():
        e("ds_read2_b32 v[54:55], v%d offset0:128 offset1:160" % aCR); e("ds_read2_b32 v[56:57], v%d offset0:192 offset1:224" % aCR)
        e("s_waitcnt lgkmcnt(0)")
        e("v_add_f32 v54, v54, v55"); e("v_add_f32 v56, v56, v57"); e("v_add_f32 v54, v54, v56")
        e("v_cvt_pk_bf16_f32 v54, v54, v54"); e("v_and_b32 v54, 0xffff0000, v54")
        e("v_mul_f32 v55, %s, v54" % hx(f2u(-LOG2E)))
        e("v_exp_f32 v55, v55"); e("s_nop 0")
        e("v_add_f32 v55, 1.0, v55")
        e("v_rcp_f32 v55, v55"); e("s_nop 0")
        e("v_mul_f32 v55, v54, v55")
        e("v_cvt_pk_bf16_f32 v55, v55, v55"); e("v_and_b32 v%d, 0xffff0000, v55" % cG)
    if elect:
        e("s_waitcnt vmcnt(0)")
        e("v_mov_b32 v42, %d" % (L_CNT + 4))
        e("s_mov_b64 exec, 1")
        e("ds_write_b32 v42, v44")
        e("s_mov_b64 exec, -1")
        e("s_waitcnt lgkmcnt(0)")
    else: gate_calc()
    e.label(lab2)
    stamp('pub')
    if diag:
        e("s_waitcnt vmcnt(0)")
        stamp('ack')
    if nopoll: e("s_branch L_fin")
    if elect:
        e("v_mov_b32 v42, %d" % (L_CNT + 4))
        e("s_barrier")
        e("ds_read_b32 v44, v42")
        e("s_waitcnt lgkmcnt(0)")
        e("v_readfirstlane_b32 s%d, v44" % sCI)
        e("s_nop 3")
        e("s_cmp_eq_u32 s%d, 40" % sCI); e("s_cbranch_scc1 L_epoch")
        e("s_cmp_gt_u32 s%d, 40" % sCI); e("s_cbranch_scc1 L_fin")
        e.vm = []
        consumer_setup()
    else:
        if tab: e("s_bitcmp1_b32 s%d, 6" % sTHR)
        else: e("s_cmp_eq_u32 s2, %d" % (249 if par else 232 if lightc else 1))
        e("s_cbranch_scc1 L_epoch")
    e("s_cmp_eq_u32 s%d, 0" % sCONS); e("s_cbranch_scc1 L_fin")
    if not early0:
        for _, t in ylds: e(t)
    if wait0 is not None: e("s_waitcnt vmcnt(%d)" % wait0)
    stamp('rd0')
    mpoll("y", ylds, 20, 21, ysleep)
    stamp('yok')
    R0 = 36
    for r in range(4): untag(R0 + r, cY[0] + r)
    for r in range(4): untag(24 + r, cY[1] + r)
    for r in range(4): untag(28 + r, cY[2] + r)
    for r in range(4): untag(32 + r, cY[3] + r)
    for r in range(4): e("v_add_f32 v%d, v%d, v%d" % (R0 + r, R0 + r, 24 + r))
    for r in range(4): e("v_add_f32 v%d, v%d, v%d" % (28 + r, 28 + r, 32 + r))
    for r in range(4): e("v_add_f32 v%d, v%d, v%d" % (R0 + r, R0 + r, 28 + r))
    e("s_nop 0")
    quad_reduce(R0)
    e("ds_write_b32 v%d, v%d offset:%d" % (aCO, R0, L_CO))
    e("s_waitcnt lgkmcnt(0)")
    e("s_barrier")
    stamp('b5')
    e("s_cmp_lg_u32 s%d, 3" % sW); e("s_cbranch_scc1 L_fin")
    e("ds_read2_b32 v[54:55], v%d offset0:0 offset1:32" % aCR); e("ds_read2_b32 v[56:57], v%d offset0:64 offset1:96" % aCR)
    e("s_mov_b32 exec_hi, 0")
    e("s_waitcnt lgkmcnt(0)")
    e("v_add_f32 v54, v54, v55"); e("v_add_f32 v56, v56, v57"); e("v_add_f32 v54, v54, v56")
    e("v_cvt_pk_bf16_f32 v54, v54, v54"); e("v_and_b32 v54, 0xffff0000, v54")
    e("v_mul_f32 v54, v54, v%d" % cG)
    e("v_cvt_pk_bf16_f32 v54, v54, v54"); e("v_and_b32 v54, 0xffff0000, v54")
    e("v_add_f32 v54, v54, v%d" % cX)
    e("v_cvt_pk_bf16_f32 v54, v54, v54")
    e("buffer_store_short v54, v%d, %s, 0 offen %s" % (aOUT, sr(sOUT), of))
    e("s_mov_b64 exec, -1")
    e("s_branch L_fin")
    e.label("L_epoch")
    e("s_cmp_lg_u32 s%d, 0" % sW); e("s_cbranch_scc1 L_fin")
    e("v_lshlrev_b32 v13, 7, v%d" % vL); e("v_add_u32 v13, %d, v13" % WS_ML)
    def ld_all():
        for i in range(4):
            e("s_mov_b32 s%d, %d" % (sT0, 8192 * i))
            e("buffer_load_dwordx4 %s, v13, %s, s%d offen sc1" % (vr(16 + 4 * i), sr(sWS), sT0))
    ld_all()
    e("s_waitcnt vmcnt(0)")
    poll("ep", [16 + 4 * k for k in range(4)], 56, 57, ld_all, sleep=epsleep)
    e("v_mov_b32 v16, s%d" % sTAG)
    e("s_mov_b32 s%d, %d" % (sT0, WS_EP))
    e("s_mov_b64 exec, 1")
    e("buffer_store_dword v16, off, %s, s%d" % (sr(sWS), sT0))
    e("s_mov_b64 exec, -1")
    e.label("L_fin")
    if calib:
        e.label("L_cal")
        e("s_memrealtime s[98:99]"); e("s_waitcnt lgkmcnt(0)")
        e("s_sub_u32 s98, s98, s%d" % sST); e("s_cmp_lt_u32 s98, %d" % calib); e("s_cbranch_scc1 L_cal")
    if trace:
        trace_pt('fin')
        e("v_writelane_b32 v89, s%d, 63" % sST)
        e("s_add_u32 s92, s26, %d" % STAMP_OFF); e("s_addc_u32 s93, s27, 0"); e("s_mov_b32 s94, 0x100000"); e("s_mov_b32 s95, 0x20000")
        e("s_lshl_b32 s%d, s2, 2" % sT0); e("s_add_u32 s%d, s%d, s%d" % (sT0, sT0, sW)); e("s_lshl_b32 s%d, s%d, 9" % (sT0, sT0))
        e("v_lshlrev_b32 v10, 2, v%d" % vL); e("v_add_u32 v10, s%d, v10" % sT0)
        e("buffer_store_dword v88, v10, s[92:95], 0 offen")
        e("buffer_store_dword v89, v10, s[92:95], 0 offen offset:256")
        open("trace_names.txt", "w").write(" ".join(trnames))
    if stamps:
        stamp('fin')
        n = nst[0]
        e("s_add_u32 s92, s26, %d" % STAMP_OFF); e("s_addc_u32 s93, s27, 0"); e("s_mov_b32 s94, 0x100000"); e("s_mov_b32 s95, 0x20000")
        if allw:
            e("s_lshl_b32 s%d, s2, 2" % sT0); e("s_add_u32 s%d, s%d, s%d" % (sT0, sT0, sW)); e("s_mul_i32 s%d, s%d, %d" % (sT0, sT0, 8 * n))
        else:
            e("s_cmp_lg_u32 s%d, 0" % sW); e("s_cbranch_scc1 L_end")
            e("s_mul_i32 s%d, s2, %d" % (sT0, 8 * n))
        e("v_mov_b32 v10, s%d" % sT0); e("v_mov_b32 v13, 0")
        e("s_mov_b64 exec, 1")
        for k in range(n):
            e("v_mov_b32 v12, s%d" % (sST + k))
            e("buffer_store_dwordx2 v[12:13], v10, s[92:95], 0 offen offset:%d" % (8 * k))
            e("s_nop 1")
    e.label("L_end")
    e("s_endpgm")
    if tab:
        e.raw(".p2align 6"); e.raw(".type role_table,@object"); e.label("role_table")
        words = role_table(*tab)
        for i in range(0, 256, 8): e(".long " + ", ".join(hx(w) for w in words[i:i + 8]))
        e.raw(".size role_table, 1024")
    e.raw('.section .rodata,"a"'); e.raw(".p2align 6"); e.raw(".amdhsa_kernel %s_kernel" % NAME)
    for s in (".amdhsa_next_free_vgpr 512", ".amdhsa_next_free_sgpr 102", ".amdhsa_accum_offset 256",
              ".amdhsa_group_segment_fixed_size 0", ".amdhsa_kernarg_size 96", ".amdhsa_user_sgpr_count 2",
              ".amdhsa_user_sgpr_kernarg_segment_ptr 1", ".amdhsa_system_sgpr_workgroup_id_x 1"):
        e(s)
    e.raw(".end_amdhsa_kernel")
    return "\n".join(e.L) + "\n", nst[0]

if __name__ == "__main__":
    import argparse
    ap = argparse.ArgumentParser()
    ap.add_argument("out"); ap.add_argument("--stamps", action="store_true")
    ap.add_argument("--opt", default="")
    a = ap.parse_args()
    kw = eval("dict(%s)" % a.opt)
    s, n = gen(stamps=a.stamps, **kw)
    hdr = open("cdna_kernels/%s.s.ref" % NAME).read().split("; Override launch")[0]
    note = """; Fused decode step, one launch, 256 workgroups (one per CU) x 4 waves x 512 registers.  Generated by a hand-written script.
"""
    open(a.out, "w").write(hdr + note + s)
    print("wrote", a.out, "stamps", n)
```

```python
import struct, sys
NAME = "recurrent_scan__gqa_block_cached__geglu_ffn__decode"

def f2u(x): return struct.unpack("<I", struct.pack("<f", x))[0]
def hx(x): return "0x%08x" % (x & 0xffffffff)
LOG2E = 1.4426950408889634

WS_Q1 = 0
WS_P1 = 0x30000
P1_LO = 5 * 24576
WS_P2 = 0x6C000
WS_Y  = 0x8A000
WS_ML = 0x12A000
WS_EP = 0x132000
WS_SIZE = 0x133000
STAMP_OFF = 300 << 20
OOB = 0x7ffffff0

L_XN = 0
L_Q1 = 5120
PS2 = 528
L_QC = 9472
L_QB = 24064
L_F1 = 24576
L_F2 = 32768
L_ML = 36864
L_CNT = 36928
L_OP = 37120
PSTR = 784
L_YP = 43520
L_CO = 53760
L_CF = 54272
L_END = 54784

class Em:
    def __init__(self):
        self.L = []; self.vm = []; self.lab = 0
    def __call__(self, s): self.L.append("  " + s)
    def raw(self, s): self.L.append(s)
    def label(self, n): self.L.append(n + ":")
    def newlab(self, p):
        self.lab += 1; return "L_%s_%d" % (p, self.lab)
    def vmem(self, s, tag=None, counted=True):
        self.L.append("  " + s)
        if counted: self.vm.append(tag)
    def behind(self, tag):
        idx = max(i for i, t in enumerate(self.vm) if t == tag)
        return len(self.vm) - 1 - idx
    def wait_vm(self, tag):
        self("s_waitcnt vmcnt(%d)" % min(self.behind(tag), 63))

def vr(a, n=4): return "v[%d:%d]" % (a, a + n - 1)
def ar(a, n=4): return "a[%d:%d]" % (a, a + n - 1)
def sr(a, n=4): return "s[%d:%d]" % (a, a + n - 1)
DPP = "row_mask:0xf bank_mask:0xf"
X1, X2, HM, RM, R8 = "quad_perm:[1,0,3,2]", "quad_perm:[2,3,0,1]", "row_half_mirror", "row_mirror", "row_ror:8"

def role_table(nb, nsm, nf, ns, cons_x, ep_x):
    assert sum(nb) == 96 and sum(nsm) == 96 and sum(nf) == 60 and sum(ns) == 120 and all(a + b + c <= 32 for a, b, c in zip(nb, nsm, nf))
    W = [None] * 256
    big = [(h, qu) for h in range(32) for qu in range(3)]; small = [(h, qu) for h in range(32) for qu in range(3, 6)]
    fi = si = 0
    kind = {}
    for x in range(8):
        ids = [8 * i + x for i in range(32)]
        kinds = ["b"] * nb[x] + ["f"] * nf[x] + ["q"] * nsm[x]; kinds += ["n"] * (32 - len(kinds))
        kinds = [kinds[(k * 13 + 5) % 32] for k in range(32)]
        for wg, kd in zip(ids, kinds):
            kind[wg] = kd
            if kd == "b": qh, qu = big.pop(0); W[wg] = qh | qu << 5
            elif kd == "q": qh, qu = small.pop(0); W[wg] = qh | qu << 5
            elif kd == "f": W[wg] = fi << 8 | 1 << 14; fi += 1
            else: W[wg] = 63 << 8 | 1 << 14
        order = sorted(ids, key=lambda w: "nqbf".index(kind[w]))
        for k, wg in enumerate(order):
            if k < ns[x]: W[wg] |= si << 16; si += 1; kind[wg] += "s"
            else: W[wg] |= 127 << 16
    cand = [w for x in cons_x for w in range(x, 256, 8)]
    cand.sort(key=lambda w: (["n", "q", "ns", "qs", "b", "f", "bs", "fs"].index(kind[w]), w >> 3))
    cons = {w: i for i, w in enumerate(cand[:40])}
    ep = [w for w in range(ep_x, 256, 8) if w not in cons][-1]
    for w in range(256): W[w] |= cons.get(w, 63) << 23 | (1 << 29 if w == ep else 0)
    return W

def gen(stamps=False, kvf="nt", wf="", qf="", ff="", RING=14, NE=3, st2_g=8, p1_g=0, ml_g=31, allw=False,
        sel=('b1', 'b2', 'vend', 'pub', 'fin'), ostep=2, ostart=0, k_pre=0, k_mid=2, qc_after=12, win=0, tmo=0x10000,
        trace=False, xspec=True, mlsleep=2, epsleep=8, nopoll=False, nocheck=False, stf='sc1', yf='sc1', cpf=0, calib=0, ysleep=0, pdepth=6, p1lo=False, ph=(0, 3, 6, 0), vrot=0, cf_g=12, cf2_g=25, of='', elect=False, tk_g=27, early0=0, adapt=0, farsleep=16, yinA=True, wait0=None, mlfull=True, lightc=True, diag=0, plf='sc1', vilv=True, gaptest=0, ex_g=5, k_ln=1, k_role=1, ne_late=0, par=3, wine=0, wmask=0x55, tab=None, ilv4=True, rev=0, ks=320, k_l0=1, k_l2=1, calx=0, calk=-1):
    e = Em()
    vL, vKV, vWQ, vWO, vPY = 1, 2, 3, 4, 5
    vM = 6; vA0 = 10; vA1 = 14; vACC = 18; vQF = 30; vS = 42
    vMW, vLW, vTAG = 74, 75, 76
    vQA, vFA, vP1O, vF1 = 78, 79, 80, 81
    T0, T1, T2, T3, T4, T5 = 82, 83, 84, 85, 86, 87
    RB = 256 - 12 * RING
    assert RB >= 88
    def rslot(i, t): return RB + 12 * i + 4 * t
    AVE = 240 - 12 * NE
    sK, sV, sRE, sWO, sX, sRO, sWD, sWS, sOUT, sWSF = 28, 32, 36, 40, 44, 48, 56, 60, 64, 92
    sS1, sS2, sKH, sNT = 52, 53, 54, 55
    sTHR = 53
    sCONS = 52
    sTAG, sU, sACT, sFACT = 68, 69, 70, 71
    sW, sB, sH, sP, sFS, sKR, sC5, sRB, sSO, sT0, sT1, sT2 = 72, 73, 74, 75, 76, 77, 78, 79, 80, 81, 82, 83
    sEX = 84; sVAL = 86; sCNT = 88; sCI = 89; sFF = 90; sWQO = 91; sSEL = 14; sROT = 15; sMK = 28
    sST = 96
    nst = [0]
    def stamp(name):
        if trace: trace_pt(name); return
        if not stamps or name not in sel: return
        e("s_memrealtime s[%d:%d]" % (sEX, sEX + 1))
        e("s_waitcnt lgkmcnt(0)")
        e("s_mov_b32 s%d, s%d" % (sST + nst[0], sEX))
        nst[0] += 1
    tr = [0]; trnames = []
    def trace_pt(name):
        if not trace: return
        k = tr[0]; tr[0] += 1; trnames.append(name)
        e("s_memrealtime s[%d:%d]" % (sST + 2, sST + 3))
        e("s_waitcnt lgkmcnt(0)")
        e("v_writelane_b32 v%d, s%d, %d" % (88 + k // 64, sST + 2, k % 64))
    def mfma(d, a, b, c): e("v_mfma_f32_16x16x32_bf16 %s, %s, %s, %s" % (d, a, b, c))
    def afrag(dst, src):
        for r in range(4): e("v_and_b32 v%d, v%d, v%d" % (dst + r, src, vM + r))
    def tagit(dst, src):
        e("v_add_u32 v%d, 0x80, v%d" % (dst, src))
        e("v_bfi_b32 v%d, s%d, v%d, v%d" % (dst, sFF, vTAG, dst))
    def untag(dst, src): e("v_and_b32 v%d, 0xffffff00, v%d" % (dst, src))
    def piece_bad(p, t0, t1, dst):
        e("v_perm_b32 v%d, v%d, v%d, s%d" % (t0, p + 1, p, sSEL))
        e("v_perm_b32 v%d, v%d, v%d, s%d" % (t1, p + 3, p + 2, sSEL))
        e("v_lshl_or_b32 v%d, v%d, 16, v%d" % (t0, t1, t0))
        e("v_cmp_ne_u32 %s, v%d, v%d" % (dst, t0, vTAG + 1))
    def poll(name, pieces, t0, t1, reload, sleep=4):
        if nocheck: return
        lab = e.newlab(name + "ok"); lp = e.newlab(name + "loop")
        e("s_mov_b32 s%d, %d" % (sCNT, tmo))
        e.label(lp)
        for k, p in enumerate(pieces):
            piece_bad(p, t0, t1, "vcc" if k == 0 else sr(sEX, 2))
            if k: e("s_or_b64 vcc, vcc, %s" % sr(sEX, 2))
        e("s_nop 1")
        e("s_cbranch_vccz %s" % lab)
        e("s_sub_u32 s%d, s%d, 1" % (sCNT, sCNT)); e("s_cbranch_scc1 %s" % lab)
        if sleep: e("s_sleep %d" % sleep)
        reload()
        e("s_waitcnt vmcnt(0)")
        e("s_branch %s" % lp)
        e.label(lab)
    def mpoll(name, loads, t0, t1, sleep):
        lab = e.newlab(name + "ok"); lp = e.newlab(name + "loop")
        e("s_mov_b32 s%d, %d" % (sCNT, 16 * tmo))
        e.label(lp)
        for k, (p, _) in enumerate(loads): piece_bad(p, t0, t1, sr(sMK + 2 * k, 2))
        e("s_nop 0")
        e("s_or_b64 vcc, %s, %s" % (sr(sMK, 2), sr(sMK + 2, 2)))
        for k in range(2, len(loads)): e("s_or_b64 vcc, vcc, %s" % sr(sMK + 2 * k, 2))
        e("s_cbranch_scc0 %s" % lab)
        e("s_sub_u32 s%d, s%d, 1" % (sCNT, sCNT)); e("s_cbranch_scc1 %s" % lab)
        for k, (p, txt) in enumerate(loads):
            sk = e.newlab(name + "sk")
            e("s_mov_b64 exec, %s" % sr(sMK + 2 * k, 2))
            e("s_cbranch_execz %s" % sk)
            e(txt)
            e.label(sk)
        e("s_mov_b64 exec, -1")
        e("s_waitcnt vmcnt(%d)" % pdepth)
        if adapt:
            e("s_bcnt1_i32_b64 s%d, %s" % (sT0, sr(sMK, 2)))
            for k in range(1, len(loads)):
                e("s_bcnt1_i32_b64 s%d, %s" % (sT1, sr(sMK + 2 * k, 2))); e("s_add_u32 s%d, s%d, s%d" % (sT0, sT0, sT1))
            near = e.newlab("near")
            e("s_cmp_le_u32 s%d, %d" % (sT0, 8 * adapt)); e("s_cbranch_scc1 %s" % near)
            e("s_sleep %d" % farsleep)
            e.label(near)
        if sleep: e("s_sleep %d" % sleep)
        e("s_branch %s" % lp)
        e.label(lab)

    e.raw("; @launch grid=(256,1,1) block=(256,1,1) lds=%d" % L_END)
    e.raw('.amdgcn_target "amdgcn-amd-amdhsa--gfx950"')
    e.raw(".text"); e.raw(".globl %s_kernel" % NAME); e.raw(".p2align 8"); e.raw(".type %s_kernel,@function" % NAME)
    e.label("%s_kernel" % NAME)
    e("s_cmp_ge_u32 s2, 256"); e("s_cbranch_scc1 L_end")
    e("s_load_dwordx16 s[4:19], s[0:1], 0")
    e("s_load_dwordx8 s[20:27], s[0:1], 64")
    sTB = 67
    if tab:
        e("s_getpc_b64 s[%d:%d]" % (sEX, sEX + 1))
        e.label("L_pc0")
        e("s_lshl_b32 s%d, s2, 2" % sTB); e("s_add_u32 s%d, s%d, role_table-L_pc0" % (sTB, sTB))
        e("s_add_u32 s%d, s%d, s%d" % (sEX, sEX, sTB)); e("s_addc_u32 s%d, s%d, 0" % (sEX + 1, sEX + 1))
        e("s_load_dword s%d, s[%d:%d], 0" % (sTB, sEX, sEX + 1))
    if stamps or trace or calib:
        e("s_memrealtime s[%d:%d]" % (sST, sST + 1)); nst[0] = 1
        for k in range(2, 6): e("s_mov_b32 s%d, 0" % (sST + k))
    e("v_and_b32 v%d, 63, v0" % vL)
    e("v_lshrrev_b32 v%d, 6, v0" % T0)
    e("v_lshrrev_b32 v%d, 3, v%d" % (T1, vL))
    e("v_and_b32 v%d, 7, v%d" % (T2, vL))
    e("v_readfirstlane_b32 s%d, v%d" % (sW, T0))
    e("v_mul_u32_u24 v%d, 384, v%d" % (vKV, T1))
    e("v_lshl_add_u32 v%d, v%d, 4, v%d" % (vKV, T2, vKV))
    e("v_mul_u32_u24 v%d, 3072, v%d" % (T3, T0))
    e("v_add_u32 v%d, v%d, v%d" % (vKV, vKV, T3))
    e("v_lshl_add_u32 v%d, v%d, 3, v%d" % (vWQ, T0, T1))
    e("v_mul_u32_u24 v%d, 12288, v%d" % (vWQ, vWQ))
    e("v_lshl_add_u32 v%d, v%d, 4, v%d" % (vWQ, T2, vWQ))
    e("v_lshrrev_b32 v%d, 5, v%d" % (T3, vL))
    e("v_mul_u32_u24 v%d, 1280, v%d" % (T3, T3))
    e("v_and_b32 v%d, 31, v%d" % (T5, vL))
    e("v_lshl_add_u32 v%d, v%d, 4, v%d" % (T4, T5, T3))
    e("v_lshl_add_u32 v%d, v%d, 3, v%d" % (T5, T5, T3))
    e("v_lshrrev_b32 v%d, 4, v%d" % (T3, vL))
    e("v_lshl_add_u32 v%d, v%d, 2, v%d" % (vF1, T0, T3))
    e("v_mul_u32_u24 v%d, 3072, v%d" % (vF1, vF1))
    e("v_and_b32 v%d, 15, v%d" % (T1, vL))
    e("v_lshl_add_u32 v%d, v%d, 4, v%d" % (vF1, T1, vF1))
    e("s_and_b32 s%d, s2, 7" % sT0)
    e("s_lshr_b32 s%d, s2, 3" % sT1)
    e("s_lshr_b32 s%d, s%d, 3" % (sT2, sT1))
    e("s_lshl_b32 s%d, s%d, 2" % (sH, sT0))
    e("s_add_u32 s%d, s%d, s%d" % (sH, sH, sT2))
    e("s_and_b32 s%d, s%d, 7" % (sU, sT1))
    e("s_lshr_b32 s%d, s%d, 2" % (sB, sU))
    e("s_and_b32 s%d, s%d, 3" % (sT1, sT1))
    e("s_lshl_b32 s%d, s%d, 2" % (sP, sH))
    e("s_add_u32 s%d, s%d, s%d" % (sP, sP, sT1))
    e("s_lshl_b32 s%d, s%d, 7" % (sT0, sB))
    e("s_add_u32 s%d, s%d, s%d" % (sT0, sT0, sP))
    if ilv4:
        e("s_and_b32 s%d, s%d, 252" % (sT0, sT0))
        e("s_mul_i32 s%d, s%d, 12288" % (sT1, sT1)); e("v_add_u32 v%d, s%d, v%d" % (vKV, sT1, vKV))
    KVSZ = 393216 * (4 if ilv4 else 1); STEP = 12288 * (4 if ilv4 else 1)
    e("s_mul_i32 s%d, s%d, 393216" % (sT0, sT0))
    e("s_mov_b32 s%d, %d" % (sK + 2, KVSZ)); e("s_mov_b32 s%d, 0x20000" % (sK + 3))
    e("s_mov_b32 s%d, 2560" % (sX + 2)); e("s_mov_b32 s%d, 0x20000" % (sX + 3))
    sQH = 3
    if tab:
        e("s_waitcnt lgkmcnt(0)")
        e("s_and_b32 s%d, s%d, 31" % (sQH, sTB)); e("s_bfe_u32 s%d, s%d, 0x30005" % (sNT, sTB))
        e("s_mov_b32 s%d, s%d" % (sWQO, sTB))
    elif par:
        e("s_lshl_b32 s%d, s2, 3" % sT1); e("s_and_b32 s%d, s%d, 8" % (sT1, sT1)); e("s_add_u32 s%d, s%d, s%d" % (sT1, sT1, sU))
        e("s_cmp_ge_u32 s%d, 14" % sT1)
        e("s_cselect_b32 s%d, 2, 0" % sT2); e("s_sub_u32 s%d, s%d, s%d" % (sNT, sU, sT2))
        e("s_lshl_b32 s%d, s%d, 1" % (sT2, sT2)); e("s_sub_u32 s%d, s%d, s%d" % (sQH, sH, sT2))
        e("s_sub_u32 s%d, s%d, 4" % (sS1, sT1))
    else:
        e("s_mov_b32 s%d, s%d" % (sNT, sU)); e("s_mov_b32 s%d, s%d" % (sQH, sH))
    e("s_cmp_ge_u32 s%d, 3" % sNT); e("s_cselect_b32 s%d, 1, 0" % sKH)
    e("s_mul_i32 s%d, s%d, 3" % (sT1, sKH)); e("s_sub_u32 s%d, s%d, s%d" % (sNT, sNT, sT1))
    e("s_mul_i32 s%d, s%d, %d" % (sCI, sKH, ks * 12288))
    e("s_mul_i32 s%d, s%d, %d" % (sSO, sKH, (2 * ks - 640) * 12288)); e("s_sub_u32 s%d, %d, s%d" % (sSO, (ks - 1) * 12288 + 128, sSO))
    e("s_mul_i32 s%d, s%d, 384" % (sT1, sQH)); e("s_add_u32 s%d, s%d, s%d" % (sCI, sCI, sT1))
    e("s_lshl_b32 s%d, s%d, 7" % (sT1, sNT)); e("s_add_u32 s%d, s%d, s%d" % (sCI, sCI, sT1))
    if tab:
        e("s_bfe_u32 s%d, s%d, 0x60008" % (sT1, sTB))
    elif par:
        e("s_bfe_u32 s%d, s2, 0x20001" % sT1); e("s_lshl_b32 s%d, s%d, 4" % (sT1, sT1))
        e("s_lshr_b32 s%d, s2, 6" % sT2); e("s_lshl_b32 s%d, s%d, 2" % (sT2, sT2))
        e("s_add_u32 s%d, s%d, s%d" % (sT1, sT1, sT2)); e("s_add_u32 s%d, s%d, s%d" % (sT1, sT1, sS1))
    else:
        e("s_lshl_b32 s%d, s%d, 1" % (sT1, sH)); e("s_add_u32 s%d, s%d, s%d" % (sT1, sT1, sU)); e("s_sub_u32 s%d, s%d, 6" % (sT1, sT1))
    e("s_and_b32 s%d, s%d, 63" % (sT1, sT1))
    e("s_mul_i32 s%d, s%d, 43" % (sKR, sT1)); e("s_lshr_b32 s%d, s%d, 9" % (sKR, sKR))
    e("s_mul_i32 s%d, s%d, 12" % (sT2, sKR)); e("s_sub_u32 s%d, s%d, s%d" % (sFS, sT1, sT2))
    e("s_cmp_lt_u32 s%d, 60" % sT1); e("s_cselect_b32 s%d, %d, 0" % (sFACT, 127 * 3072 + 256))
    e("s_min_u32 s%d, s%d, 4" % (sKR, sKR))
    e("s_mul_i32 s%d, s%d, %d" % (sCNT, sKR, 128 * 3072))
    e("s_lshl_b32 s%d, s%d, 8" % (sT2, sFS)); e("s_add_u32 s%d, s%d, s%d" % (sCNT, sCNT, sT2))
    e("s_mov_b32 s%d, 0x20000" % (sRE + 3)); e("s_mov_b32 s%d, 0x20000" % (sRO + 3))
    e("s_mov_b32 s%d, 786432" % sS2)
    if tab: e("s_bitcmp1_b32 s%d, 14" % sTB)
    elif par: e("s_cmp_lt_u32 s%d, 4" % sS1)
    else: e("s_cmp_ge_u32 s%d, 6" % sU)
    e("s_cselect_b32 s%d, s%d, s%d" % (sRE + 2, sFACT, sSO))
    e("s_cselect_b32 s%d, s%d, s%d" % (sRO + 2, sFACT, sSO))
    e("s_cselect_b32 s%d, 0, 393216" % sS1)
    e("s_cselect_b32 s%d, 49152, s%d" % (sS2, sS2))
    e("s_cselect_b32 s%d, s%d, s%d" % (sCI, sCNT, sCI))
    e("s_cselect_b64 vcc, -1, 0")
    e("s_waitcnt lgkmcnt(0)")
    if stamps and 'ka' in sel:
        e("s_memrealtime s[%d:%d]" % (sEX, sEX + 1)); e("s_waitcnt lgkmcnt(0)"); e("s_mov_b32 s%d, s%d" % (sST + nst[0], sEX)); nst[0] += 1
    e("s_cselect_b32 s%d, s16, s10" % sRE); e("s_cselect_b32 s%d, s17, s11" % (sRE + 1))
    e("s_cselect_b32 s%d, s18, s10" % sRO); e("s_cselect_b32 s%d, s19, s11" % (sRO + 1))
    e("s_mov_b32 s%d, s4" % sX); e("s_mov_b32 s%d, s5" % (sX + 1))
    e("v_cndmask_b32 v%d, v%d, v%d, vcc" % (vWQ, vWQ, vF1))
    e.vmem("buffer_load_dwordx4 %s, v%d, %s, 0 offen" % (vr(18), T4, sr(sX)), "x")
    e.vmem("buffer_load_dwordx4 %s, v%d, %s, 0 offen offset:512" % (vr(22), T4, sr(sX)), "x")
    e.vmem("buffer_load_dwordx2 %s, v%d, %s, 0 offen offset:1024" % (vr(26, 2), T5, sr(sX)), "x")
    e("s_add_u32 s%d, s%d, s%d" % (sRE, sRE, sCI)); e("s_addc_u32 s%d, s%d, 0" % (sRE + 1, sRE + 1))
    e("s_add_u32 s%d, s%d, s%d" % (sRO, sRO, sCI)); e("s_addc_u32 s%d, s%d, 0" % (sRO + 1, sRO + 1))
    e("s_add_u32 s%d, s6, s%d" % (sK, sT0)); e("s_addc_u32 s%d, s7, 0" % (sK + 1))
    e("s_add_u32 s%d, s8, s%d" % (sV, sT0)); e("s_addc_u32 s%d, s9, 0" % (sV + 1))

    ring = {}
    curwin = [0]
    def throttle(n=3):
        if wine and curwin[0] == -1:
            sk = e.newlab("thr")
            e("s_cmp_eq_u32 s%d, 0" % sTHR); e("s_cbranch_scc1 %s" % sk); e("s_waitcnt vmcnt(%d)" % (wine - n)); e.label(sk)
            return
        if curwin[0] and len(e.vm) + n > curwin[0]: e("s_waitcnt vmcnt(%d)" % (curwin[0] - n))
    def issue_kv(kind, g, rs):
        throttle()
        ring[(kind, g)] = rs
        srd = sK if kind == "K" else sV
        if ph:
            e("s_add_u32 s%d, s%d, %d" % (sSO, sROT, g)); e("s_and_b32 s%d, s%d, 31" % (sSO, sSO))
            if rev and (rev == 2 or kind == "V"): pass
            e("s_mul_i32 s%d, s%d, %d" % (sSO, sSO, STEP)); so = "s%d" % sSO
        elif g == 0: so = "0"
        else:
            e("s_mov_b32 s%d, %d" % (sSO, g * 12288)); so = "s%d" % sSO
        for t in range(3):
            e.vmem("buffer_load_dwordx4 %s, v%d, %s, %s offen offset:%d %s" % (reg_of(rs, t), vKV, sr(srd), so, t * 128, kvf), "%s%d" % (kind, g))
    def reg_of(rs, t):
        return ar(rs[1] + 4 * t) if isinstance(rs, tuple) else vr(rslot(rs, t))
    def issue_wo(n):
        throttle()
        last = None
        for t in range(3):
            z = 3 * n + t; i, seg = 2 * (z // 10) + (z & 1), (z % 10) >> 1
            if i == 0: so = "0"
            else:
                if last != i: e("s_mov_b32 s%d, %d" % (sSO, i * 5120))
                so = "s%d" % sSO
                last = i
            e.vmem("buffer_load_dwordx4 %s, v%d, %s, %s offen offset:%d %s" % (ar(4 * z), vWO, sr(sWO), so, seg * 256, wf), "O%d" % n)
    e("s_mov_b32 s%d, 0" % sCNT)
    for m in range(8):
        e.vmem("buffer_load_dwordx4 %s, v%d, %s, s%d offen %s" % (ar(8 * m), vWQ, sr(sRE), sCNT, qf), "R")
        e("s_add_u32 s%d, s%d, s%d" % (sSO, sCNT, sS1))
        e.vmem("buffer_load_dwordx4 %s, v%d, %s, s%d offen %s" % (ar(8 * m + 4), vWQ, sr(sRO), sSO, qf), "R")
        if m < 7: e("s_add_u32 s%d, s%d, s%d" % (sCNT, sCNT, sS2))
    stamp('rl')
    if cpf:
        e("s_getpc_b64 s[6:7]")
        e.label("L_pc")
        e("s_sub_u32 s6, s6, L_pc-%s_kernel" % NAME); e("s_subb_u32 s7, s7, 0")
        e("s_lshr_b32 s8, s2, 3"); e("s_lshl_b32 s8, s8, 2"); e("s_add_u32 s8, s8, s%d" % sW)
        e("s_mul_i32 s8, s8, %d" % (64 * cpf)); e("s_min_u32 s8, s8, L_end-%s_kernel-%d" % (NAME, 64 * cpf))
        e("s_add_u32 s6, s6, s8"); e("s_addc_u32 s7, s7, 0")
        for k in range(cpf): e("s_load_dword s8, s[6:7], %d" % (64 * k))
    e("s_add_u32 s%d, s26, %d" % (sEX, WS_EP)); e("s_addc_u32 s%d, s27, 0" % (sEX + 1))
    e("s_load_dword s%d, s[%d:%d], 0" % (sTAG, sEX, sEX + 1))
    if ph:
        aj, ab, ah, ax = ph
        e("s_bfe_u32 s%d, s2, 0x20003" % sT0); e("s_mul_i32 s%d, s%d, %d" % (sROT, sT0, aj))
        e("s_mul_i32 s%d, s%d, %d" % (sT0, sB, ab)); e("s_add_u32 s%d, s%d, s%d" % (sROT, sROT, sT0))
        e("s_lshr_b32 s%d, s2, 6" % sT0); e("s_mul_i32 s%d, s%d, %d" % (sT0, sT0, ah)); e("s_add_u32 s%d, s%d, s%d" % (sROT, sROT, sT0))
        e("s_and_b32 s%d, s2, 7" % sT0); e("s_mul_i32 s%d, s%d, %d" % (sT0, sT0, ax)); e("s_add_u32 s%d, s%d, s%d" % (sROT, sROT, sT0))
    e("s_mov_b32 s%d, %d" % (sV + 2, KVSZ)); e("s_mov_b32 s%d, 0x20000" % (sV + 3))
    e("s_mul_i32 s%d, s%d, 245760" % (sT0, sH))
    e("s_add_u32 s%d, s12, s%d" % (sWO, sT0)); e("s_addc_u32 s%d, s13, 0" % (sWO + 1))
    e("s_mov_b32 s%d, 245760" % (sWO + 2)); e("s_mov_b32 s%d, 0x20000" % (sWO + 3))
    e("s_mov_b32 s%d, s26" % sWS); e("s_mov_b32 s%d, s27" % (sWS + 1))
    e("s_mov_b32 s%d, %d" % (sWS + 2, WS_SIZE)); e("s_mov_b32 s%d, 0x20000" % (sWS + 3))
    e("s_mov_b32 s%d, s22" % sOUT); e("s_mov_b32 s%d, s23" % (sOUT + 1))
    e("s_mov_b32 s%d, 2560" % (sOUT + 2)); e("s_mov_b32 s%d, 0x20000" % (sOUT + 3))
    if tab:
        e("s_bfe_u32 s%d, s%d, 0x70010" % (sT0, sWQO))
        e("s_lshr_b32 s%d, s%d, 23" % (sTHR, sWQO))
    elif par == 2:
        e("s_bfe_u32 s%d, s2, 0x20001" % sT0); e("s_lshl_b32 s%d, s%d, 5" % (sT0, sT0)); e("s_lshr_b32 s%d, s2, 3" % sT1); e("s_add_u32 s%d, s%d, s%d" % (sT0, sT0, sT1))
    elif par == 3:
        e("s_and_b32 s%d, s2, 3" % sT0); e("s_lshl_b32 s%d, s%d, 5" % (sT0, sT0)); e("s_lshr_b32 s%d, s2, 3" % sT1); e("s_add_u32 s%d, s%d, s%d" % (sT0, sT0, sT1))
    elif par == 4:
        e("s_and_b32 s%d, s2, 7" % sT0); e("s_lshl_b32 s%d, s%d, 2" % (sT0, sT0)); e("s_lshr_b32 s%d, 0x83888210, s%d" % (sT0, sT0)); e("s_and_b32 s%d, s%d, 15" % (sT0, sT0))
        e("s_lshl_b32 s%d, s%d, 5" % (sT0, sT0)); e("s_lshr_b32 s%d, s2, 3" % sT1); e("s_add_u32 s%d, s%d, s%d" % (sT0, sT0, sT1)); e("s_min_u32 s%d, s%d, 199" % (sT0, sT0))
    else:
        e("s_lshl_b32 s%d, s%d, 2" % (sT0, sH)); e("s_add_u32 s%d, s%d, s%d" % (sT0, sT0, sU))
    e("s_mul_i32 s%d, s%d, 205" % (sRB, sT0)); e("s_lshr_b32 s%d, s%d, 10" % (sRB, sRB))
    e("s_mul_i32 s%d, s%d, 5" % (sT1, sRB)); e("s_sub_u32 s%d, s%d, s%d" % (sC5, sT0, sT1))
    if not tab:
        if par == 2: e("s_bitcmp0_b32 s2, 0")
        elif par == 3: e("s_bitcmp0_b32 s2, 2")
        elif par == 4: e("s_cmp_eq_u32 s2, s2")
        else: e("s_cmp_lt_u32 s%d, 4" % sU)
        e("s_cselect_b32 s%d, s%d, 255" % (sT0, sT0))
    e("s_cmp_lt_u32 s%d, 120" % sT0)
    e("s_cselect_b32 s%d, %d, 0" % (sWD + 2, 1536 * 1280))
    e("s_cselect_b32 s%d, %d, 0" % (sWSF + 2, WS_Y))
    e("s_cselect_b32 s%d, 1, 0" % sACT)
    e("s_mov_b32 s%d, s20" % sWD); e("s_mov_b32 s%d, s21" % (sWD + 1)); e("s_mov_b32 s%d, 0x20000" % (sWD + 3))
    e("s_mov_b32 s%d, s26" % sWSF); e("s_mov_b32 s%d, s27" % (sWSF + 1)); e("s_mov_b32 s%d, 0x20000" % (sWSF + 3))
    e("s_mov_b32 s%d, 0x00ff00ff" % sVAL); e("s_mov_b32 s%d, 0xff00ff00" % (sVAL + 1))
    e("v_mul_u32_u24 v%d, 1280, v%d" % (vWO, T3))
    e("v_lshl_add_u32 v%d, v%d, 4, v%d" % (vWO, T1, vWO))
    e("s_mul_i32 s%d, s%d, 61440" % (sT0, sW))
    e("v_add_u32 v%d, s%d, v%d" % (vWO, sT0, vWO))
    e("v_lshrrev_b32 v%d, 5, v%d" % (T0, vL))
    e("v_and_b32 v%d, 16, v%d" % (T3, vL))
    e("v_lshl_add_u32 v%d, v%d, 5, v%d" % (vP1O, T2, T3))
    e("v_mul_u32_u24 v%d, %d, v%d" % (vQA, PSTR, T0)); e("v_add_u32 v%d, v%d, v%d" % (vQA, vQA, vP1O))
    e("s_mul_i32 s%d, s%d, %d" % (sT0, sW, 2 * PSTR))
    e("v_add_u32 v%d, s%d, v%d" % (vQA, sT0, vQA))
    e("v_mul_u32_u24 v%d, %d, v%d" % (vF1, PS2, T0)); e("v_add_u32 v%d, v%d, v%d" % (vF1, vF1, vP1O))
    e("s_mul_i32 s%d, s%d, %d" % (sT0, sW, 2 * PS2))
    e("v_add_u32 v%d, s%d, v%d" % (vF1, sT0, vF1))
    e("v_lshlrev_b32 v%d, 9, v%d" % (vFA, T0)); e("v_lshl_add_u32 v%d, v%d, 5, v%d" % (vFA, T1, vFA))
    e("v_add_u32 v%d, v%d, v%d" % (vFA, vFA, T3))
    e("v_lshrrev_b32 v%d, 3, v0" % T0); e("v_lshlrev_b32 v%d, 14, v%d" % (T0, T0))
    e("v_lshl_add_u32 v%d, v%d, 4, v%d" % (T0, T2, T0))
    e("s_mul_i32 s%d, s%d, %d" % (sT0, sB, 20 * 16384))
    e("s_lshl_b32 s%d, s%d, 7" % (sT1, sP))
    e("s_add_u32 s%d, s%d, s%d" % (sT0, sT0, sT1)); e("s_add_u32 s%d, s%d, %d" % (sT0, sT0, WS_Y))
    e("v_cmp_gt_u32 vcc, %d, v0" % (80 if diag == 2 else 160))
    e("v_add_u32 v%d, s%d, v%d" % (T0, sT0, T0))
    e("v_mov_b32 v%d, %d" % (vPY, OOB))
    e("v_cndmask_b32 v%d, v%d, v%d, vcc" % (vPY, vPY, T0))
    e("s_mov_b32 s%d, 0xff" % sFF); e("s_mov_b32 s%d, 0x0c0c0400" % sSEL)
    e("v_and_b32 v%d, 1, v%d" % (T0, vL))
    e("v_lshlrev_b32 v%d, 4, v%d" % (T0, T0))
    e("v_mov_b32 v%d, 0xffff" % T1)
    e("v_lshlrev_b32 v%d, v%d, v%d" % (T0, T0, T1))
    e("v_bfe_u32 v%d, v%d, 1, 2" % (T1, vL))
    for r in range(4):
        e("v_cmp_eq_u32 vcc, %d, v%d" % (r, T1))
        e("s_nop 1")
        e("v_cndmask_b32 v%d, 0, v%d, vcc" % (vM + r, T0))
    kn = [0]
    def more_k(n):
        for _ in range(n):
            if kn[0] < RING: issue_kv("K", kn[0], kn[0]); trace_pt("ik%d" % kn[0]); kn[0] += 1
    more_k(k_pre)
    stamp('iss')
    e.wait_vm("x")
    stamp('x')
    X = 28
    for r in range(10):
        e("v_lshlrev_b32 v%d, 16, v%d" % (X + 2 * r, 18 + r))
        e("v_and_b32 v%d, 0xffff0000, v%d" % (X + 2 * r + 1, 18 + r))
    def half_allreduce(v, t, op="v_add_f32"):
        for pat in (X1, X2, HM, RM):
            e("s_nop 1")
            e("%s_dpp v%d, v%d, v%d %s %s" % (op, v, v, v, pat, DPP))
        e("v_mov_b32 v%d, v%d" % (t, v))
        e("s_nop 1")
        e("v_permlane16_swap_b32 v%d, v%d" % (v, t))
        e("s_nop 1")
        e("%s v%d, v%d, v%d" % (op, v, v, t))
    for r in range(4): e("v_add_f32 v%d, v%d, v%d" % (48 + r, X + r, X + 4 + r))
    for k in range(8, 20): e("v_add_f32 v%d, v%d, v%d" % (48 + k % 4, 48 + k % 4, X + k))
    e("v_add_f32 v48, v48, v49"); e("v_add_f32 v50, v50, v51"); e("v_add_f32 v48, v48, v50")
    half_allreduce(48, 49)
    more_k(k_l0)
    e("v_mul_f32 v48, %s, v48" % hx(f2u(1.0 / 640)))
    for k in range(20):
        e("v_sub_f32 v%d, v%d, v48" % (18 + k % 4, X + k))
        if k < 4: e("v_mul_f32 v%d, v%d, v%d" % (52 + k, 18 + k, 18 + k))
        else: e("v_fmac_f32 v%d, v%d, v%d" % (52 + k % 4, 18 + k % 4, 18 + k % 4))
    e("v_add_f32 v52, v52, v53"); e("v_add_f32 v54, v54, v55"); e("v_add_f32 v52, v52, v54")
    half_allreduce(52, 53)
    more_k(k_ln)
    e("v_mul_f32 v52, %s, v52" % hx(f2u(1.0 / 640)))
    e("v_cvt_pk_bf16_f32 v48, v48, v52")
    e("v_and_b32 v52, 0xffff0000, v48")
    e("v_lshlrev_b32 v48, 16, v48")
    e("v_add_f32 v52, %s, v52" % hx(f2u(1e-5)))
    e("v_cvt_pk_bf16_f32 v52, v52, v52")
    e("v_and_b32 v52, 0xffff0000, v52")
    e("v_sqrt_f32 v52, v52")
    e("s_nop 0")
    e("v_cvt_pk_bf16_f32 v52, v52, v52")
    e("v_and_b32 v52, 0xffff0000, v52")
    e("v_rcp_f32 v53, v52")
    for k in range(0, 20, 2):
        if k == 10: more_k(k_l2)
        a, b2 = X + k, X + k + 1
        e("v_sub_f32 v%d, v%d, v48" % (a, a)); e("v_sub_f32 v%d, v%d, v48" % (b2, b2))
        e("v_cvt_pk_bf16_f32 v18, v%d, v%d" % (a, b2))
        e("v_lshlrev_b32 v%d, 16, v18" % a); e("v_and_b32 v%d, 0xffff0000, v18" % b2)
        e("v_mul_f32 v19, v%d, v53" % a); e("v_mul_f32 v20, v%d, v53" % b2)
        e("v_fma_f32 v%d, -v19, v52, v%d" % (a, a)); e("v_fma_f32 v%d, -v20, v52, v%d" % (b2, b2))
        e("v_fmac_f32 v19, v%d, v53" % a); e("v_fmac_f32 v20, v%d, v53" % b2)
        e("v_cvt_pk_bf16_f32 v%d, v19, v19" % a); e("v_cvt_pk_bf16_f32 v%d, v20, v20" % b2)
    e("v_lshlrev_b32 v%d, 1, v%d" % (T4, T4)); e("v_lshlrev_b32 v%d, 1, v%d" % (T5, T5))
    e("ds_write_b128 v%d, %s offset:%d" % (T4, vr(X), L_XN))
    e("ds_write_b128 v%d, %s offset:%d" % (T4, vr(X + 4), L_XN + 16))
    e("ds_write_b128 v%d, %s offset:%d" % (T4, vr(X + 8), L_XN + 1024))
    e("ds_write_b128 v%d, %s offset:%d" % (T4, vr(X + 12), L_XN + 1024 + 16))
    e("ds_write_b128 v%d, %s offset:%d" % (T5, vr(X + 16), L_XN + 2048))
    e("v_mov_b32 v%d, %d" % (T4, L_CNT)); e("v_mov_b32 v%d, 0" % T5)
    e("s_waitcnt lgkmcnt(0)")
    e("s_add_u32 s%d, s%d, 1" % (sTAG, sTAG))
    e("s_and_b32 s%d, s%d, 0xff" % (sT0, sTAG)); e("s_mul_i32 s%d, s%d, 0x01010101" % (sT1, sT0))
    e("ds_write_b32 v%d, v%d" % (T4, T5))
    e("v_mov_b32 v%d, s%d" % (vTAG, sT0)); e("v_mov_b32 v%d, s%d" % (vTAG + 1, sT1))
    more_k(k_mid)
    stamp('ln')
    e("s_cmp_eq_u32 s%d, 0" % sS1); e("s_cbranch_scc1 L_frole")
    N0, N1 = ks // 32, (640 - ks) // 32
    e("s_mul_i32 s%d, s%d, %d" % (sT0, sKH, 4 * ks)); e("s_lshl_b32 s%d, s%d, 5" % (sT1, sW)); e("s_add_u32 s%d, s%d, s%d" % (sT0, sT0, sT1))
    e("v_lshrrev_b32 v%d, 3, v%d" % (T0, vL)); e("v_lshlrev_b32 v%d, 2, v%d" % (T1, T0))
    e("v_add_u32 v%d, s%d, v%d" % (T1, sT0, T1))
    for n in range(N0):
        e("ds_read_b32 v%d, v%d offset:%d" % (vS + 2 * n, T1, 128 * n))
        e("ds_read_b32 v%d, v%d offset:%d" % (vS + 2 * n + 1, T1, 128 * n + 2560))
        if n in (6, 9, 12): e("s_waitcnt lgkmcnt(8)")
    e("s_waitcnt lgkmcnt(0)")
    for n in range(N0):
        if n == N1:
            e("s_cmp_lg_u32 s%d, 0" % sKH); e("s_cbranch_scc1 L_qshort")
        afrag(vA0, vS + 2 * n); afrag(vA1, vS + 2 * n + 1)
        if n == 0: rwait = "s_waitcnt vmcnt(%d)" % min(e.behind("R"), 63); e(rwait)
        else: e("s_nop 0")
        mfma(vr(vACC), vr(vA0), ar(4 * n), "0" if n == 0 else vr(vACC))
        mfma(vr(vACC + 4), vr(vA1), ar(4 * n), "0" if n == 0 else vr(vACC + 4))
    e.label("L_qshort")
    mark0 = len(e.L); more_k(k_role); role_k = e.L[mark0:]
    e("v_and_b32 v%d, 31, v%d" % (T1, vL)); e("v_lshlrev_b32 v%d, 4, v%d" % (T1, T1))
    e("v_bfe_u32 v%d, v%d, 4, 1" % (T3, vL)); e("v_mul_u32_u24 v%d, 3072, v%d" % (T3, T3))
    e("v_and_b32 v%d, 15, v%d" % (T4, vL)); e("v_lshl_add_u32 v%d, v%d, 4, v%d" % (T3, T4, T3))
    e("v_lshrrev_b32 v%d, 5, v%d" % (T4, vL)); e("v_mul_u32_u24 v%d, 768, v%d" % (T4, T4)); e("v_add_u32 v%d, v%d, v%d" % (T3, T3, T4))
    e("s_mul_i32 s%d, s%d, 6144" % (sT0, sQH)); e("s_mul_i32 s%d, s%d, 1536" % (sT1, sKH)); e("s_add_u32 s%d, s%d, s%d" % (sT0, sT0, sT1))
    e("s_lshl_b32 s%d, s%d, 8" % (sT1, sNT)); e("s_add_u32 s%d, s%d, s%d" % (sT0, sT0, sT1))
    e("s_mov_b64 exec, %s" % sr(sVAL, 2))
    e("ds_write_b128 v%d, %s offset:%d" % (vF1, vr(vACC), L_Q1))
    e("ds_write_b128 v%d, %s offset:%d" % (vF1, vr(vACC + 4), L_Q1 + 256))
    e("s_mov_b64 exec, -1")
    e("s_waitcnt lgkmcnt(0)")
    e("s_barrier")
    e("s_cmp_lg_u32 s%d, 0" % sW); e("s_cbranch_scc1 L_rdone")
    for pp in range(8): e("ds_read_b128 %s, v%d offset:%d" % (vr(vS + 4 * pp), T1, L_Q1 + pp * PS2))
    e("s_waitcnt lgkmcnt(6)")
    for r in range(4): e("v_add_f32 v%d, v%d, v%d" % (18 + r, vS + r, vS + 4 + r))
    for pp in range(2, 8):
        e("s_waitcnt lgkmcnt(%d)" % (7 - pp))
        for r in range(4): e("v_add_f32 v%d, v%d, v%d" % (18 + r, 18 + r, vS + 4 * pp + r))
    e("s_mov_b32 exec_lo, 0")
    for r in range(4): untag(22 + r, 18 + r)
    for r in range(4): e("v_sub_f32 v%d, v%d, v%d" % (18 + r, 18 + r, 22 + r))
    e("s_mov_b64 exec, -1")
    for r in range(4): e("v_bfi_b32 v%d, s%d, v%d, v%d" % (18 + r, sFF, vTAG, 18 + r))
    e.vmem("buffer_store_dwordx4 v[18:21], v%d, %s, s%d offen %s" % (T3, sr(sWS), sT0, stf), counted=False)
    e("s_branch L_rdone")
    e.label("L_frole")
    e("v_bfe_u32 v%d, v%d, 3, 1" % (T0, vL)); e("v_mul_u32_u24 v%d, 2560, v%d" % (T0, T0))
    e("v_lshrrev_b32 v%d, 4, v%d" % (T3, vL)); e("v_lshl_add_u32 v%d, v%d, 2, v%d" % (T0, T3, T0))
    e("s_lshl_b32 s%d, s%d, 9" % (sT0, sKR)); e("s_lshl_b32 s%d, s%d, 4" % (sT1, sW)); e("s_add_u32 s%d, s%d, s%d" % (sT0, sT0, sT1))
    e("v_add_u32 v%d, s%d, v%d" % (T0, sT0, T0))
    for m in range(0, 8, 2): e("ds_read2_b32 v[%d:%d], v%d offset0:%d offset1:%d" % (vS + m, vS + m + 1, T0, 16 * m, 16 * m + 16))
    e("s_waitcnt lgkmcnt(0)")
    for m in range(8):
        A = vA0 if m % 2 == 0 else vA1
        afrag(A, vS + m)
        e("s_nop 0")
        if m == 0: e(rwait)
        else: e("s_nop 0")
        mfma(vr(vACC), vr(A), ar(8 * m), "0" if m == 0 else vr(vACC))
        mfma(vr(vACC + 4), vr(A), ar(8 * m + 4), "0" if m == 0 else vr(vACC + 4))
    e.L += role_k
    e("s_lshl_b32 s%d, s%d, 11" % (sT0, sW))
    e("v_add_u32 v%d, s%d, v%d" % (T0, sT0, vFA))
    e("v_bfe_u32 v%d, v0, 1, 2" % T2); e("v_lshlrev_b32 v%d, 9, v%d" % (T2, T2))
    e("v_bfe_u32 v%d, v0, 3, 4" % T3); e("v_lshl_add_u32 v%d, v%d, 5, v%d" % (T2, T3, T2))
    e("v_and_b32 v%d, 1, v0" % T4); e("v_lshl_add_u32 v%d, v%d, 4, v%d" % (T2, T4, T2))
    e("v_and_b32 v%d, 127, v0" % T3); e("v_lshlrev_b32 v%d, 4, v%d" % (T3, T3))
    e("s_mul_i32 s%d, s%d, 24576" % (sT0, sKR)); e("s_lshl_b32 s%d, s%d, 11" % (sT1, sFS))
    e("s_add_u32 s%d, s%d, s%d" % (sT0, sT0, sT1)); e("s_add_u32 s%d, s%d, %d" % (sT0, sT0, WS_P1))
    e("ds_write_b128 v%d, %s offset:%d" % (T0, vr(vACC), L_F1))
    e("ds_write_b128 v%d, %s offset:%d" % (T0, vr(vACC + 4), L_F1 + 1024))
    e("s_waitcnt lgkmcnt(0)")
    e("s_barrier")
    e("s_cmp_eq_u32 s%d, 0" % sFACT); e("s_cbranch_scc1 L_rdone")
    for pp in range(4): e("ds_read_b128 %s, v%d offset:%d" % (vr(vS + 4 * pp), T2, L_F1 + pp * 2048))
    e("s_waitcnt lgkmcnt(0)")
    for r in range(4): e("v_add_f32 v%d, v%d, v%d" % (18 + r, vS + r, vS + 4 + r))
    for pp in (2, 3):
        for r in range(4): e("v_add_f32 v%d, v%d, v%d" % (18 + r, 18 + r, vS + 4 * pp + r))
    if p1lo:
        lab = e.newlab("p1hi")
        e("s_cmp_lt_u32 s%d, 2" % sW); e("s_cbranch_scc1 %s" % lab)
        for r in range(4): untag(22 + r, 18 + r)
        for r in range(4): e("v_sub_f32 v%d, v%d, v%d" % (18 + r, 18 + r, 22 + r))
        e("s_add_u32 s%d, s%d, %d" % (sT0, sT0, P1_LO))
        e.label(lab)
        for r in range(4): e("v_bfi_b32 v%d, s%d, v%d, v%d" % (18 + r, sFF, vTAG, 18 + r))
    else:
        e("s_cmp_ge_u32 s%d, 2" % sW); e("s_cbranch_scc1 L_rdone")
        for r in range(4): tagit(18 + r, 18 + r)
    e.vmem("buffer_store_dwordx4 v[18:21], v%d, %s, s%d offen %s" % (T3, sr(sWS), sT0, stf), counted=False)
    e.label("L_rdone")
    stamp('q1')
    e("s_lshl_b32 s%d, s%d, 1" % (sT0, sH)); e("s_add_u32 s%d, s%d, s%d" % (sT0, sT0, sB)); e("s_mul_i32 s%d, s%d, 3072" % (sT0, sT0))
    e("s_mul_i32 s%d, s%d, 768" % (sT1, sW)); e("s_add_u32 s%d, s%d, s%d" % (sT0, sT0, sT1))
    e("v_lshlrev_b32 v%d, 4, v%d" % (T4, vL)); e("v_add_u32 v%d, s%d, v%d" % (vWQ, sT0, T4))
    vQC = vS
    def issue_qc(counted):
        e.vmem("buffer_load_dwordx4 %s, v%d, %s, 0 offen sc1" % (vr(vQC), vWQ, sr(sWS)), "QC", counted=counted)
    more_k(qc_after - kn[0])
    e("s_mov_b32 exec_hi, 0xffff")
    issue_qc(True)
    e("s_mov_b64 exec, -1")
    more_k(RING)
    for g in range(NE - ne_late): issue_kv("V", g, ('a', AVE + 12 * g)); trace_pt("iv%d" % g)
    for g in range(4, 32): e("v_mov_b32 v%d, 0" % (vS + g))
    e("s_mul_i32 s%d, s%d, 768" % (sT0, sW)); e("s_add_u32 s%d, s%d, %d" % (sT0, sT0, L_QC))
    e("v_lshlrev_b32 v%d, 3, v%d" % (T2, vL)); e("v_add_u32 v%d, s%d, v%d" % (T3, sT0, T4))
    e("v_and_b32 v%d, 7, v%d" % (T5, vL)); e("v_lshlrev_b32 v%d, 4, v%d" % (T5, T5))
    stamp('iss2')
    e.wait_vm("QC")
    e("s_mov_b32 exec_hi, 0xffff")
    poll("qc", [vQC], T0, T1, lambda: issue_qc(False))
    for r in range(4): untag(vQC + r, vQC + r)
    e("ds_write_b128 v%d, %s" % (T3, vr(vQC)))
    e("s_mov_b64 exec, -1")
    e("s_waitcnt lgkmcnt(0)")
    e("s_barrier")
    stamp('b1')
    e("ds_read_b128 %s, v%d offset:%d" % (vr(vQF), T4, L_QC))
    e("ds_read_b128 %s, v%d offset:%d" % (vr(vQF + 4), T4, L_QC + 768))
    e("ds_read_b128 %s, v%d offset:%d" % (vr(vQF + 8), T4, L_QC + 1536))
    e("ds_read_b128 %s, v%d offset:%d" % (vr(vA0), T4, L_QC + 2304))
    for g in range(4): e("v_mov_b32 v%d, 0" % (vS + g))
    for g in range(NE - ne_late, NE): issue_kv("V", g, ('a', AVE + 12 * g))
    e("s_waitcnt lgkmcnt(0)")
    for r in range(4): e("v_add_f32 v%d, v%d, v%d" % (vQF + r, vQF + r, vQF + 4 + r))
    for r in range(4): e("v_add_f32 v%d, v%d, v%d" % (vQF + 8 + r, vQF + 8 + r, vA0 + r))
    for r in range(4): e("v_add_f32 v%d, v%d, v%d" % (vQF + r, vQF + r, vQF + 8 + r))
    e("v_cvt_pk_bf16_f32 v%d, v%d, v%d" % (vQF, vQF, vQF + 1))
    e("v_cvt_pk_bf16_f32 v%d, v%d, v%d" % (vQF + 1, vQF + 2, vQF + 3))
    e("ds_write_b64 v%d, %s offset:%d" % (T2, vr(vQF, 2), L_QB))
    e("s_waitcnt lgkmcnt(0)")
    for t in range(3): e("ds_read_b128 %s, v%d offset:%d" % (vr(vQF + 4 * t), T5, L_QB + t * 128))
    e("s_waitcnt lgkmcnt(0)")

    vP1 = 10
    def issue_p1(counted):
        e.vmem("buffer_load_dwordx4 %s, v%d, %s, 0 offen sc1" % (vr(vP1), vP1O, sr(sWSF)), "P1", counted=counted)
        e.vmem("buffer_load_dwordx4 %s, v%d, %s, 0 offen sc1" % (vr(vP1 + 4), vF1, sr(sWSF)), "P1", counted=counted)
        if not p1lo: return
        e("s_mov_b32 s%d, %d" % (sSO, P1_LO))
        e.vmem("buffer_load_dwordx4 %s, v%d, %s, s%d offen sc1" % (vr(vP1 + 8), vP1O, sr(sWSF), sSO), "P1", counted=counted)
        e.vmem("buffer_load_dwordx4 %s, v%d, %s, s%d offen sc1" % (vr(vP1 + 12), vF1, sr(sWSF), sSO), "P1", counted=counted)
    def start_p1():
        e("s_lshl_b32 s%d, s%d, 2" % (sT0, sRB)); e("s_add_u32 s%d, s%d, s%d" % (sT0, sT0, sW))
        e("s_lshl_b32 s%d, s%d, 8" % (sT1, sT0)); e("s_add_u32 s%d, s%d, %d" % (sT1, sT1, WS_P1))
        e("v_and_b32 v%d, 15, v%d" % (vF1, vL)); e("v_lshlrev_b32 v%d, 4, v%d" % (vF1, vF1)); e("v_add_u32 v%d, s%d, v%d" % (vF1, sT1, vF1))
        e("v_lshrrev_b32 v%d, 4, v%d" % (vP1O, vL)); e("v_mul_u32_u24 v%d, 24576, v%d" % (vP1O, vP1O)); e("v_add_u32 v%d, v%d, v%d" % (vP1O, vP1O, vF1))
        e("v_add_u32 v%d, %d, v%d" % (vF1, 4 * 24576, vF1))
        issue_p1(True)
        e("s_mul_i32 s%d, s%d, 20480" % (sT1, sT0))
        e("s_lshl_b32 s%d, s%d, 8" % (sT2, sC5)); e("s_add_u32 s%d, s%d, s%d" % (sT1, sT1, sT2))
        e("s_mul_i32 s%d, s%d, 61440" % (sT2, sW))
        e("v_subrev_u32 v%d, s%d, v%d" % (T1, sT2, vWO))
        for i in range(4):
            e.vmem("buffer_load_dwordx4 %s, v%d, %s, s%d offen %s" % (ar(240 + 4 * i), T1, sr(sWD), sT1, ff), "WD")
            if i < 3: e("s_add_u32 s%d, s%d, 5120" % (sT1, sT1))
    def stage2():
        skip = e.newlab("nost2")
        e("s_cmp_eq_u32 s%d, 0" % sACT); e("s_cbranch_scc1 %s" % skip)
        e.wait_vm("WD")
        poll("p1", [vP1, vP1 + 4, vP1 + 8, vP1 + 12][:4 if p1lo else 2], T1, T2, lambda: issue_p1(False))
        for r in range(16 if p1lo else 8): untag(10 + r, 10 + r)
        if p1lo:
            for r in range(8): e("v_add_f32 v%d, v%d, v%d" % (10 + r, 10 + r, 18 + r))
        e("s_mov_b64 exec, 0xffff")
        for r in range(4): e("v_add_f32 v%d, v%d, v%d" % (10 + r, 10 + r, 14 + r))
        e("s_mov_b64 exec, -1")
        for sw in ("v_permlane16_swap_b32", "v_permlane32_swap_b32"):
            for r in range(4): e("v_mov_b32 v%d, v%d" % (14 + r, 10 + r))
            e("s_nop 0")
            for r in range(4): e("%s v%d, v%d" % (sw, 10 + r, 14 + r))
            e("s_nop 0")
            for r in range(4): e("v_add_f32 v%d, v%d, v%d" % (10 + r, 10 + r, 14 + r))
        e("v_cvt_pk_bf16_f32 v14, v10, v11"); e("v_cvt_pk_bf16_f32 v15, v12, v13")
        e("v_lshlrev_b32 v10, 16, v14"); e("v_and_b32 v11, 0xffff0000, v14")
        e("v_lshlrev_b32 v12, 16, v15"); e("v_and_b32 v13, 0xffff0000, v15")
        e("s_nop 0")
        for r in range(4): e("v_mov_b32_dpp v%d, v%d row_shl:4 %s" % (14 + r, 10 + r, DPP))
        for k in range(4): e("v_mul_f32 v%d, v%d, v%d" % (18 + k, 10 + k, 10 + k))
        for k in range(4): e("v_mul_f32 v%d, %s, v%d" % (18 + k, hx(f2u(0.044715)), 18 + k))
        for k in range(4): e("v_fma_f32 v%d, v%d, v%d, v%d" % (18 + k, 18 + k, 10 + k, 10 + k))
        for k in range(4): e("v_mul_f32 v%d, %s, v%d" % (18 + k, hx(f2u(-2.0 * LOG2E * 0.7978845608028654)), 18 + k))
        for k in range(4): e("v_exp_f32 v%d, v%d" % (18 + k, 18 + k))
        for k in range(4): e("v_add_f32 v%d, 1.0, v%d" % (18 + k, 18 + k))
        for k in range(4): e("v_rcp_f32 v%d, v%d" % (18 + k, 18 + k))
        for k in range(4): e("v_mul_f32 v%d, v%d, v%d" % (18 + k, 10 + k, 18 + k))
        e("v_cvt_pk_bf16_f32 v10, v18, v19"); e("v_cvt_pk_bf16_f32 v11, v20, v21")
        e("v_lshlrev_b32 v18, 16, v10"); e("v_and_b32 v19, 0xffff0000, v10")
        e("v_lshlrev_b32 v20, 16, v11"); e("v_and_b32 v21, 0xffff0000, v11")
        for k in range(4): e("v_mul_f32 v%d, v%d, v%d" % (18 + k, 18 + k, 14 + k))
        e("v_cvt_pk_bf16_f32 v28, v18, v19"); e("v_cvt_pk_bf16_f32 v29, v20, v21")
        e("v_bfe_u32 v18, v%d, 3, 1" % vL); e("v_lshlrev_b32 v18, 3, v18")
        for i, off in enumerate((0, 4, 32, 36)):
            e("ds_bpermute_b32 v%d, v18, v28 offset:%d" % (10 + i, off)); e("ds_bpermute_b32 v%d, v18, v29 offset:%d" % (14 + i, off))
        e("v_lshrrev_b32 v19, 4, v%d" % vL); e("v_mul_u32_u24 v19, 0x0202, v19"); e("v_add_u32 v19, 0x0100, v19")
        e("v_lshl_or_b32 v19, v19, 16, v19")
        e("s_waitcnt lgkmcnt(0)")
        for i in range(4): e("v_perm_b32 v%d, v%d, v%d, v19" % (10 + i, 14 + i, 10 + i))
        for i in range(4):
            A = 20 if i % 2 == 0 else 24
            afrag(A, 10 + i)
            e("s_nop 1")
            mfma(vr(16), vr(A), ar(240 + 4 * i), "0" if i == 0 else vr(16))
        e("s_lshl_b32 s%d, s%d, 10" % (sT0, sW))
        e("v_add_u32 v10, s%d, v%d" % (sT0, vFA))
        e("v_mov_b32 v11, %d" % L_CNT); e("v_mov_b32 v12, 1")
        e("s_nop 5")
        e("ds_write_b128 v10, %s offset:%d" % (vr(16), L_F2))
        e("s_waitcnt lgkmcnt(0)")
        e("s_mov_b64 exec, 1")
        e("ds_add_rtn_u32 v12, v11, v12")
        e("s_mov_b64 exec, -1")
        e("s_waitcnt lgkmcnt(0)")
        e("v_readfirstlane_b32 s%d, v12" % sT0)
        e("s_nop 3")
        e("s_cmp_lg_u32 s%d, 3" % sT0); e("s_cbranch_scc1 %s" % skip)
        e("v_lshlrev_b32 v28, 4, v%d" % vL)
        for pp in range(4): e("ds_read_b128 %s, v28 offset:%d" % (vr(10 + 4 * pp), L_F2 + pp * 1024))
        e("v_lshrrev_b32 v28, 3, v%d" % vL); e("v_mul_u32_u24 v28, 3072, v28")
        e("v_and_b32 v29, 7, v%d" % vL); e("v_lshl_add_u32 v28, v29, 4, v28")
        e("s_mul_i32 s%d, s%d, %d" % (sT0, sC5, 8 * 3072))
        e("s_lshl_b32 s%d, s%d, 7" % (sT1, sRB))
        e("s_add_u32 s%d, s%d, s%d" % (sT0, sT0, sT1)); e("s_add_u32 s%d, s%d, %d" % (sT0, sT0, WS_P2))
        e("s_waitcnt lgkmcnt(0)")
        for pp in range(1, 4):
            for r in range(4): e("v_add_f32 v%d, v%d, v%d" % (10 + r, 10 + r, 10 + 4 * pp + r))
        for r in range(4): tagit(10 + r, 10 + r)
        e.vmem("buffer_store_dwordx4 %s, v28, %s, s%d offen %s" % (vr(10), sr(sWSF), sT0, stf), counted=False)
        e("s_nop 1")
        e.label(skip)

    curwin[0] = -1 if wine else win
    if wine:
        e("s_and_b32 s%d, s2, 7" % sT0); e("s_lshr_b32 s%d, %d, s%d" % (sTHR, wmask, sT0)); e("s_and_b32 s%d, s%d, 1" % (sTHR, sTHR))
    sc = hx(f2u(192 ** -0.5))
    nwo = [0]
    NO1 = AVE // 12
    def finish_scores(g0):
        a, b2, t = vS + g0, vS + g0 + 1, T0
        for pat in (X1, X2, HM):
            e("v_add_f32_dpp v%d, v%d, v%d %s %s" % (a, a, a, pat, DPP))
            e("v_add_f32_dpp v%d, v%d, v%d %s %s" % (b2, b2, b2, pat, DPP))
            e("s_nop 0")
        e("v_cvt_pk_bf16_f32 v%d, v%d, v%d" % (t, a, b2))
        e("v_lshlrev_b32 v%d, 16, v%d" % (a, t)); e("v_and_b32 v%d, 0xffff0000, v%d" % (b2, t))
        e("v_mul_f32 v%d, %s, v%d" % (a, sc, a)); e("v_mul_f32 v%d, %s, v%d" % (b2, sc, b2))
        e("v_cvt_pk_bf16_f32 v%d, v%d, v%d" % (t, a, b2))
        e("v_lshlrev_b32 v%d, 16, v%d" % (a, t)); e("v_and_b32 v%d, 0xffff0000, v%d" % (b2, t))
        if g0 == 0: e("v_max_f32 v%d, v%d, v%d" % (vMW, a, b2))
        else: e("v_max3_f32 v%d, v%d, v%d, v%d" % (vMW, vMW, a, b2))
    def group_allreduce(v, t, op):
        e("s_nop 1")
        e("%s_dpp v%d, v%d, v%d %s %s" % (op, v, v, v, R8, DPP))
        e("v_mov_b32 v%d, v%d" % (t, v)); e("s_nop 1")
        e("v_permlane16_swap_b32 v%d, v%d" % (v, t)); e("s_nop 1")
        e("%s v%d, v%d, v%d" % (op, v, v, t))
        e("v_mov_b32 v%d, v%d" % (t, v)); e("s_nop 1")
        e("v_permlane32_swap_b32 v%d, v%d" % (v, t)); e("s_nop 1")
        e("%s v%d, v%d, v%d" % (op, v, v, t))
    l2e = hx(f2u(LOG2E))
    def exps(gs, m):
        for g in gs: e("v_sub_f32 v%d, v%d, v%d" % (vS + g, vS + g, m))
        for g in gs: e("v_mul_f32 v%d, %s, v%d" % (vS + g, l2e, vS + g))
        for g in gs: e("v_exp_f32 v%d, v%d" % (vS + g, vS + g))
    NEARLY = 28
    vM1, vL1 = T1, T2
    vn = [NE]
    for g in range(32):
        e.wait_vm("K%d" % g)
        stamp('k%d' % g)
        rs = ring[("K", g)]
        for t in range(3):
            for r in range(4):
                e("v_dot2c_f32_bf16 v%d, v%d, v%d" % (vS + g, rslot(rs, t) + r, vQF + 4 * t + r))
        if g + RING < 32: issue_kv("K", g + RING, rs)
        else: issue_kv("V", vn[0], rs); vn[0] += 1
        if nwo[0] < NO1 and g >= ostart and (g - ostart) % ostep == 0:
            issue_wo(nwo[0]); nwo[0] += 1
        if g == p1_g: start_p1()
        if g == st2_g: stage2()
        if g % 2 == 1 and 3 <= g < 31: finish_scores(g - 3)
        if g == 29:
            e("v_mov_b32 v%d, v%d" % (vM1, vMW))
            group_allreduce(vM1, T0, "v_max_f32")
            exps(range(0, 14), vM1)
        if g == 30:
            exps(range(14, 28), vM1)
            finish_scores(28)
            e("v_add_f32 v%d, v%d, v%d" % (vL1, vS, vS + 1)); e("v_add_f32 v%d, v%d, v%d" % (T0, vS + 2, vS + 3))
            for k in range(4, NEARLY, 2):
                e("v_add_f32 v%d, v%d, v%d" % (vL1, vL1, vS + k)); e("v_add_f32 v%d, v%d, v%d" % (T0, T0, vS + k + 1))
            e("v_add_f32 v%d, v%d, v%d" % (vL1, vL1, T0))
    finish_scores(30)
    group_allreduce(vMW, T0, "v_max_f32")
    vFAC, vLF = 41, 39
    e("v_sub_f32 v%d, v%d, v%d" % (vFAC, vM1, vMW)); e("v_mul_f32 v%d, %s, v%d" % (vFAC, l2e, vFAC)); e("v_exp_f32 v%d, v%d" % (vFAC, vFAC))
    exps(range(NEARLY, 32), vMW)
    stamp('b2')
    def wave_sum():
        e("v_mul_f32 v%d, v%d, v%d" % (vLW, vL1, vFAC))
        for k in range(NEARLY, 32): e("v_add_f32 v%d, v%d, v%d" % (vLW, vLW, vS + k))
        group_allreduce(vLW, T0, "v_add_f32")
        e("s_lshl_b32 s%d, s%d, 3" % (sT0, sW)); e("s_add_u32 s%d, s%d, %d" % (sT0, sT0, L_ML)); e("v_mov_b32 v%d, s%d" % (T0, sT0))
        e("ds_write_b64 v%d, v[%d:%d]" % (T0, vMW, vLW))
    def wg_exchange():
        e("v_bfe_u32 v%d, v%d, 1, 2" % (T0, vL)); e("v_lshlrev_b32 v%d, 3, v%d" % (T0, T0))
        e("s_waitcnt lgkmcnt(0)")
        e("s_barrier")
        e("ds_read_b64 v[30:31], v%d offset:%d" % (T0, L_ML))
        e("s_waitcnt lgkmcnt(0)")
        e("v_mov_b32 v32, v30")
        for pat in (X2, HM):
            e("s_nop 1"); e("v_max_f32_dpp v32, v32, v32 %s %s" % (pat, DPP))
        e("v_sub_f32 v33, v30, v32")
        e("v_mul_f32 v33, %s, v33" % l2e)
        e("v_exp_f32 v33, v33")
        e("s_nop 0")
        e("v_mul_f32 v30, v33, v31")
        for pat in (X2, HM):
            e("s_nop 1"); e("v_add_f32_dpp v30, v30, v30 %s %s" % (pat, DPP))
        e("v_rcp_f32 v31, v30")
        tagit(34, 32); tagit(35, 30); tagit(36, 32); tagit(37, 30)
        e("v_mul_f32 v%d, v33, v31" % vLF)
        e("s_lshl_b32 s%d, s%d, 7" % (sT0, sB)); e("s_add_u32 s%d, s%d, s%d" % (sT0, sT0, sP))
        e("s_lshl_b32 s%d, s%d, 7" % (sT0, sT0)); e("s_add_u32 s%d, s%d, %d" % (sWQO, sT0, WS_ML))
        e("v_mov_b32 v%d, v32" % vMW); e("v_mov_b32 v%d, v30" % vLW)
        e("v_lshlrev_b32 v%d, 4, v%d" % (vF1, vL))
        lab = e.newlab("noml")
        e("s_cmp_lg_u32 s%d, 3" % sW); e("s_cbranch_scc1 %s" % lab)
        e("s_mov_b64 exec, 0xff")
        e.vmem("buffer_store_dwordx4 %s, v%d, %s, s%d offen %s" % (vr(34), vF1, sr(sWS), sWQO, stf), counted=False)
        e("s_mov_b64 exec, -1")
        e.label(lab)
        e("s_and_b32 s%d, s%d, %d" % (sWQO, sWQO, ~511 & 0xffffffff))
        e("v_and_b32 v%d, 3, v%d" % (vF1, vL)); e("v_lshlrev_b32 v%d, 7, v%d" % (vF1, vF1))

    aY, aML, cF, cX, aOUT, aCO, aCR, cG = 42, 43, 44, 48, 49, 50, 51, 52
    def quad_reduce(q):
        e("s_nop 0")
        e("v_permlane32_swap_b32 v%d, v%d" % (q, q + 1)); e("v_permlane32_swap_b32 v%d, v%d" % (q + 2, q + 3)); e("s_nop 0")
        e("v_add_f32 v%d, v%d, v%d" % (q, q, q + 1)); e("v_add_f32 v%d, v%d, v%d" % (q + 2, q + 2, q + 3)); e("s_nop 1")
        e("v_permlane16_swap_b32 v%d, v%d" % (q, q + 2)); e("s_nop 0")
        e("v_add_f32 v%d, v%d, v%d" % (q, q, q + 2)); e("s_nop 1")
        e("v_add_f32_dpp v%d, v%d, v%d %s %s" % (q, q, q, R8, DPP))
    def ld_f(counted): e.vmem("buffer_load_dwordx4 %s, v%d, %s, 0 offen sc1" % (vr(cF), 53, sr(sWSF)), "CF", counted=counted)
    vWJ = 38
    def ld_sib(counted): e.vmem("buffer_load_dwordx4 %s, v%d, %s, s%d offen sc1" % (vr(30), vF1, sr(sWS), sWQO), "SIB", counted=counted)
    def split_weight():
        e.wait_vm("SIB")
        poll("sib", [30], 54, 55, lambda: ld_sib(False))
        untag(30, 30); untag(31, 31)
        e("v_mov_b32 v32, v30")
        for pat in (X1, X2):
            e("s_nop 1"); e("v_max_f32_dpp v32, v32, v32 %s %s" % (pat, DPP))
        e("v_sub_f32 v30, v30, v32"); e("v_sub_f32 v33, v%d, v32" % vMW)
        e("v_mul_f32 v30, %s, v30" % l2e); e("v_mul_f32 v33, %s, v33" % l2e)
        e("v_exp_f32 v30, v30"); e("v_exp_f32 v33, v33")
        e("v_add_u32 v32, 0x80, v%d" % vLW); untag(32, 32)
        e("v_mul_f32 v30, v30, v31"); e("v_mul_f32 v33, v33, v32")
        for pat in (X1, X2):
            e("s_nop 1"); e("v_add_f32_dpp v30, v30, v30 %s %s" % (pat, DPP))
        e("v_rcp_f32 v30, v30"); e("s_nop 0")
        e("v_mul_f32 v%d, v33, v30" % vWJ)
        e("v_mul_f32 v%d, v%d, v%d" % (vWJ, vWJ, vLF))
    def consumer_setup():
        if elect:
            e("s_mov_b32 s%d, %d" % (sWSF + 2, WS_SIZE))
        elif tab:
            e("s_and_b32 s%d, s%d, 63" % (sCI, sTHR))
            e("s_cmp_lt_u32 s%d, 40" % sCI)
            e("s_cselect_b32 s%d, 1, 0" % sCONS); e("s_cselect_b32 s%d, %d, 0" % (sWSF + 2, WS_SIZE))
        elif par:
            e("s_lshr_b32 s%d, s2, 6" % sT0); e("s_lshl_b32 s%d, s%d, 2" % (sT0, sT0))
            e("s_sub_u32 s%d, s%d, 4" % (sT1, sU)); e("s_add_u32 s%d, s%d, s%d" % (sT0, sT0, sT1))
            e("s_cmp_lt_u32 s%d, 4" % sT1); e("s_cselect_b32 s%d, s%d, 99" % (sT0, sT0))
            e("s_bitcmp1_b32 s2, 0"); e("s_cselect_b32 s%d, s%d, 99" % (sT0, sT0))
            e("s_bfe_u32 s%d, s2, 0x20001" % sT1); e("s_mul_i32 s%d, s%d, 10" % (sCI, sT1)); e("s_add_u32 s%d, s%d, s%d" % (sCI, sCI, sT0))
            e("s_cmp_lt_u32 s%d, 10" % sT0)
            e("s_cselect_b32 s%d, 1, 0" % sCONS); e("s_cselect_b32 s%d, %d, 0" % (sWSF + 2, WS_SIZE))
        elif lightc:
            e("s_lshr_b32 s%d, s2, 6" % sT0); e("s_lshl_b32 s%d, s%d, 1" % (sT0, sT0))
            e("s_sub_u32 s%d, s%d, 4" % (sT1, sU)); e("s_add_u32 s%d, s%d, s%d" % (sT0, sT0, sT1))
            e("s_cmp_lt_u32 s%d, 2" % sT1); e("s_cselect_b32 s%d, s%d, 99" % (sT0, sT0))
            e("s_and_b32 s%d, s2, 7" % sT1); e("s_mul_i32 s%d, s%d, 5" % (sCI, sT1)); e("s_add_u32 s%d, s%d, s%d" % (sCI, sCI, sT0))
            e("s_cmp_lt_u32 s%d, 5" % sT0)
            e("s_cselect_b32 s%d, 1, 0" % sCONS); e("s_cselect_b32 s%d, %d, 0" % (sWSF + 2, WS_SIZE))
        else:
            e("s_and_b32 s%d, s2, 1" % sT0); e("s_lshl_b32 s%d, s%d, 8" % (sT0, sT0)); e("s_add_u32 s%d, s%d, s2" % (sT0, sT0))
            e("s_cmp_lt_u32 s%d, 80" % sT0)
            e("s_cselect_b32 s%d, 1, 0" % sCONS); e("s_cselect_b32 s%d, %d, 0" % (sWSF + 2, WS_SIZE))
            e("s_lshr_b32 s%d, s2, 1" % sCI)
        e("s_cmp_ge_u32 s%d, 20" % sCI); e("s_cselect_b32 s%d, 1, 0" % sB)
        e("s_mul_i32 s%d, s%d, 20" % (sT0, sB)); e("s_sub_u32 s%d, s%d, s%d" % (sH, sCI, sT0))
        e("v_lshlrev_b32 v53, 4, v%d" % vL)
        e("s_lshl_b32 s%d, s%d, 14" % (sT0, sCI)); e("s_lshl_b32 s%d, s%d, 12" % (sT1, sW))
        e("s_add_u32 s%d, s%d, s%d" % (sT0, sT0, sT1)); e("s_add_u32 s%d, s%d, %d" % (sT0, sT0, WS_Y))
        e("v_add_u32 v%d, s%d, v53" % (aY, sT0))
        e("s_lshr_b32 s%d, s%d, 2" % (sT0, sH)); e("s_lshl_b32 s%d, s%d, 1" % (sT0, sT0)); e("s_add_u32 s%d, s%d, s%d" % (sT0, sT0, sB))
        e("s_lshl_b32 s%d, s%d, 2" % (sT0, sT0)); e("s_and_b32 s%d, s%d, 3" % (sT1, sH)); e("s_add_u32 s%d, s%d, s%d" % (sT0, sT0, sT1))
        e("s_mul_i32 s%d, s%d, 3072" % (sT0, sT0)); e("s_mul_i32 s%d, s%d, 768" % (sT1, sW))
        e("s_add_u32 s%d, s%d, s%d" % (sT0, sT0, sT1)); e("s_add_u32 s%d, s%d, %d" % (sT0, sT0, WS_P2))
        e("v_min_u32 v53, 752, v53"); e("v_add_u32 v53, s%d, v53" % sT0)
        e("v_lshrrev_b32 v%d, 3, v%d" % (aML, vL)); e("v_lshlrev_b32 v%d, 7, v%d" % (aML, aML))
        e("s_lshl_b32 s%d, s%d, 14" % (sT0, sB)); e("s_lshl_b32 s%d, s%d, 12" % (sT1, sW))
        e("s_add_u32 s%d, s%d, s%d" % (sT0, sT0, sT1)); e("s_add_u32 s%d, s%d, %d" % (sT0, sT0, WS_ML))
        e("v_add_u32 v%d, s%d, v%d" % (aML, sT0, aML))
        e("v_and_b32 v%d, 31, v%d" % (aCR, vL)); e("v_lshlrev_b32 v%d, 1, v%d" % (aOUT, aCR))
        e("s_lshl_b32 s%d, s%d, 6" % (sT0, sCI)); e("v_add_u32 v%d, s%d, v%d" % (aOUT, sT0, aOUT))
        e("v_lshlrev_b32 v%d, 2, v%d" % (aCR, aCR)); e("v_add_u32 v%d, %d, v%d" % (aCR, L_CO, aCR))
        ld_f(True)
        e.vmem("buffer_load_ushort v%d, v%d, %s, 0 offen" % (cX, aOUT, sr(sX)), "CF")
        e("v_and_b32 v%d, 7, v%d" % (aCO, vL)); e("v_lshlrev_b32 v%d, 4, v%d" % (aCO, aCO))
        e("v_bfe_u32 v%d, v%d, 4, 1" % (cG, vL)); e("v_lshl_add_u32 v%d, v%d, 3, v%d" % (aCO, cG, aCO))
        e("v_lshrrev_b32 v%d, 5, v%d" % (cG, vL)); e("v_lshl_add_u32 v%d, v%d, 2, v%d" % (aCO, cG, aCO))
        e("s_lshl_b32 s%d, s%d, 7" % (sT0, sW)); e("v_add_u32 v%d, s%d, v%d" % (aCO, sT0, aCO))
    def consumer_ffn():
        skip = e.newlab("nocf")
        if not elect: e("s_cmp_eq_u32 s%d, 0" % sCONS); e("s_cbranch_scc1 %s" % skip)
        e.wait_vm("CF")
        poll("cf", [cF], 54, 55, lambda: ld_f(False))
        for r in range(4): untag(cF + r, cF + r)
        e("s_mov_b32 exec_lo, 0"); e("s_mov_b32 exec_hi, 0xffff0000")
        for r in range(4): e("v_mov_b32 v%d, 0" % (cF + r))
        e("s_mov_b64 exec, -1")
        e("v_lshlrev_b32 v%d, 16, v%d" % (cX, cX))
        quad_reduce(cF)
        e("ds_write_b32 v%d, v%d offset:%d" % (aCO, cF, L_CF))
        e.label(skip)

    order = list(range(32))
    if vilv:
        order = [x for k in range(NE) for x in (NE + k, k)] + list(range(2 * NE, 32))
    for g, vg in enumerate(order):
        A = vA0 if g % 2 == 0 else vA1
        if vg < NEARLY: e("v_mul_f32 v%d, v%d, v%d" % (vS + vg, vS + vg, vFAC))
        e("v_cvt_pk_bf16_f32 v%d, v%d, v%d" % (vS + vg, vS + vg, vS + vg))
        afrag(A, vS + vg)
        e("s_nop 0")
        e.wait_vm("V%d" % vg)
        stamp('v%d' % g)
        rs = ring[("V", vg)]
        for t in range(3):
            mfma(vr(vACC + 4 * t), vr(A), reg_of(rs, t), "0" if g == 0 else vr(vACC + 4 * t))
        if g == cf_g: ld_sib(True); consumer_setup()
        if not isinstance(rs, tuple) and vn[0] < 32:
            issue_kv("V", vn[0], rs); vn[0] += 1
        if nwo[0] < 20 and (nwo[0] < NO1 or (nwo[0] - NO1) in order[:g + 1]):
            issue_wo(nwo[0]); nwo[0] += 1
        if g == 0: wave_sum()
        if g == ex_g: wg_exchange()
        if g == 24:
            free = sorted(ring[("V", k)] for k in range(19, 24))
            y0 = [k for k in free if k + 1 in free][0]
            vY = rslot(y0, 0)
            for r in range(20): e("v_mov_b32 v%d, 0" % (vY + r))
            e("v_and_b32 v%d, 7, v%d" % (T0, vL)); e("v_mul_u32_u24 v%d, %d, v%d" % (T0, PSTR, T0))
            e("v_lshrrev_b32 v%d, 4, v%d" % (T1, vL)); e("v_lshl_add_u32 v%d, v%d, 3, v%d" % (T0, T1, T0))
            e("v_bfe_u32 v%d, v%d, 3, 1" % (T1, vL)); e("v_mul_u32_u24 v%d, 96, v%d" % (T1, T1))
            e("s_mul_i32 s%d, s%d, 192" % (sT0, sW))
            e("v_add3_u32 v%d, s%d, v%d, v%d" % (T0, sT0, T0, T1))
            e("s_mul_i32 s%d, s%d, 2560" % (sT0, sW))
            e("v_add_u32 v%d, s%d, v%d" % (T1, sT0, vFA))
            e("v_lshlrev_b32 v%d, 4, v0" % T2)
            e("v_bfe_u32 v%d, v%d, 2, 1" % (T4, vL)); e("v_mul_u32_u24 v%d, 0xffff, v%d" % (T4, T4))
            e("v_xor_b32 v%d, 0xffff, v%d" % (T3, T4))
            e("v_and_b32 v%d, 3, v%d" % (T5, vL)); e("v_add_u32 v%d, 1, v%d" % (vP1O, T5)); e("v_and_b32 v%d, 3, v%d" % (vP1O, vP1O))
            e("v_lshl_or_b32 v%d, v%d, 2, v%d" % (T5, vP1O, T5)); e("v_mul_u32_u24 v%d, 0x1111, v%d" % (T5, T5))
            quads = [rslot(k, t) for k in free if k not in (y0, y0 + 1) for t in range(3)]
            cML, cY = quads[0:4], quads[4:8]
            for q in cY: e("v_xor_b32 v%d, 0xff, v%d" % (q, vTAG))
        if g == cf2_g: split_weight(); consumer_ffn()
    assert nwo[0] == 20 and vn[0] == 32
    stamp('vend')
    e("s_mov_b64 exec, %s" % sr(sVAL, 2))
    e("s_nop 4")
    for t in range(3): e("ds_write_b128 v%d, %s offset:%d" % (vQA, vr(vACC + 4 * t), L_OP + t * 256))
    e("s_mov_b64 exec, -1")
    e("s_waitcnt lgkmcnt(0)")
    e("s_barrier")
    stamp('b3')
    mlds = [(cML[i], "buffer_load_dwordx4 %s, v%d, %s, 0 offen offset:%d %s" % (vr(cML[i]), aML, sr(sWS), 1024 * i, plf)) for i in range(4)]
    ylds = [(cY[i], "buffer_load_dwordx4 %s, v%d, %s, 0 offen offset:%d %s" % (vr(cY[i]), aY, sr(sWS), 1024 * i, plf)) for i in range(4)]
    def first_reads():
        lab = e.newlab("nofr")
        e("s_cmp_eq_u32 s%d, 0" % sCONS); e("s_cbranch_scc1 %s" % lab)
        for _, t in ylds: e.vmem(t, counted=False)
        e.label(lab)
    vO = 58
    for n in range(3): e("ds_read_b64 %s, v%d offset:%d" % (vr(vO + 2 * n, 2), T0, L_OP + 32 * n))
    if early0 == 1 and not elect: first_reads()
    e("s_waitcnt lgkmcnt(0)")
    for i in range(6): e("v_mul_f32 v%d, v%d, v%d" % (vO + i, vO + i, vWJ))
    for pat in (X1, X2, HM):
        for i in range(6): e("v_add_f32_dpp v%d, v%d, v%d %s %s" % (vO + i, vO + i, vO + i, pat, DPP))
    for i in range(6): e("v_cvt_pk_bf16_f32 v%d, v%d, v%d" % (vO + i, vO + i, vO + i))
    assert e.vm[-1] == "V31"
    def sfrag(dst, n, r):
        src = vO + 2 * (n % 3) + (r >> 1); m = T3 if r % 2 == 0 else T4
        if n >= 3: e("v_and_b32_dpp v%d, v%d, v%d %s %s" % (dst + r, src, m, R8, DPP))
        else: e("v_and_b32 v%d, v%d, v%d" % (dst + r, src, m))
    for r in range(4): sfrag(vA0, 0, r)
    for n in range(6):
        A = vA0 if n % 2 == 0 else vA1
        An = vA1 if n % 2 == 0 else vA0
        if n == 0: e("s_nop 1")
        for seg in range(5):
            e("v_smfmac_f32_16x16x64_bf16 %s, %s, %s, v%d" % (vr(vY + 4 * seg), vr(A), ar(8 * (5 * n + seg), 8), T5))
            if n < 5 and seg < 2:
                for r in (2 * seg, 2 * seg + 1): sfrag(An, n + 1, r)
    stamp('mf')
    e("s_mov_b32 exec_hi, 0")
    e("s_nop 3")
    for seg in range(5): e("ds_write_b128 v%d, %s offset:%d" % (T1, vr(vY + 4 * seg), L_YP + seg * 512))
    e("s_mov_b64 exec, -1")
    if early0 == 2 and not elect: first_reads()
    e("s_waitcnt lgkmcnt(0)")
    e("s_barrier")
    lab = e.newlab("noy")
    e("s_cmp_ge_u32 s%d, 3" % sW); e("s_cbranch_scc1 %s" % lab)
    for pp in range(4): e("ds_read_b128 %s, v%d offset:%d" % (vr(18 + 4 * pp), T2, L_YP + pp * 2560))
    e("s_waitcnt lgkmcnt(2)")
    for r in range(4): e("v_add_f32 v%d, v%d, v%d" % (18 + r, 18 + r, 22 + r))
    e("s_waitcnt lgkmcnt(0)")
    for r in range(4): e("v_add_f32 v%d, v%d, v%d" % (26 + r, 26 + r, 30 + r))
    for r in range(4): e("v_add_f32 v%d, v%d, v%d" % (64 + r, 18 + r, 26 + r))
    for r in range(4): tagit(64 + r, 64 + r)
    e.vmem("buffer_store_dwordx4 v[64:67], v%d, %s, 0 offen %s" % (vPY, sr(sWS), yf), counted=False)
    lab2 = e.newlab("pubd")
    e("s_branch %s" % lab2)
    e.label(lab)
    def gate_calc():
        e("ds_read2_b32 v[54:55], v%d offset0:128 offset1:160" % aCR); e("ds_read2_b32 v[56:57], v%d offset0:192 offset1:224" % aCR)
        e("s_waitcnt lgkmcnt(0)")
        e("v_add_f32 v54, v54, v55"); e("v_add_f32 v56, v56, v57"); e("v_add_f32 v54, v54, v56")
        e("v_cvt_pk_bf16_f32 v54, v54, v54"); e("v_and_b32 v54, 0xffff0000, v54")
        e("v_mul_f32 v55, %s, v54" % hx(f2u(-LOG2E)))
        e("v_exp_f32 v55, v55"); e("s_nop 0")
        e("v_add_f32 v55, 1.0, v55")
        e("v_rcp_f32 v55, v55"); e("s_nop 0")
        e("v_mul_f32 v55, v54, v55")
        e("v_cvt_pk_bf16_f32 v55, v55, v55"); e("v_and_b32 v%d, 0xffff0000, v55" % cG)
    if elect:
        e("s_waitcnt vmcnt(0)")
        e("v_mov_b32 v42, %d" % (L_CNT + 4))
        e("s_mov_b64 exec, 1")
        e("ds_write_b32 v42, v44")
        e("s_mov_b64 exec, -1")
        e("s_waitcnt lgkmcnt(0)")
    else: gate_calc()
    e.label(lab2)
    stamp('pub')
    if diag:
        e("s_waitcnt vmcnt(0)")
        stamp('ack')
    if nopoll: e("s_branch L_fin")
    if elect:
        e("v_mov_b32 v42, %d" % (L_CNT + 4))
        e("s_barrier")
        e("ds_read_b32 v44, v42")
        e("s_waitcnt lgkmcnt(0)")
        e("v_readfirstlane_b32 s%d, v44" % sCI)
        e("s_nop 3")
        e("s_cmp_eq_u32 s%d, 40" % sCI); e("s_cbranch_scc1 L_epoch")
        e("s_cmp_gt_u32 s%d, 40" % sCI); e("s_cbranch_scc1 L_fin")
        e.vm = []
        consumer_setup()
    else:
        if tab: e("s_bitcmp1_b32 s%d, 6" % sTHR)
        else: e("s_cmp_eq_u32 s2, %d" % (249 if par else 232 if lightc else 1))
        e("s_cbranch_scc1 L_epoch")
    e("s_cmp_eq_u32 s%d, 0" % sCONS); e("s_cbranch_scc1 L_fin")
    if not early0:
        for _, t in ylds: e(t)
    if wait0 is not None: e("s_waitcnt vmcnt(%d)" % wait0)
    stamp('rd0')
    mpoll("y", ylds, 20, 21, ysleep)
    stamp('yok')
    R0 = 36
    for r in range(4): untag(R0 + r, cY[0] + r)
    for r in range(4): untag(24 + r, cY[1] + r)
    for r in range(4): untag(28 + r, cY[2] + r)
    for r in range(4): untag(32 + r, cY[3] + r)
    for r in range(4): e("v_add_f32 v%d, v%d, v%d" % (R0 + r, R0 + r, 24 + r))
    for r in range(4): e("v_add_f32 v%d, v%d, v%d" % (28 + r, 28 + r, 32 + r))
    for r in range(4): e("v_add_f32 v%d, v%d, v%d" % (R0 + r, R0 + r, 28 + r))
    e("s_nop 0")
    quad_reduce(R0)
    e("ds_write_b32 v%d, v%d offset:%d" % (aCO, R0, L_CO))
    e("s_waitcnt lgkmcnt(0)")
    e("s_barrier")
    stamp('b5')
    e("s_cmp_lg_u32 s%d, 3" % sW); e("s_cbranch_scc1 L_fin")
    e("ds_read2_b32 v[54:55], v%d offset0:0 offset1:32" % aCR); e("ds_read2_b32 v[56:57], v%d offset0:64 offset1:96" % aCR)
    e("s_mov_b32 exec_hi, 0")
    e("s_waitcnt lgkmcnt(0)")
    e("v_add_f32 v54, v54, v55"); e("v_add_f32 v56, v56, v57"); e("v_add_f32 v54, v54, v56")
    e("v_cvt_pk_bf16_f32 v54, v54, v54"); e("v_and_b32 v54, 0xffff0000, v54")
    e("v_mul_f32 v54, v54, v%d" % cG)
    e("v_cvt_pk_bf16_f32 v54, v54, v54"); e("v_and_b32 v54, 0xffff0000, v54")
    e("v_add_f32 v54, v54, v%d" % cX)
    e("v_cvt_pk_bf16_f32 v54, v54, v54")
    e("buffer_store_short v54, v%d, %s, 0 offen %s" % (aOUT, sr(sOUT), of))
    e("s_mov_b64 exec, -1")
    e("s_branch L_fin")
    e.label("L_epoch")
    e("s_cmp_lg_u32 s%d, 0" % sW); e("s_cbranch_scc1 L_fin")
    e("v_lshlrev_b32 v13, 7, v%d" % vL); e("v_add_u32 v13, %d, v13" % WS_ML)
    def ld_all():
        for i in range(4):
            e("s_mov_b32 s%d, %d" % (sT0, 8192 * i))
            e("buffer_load_dwordx4 %s, v13, %s, s%d offen sc1" % (vr(16 + 4 * i), sr(sWS), sT0))
    ld_all()
    e("s_waitcnt vmcnt(0)")
    poll("ep", [16 + 4 * k for k in range(4)], 56, 57, ld_all, sleep=epsleep)
    e("v_mov_b32 v16, s%d" % sTAG)
    e("s_mov_b32 s%d, %d" % (sT0, WS_EP))
    e("s_mov_b64 exec, 1")
    e("buffer_store_dword v16, off, %s, s%d" % (sr(sWS), sT0))
    e("s_mov_b64 exec, -1")
    e.label("L_fin")
    if calib:
        if calk >= 0:
            e("s_and_b32 s100, s2, 7"); e("s_cmp_lg_u32 s100, %d" % calk); e("s_cbranch_scc1 L_end")
        e.label("L_cal")
        e("s_memrealtime s[98:99]"); e("s_waitcnt lgkmcnt(0)")
        e("s_getreg_b32 s100, hwreg(HW_REG_XCC_ID, 0, 4)"); e("s_sub_u32 s100, s100, s2"); e("s_and_b32 s100, s100, 7")
        e("s_mul_i32 s100, s100, %d" % calx); e("s_add_u32 s100, s100, %d" % calib)
        e("s_sub_u32 s98, s98, s%d" % sST); e("s_cmp_lt_u32 s98, s100"); e("s_cbranch_scc1 L_cal")
    if trace:
        trace_pt('fin')
        e("v_writelane_b32 v89, s%d, 63" % sST)
        e("s_add_u32 s92, s26, %d" % STAMP_OFF); e("s_addc_u32 s93, s27, 0"); e("s_mov_b32 s94, 0x100000"); e("s_mov_b32 s95, 0x20000")
        e("s_lshl_b32 s%d, s2, 2" % sT0); e("s_add_u32 s%d, s%d, s%d" % (sT0, sT0, sW)); e("s_lshl_b32 s%d, s%d, 9" % (sT0, sT0))
        e("v_lshlrev_b32 v10, 2, v%d" % vL); e("v_add_u32 v10, s%d, v10" % sT0)
        e("buffer_store_dword v88, v10, s[92:95], 0 offen")
        e("buffer_store_dword v89, v10, s[92:95], 0 offen offset:256")
        open("trace_names.txt", "w").write(" ".join(trnames))
    if stamps:
        stamp('fin')
        n = nst[0]
        e("s_add_u32 s92, s26, %d" % STAMP_OFF); e("s_addc_u32 s93, s27, 0"); e("s_mov_b32 s94, 0x100000"); e("s_mov_b32 s95, 0x20000")
        if allw:
            e("s_lshl_b32 s%d, s2, 2" % sT0); e("s_add_u32 s%d, s%d, s%d" % (sT0, sT0, sW)); e("s_mul_i32 s%d, s%d, %d" % (sT0, sT0, 8 * n))
        else:
            e("s_cmp_lg_u32 s%d, 0" % sW); e("s_cbranch_scc1 L_end")
            e("s_mul_i32 s%d, s2, %d" % (sT0, 8 * n))
        e("v_mov_b32 v10, s%d" % sT0); e("v_mov_b32 v13, 0")
        e("s_mov_b64 exec, 1")
        for k in range(n):
            e("v_mov_b32 v12, s%d" % (sST + k))
            e("buffer_store_dwordx2 v[12:13], v10, s[92:95], 0 offen offset:%d" % (8 * k))
            e("s_nop 1")
    e.label("L_end")
    e("s_endpgm")
    if tab:
        e.raw(".p2align 6"); e.raw(".type role_table,@object"); e.label("role_table")
        words = role_table(*tab)
        for i in range(0, 256, 8): e(".long " + ", ".join(hx(w) for w in words[i:i + 8]))
        e.raw(".size role_table, 1024")
    e.raw('.section .rodata,"a"'); e.raw(".p2align 6"); e.raw(".amdhsa_kernel %s_kernel" % NAME)
    for s in (".amdhsa_next_free_vgpr 512", ".amdhsa_next_free_sgpr 102", ".amdhsa_accum_offset 256",
              ".amdhsa_group_segment_fixed_size 0", ".amdhsa_kernarg_size 96", ".amdhsa_user_sgpr_count 2",
              ".amdhsa_user_sgpr_kernarg_segment_ptr 1", ".amdhsa_system_sgpr_workgroup_id_x 1"):
        e(s)
    e.raw(".end_amdhsa_kernel")
    return "\n".join(e.L) + "\n", nst[0]

if __name__ == "__main__":
    import argparse
    ap = argparse.ArgumentParser()
    ap.add_argument("out"); ap.add_argument("--stamps", action="store_true")
    ap.add_argument("--opt", default="")
    a = ap.parse_args()
    kw = eval("dict(%s)" % a.opt)
    s, n = gen(stamps=a.stamps, **kw)
    hdr = open("cdna_kernels/%s.s.ref" % NAME).read().split("; Override launch")[0]
    note = """; Fused decode step, one launch, 256 workgroups (one per CU) x 4 waves x 512 registers.  Generated by a hand-written script.
"""
    open(a.out, "w").write(hdr + note + s)
    print("wrote", a.out, "stamps", n)
```

```python
import struct, sys
NAME = "recurrent_scan__gqa_block_cached__geglu_ffn__decode"

def f2u(x): return struct.unpack("<I", struct.pack("<f", x))[0]
def hx(x): return "0x%08x" % (x & 0xffffffff)
LOG2E = 1.4426950408889634

WS_Q1 = 0
WS_P1 = 0x30000
P1_LO = 5 * 24576
WS_P2 = 0x6C000
WS_Y  = 0x8A000
WS_ML = 0x12A000
WS_EP = 0x132000
WS_SIZE = 0x133000
STAMP_OFF = 300 << 20
OOB = 0x7ffffff0

L_XN = 0
L_Q1 = 5120
PS2 = 528
L_QC = 9472
L_QB = 24064
L_F1 = 24576
L_F2 = 32768
L_ML = 36864
L_CNT = 36928
L_OP = 37120
PSTR = 784
L_YP = 43520
L_CO = 53760
L_CF = 54272
L_END = 54784

class Em:
    def __init__(self):
        self.L = []; self.vm = []; self.lab = 0
    def __call__(self, s): self.L.append("  " + s)
    def raw(self, s): self.L.append(s)
    def label(self, n): self.L.append(n + ":")
    def newlab(self, p):
        self.lab += 1; return "L_%s_%d" % (p, self.lab)
    def vmem(self, s, tag=None, counted=True):
        self.L.append("  " + s)
        if counted: self.vm.append(tag)
    def behind(self, tag):
        idx = max(i for i, t in enumerate(self.vm) if t == tag)
        return len(self.vm) - 1 - idx
    def wait_vm(self, tag):
        self("s_waitcnt vmcnt(%d)" % min(self.behind(tag), 63))

def vr(a, n=4): return "v[%d:%d]" % (a, a + n - 1)
def ar(a, n=4): return "a[%d:%d]" % (a, a + n - 1)
def sr(a, n=4): return "s[%d:%d]" % (a, a + n - 1)
DPP = "row_mask:0xf bank_mask:0xf"
X1, X2, HM, RM, R8 = "quad_perm:[1,0,3,2]", "quad_perm:[2,3,0,1]", "row_half_mirror", "row_mirror", "row_ror:8"

def role_table(nb, nsm, nf, ns, cons_x, ep_x):
    assert sum(nb) == 96 and sum(nsm) == 96 and sum(nf) == 60 and sum(ns) == 120 and all(a + b + c <= 32 for a, b, c in zip(nb, nsm, nf))
    W = [None] * 256
    big = [(h, qu) for h in range(32) for qu in range(3)]; small = [(h, qu) for h in range(32) for qu in range(3, 6)]
    fi = si = 0
    kind = {}
    for x in range(8):
        ids = [8 * i + x for i in range(32)]
        kinds = ["b"] * nb[x] + ["f"] * nf[x] + ["q"] * nsm[x]; kinds += ["n"] * (32 - len(kinds))
        kinds = [kinds[(k * 13 + 5) % 32] for k in range(32)]
        for wg, kd in zip(ids, kinds):
            kind[wg] = kd
            if kd == "b": qh, qu = big.pop(0); W[wg] = qh | qu << 5
            elif kd == "q": qh, qu = small.pop(0); W[wg] = qh | qu << 5
            elif kd == "f": W[wg] = fi << 8 | 1 << 14; fi += 1
            else: W[wg] = 63 << 8 | 1 << 14
        order = sorted(ids, key=lambda w: "nqbf".index(kind[w]))
        for k, wg in enumerate(order):
            if k < ns[x]: W[wg] |= si << 16; si += 1; kind[wg] += "s"
            else: W[wg] |= 127 << 16
    cand = [w for x in cons_x for w in range(x, 256, 8)]
    cand.sort(key=lambda w: (["n", "q", "ns", "qs", "b", "f", "bs", "fs"].index(kind[w]), w >> 3))
    cons = {w: i for i, w in enumerate(cand[:40])}
    ep = [w for w in range(ep_x, 256, 8) if w not in cons][-1]
    for w in range(256): W[w] |= cons.get(w, 63) << 23 | (1 << 29 if w == ep else 0)
    return W

def gen(stamps=False, kvf="nt", wf="", qf="", ff="", RING=14, NE=3, st2_g=8, p1_g=0, ml_g=31, allw=False,
        sel=('b1', 'b2', 'vend', 'pub', 'fin'), ostep=2, ostart=0, k_pre=0, k_mid=2, qc_after=12, win=0, tmo=0x10000,
        trace=False, xspec=True, mlsleep=2, epsleep=8, nopoll=False, nocheck=False, stf='sc1', yf='sc1', cpf=0, calib=0, ysleep=0, pdepth=6, p1lo=False, ph=(0, 3, 6, 0), vrot=0, cf_g=12, cf2_g=25, of='', elect=False, tk_g=27, early0=0, adapt=0, farsleep=16, yinA=True, wait0=None, mlfull=True, lightc=True, diag=0, plf='sc1', vilv=True, gaptest=0, ex_g=5, k_ln=1, k_role=1, ne_late=0, par=1, wine=0, wmask=0x55, tab=None, ilv4=True, rev=0, ks=320, k_l0=1, k_l2=1, calx=0, calk=-1, wde=1):
    e = Em()
    vL, vKV, vWQ, vWO, vPY = 1, 2, 3, 4, 5
    vM = 6; vA0 = 10; vA1 = 14; vACC = 18; vQF = 30; vS = 42
    vMW, vLW, vTAG = 74, 75, 76
    vQA, vFA, vP1O, vF1 = 78, 79, 80, 81
    T0, T1, T2, T3, T4, T5 = 82, 83, 84, 85, 86, 87
    RB = 256 - 12 * RING
    assert RB >= 88
    def rslot(i, t): return RB + 12 * i + 4 * t
    AVE = 240 - 12 * NE
    sK, sV, sRE, sWO, sX, sRO, sWD, sWS, sOUT, sWSF = 28, 32, 36, 40, 44, 48, 56, 60, 64, 92
    sS1, sS2, sKH, sNT = 52, 53, 54, 55
    sTHR = 53
    sCONS = 52
    sTAG, sU, sACT, sFACT = 68, 69, 70, 71
    sW, sB, sH, sP, sFS, sKR, sC5, sRB, sSO, sT0, sT1, sT2 = 72, 73, 74, 75, 76, 77, 78, 79, 80, 81, 82, 83
    sEX = 84; sVAL = 86; sCNT = 88; sCI = 89; sFF = 90; sWQO = 91; sSEL = 14; sROT = 15; sMK = 28
    sST = 96
    nst = [0]
    def stamp(name):
        if trace: trace_pt(name); return
        if not stamps or name not in sel: return
        e("s_memrealtime s[%d:%d]" % (sEX, sEX + 1))
        e("s_waitcnt lgkmcnt(0)")
        e("s_mov_b32 s%d, s%d" % (sST + nst[0], sEX))
        nst[0] += 1
    tr = [0]; trnames = []
    def trace_pt(name):
        if not trace: return
        k = tr[0]; tr[0] += 1; trnames.append(name)
        e("s_memrealtime s[%d:%d]" % (sST + 2, sST + 3))
        e("s_waitcnt lgkmcnt(0)")
        e("v_writelane_b32 v%d, s%d, %d" % (88 + k // 64, sST + 2, k % 64))
    def mfma(d, a, b, c): e("v_mfma_f32_16x16x32_bf16 %s, %s, %s, %s" % (d, a, b, c))
    def afrag(dst, src):
        for r in range(4): e("v_and_b32 v%d, v%d, v%d" % (dst + r, src, vM + r))
    def tagit(dst, src):
        e("v_add_u32 v%d, 0x80, v%d" % (dst, src))
        e("v_bfi_b32 v%d, s%d, v%d, v%d" % (dst, sFF, vTAG, dst))
    def untag(dst, src): e("v_and_b32 v%d, 0xffffff00, v%d" % (dst, src))
    def piece_bad(p, t0, t1, dst):
        e("v_perm_b32 v%d, v%d, v%d, s%d" % (t0, p + 1, p, sSEL))
        e("v_perm_b32 v%d, v%d, v%d, s%d" % (t1, p + 3, p + 2, sSEL))
        e("v_lshl_or_b32 v%d, v%d, 16, v%d" % (t0, t1, t0))
        e("v_cmp_ne_u32 %s, v%d, v%d" % (dst, t0, vTAG + 1))
    def poll(name, pieces, t0, t1, reload, sleep=4):
        if nocheck: return
        lab = e.newlab(name + "ok"); lp = e.newlab(name + "loop")
        e("s_mov_b32 s%d, %d" % (sCNT, tmo))
        e.label(lp)
        for k, p in enumerate(pieces):
            piece_bad(p, t0, t1, "vcc" if k == 0 else sr(sEX, 2))
            if k: e("s_or_b64 vcc, vcc, %s" % sr(sEX, 2))
        e("s_nop 1")
        e("s_cbranch_vccz %s" % lab)
        e("s_sub_u32 s%d, s%d, 1" % (sCNT, sCNT)); e("s_cbranch_scc1 %s" % lab)
        if sleep: e("s_sleep %d" % sleep)
        reload()
        e("s_waitcnt vmcnt(0)")
        e("s_branch %s" % lp)
        e.label(lab)
    def mpoll(name, loads, t0, t1, sleep):
        lab = e.newlab(name + "ok"); lp = e.newlab(name + "loop")
        e("s_mov_b32 s%d, %d" % (sCNT, 16 * tmo))
        e.label(lp)
        for k, (p, _) in enumerate(loads): piece_bad(p, t0, t1, sr(sMK + 2 * k, 2))
        e("s_nop 0")
        e("s_or_b64 vcc, %s, %s" % (sr(sMK, 2), sr(sMK + 2, 2)))
        for k in range(2, len(loads)): e("s_or_b64 vcc, vcc, %s" % sr(sMK + 2 * k, 2))
        e("s_cbranch_scc0 %s" % lab)
        e("s_sub_u32 s%d, s%d, 1" % (sCNT, sCNT)); e("s_cbranch_scc1 %s" % lab)
        for k, (p, txt) in enumerate(loads):
            sk = e.newlab(name + "sk")
            e("s_mov_b64 exec, %s" % sr(sMK + 2 * k, 2))
            e("s_cbranch_execz %s" % sk)
            e(txt)
            e.label(sk)
        e("s_mov_b64 exec, -1")
        e("s_waitcnt vmcnt(%d)" % pdepth)
        if adapt:
            e("s_bcnt1_i32_b64 s%d, %s" % (sT0, sr(sMK, 2)))
            for k in range(1, len(loads)):
                e("s_bcnt1_i32_b64 s%d, %s" % (sT1, sr(sMK + 2 * k, 2))); e("s_add_u32 s%d, s%d, s%d" % (sT0, sT0, sT1))
            near = e.newlab("near")
            e("s_cmp_le_u32 s%d, %d" % (sT0, 8 * adapt)); e("s_cbranch_scc1 %s" % near)
            e("s_sleep %d" % farsleep)
            e.label(near)
        if sleep: e("s_sleep %d" % sleep)
        e("s_branch %s" % lp)
        e.label(lab)

    e.raw("; @launch grid=(256,1,1) block=(256,1,1) lds=%d" % L_END)
    e.raw('.amdgcn_target "amdgcn-amd-amdhsa--gfx950"')
    e.raw(".text"); e.raw(".globl %s_kernel" % NAME); e.raw(".p2align 8"); e.raw(".type %s_kernel,@function" % NAME)
    e.label("%s_kernel" % NAME)
    e("s_cmp_ge_u32 s2, 256"); e("s_cbranch_scc1 L_end")
    e("s_load_dwordx16 s[4:19], s[0:1], 0")
    e("s_load_dwordx8 s[20:27], s[0:1], 64")
    sTB = 67
    if tab:
        e("s_getpc_b64 s[%d:%d]" % (sEX, sEX + 1))
        e.label("L_pc0")
        e("s_lshl_b32 s%d, s2, 2" % sTB); e("s_add_u32 s%d, s%d, role_table-L_pc0" % (sTB, sTB))
        e("s_add_u32 s%d, s%d, s%d" % (sEX, sEX, sTB)); e("s_addc_u32 s%d, s%d, 0" % (sEX + 1, sEX + 1))
        e("s_load_dword s%d, s[%d:%d], 0" % (sTB, sEX, sEX + 1))
    if stamps or trace or calib:
        e("s_memrealtime s[%d:%d]" % (sST, sST + 1)); nst[0] = 1
        for k in range(2, 6): e("s_mov_b32 s%d, 0" % (sST + k))
    e("v_and_b32 v%d, 63, v0" % vL)
    e("v_lshrrev_b32 v%d, 6, v0" % T0)
    e("v_lshrrev_b32 v%d, 3, v%d" % (T1, vL))
    e("v_and_b32 v%d, 7, v%d" % (T2, vL))
    e("v_readfirstlane_b32 s%d, v%d" % (sW, T0))
    e("v_mul_u32_u24 v%d, 384, v%d" % (vKV, T1))
    e("v_lshl_add_u32 v%d, v%d, 4, v%d" % (vKV, T2, vKV))
    e("v_mul_u32_u24 v%d, 3072, v%d" % (T3, T0))
    e("v_add_u32 v%d, v%d, v%d" % (vKV, vKV, T3))
    e("v_lshl_add_u32 v%d, v%d, 3, v%d" % (vWQ, T0, T1))
    e("v_mul_u32_u24 v%d, 12288, v%d" % (vWQ, vWQ))
    e("v_lshl_add_u32 v%d, v%d, 4, v%d" % (vWQ, T2, vWQ))
    e("v_lshrrev_b32 v%d, 5, v%d" % (T3, vL))
    e("v_mul_u32_u24 v%d, 1280, v%d" % (T3, T3))
    e("v_and_b32 v%d, 31, v%d" % (T5, vL))
    e("v_lshl_add_u32 v%d, v%d, 4, v%d" % (T4, T5, T3))
    e("v_lshl_add_u32 v%d, v%d, 3, v%d" % (T5, T5, T3))
    e("v_lshrrev_b32 v%d, 4, v%d" % (T3, vL))
    e("v_lshl_add_u32 v%d, v%d, 2, v%d" % (vF1, T0, T3))
    e("v_mul_u32_u24 v%d, 3072, v%d" % (vF1, vF1))
    e("v_and_b32 v%d, 15, v%d" % (T1, vL))
    e("v_lshl_add_u32 v%d, v%d, 4, v%d" % (vF1, T1, vF1))
    e("s_and_b32 s%d, s2, 7" % sT0)
    e("s_lshr_b32 s%d, s2, 3" % sT1)
    e("s_lshr_b32 s%d, s%d, 3" % (sT2, sT1))
    e("s_lshl_b32 s%d, s%d, 2" % (sH, sT0))
    e("s_add_u32 s%d, s%d, s%d" % (sH, sH, sT2))
    e("s_and_b32 s%d, s%d, 7" % (sU, sT1))
    e("s_lshr_b32 s%d, s%d, 2" % (sB, sU))
    e("s_and_b32 s%d, s%d, 3" % (sT1, sT1))
    e("s_lshl_b32 s%d, s%d, 2" % (sP, sH))
    e("s_add_u32 s%d, s%d, s%d" % (sP, sP, sT1))
    e("s_lshl_b32 s%d, s%d, 7" % (sT0, sB))
    e("s_add_u32 s%d, s%d, s%d" % (sT0, sT0, sP))
    if ilv4:
        e("s_and_b32 s%d, s%d, 252" % (sT0, sT0))
        e("s_mul_i32 s%d, s%d, 12288" % (sT1, sT1)); e("v_add_u32 v%d, s%d, v%d" % (vKV, sT1, vKV))
    KVSZ = 393216 * (4 if ilv4 else 1); STEP = 12288 * (4 if ilv4 else 1)
    e("s_mul_i32 s%d, s%d, 393216" % (sT0, sT0))
    e("s_mov_b32 s%d, %d" % (sK + 2, KVSZ)); e("s_mov_b32 s%d, 0x20000" % (sK + 3))
    e("s_mov_b32 s%d, 2560" % (sX + 2)); e("s_mov_b32 s%d, 0x20000" % (sX + 3))
    sQH = 3
    if tab:
        e("s_waitcnt lgkmcnt(0)")
        e("s_and_b32 s%d, s%d, 31" % (sQH, sTB)); e("s_bfe_u32 s%d, s%d, 0x30005" % (sNT, sTB))
        e("s_mov_b32 s%d, s%d" % (sWQO, sTB))
    elif par:
        e("s_lshl_b32 s%d, s2, 3" % sT1); e("s_and_b32 s%d, s%d, 8" % (sT1, sT1)); e("s_add_u32 s%d, s%d, s%d" % (sT1, sT1, sU))
        e("s_cmp_ge_u32 s%d, 14" % sT1)
        e("s_cselect_b32 s%d, 2, 0" % sT2); e("s_sub_u32 s%d, s%d, s%d" % (sNT, sU, sT2))
        e("s_lshl_b32 s%d, s%d, 1" % (sT2, sT2)); e("s_sub_u32 s%d, s%d, s%d" % (sQH, sH, sT2))
        e("s_sub_u32 s%d, s%d, 4" % (sS1, sT1))
    else:
        e("s_mov_b32 s%d, s%d" % (sNT, sU)); e("s_mov_b32 s%d, s%d" % (sQH, sH))
    e("s_cmp_ge_u32 s%d, 3" % sNT); e("s_cselect_b32 s%d, 1, 0" % sKH)
    e("s_mul_i32 s%d, s%d, 3" % (sT1, sKH)); e("s_sub_u32 s%d, s%d, s%d" % (sNT, sNT, sT1))
    e("s_mul_i32 s%d, s%d, %d" % (sCI, sKH, ks * 12288))
    e("s_mul_i32 s%d, s%d, %d" % (sSO, sKH, (2 * ks - 640) * 12288)); e("s_sub_u32 s%d, %d, s%d" % (sSO, (ks - 1) * 12288 + 128, sSO))
    e("s_mul_i32 s%d, s%d, 384" % (sT1, sQH)); e("s_add_u32 s%d, s%d, s%d" % (sCI, sCI, sT1))
    e("s_lshl_b32 s%d, s%d, 7" % (sT1, sNT)); e("s_add_u32 s%d, s%d, s%d" % (sCI, sCI, sT1))
    if tab:
        e("s_bfe_u32 s%d, s%d, 0x60008" % (sT1, sTB))
    elif par:
        e("s_bfe_u32 s%d, s2, 0x20001" % sT1); e("s_lshl_b32 s%d, s%d, 4" % (sT1, sT1))
        e("s_lshr_b32 s%d, s2, 6" % sT2); e("s_lshl_b32 s%d, s%d, 2" % (sT2, sT2))
        e("s_add_u32 s%d, s%d, s%d" % (sT1, sT1, sT2)); e("s_add_u32 s%d, s%d, s%d" % (sT1, sT1, sS1))
    else:
        e("s_lshl_b32 s%d, s%d, 1" % (sT1, sH)); e("s_add_u32 s%d, s%d, s%d" % (sT1, sT1, sU)); e("s_sub_u32 s%d, s%d, 6" % (sT1, sT1))
    e("s_and_b32 s%d, s%d, 63" % (sT1, sT1))
    e("s_mul_i32 s%d, s%d, 43" % (sKR, sT1)); e("s_lshr_b32 s%d, s%d, 9" % (sKR, sKR))
    e("s_mul_i32 s%d, s%d, 12" % (sT2, sKR)); e("s_sub_u32 s%d, s%d, s%d" % (sFS, sT1, sT2))
    e("s_cmp_lt_u32 s%d, 60" % sT1); e("s_cselect_b32 s%d, %d, 0" % (sFACT, 127 * 3072 + 256))
    e("s_min_u32 s%d, s%d, 4" % (sKR, sKR))
    e("s_mul_i32 s%d, s%d, %d" % (sCNT, sKR, 128 * 3072))
    e("s_lshl_b32 s%d, s%d, 8" % (sT2, sFS)); e("s_add_u32 s%d, s%d, s%d" % (sCNT, sCNT, sT2))
    e("s_mov_b32 s%d, 0x20000" % (sRE + 3)); e("s_mov_b32 s%d, 0x20000" % (sRO + 3))
    e("s_mov_b32 s%d, 786432" % sS2)
    if tab: e("s_bitcmp1_b32 s%d, 14" % sTB)
    elif par: e("s_cmp_lt_u32 s%d, 4" % sS1)
    else: e("s_cmp_ge_u32 s%d, 6" % sU)
    e("s_cselect_b32 s%d, s%d, s%d" % (sRE + 2, sFACT, sSO))
    e("s_cselect_b32 s%d, s%d, s%d" % (sRO + 2, sFACT, sSO))
    e("s_cselect_b32 s%d, 0, 393216" % sS1)
    e("s_cselect_b32 s%d, 49152, s%d" % (sS2, sS2))
    e("s_cselect_b32 s%d, s%d, s%d" % (sCI, sCNT, sCI))
    e("s_cselect_b64 vcc, -1, 0")
    e("s_waitcnt lgkmcnt(0)")
    if stamps and 'ka' in sel:
        e("s_memrealtime s[%d:%d]" % (sEX, sEX + 1)); e("s_waitcnt lgkmcnt(0)"); e("s_mov_b32 s%d, s%d" % (sST + nst[0], sEX)); nst[0] += 1
    e("s_cselect_b32 s%d, s16, s10" % sRE); e("s_cselect_b32 s%d, s17, s11" % (sRE + 1))
    e("s_cselect_b32 s%d, s18, s10" % sRO); e("s_cselect_b32 s%d, s19, s11" % (sRO + 1))
    e("s_mov_b32 s%d, s4" % sX); e("s_mov_b32 s%d, s5" % (sX + 1))
    e("v_cndmask_b32 v%d, v%d, v%d, vcc" % (vWQ, vWQ, vF1))
    e.vmem("buffer_load_dwordx4 %s, v%d, %s, 0 offen" % (vr(18), T4, sr(sX)), "x")
    e.vmem("buffer_load_dwordx4 %s, v%d, %s, 0 offen offset:512" % (vr(22), T4, sr(sX)), "x")
    e.vmem("buffer_load_dwordx2 %s, v%d, %s, 0 offen offset:1024" % (vr(26, 2), T5, sr(sX)), "x")
    e("s_add_u32 s%d, s%d, s%d" % (sRE, sRE, sCI)); e("s_addc_u32 s%d, s%d, 0" % (sRE + 1, sRE + 1))
    e("s_add_u32 s%d, s%d, s%d" % (sRO, sRO, sCI)); e("s_addc_u32 s%d, s%d, 0" % (sRO + 1, sRO + 1))
    e("s_add_u32 s%d, s6, s%d" % (sK, sT0)); e("s_addc_u32 s%d, s7, 0" % (sK + 1))
    e("s_add_u32 s%d, s8, s%d" % (sV, sT0)); e("s_addc_u32 s%d, s9, 0" % (sV + 1))

    ring = {}
    curwin = [0]
    def throttle(n=3):
        if wine and curwin[0] == -1:
            sk = e.newlab("thr")
            e("s_cmp_eq_u32 s%d, 0" % sTHR); e("s_cbranch_scc1 %s" % sk); e("s_waitcnt vmcnt(%d)" % (wine - n)); e.label(sk)
            return
        if curwin[0] and len(e.vm) + n > curwin[0]: e("s_waitcnt vmcnt(%d)" % (curwin[0] - n))
    def issue_kv(kind, g, rs):
        throttle()
        ring[(kind, g)] = rs
        srd = sK if kind == "K" else sV
        if ph:
            e("s_add_u32 s%d, s%d, %d" % (sSO, sROT, g)); e("s_and_b32 s%d, s%d, 31" % (sSO, sSO))
            if rev and (rev == 2 or kind == "V"): pass
            e("s_mul_i32 s%d, s%d, %d" % (sSO, sSO, STEP)); so = "s%d" % sSO
        elif g == 0: so = "0"
        else:
            e("s_mov_b32 s%d, %d" % (sSO, g * 12288)); so = "s%d" % sSO
        for t in range(3):
            e.vmem("buffer_load_dwordx4 %s, v%d, %s, %s offen offset:%d %s" % (reg_of(rs, t), vKV, sr(srd), so, t * 128, kvf), "%s%d" % (kind, g))
    def reg_of(rs, t):
        return ar(rs[1] + 4 * t) if isinstance(rs, tuple) else vr(rslot(rs, t))
    def issue_wo(n):
        throttle()
        last = None
        for t in range(3):
            z = 3 * n + t; i, seg = 2 * (z // 10) + (z & 1), (z % 10) >> 1
            if i == 0: so = "0"
            else:
                if last != i: e("s_mov_b32 s%d, %d" % (sSO, i * 5120))
                so = "s%d" % sSO
                last = i
            e.vmem("buffer_load_dwordx4 %s, v%d, %s, %s offen offset:%d %s" % (ar(4 * z), vWO, sr(sWO), so, seg * 256, wf), "O%d" % n)
    e("s_mov_b32 s%d, 0" % sCNT)
    for m in range(8):
        e.vmem("buffer_load_dwordx4 %s, v%d, %s, s%d offen %s" % (ar(8 * m), vWQ, sr(sRE), sCNT, qf), "R")
        e("s_add_u32 s%d, s%d, s%d" % (sSO, sCNT, sS1))
        e.vmem("buffer_load_dwordx4 %s, v%d, %s, s%d offen %s" % (ar(8 * m + 4), vWQ, sr(sRO), sSO, qf), "R")
        if m < 7: e("s_add_u32 s%d, s%d, s%d" % (sCNT, sCNT, sS2))
    stamp('rl')
    if cpf:
        e("s_getpc_b64 s[6:7]")
        e.label("L_pc")
        e("s_sub_u32 s6, s6, L_pc-%s_kernel" % NAME); e("s_subb_u32 s7, s7, 0")
        e("s_lshr_b32 s8, s2, 3"); e("s_lshl_b32 s8, s8, 2"); e("s_add_u32 s8, s8, s%d" % sW)
        e("s_mul_i32 s8, s8, %d" % (64 * cpf)); e("s_min_u32 s8, s8, L_end-%s_kernel-%d" % (NAME, 64 * cpf))
        e("s_add_u32 s6, s6, s8"); e("s_addc_u32 s7, s7, 0")
        for k in range(cpf): e("s_load_dword s8, s[6:7], %d" % (64 * k))
    e("s_add_u32 s%d, s26, %d" % (sEX, WS_EP)); e("s_addc_u32 s%d, s27, 0" % (sEX + 1))
    e("s_load_dword s%d, s[%d:%d], 0" % (sTAG, sEX, sEX + 1))
    if ph:
        aj, ab, ah, ax = ph
        e("s_bfe_u32 s%d, s2, 0x20003" % sT0); e("s_mul_i32 s%d, s%d, %d" % (sROT, sT0, aj))
        e("s_mul_i32 s%d, s%d, %d" % (sT0, sB, ab)); e("s_add_u32 s%d, s%d, s%d" % (sROT, sROT, sT0))
        e("s_lshr_b32 s%d, s2, 6" % sT0); e("s_mul_i32 s%d, s%d, %d" % (sT0, sT0, ah)); e("s_add_u32 s%d, s%d, s%d" % (sROT, sROT, sT0))
        e("s_and_b32 s%d, s2, 7" % sT0); e("s_mul_i32 s%d, s%d, %d" % (sT0, sT0, ax)); e("s_add_u32 s%d, s%d, s%d" % (sROT, sROT, sT0))
    e("s_mov_b32 s%d, %d" % (sV + 2, KVSZ)); e("s_mov_b32 s%d, 0x20000" % (sV + 3))
    e("s_mul_i32 s%d, s%d, 245760" % (sT0, sH))
    e("s_add_u32 s%d, s12, s%d" % (sWO, sT0)); e("s_addc_u32 s%d, s13, 0" % (sWO + 1))
    e("s_mov_b32 s%d, 245760" % (sWO + 2)); e("s_mov_b32 s%d, 0x20000" % (sWO + 3))
    e("s_mov_b32 s%d, s26" % sWS); e("s_mov_b32 s%d, s27" % (sWS + 1))
    e("s_mov_b32 s%d, %d" % (sWS + 2, WS_SIZE)); e("s_mov_b32 s%d, 0x20000" % (sWS + 3))
    e("s_mov_b32 s%d, s22" % sOUT); e("s_mov_b32 s%d, s23" % (sOUT + 1))
    e("s_mov_b32 s%d, 2560" % (sOUT + 2)); e("s_mov_b32 s%d, 0x20000" % (sOUT + 3))
    if tab:
        e("s_bfe_u32 s%d, s%d, 0x70010" % (sT0, sWQO))
        e("s_lshr_b32 s%d, s%d, 23" % (sTHR, sWQO))
    elif par == 2:
        e("s_bfe_u32 s%d, s2, 0x20001" % sT0); e("s_lshl_b32 s%d, s%d, 5" % (sT0, sT0)); e("s_lshr_b32 s%d, s2, 3" % sT1); e("s_add_u32 s%d, s%d, s%d" % (sT0, sT0, sT1))
    elif par == 3:
        e("s_and_b32 s%d, s2, 3" % sT0); e("s_lshl_b32 s%d, s%d, 5" % (sT0, sT0)); e("s_lshr_b32 s%d, s2, 3" % sT1); e("s_add_u32 s%d, s%d, s%d" % (sT0, sT0, sT1))
    elif par == 4:
        e("s_and_b32 s%d, s2, 7" % sT0); e("s_lshl_b32 s%d, s%d, 2" % (sT0, sT0)); e("s_lshr_b32 s%d, 0x83888210, s%d" % (sT0, sT0)); e("s_and_b32 s%d, s%d, 15" % (sT0, sT0))
        e("s_lshl_b32 s%d, s%d, 5" % (sT0, sT0)); e("s_lshr_b32 s%d, s2, 3" % sT1); e("s_add_u32 s%d, s%d, s%d" % (sT0, sT0, sT1)); e("s_min_u32 s%d, s%d, 199" % (sT0, sT0))
    else:
        e("s_lshl_b32 s%d, s%d, 2" % (sT0, sH)); e("s_add_u32 s%d, s%d, s%d" % (sT0, sT0, sU))
    e("s_mul_i32 s%d, s%d, 205" % (sRB, sT0)); e("s_lshr_b32 s%d, s%d, 10" % (sRB, sRB))
    e("s_mul_i32 s%d, s%d, 5" % (sT1, sRB)); e("s_sub_u32 s%d, s%d, s%d" % (sC5, sT0, sT1))
    if not tab:
        if par == 2: e("s_bitcmp0_b32 s2, 0")
        elif par == 3: e("s_bitcmp0_b32 s2, 2")
        elif par == 4: e("s_cmp_eq_u32 s2, s2")
        else: e("s_cmp_lt_u32 s%d, 4" % sU)
        e("s_cselect_b32 s%d, s%d, 255" % (sT0, sT0))
    e("s_cmp_lt_u32 s%d, 120" % sT0)
    e("s_cselect_b32 s%d, %d, 0" % (sWD + 2, 1536 * 1280))
    e("s_cselect_b32 s%d, %d, 0" % (sWSF + 2, WS_Y))
    e("s_cselect_b32 s%d, 1, 0" % sACT)
    e("s_mov_b32 s%d, s20" % sWD); e("s_mov_b32 s%d, s21" % (sWD + 1)); e("s_mov_b32 s%d, 0x20000" % (sWD + 3))
    e("s_mov_b32 s%d, s26" % sWSF); e("s_mov_b32 s%d, s27" % (sWSF + 1)); e("s_mov_b32 s%d, 0x20000" % (sWSF + 3))
    e("s_mov_b32 s%d, 0x00ff00ff" % sVAL); e("s_mov_b32 s%d, 0xff00ff00" % (sVAL + 1))
    e("v_mul_u32_u24 v%d, 1280, v%d" % (vWO, T3))
    e("v_lshl_add_u32 v%d, v%d, 4, v%d" % (vWO, T1, vWO))
    e("s_mul_i32 s%d, s%d, 61440" % (sT0, sW))
    e("v_add_u32 v%d, s%d, v%d" % (vWO, sT0, vWO))
    e("v_lshrrev_b32 v%d, 5, v%d" % (T0, vL))
    e("v_and_b32 v%d, 16, v%d" % (T3, vL))
    e("v_lshl_add_u32 v%d, v%d, 5, v%d" % (vP1O, T2, T3))
    e("v_mul_u32_u24 v%d, %d, v%d" % (vQA, PSTR, T0)); e("v_add_u32 v%d, v%d, v%d" % (vQA, vQA, vP1O))
    e("s_mul_i32 s%d, s%d, %d" % (sT0, sW, 2 * PSTR))
    e("v_add_u32 v%d, s%d, v%d" % (vQA, sT0, vQA))
    e("v_mul_u32_u24 v%d, %d, v%d" % (vF1, PS2, T0)); e("v_add_u32 v%d, v%d, v%d" % (vF1, vF1, vP1O))
    e("s_mul_i32 s%d, s%d, %d" % (sT0, sW, 2 * PS2))
    e("v_add_u32 v%d, s%d, v%d" % (vF1, sT0, vF1))
    e("v_lshlrev_b32 v%d, 9, v%d" % (vFA, T0)); e("v_lshl_add_u32 v%d, v%d, 5, v%d" % (vFA, T1, vFA))
    e("v_add_u32 v%d, v%d, v%d" % (vFA, vFA, T3))
    e("v_lshrrev_b32 v%d, 3, v0" % T0); e("v_lshlrev_b32 v%d, 14, v%d" % (T0, T0))
    e("v_lshl_add_u32 v%d, v%d, 4, v%d" % (T0, T2, T0))
    e("s_mul_i32 s%d, s%d, %d" % (sT0, sB, 20 * 16384))
    e("s_lshl_b32 s%d, s%d, 7" % (sT1, sP))
    e("s_add_u32 s%d, s%d, s%d" % (sT0, sT0, sT1)); e("s_add_u32 s%d, s%d, %d" % (sT0, sT0, WS_Y))
    e("v_cmp_gt_u32 vcc, %d, v0" % (80 if diag == 2 else 160))
    e("v_add_u32 v%d, s%d, v%d" % (T0, sT0, T0))
    e("v_mov_b32 v%d, %d" % (vPY, OOB))
    e("v_cndmask_b32 v%d, v%d, v%d, vcc" % (vPY, vPY, T0))
    e("s_mov_b32 s%d, 0xff" % sFF); e("s_mov_b32 s%d, 0x0c0c0400" % sSEL)
    e("v_and_b32 v%d, 1, v%d" % (T0, vL))
    e("v_lshlrev_b32 v%d, 4, v%d" % (T0, T0))
    e("v_mov_b32 v%d, 0xffff" % T1)
    e("v_lshlrev_b32 v%d, v%d, v%d" % (T0, T0, T1))
    e("v_bfe_u32 v%d, v%d, 1, 2" % (T1, vL))
    for r in range(4):
        e("v_cmp_eq_u32 vcc, %d, v%d" % (r, T1))
        e("s_nop 1")
        e("v_cndmask_b32 v%d, 0, v%d, vcc" % (vM + r, T0))
    def issue_wd():
        e("s_lshl_b32 s%d, s%d, 2" % (sT0, sRB)); e("s_add_u32 s%d, s%d, s%d" % (sT0, sT0, sW))
        e("s_mul_i32 s%d, s%d, 20480" % (sT1, sT0))
        e("s_lshl_b32 s%d, s%d, 8" % (sT2, sC5)); e("s_add_u32 s%d, s%d, s%d" % (sT1, sT1, sT2))
        e("s_mul_i32 s%d, s%d, 61440" % (sT2, sW))
        e("v_subrev_u32 v%d, s%d, v%d" % (T1, sT2, vWO))
        for i in range(4):
            e.vmem("buffer_load_dwordx4 %s, v%d, %s, s%d offen %s" % (ar(240 + 4 * i), T1, sr(sWD), sT1, ff), "WD")
            if i < 3: e("s_add_u32 s%d, s%d, 5120" % (sT1, sT1))
    kn = [0]
    def more_k(n):
        for _ in range(n):
            if kn[0] < RING: issue_kv("K", kn[0], kn[0]); trace_pt("ik%d" % kn[0]); kn[0] += 1
    if wde == 1: issue_wd()
    more_k(k_pre)
    stamp('iss')
    e.wait_vm("x")
    stamp('x')
    X = 28
    for r in range(10):
        e("v_lshlrev_b32 v%d, 16, v%d" % (X + 2 * r, 18 + r))
        e("v_and_b32 v%d, 0xffff0000, v%d" % (X + 2 * r + 1, 18 + r))
    def half_allreduce(v, t, op="v_add_f32"):
        for pat in (X1, X2, HM, RM):
            e("s_nop 1")
            e("%s_dpp v%d, v%d, v%d %s %s" % (op, v, v, v, pat, DPP))
        e("v_mov_b32 v%d, v%d" % (t, v))
        e("s_nop 1")
        e("v_permlane16_swap_b32 v%d, v%d" % (v, t))
        e("s_nop 1")
        e("%s v%d, v%d, v%d" % (op, v, v, t))
    for r in range(4): e("v_add_f32 v%d, v%d, v%d" % (48 + r, X + r, X + 4 + r))
    for k in range(8, 20): e("v_add_f32 v%d, v%d, v%d" % (48 + k % 4, 48 + k % 4, X + k))
    e("v_add_f32 v48, v48, v49"); e("v_add_f32 v50, v50, v51"); e("v_add_f32 v48, v48, v50")
    half_allreduce(48, 49)
    more_k(k_l0)
    e("v_mul_f32 v48, %s, v48" % hx(f2u(1.0 / 640)))
    for k in range(20):
        e("v_sub_f32 v%d, v%d, v48" % (18 + k % 4, X + k))
        if k < 4: e("v_mul_f32 v%d, v%d, v%d" % (52 + k, 18 + k, 18 + k))
        else: e("v_fmac_f32 v%d, v%d, v%d" % (52 + k % 4, 18 + k % 4, 18 + k % 4))
    e("v_add_f32 v52, v52, v53"); e("v_add_f32 v54, v54, v55"); e("v_add_f32 v52, v52, v54")
    half_allreduce(52, 53)
    more_k(k_ln)
    e("v_mul_f32 v52, %s, v52" % hx(f2u(1.0 / 640)))
    e("v_cvt_pk_bf16_f32 v48, v48, v52")
    e("v_and_b32 v52, 0xffff0000, v48")
    e("v_lshlrev_b32 v48, 16, v48")
    e("v_add_f32 v52, %s, v52" % hx(f2u(1e-5)))
    e("v_cvt_pk_bf16_f32 v52, v52, v52")
    e("v_and_b32 v52, 0xffff0000, v52")
    e("v_sqrt_f32 v52, v52")
    e("s_nop 0")
    e("v_cvt_pk_bf16_f32 v52, v52, v52")
    e("v_and_b32 v52, 0xffff0000, v52")
    e("v_rcp_f32 v53, v52")
    for k in range(0, 20, 2):
        if k == 10: more_k(k_l2)
        a, b2 = X + k, X + k + 1
        e("v_sub_f32 v%d, v%d, v48" % (a, a)); e("v_sub_f32 v%d, v%d, v48" % (b2, b2))
        e("v_cvt_pk_bf16_f32 v18, v%d, v%d" % (a, b2))
        e("v_lshlrev_b32 v%d, 16, v18" % a); e("v_and_b32 v%d, 0xffff0000, v18" % b2)
        e("v_mul_f32 v19, v%d, v53" % a); e("v_mul_f32 v20, v%d, v53" % b2)
        e("v_fma_f32 v%d, -v19, v52, v%d" % (a, a)); e("v_fma_f32 v%d, -v20, v52, v%d" % (b2, b2))
        e("v_fmac_f32 v19, v%d, v53" % a); e("v_fmac_f32 v20, v%d, v53" % b2)
        e("v_cvt_pk_bf16_f32 v%d, v19, v19" % a); e("v_cvt_pk_bf16_f32 v%d, v20, v20" % b2)
    e("v_lshlrev_b32 v%d, 1, v%d" % (T4, T4)); e("v_lshlrev_b32 v%d, 1, v%d" % (T5, T5))
    e("ds_write_b128 v%d, %s offset:%d" % (T4, vr(X), L_XN))
    e("ds_write_b128 v%d, %s offset:%d" % (T4, vr(X + 4), L_XN + 16))
    e("ds_write_b128 v%d, %s offset:%d" % (T4, vr(X + 8), L_XN + 1024))
    e("ds_write_b128 v%d, %s offset:%d" % (T4, vr(X + 12), L_XN + 1024 + 16))
    e("ds_write_b128 v%d, %s offset:%d" % (T5, vr(X + 16), L_XN + 2048))
    e("v_mov_b32 v%d, %d" % (T4, L_CNT)); e("v_mov_b32 v%d, 0" % T5)
    e("s_waitcnt lgkmcnt(0)")
    e("s_add_u32 s%d, s%d, 1" % (sTAG, sTAG))
    e("s_and_b32 s%d, s%d, 0xff" % (sT0, sTAG)); e("s_mul_i32 s%d, s%d, 0x01010101" % (sT1, sT0))
    e("ds_write_b32 v%d, v%d" % (T4, T5))
    e("v_mov_b32 v%d, s%d" % (vTAG, sT0)); e("v_mov_b32 v%d, s%d" % (vTAG + 1, sT1))
    more_k(k_mid)
    stamp('ln')
    e("s_cmp_eq_u32 s%d, 0" % sS1); e("s_cbranch_scc1 L_frole")
    N0, N1 = ks // 32, (640 - ks) // 32
    e("s_mul_i32 s%d, s%d, %d" % (sT0, sKH, 4 * ks)); e("s_lshl_b32 s%d, s%d, 5" % (sT1, sW)); e("s_add_u32 s%d, s%d, s%d" % (sT0, sT0, sT1))
    e("v_lshrrev_b32 v%d, 3, v%d" % (T0, vL)); e("v_lshlrev_b32 v%d, 2, v%d" % (T1, T0))
    e("v_add_u32 v%d, s%d, v%d" % (T1, sT0, T1))
    for n in range(N0):
        e("ds_read_b32 v%d, v%d offset:%d" % (vS + 2 * n, T1, 128 * n))
        e("ds_read_b32 v%d, v%d offset:%d" % (vS + 2 * n + 1, T1, 128 * n + 2560))
        if n in (6, 9, 12): e("s_waitcnt lgkmcnt(8)")
    e("s_waitcnt lgkmcnt(0)")
    for n in range(N0):
        if n == N1:
            e("s_cmp_lg_u32 s%d, 0" % sKH); e("s_cbranch_scc1 L_qshort")
        afrag(vA0, vS + 2 * n); afrag(vA1, vS + 2 * n + 1)
        if n == 0: rwait = "s_waitcnt vmcnt(%d)" % min(e.behind("R"), 63); e(rwait)
        else: e("s_nop 0")
        mfma(vr(vACC), vr(vA0), ar(4 * n), "0" if n == 0 else vr(vACC))
        mfma(vr(vACC + 4), vr(vA1), ar(4 * n), "0" if n == 0 else vr(vACC + 4))
    e.label("L_qshort")
    mark0 = len(e.L); more_k(k_role); role_k = e.L[mark0:]
    e("v_and_b32 v%d, 31, v%d" % (T1, vL)); e("v_lshlrev_b32 v%d, 4, v%d" % (T1, T1))
    e("v_bfe_u32 v%d, v%d, 4, 1" % (T3, vL)); e("v_mul_u32_u24 v%d, 3072, v%d" % (T3, T3))
    e("v_and_b32 v%d, 15, v%d" % (T4, vL)); e("v_lshl_add_u32 v%d, v%d, 4, v%d" % (T3, T4, T3))
    e("v_lshrrev_b32 v%d, 5, v%d" % (T4, vL)); e("v_mul_u32_u24 v%d, 768, v%d" % (T4, T4)); e("v_add_u32 v%d, v%d, v%d" % (T3, T3, T4))
    e("s_mul_i32 s%d, s%d, 6144" % (sT0, sQH)); e("s_mul_i32 s%d, s%d, 1536" % (sT1, sKH)); e("s_add_u32 s%d, s%d, s%d" % (sT0, sT0, sT1))
    e("s_lshl_b32 s%d, s%d, 8" % (sT1, sNT)); e("s_add_u32 s%d, s%d, s%d" % (sT0, sT0, sT1))
    e("s_mov_b64 exec, %s" % sr(sVAL, 2))
    e("ds_write_b128 v%d, %s offset:%d" % (vF1, vr(vACC), L_Q1))
    e("ds_write_b128 v%d, %s offset:%d" % (vF1, vr(vACC + 4), L_Q1 + 256))
    e("s_mov_b64 exec, -1")
    e("s_waitcnt lgkmcnt(0)")
    e("s_barrier")
    e("s_cmp_lg_u32 s%d, 0" % sW); e("s_cbranch_scc1 L_rdone")
    for pp in range(8): e("ds_read_b128 %s, v%d offset:%d" % (vr(vS + 4 * pp), T1, L_Q1 + pp * PS2))
    e("s_waitcnt lgkmcnt(6)")
    for r in range(4): e("v_add_f32 v%d, v%d, v%d" % (18 + r, vS + r, vS + 4 + r))
    for pp in range(2, 8):
        e("s_waitcnt lgkmcnt(%d)" % (7 - pp))
        for r in range(4): e("v_add_f32 v%d, v%d, v%d" % (18 + r, 18 + r, vS + 4 * pp + r))
    e("s_mov_b32 exec_lo, 0")
    for r in range(4): untag(22 + r, 18 + r)
    for r in range(4): e("v_sub_f32 v%d, v%d, v%d" % (18 + r, 18 + r, 22 + r))
    e("s_mov_b64 exec, -1")
    for r in range(4): e("v_bfi_b32 v%d, s%d, v%d, v%d" % (18 + r, sFF, vTAG, 18 + r))
    e.vmem("buffer_store_dwordx4 v[18:21], v%d, %s, s%d offen %s" % (T3, sr(sWS), sT0, stf), counted=False)
    e("s_branch L_rdone")
    e.label("L_frole")
    e("v_bfe_u32 v%d, v%d, 3, 1" % (T0, vL)); e("v_mul_u32_u24 v%d, 2560, v%d" % (T0, T0))
    e("v_lshrrev_b32 v%d, 4, v%d" % (T3, vL)); e("v_lshl_add_u32 v%d, v%d, 2, v%d" % (T0, T3, T0))
    e("s_lshl_b32 s%d, s%d, 9" % (sT0, sKR)); e("s_lshl_b32 s%d, s%d, 4" % (sT1, sW)); e("s_add_u32 s%d, s%d, s%d" % (sT0, sT0, sT1))
    e("v_add_u32 v%d, s%d, v%d" % (T0, sT0, T0))
    for m in range(0, 8, 2): e("ds_read2_b32 v[%d:%d], v%d offset0:%d offset1:%d" % (vS + m, vS + m + 1, T0, 16 * m, 16 * m + 16))
    e("s_waitcnt lgkmcnt(0)")
    for m in range(8):
        A = vA0 if m % 2 == 0 else vA1
        afrag(A, vS + m)
        e("s_nop 0")
        if m == 0: e(rwait)
        else: e("s_nop 0")
        mfma(vr(vACC), vr(A), ar(8 * m), "0" if m == 0 else vr(vACC))
        mfma(vr(vACC + 4), vr(A), ar(8 * m + 4), "0" if m == 0 else vr(vACC + 4))
    e.L += role_k
    e("s_lshl_b32 s%d, s%d, 11" % (sT0, sW))
    e("v_add_u32 v%d, s%d, v%d" % (T0, sT0, vFA))
    e("v_bfe_u32 v%d, v0, 1, 2" % T2); e("v_lshlrev_b32 v%d, 9, v%d" % (T2, T2))
    e("v_bfe_u32 v%d, v0, 3, 4" % T3); e("v_lshl_add_u32 v%d, v%d, 5, v%d" % (T2, T3, T2))
    e("v_and_b32 v%d, 1, v0" % T4); e("v_lshl_add_u32 v%d, v%d, 4, v%d" % (T2, T4, T2))
    e("v_and_b32 v%d, 127, v0" % T3); e("v_lshlrev_b32 v%d, 4, v%d" % (T3, T3))
    e("s_mul_i32 s%d, s%d, 24576" % (sT0, sKR)); e("s_lshl_b32 s%d, s%d, 11" % (sT1, sFS))
    e("s_add_u32 s%d, s%d, s%d" % (sT0, sT0, sT1)); e("s_add_u32 s%d, s%d, %d" % (sT0, sT0, WS_P1))
    e("ds_write_b128 v%d, %s offset:%d" % (T0, vr(vACC), L_F1))
    e("ds_write_b128 v%d, %s offset:%d" % (T0, vr(vACC + 4), L_F1 + 1024))
    e("s_waitcnt lgkmcnt(0)")
    e("s_barrier")
    e("s_cmp_eq_u32 s%d, 0" % sFACT); e("s_cbranch_scc1 L_rdone")
    for pp in range(4): e("ds_read_b128 %s, v%d offset:%d" % (vr(vS + 4 * pp), T2, L_F1 + pp * 2048))
    e("s_waitcnt lgkmcnt(0)")
    for r in range(4): e("v_add_f32 v%d, v%d, v%d" % (18 + r, vS + r, vS + 4 + r))
    for pp in (2, 3):
        for r in range(4): e("v_add_f32 v%d, v%d, v%d" % (18 + r, 18 + r, vS + 4 * pp + r))
    if p1lo:
        lab = e.newlab("p1hi")
        e("s_cmp_lt_u32 s%d, 2" % sW); e("s_cbranch_scc1 %s" % lab)
        for r in range(4): untag(22 + r, 18 + r)
        for r in range(4): e("v_sub_f32 v%d, v%d, v%d" % (18 + r, 18 + r, 22 + r))
        e("s_add_u32 s%d, s%d, %d" % (sT0, sT0, P1_LO))
        e.label(lab)
        for r in range(4): e("v_bfi_b32 v%d, s%d, v%d, v%d" % (18 + r, sFF, vTAG, 18 + r))
    else:
        e("s_cmp_ge_u32 s%d, 2" % sW); e("s_cbranch_scc1 L_rdone")
        for r in range(4): tagit(18 + r, 18 + r)
    e.vmem("buffer_store_dwordx4 v[18:21], v%d, %s, s%d offen %s" % (T3, sr(sWS), sT0, stf), counted=False)
    e.label("L_rdone")
    stamp('q1')
    if wde == 2: issue_wd()
    e("s_lshl_b32 s%d, s%d, 1" % (sT0, sH)); e("s_add_u32 s%d, s%d, s%d" % (sT0, sT0, sB)); e("s_mul_i32 s%d, s%d, 3072" % (sT0, sT0))
    e("s_mul_i32 s%d, s%d, 768" % (sT1, sW)); e("s_add_u32 s%d, s%d, s%d" % (sT0, sT0, sT1))
    e("v_lshlrev_b32 v%d, 4, v%d" % (T4, vL)); e("v_add_u32 v%d, s%d, v%d" % (vWQ, sT0, T4))
    vQC = vS
    def issue_qc(counted):
        e.vmem("buffer_load_dwordx4 %s, v%d, %s, 0 offen sc1" % (vr(vQC), vWQ, sr(sWS)), "QC", counted=counted)
    more_k(qc_after - kn[0])
    e("s_mov_b32 exec_hi, 0xffff")
    issue_qc(True)
    e("s_mov_b64 exec, -1")
    more_k(RING)
    for g in range(NE - ne_late): issue_kv("V", g, ('a', AVE + 12 * g)); trace_pt("iv%d" % g)
    for g in range(4, 32): e("v_mov_b32 v%d, 0" % (vS + g))
    e("s_mul_i32 s%d, s%d, 768" % (sT0, sW)); e("s_add_u32 s%d, s%d, %d" % (sT0, sT0, L_QC))
    e("v_lshlrev_b32 v%d, 3, v%d" % (T2, vL)); e("v_add_u32 v%d, s%d, v%d" % (T3, sT0, T4))
    e("v_and_b32 v%d, 7, v%d" % (T5, vL)); e("v_lshlrev_b32 v%d, 4, v%d" % (T5, T5))
    stamp('iss2')
    e.wait_vm("QC")
    e("s_mov_b32 exec_hi, 0xffff")
    poll("qc", [vQC], T0, T1, lambda: issue_qc(False))
    for r in range(4): untag(vQC + r, vQC + r)
    e("ds_write_b128 v%d, %s" % (T3, vr(vQC)))
    e("s_mov_b64 exec, -1")
    e("s_waitcnt lgkmcnt(0)")
    e("s_barrier")
    stamp('b1')
    e("ds_read_b128 %s, v%d offset:%d" % (vr(vQF), T4, L_QC))
    e("ds_read_b128 %s, v%d offset:%d" % (vr(vQF + 4), T4, L_QC + 768))
    e("ds_read_b128 %s, v%d offset:%d" % (vr(vQF + 8), T4, L_QC + 1536))
    e("ds_read_b128 %s, v%d offset:%d" % (vr(vA0), T4, L_QC + 2304))
    for g in range(4): e("v_mov_b32 v%d, 0" % (vS + g))
    for g in range(NE - ne_late, NE): issue_kv("V", g, ('a', AVE + 12 * g))
    e("s_waitcnt lgkmcnt(0)")
    for r in range(4): e("v_add_f32 v%d, v%d, v%d" % (vQF + r, vQF + r, vQF + 4 + r))
    for r in range(4): e("v_add_f32 v%d, v%d, v%d" % (vQF + 8 + r, vQF + 8 + r, vA0 + r))
    for r in range(4): e("v_add_f32 v%d, v%d, v%d" % (vQF + r, vQF + r, vQF + 8 + r))
    e("v_cvt_pk_bf16_f32 v%d, v%d, v%d" % (vQF, vQF, vQF + 1))
    e("v_cvt_pk_bf16_f32 v%d, v%d, v%d" % (vQF + 1, vQF + 2, vQF + 3))
    e("ds_write_b64 v%d, %s offset:%d" % (T2, vr(vQF, 2), L_QB))
    e("s_waitcnt lgkmcnt(0)")
    for t in range(3): e("ds_read_b128 %s, v%d offset:%d" % (vr(vQF + 4 * t), T5, L_QB + t * 128))
    e("s_waitcnt lgkmcnt(0)")

    vP1 = 10
    def issue_p1(counted):
        e.vmem("buffer_load_dwordx4 %s, v%d, %s, 0 offen sc1" % (vr(vP1), vP1O, sr(sWSF)), "P1", counted=counted)
        e.vmem("buffer_load_dwordx4 %s, v%d, %s, 0 offen sc1" % (vr(vP1 + 4), vF1, sr(sWSF)), "P1", counted=counted)
        if not p1lo: return
        e("s_mov_b32 s%d, %d" % (sSO, P1_LO))
        e.vmem("buffer_load_dwordx4 %s, v%d, %s, s%d offen sc1" % (vr(vP1 + 8), vP1O, sr(sWSF), sSO), "P1", counted=counted)
        e.vmem("buffer_load_dwordx4 %s, v%d, %s, s%d offen sc1" % (vr(vP1 + 12), vF1, sr(sWSF), sSO), "P1", counted=counted)
    def start_p1():
        e("s_lshl_b32 s%d, s%d, 2" % (sT0, sRB)); e("s_add_u32 s%d, s%d, s%d" % (sT0, sT0, sW))
        e("s_lshl_b32 s%d, s%d, 8" % (sT1, sT0)); e("s_add_u32 s%d, s%d, %d" % (sT1, sT1, WS_P1))
        e("v_and_b32 v%d, 15, v%d" % (vF1, vL)); e("v_lshlrev_b32 v%d, 4, v%d" % (vF1, vF1)); e("v_add_u32 v%d, s%d, v%d" % (vF1, sT1, vF1))
        e("v_lshrrev_b32 v%d, 4, v%d" % (vP1O, vL)); e("v_mul_u32_u24 v%d, 24576, v%d" % (vP1O, vP1O)); e("v_add_u32 v%d, v%d, v%d" % (vP1O, vP1O, vF1))
        e("v_add_u32 v%d, %d, v%d" % (vF1, 4 * 24576, vF1))
        issue_p1(True)
        if not wde: issue_wd()
    def stage2():
        skip = e.newlab("nost2")
        e("s_cmp_eq_u32 s%d, 0" % sACT); e("s_cbranch_scc1 %s" % skip)
        e.wait_vm("P1" if wde else "WD")
        poll("p1", [vP1, vP1 + 4, vP1 + 8, vP1 + 12][:4 if p1lo else 2], T1, T2, lambda: issue_p1(False))
        for r in range(16 if p1lo else 8): untag(10 + r, 10 + r)
        if p1lo:
            for r in range(8): e("v_add_f32 v%d, v%d, v%d" % (10 + r, 10 + r, 18 + r))
        e("s_mov_b64 exec, 0xffff")
        for r in range(4): e("v_add_f32 v%d, v%d, v%d" % (10 + r, 10 + r, 14 + r))
        e("s_mov_b64 exec, -1")
        for sw in ("v_permlane16_swap_b32", "v_permlane32_swap_b32"):
            for r in range(4): e("v_mov_b32 v%d, v%d" % (14 + r, 10 + r))
            e("s_nop 0")
            for r in range(4): e("%s v%d, v%d" % (sw, 10 + r, 14 + r))
            e("s_nop 0")
            for r in range(4): e("v_add_f32 v%d, v%d, v%d" % (10 + r, 10 + r, 14 + r))
        e("v_cvt_pk_bf16_f32 v14, v10, v11"); e("v_cvt_pk_bf16_f32 v15, v12, v13")
        e("v_lshlrev_b32 v10, 16, v14"); e("v_and_b32 v11, 0xffff0000, v14")
        e("v_lshlrev_b32 v12, 16, v15"); e("v_and_b32 v13, 0xffff0000, v15")
        e("s_nop 0")
        for r in range(4): e("v_mov_b32_dpp v%d, v%d row_shl:4 %s" % (14 + r, 10 + r, DPP))
        for k in range(4): e("v_mul_f32 v%d, v%d, v%d" % (18 + k, 10 + k, 10 + k))
        for k in range(4): e("v_mul_f32 v%d, %s, v%d" % (18 + k, hx(f2u(0.044715)), 18 + k))
        for k in range(4): e("v_fma_f32 v%d, v%d, v%d, v%d" % (18 + k, 18 + k, 10 + k, 10 + k))
        for k in range(4): e("v_mul_f32 v%d, %s, v%d" % (18 + k, hx(f2u(-2.0 * LOG2E * 0.7978845608028654)), 18 + k))
        for k in range(4): e("v_exp_f32 v%d, v%d" % (18 + k, 18 + k))
        for k in range(4): e("v_add_f32 v%d, 1.0, v%d" % (18 + k, 18 + k))
        for k in range(4): e("v_rcp_f32 v%d, v%d" % (18 + k, 18 + k))
        for k in range(4): e("v_mul_f32 v%d, v%d, v%d" % (18 + k, 10 + k, 18 + k))
        e("v_cvt_pk_bf16_f32 v10, v18, v19"); e("v_cvt_pk_bf16_f32 v11, v20, v21")
        e("v_lshlrev_b32 v18, 16, v10"); e("v_and_b32 v19, 0xffff0000, v10")
        e("v_lshlrev_b32 v20, 16, v11"); e("v_and_b32 v21, 0xffff0000, v11")
        for k in range(4): e("v_mul_f32 v%d, v%d, v%d" % (18 + k, 18 + k, 14 + k))
        e("v_cvt_pk_bf16_f32 v28, v18, v19"); e("v_cvt_pk_bf16_f32 v29, v20, v21")
        e("v_bfe_u32 v18, v%d, 3, 1" % vL); e("v_lshlrev_b32 v18, 3, v18")
        for i, off in enumerate((0, 4, 32, 36)):
            e("ds_bpermute_b32 v%d, v18, v28 offset:%d" % (10 + i, off)); e("ds_bpermute_b32 v%d, v18, v29 offset:%d" % (14 + i, off))
        e("v_lshrrev_b32 v19, 4, v%d" % vL); e("v_mul_u32_u24 v19, 0x0202, v19"); e("v_add_u32 v19, 0x0100, v19")
        e("v_lshl_or_b32 v19, v19, 16, v19")
        e("s_waitcnt lgkmcnt(0)")
        for i in range(4): e("v_perm_b32 v%d, v%d, v%d, v19" % (10 + i, 14 + i, 10 + i))
        for i in range(4):
            A = 20 if i % 2 == 0 else 24
            afrag(A, 10 + i)
            e("s_nop 1")
            mfma(vr(16), vr(A), ar(240 + 4 * i), "0" if i == 0 else vr(16))
        e("s_lshl_b32 s%d, s%d, 10" % (sT0, sW))
        e("v_add_u32 v10, s%d, v%d" % (sT0, vFA))
        e("v_mov_b32 v11, %d" % L_CNT); e("v_mov_b32 v12, 1")
        e("s_nop 5")
        e("ds_write_b128 v10, %s offset:%d" % (vr(16), L_F2))
        e("s_waitcnt lgkmcnt(0)")
        e("s_mov_b64 exec, 1")
        e("ds_add_rtn_u32 v12, v11, v12")
        e("s_mov_b64 exec, -1")
        e("s_waitcnt lgkmcnt(0)")
        e("v_readfirstlane_b32 s%d, v12" % sT0)
        e("s_nop 3")
        e("s_cmp_lg_u32 s%d, 3" % sT0); e("s_cbranch_scc1 %s" % skip)
        e("v_lshlrev_b32 v28, 4, v%d" % vL)
        for pp in range(4): e("ds_read_b128 %s, v28 offset:%d" % (vr(10 + 4 * pp), L_F2 + pp * 1024))
        e("v_lshrrev_b32 v28, 3, v%d" % vL); e("v_mul_u32_u24 v28, 3072, v28")
        e("v_and_b32 v29, 7, v%d" % vL); e("v_lshl_add_u32 v28, v29, 4, v28")
        e("s_mul_i32 s%d, s%d, %d" % (sT0, sC5, 8 * 3072))
        e("s_lshl_b32 s%d, s%d, 7" % (sT1, sRB))
        e("s_add_u32 s%d, s%d, s%d" % (sT0, sT0, sT1)); e("s_add_u32 s%d, s%d, %d" % (sT0, sT0, WS_P2))
        e("s_waitcnt lgkmcnt(0)")
        for pp in range(1, 4):
            for r in range(4): e("v_add_f32 v%d, v%d, v%d" % (10 + r, 10 + r, 10 + 4 * pp + r))
        for r in range(4): tagit(10 + r, 10 + r)
        e.vmem("buffer_store_dwordx4 %s, v28, %s, s%d offen %s" % (vr(10), sr(sWSF), sT0, stf), counted=False)
        e("s_nop 1")
        e.label(skip)

    curwin[0] = -1 if wine else win
    if wine:
        e("s_and_b32 s%d, s2, 7" % sT0); e("s_lshr_b32 s%d, %d, s%d" % (sTHR, wmask, sT0)); e("s_and_b32 s%d, s%d, 1" % (sTHR, sTHR))
    sc = hx(f2u(192 ** -0.5))
    nwo = [0]
    NO1 = AVE // 12
    def finish_scores(g0):
        a, b2, t = vS + g0, vS + g0 + 1, T0
        for pat in (X1, X2, HM):
            e("v_add_f32_dpp v%d, v%d, v%d %s %s" % (a, a, a, pat, DPP))
            e("v_add_f32_dpp v%d, v%d, v%d %s %s" % (b2, b2, b2, pat, DPP))
            e("s_nop 0")
        e("v_cvt_pk_bf16_f32 v%d, v%d, v%d" % (t, a, b2))
        e("v_lshlrev_b32 v%d, 16, v%d" % (a, t)); e("v_and_b32 v%d, 0xffff0000, v%d" % (b2, t))
        e("v_mul_f32 v%d, %s, v%d" % (a, sc, a)); e("v_mul_f32 v%d, %s, v%d" % (b2, sc, b2))
        e("v_cvt_pk_bf16_f32 v%d, v%d, v%d" % (t, a, b2))
        e("v_lshlrev_b32 v%d, 16, v%d" % (a, t)); e("v_and_b32 v%d, 0xffff0000, v%d" % (b2, t))
        if g0 == 0: e("v_max_f32 v%d, v%d, v%d" % (vMW, a, b2))
        else: e("v_max3_f32 v%d, v%d, v%d, v%d" % (vMW, vMW, a, b2))
    def group_allreduce(v, t, op):
        e("s_nop 1")
        e("%s_dpp v%d, v%d, v%d %s %s" % (op, v, v, v, R8, DPP))
        e("v_mov_b32 v%d, v%d" % (t, v)); e("s_nop 1")
        e("v_permlane16_swap_b32 v%d, v%d" % (v, t)); e("s_nop 1")
        e("%s v%d, v%d, v%d" % (op, v, v, t))
        e("v_mov_b32 v%d, v%d" % (t, v)); e("s_nop 1")
        e("v_permlane32_swap_b32 v%d, v%d" % (v, t)); e("s_nop 1")
        e("%s v%d, v%d, v%d" % (op, v, v, t))
    l2e = hx(f2u(LOG2E))
    def exps(gs, m):
        for g in gs: e("v_sub_f32 v%d, v%d, v%d" % (vS + g, vS + g, m))
        for g in gs: e("v_mul_f32 v%d, %s, v%d" % (vS + g, l2e, vS + g))
        for g in gs: e("v_exp_f32 v%d, v%d" % (vS + g, vS + g))
    NEARLY = 28
    vM1, vL1 = T1, T2
    vn = [NE]
    for g in range(32):
        e.wait_vm("K%d" % g)
        stamp('k%d' % g)
        rs = ring[("K", g)]
        for t in range(3):
            for r in range(4):
                e("v_dot2c_f32_bf16 v%d, v%d, v%d" % (vS + g, rslot(rs, t) + r, vQF + 4 * t + r))
        if g + RING < 32: issue_kv("K", g + RING, rs)
        else: issue_kv("V", vn[0], rs); vn[0] += 1
        if nwo[0] < NO1 and g >= ostart and (g - ostart) % ostep == 0:
            issue_wo(nwo[0]); nwo[0] += 1
        if g == p1_g: start_p1()
        if g == st2_g: stage2()
        if g % 2 == 1 and 3 <= g < 31: finish_scores(g - 3)
        if g == 29:
            e("v_mov_b32 v%d, v%d" % (vM1, vMW))
            group_allreduce(vM1, T0, "v_max_f32")
            exps(range(0, 14), vM1)
        if g == 30:
            exps(range(14, 28), vM1)
            finish_scores(28)
            e("v_add_f32 v%d, v%d, v%d" % (vL1, vS, vS + 1)); e("v_add_f32 v%d, v%d, v%d" % (T0, vS + 2, vS + 3))
            for k in range(4, NEARLY, 2):
                e("v_add_f32 v%d, v%d, v%d" % (vL1, vL1, vS + k)); e("v_add_f32 v%d, v%d, v%d" % (T0, T0, vS + k + 1))
            e("v_add_f32 v%d, v%d, v%d" % (vL1, vL1, T0))
    finish_scores(30)
    group_allreduce(vMW, T0, "v_max_f32")
    vFAC, vLF = 41, 39
    e("v_sub_f32 v%d, v%d, v%d" % (vFAC, vM1, vMW)); e("v_mul_f32 v%d, %s, v%d" % (vFAC, l2e, vFAC)); e("v_exp_f32 v%d, v%d" % (vFAC, vFAC))
    exps(range(NEARLY, 32), vMW)
    stamp('b2')
    def wave_sum():
        e("v_mul_f32 v%d, v%d, v%d" % (vLW, vL1, vFAC))
        for k in range(NEARLY, 32): e("v_add_f32 v%d, v%d, v%d" % (vLW, vLW, vS + k))
        group_allreduce(vLW, T0, "v_add_f32")
        e("s_lshl_b32 s%d, s%d, 3" % (sT0, sW)); e("s_add_u32 s%d, s%d, %d" % (sT0, sT0, L_ML)); e("v_mov_b32 v%d, s%d" % (T0, sT0))
        e("ds_write_b64 v%d, v[%d:%d]" % (T0, vMW, vLW))
    def wg_exchange():
        e("v_bfe_u32 v%d, v%d, 1, 2" % (T0, vL)); e("v_lshlrev_b32 v%d, 3, v%d" % (T0, T0))
        e("s_waitcnt lgkmcnt(0)")
        e("s_barrier")
        e("ds_read_b64 v[30:31], v%d offset:%d" % (T0, L_ML))
        e("s_waitcnt lgkmcnt(0)")
        e("v_mov_b32 v32, v30")
        for pat in (X2, HM):
            e("s_nop 1"); e("v_max_f32_dpp v32, v32, v32 %s %s" % (pat, DPP))
        e("v_sub_f32 v33, v30, v32")
        e("v_mul_f32 v33, %s, v33" % l2e)
        e("v_exp_f32 v33, v33")
        e("s_nop 0")
        e("v_mul_f32 v30, v33, v31")
        for pat in (X2, HM):
            e("s_nop 1"); e("v_add_f32_dpp v30, v30, v30 %s %s" % (pat, DPP))
        e("v_rcp_f32 v31, v30")
        tagit(34, 32); tagit(35, 30); tagit(36, 32); tagit(37, 30)
        e("v_mul_f32 v%d, v33, v31" % vLF)
        e("s_lshl_b32 s%d, s%d, 7" % (sT0, sB)); e("s_add_u32 s%d, s%d, s%d" % (sT0, sT0, sP))
        e("s_lshl_b32 s%d, s%d, 7" % (sT0, sT0)); e("s_add_u32 s%d, s%d, %d" % (sWQO, sT0, WS_ML))
        e("v_mov_b32 v%d, v32" % vMW); e("v_mov_b32 v%d, v30" % vLW)
        e("v_lshlrev_b32 v%d, 4, v%d" % (vF1, vL))
        lab = e.newlab("noml")
        e("s_cmp_lg_u32 s%d, 3" % sW); e("s_cbranch_scc1 %s" % lab)
        e("s_mov_b64 exec, 0xff")
        e.vmem("buffer_store_dwordx4 %s, v%d, %s, s%d offen %s" % (vr(34), vF1, sr(sWS), sWQO, stf), counted=False)
        e("s_mov_b64 exec, -1")
        e.label(lab)
        e("s_and_b32 s%d, s%d, %d" % (sWQO, sWQO, ~511 & 0xffffffff))
        e("v_and_b32 v%d, 3, v%d" % (vF1, vL)); e("v_lshlrev_b32 v%d, 7, v%d" % (vF1, vF1))

    aY, aML, cF, cX, aOUT, aCO, aCR, cG = 42, 43, 44, 48, 49, 50, 51, 52
    def quad_reduce(q):
        e("s_nop 0")
        e("v_permlane32_swap_b32 v%d, v%d" % (q, q + 1)); e("v_permlane32_swap_b32 v%d, v%d" % (q + 2, q + 3)); e("s_nop 0")
        e("v_add_f32 v%d, v%d, v%d" % (q, q, q + 1)); e("v_add_f32 v%d, v%d, v%d" % (q + 2, q + 2, q + 3)); e("s_nop 1")
        e("v_permlane16_swap_b32 v%d, v%d" % (q, q + 2)); e("s_nop 0")
        e("v_add_f32 v%d, v%d, v%d" % (q, q, q + 2)); e("s_nop 1")
        e("v_add_f32_dpp v%d, v%d, v%d %s %s" % (q, q, q, R8, DPP))
    def ld_f(counted): e.vmem("buffer_load_dwordx4 %s, v%d, %s, 0 offen sc1" % (vr(cF), 53, sr(sWSF)), "CF", counted=counted)
    vWJ = 38
    def ld_sib(counted): e.vmem("buffer_load_dwordx4 %s, v%d, %s, s%d offen sc1" % (vr(30), vF1, sr(sWS), sWQO), "SIB", counted=counted)
    def split_weight():
        e.wait_vm("SIB")
        poll("sib", [30], 54, 55, lambda: ld_sib(False))
        untag(30, 30); untag(31, 31)
        e("v_mov_b32 v32, v30")
        for pat in (X1, X2):
            e("s_nop 1"); e("v_max_f32_dpp v32, v32, v32 %s %s" % (pat, DPP))
        e("v_sub_f32 v30, v30, v32"); e("v_sub_f32 v33, v%d, v32" % vMW)
        e("v_mul_f32 v30, %s, v30" % l2e); e("v_mul_f32 v33, %s, v33" % l2e)
        e("v_exp_f32 v30, v30"); e("v_exp_f32 v33, v33")
        e("v_add_u32 v32, 0x80, v%d" % vLW); untag(32, 32)
        e("v_mul_f32 v30, v30, v31"); e("v_mul_f32 v33, v33, v32")
        for pat in (X1, X2):
            e("s_nop 1"); e("v_add_f32_dpp v30, v30, v30 %s %s" % (pat, DPP))
        e("v_rcp_f32 v30, v30"); e("s_nop 0")
        e("v_mul_f32 v%d, v33, v30" % vWJ)
        e("v_mul_f32 v%d, v%d, v%d" % (vWJ, vWJ, vLF))
    def consumer_setup():
        if elect:
            e("s_mov_b32 s%d, %d" % (sWSF + 2, WS_SIZE))
        elif tab:
            e("s_and_b32 s%d, s%d, 63" % (sCI, sTHR))
            e("s_cmp_lt_u32 s%d, 40" % sCI)
            e("s_cselect_b32 s%d, 1, 0" % sCONS); e("s_cselect_b32 s%d, %d, 0" % (sWSF + 2, WS_SIZE))
        elif par:
            e("s_lshr_b32 s%d, s2, 6" % sT0); e("s_lshl_b32 s%d, s%d, 2" % (sT0, sT0))
            e("s_sub_u32 s%d, s%d, 4" % (sT1, sU)); e("s_add_u32 s%d, s%d, s%d" % (sT0, sT0, sT1))
            e("s_cmp_lt_u32 s%d, 4" % sT1); e("s_cselect_b32 s%d, s%d, 99" % (sT0, sT0))
            e("s_bitcmp1_b32 s2, 0"); e("s_cselect_b32 s%d, s%d, 99" % (sT0, sT0))
            e("s_bfe_u32 s%d, s2, 0x20001" % sT1); e("s_mul_i32 s%d, s%d, 10" % (sCI, sT1)); e("s_add_u32 s%d, s%d, s%d" % (sCI, sCI, sT0))
            e("s_cmp_lt_u32 s%d, 10" % sT0)
            e("s_cselect_b32 s%d, 1, 0" % sCONS); e("s_cselect_b32 s%d, %d, 0" % (sWSF + 2, WS_SIZE))
        elif lightc:
            e("s_lshr_b32 s%d, s2, 6" % sT0); e("s_lshl_b32 s%d, s%d, 1" % (sT0, sT0))
            e("s_sub_u32 s%d, s%d, 4" % (sT1, sU)); e("s_add_u32 s%d, s%d, s%d" % (sT0, sT0, sT1))
            e("s_cmp_lt_u32 s%d, 2" % sT1); e("s_cselect_b32 s%d, s%d, 99" % (sT0, sT0))
            e("s_and_b32 s%d, s2, 7" % sT1); e("s_mul_i32 s%d, s%d, 5" % (sCI, sT1)); e("s_add_u32 s%d, s%d, s%d" % (sCI, sCI, sT0))
            e("s_cmp_lt_u32 s%d, 5" % sT0)
            e("s_cselect_b32 s%d, 1, 0" % sCONS); e("s_cselect_b32 s%d, %d, 0" % (sWSF + 2, WS_SIZE))
        else:
            e("s_and_b32 s%d, s2, 1" % sT0); e("s_lshl_b32 s%d, s%d, 8" % (sT0, sT0)); e("s_add_u32 s%d, s%d, s2" % (sT0, sT0))
            e("s_cmp_lt_u32 s%d, 80" % sT0)
            e("s_cselect_b32 s%d, 1, 0" % sCONS); e("s_cselect_b32 s%d, %d, 0" % (sWSF + 2, WS_SIZE))
            e("s_lshr_b32 s%d, s2, 1" % sCI)
        e("s_cmp_ge_u32 s%d, 20" % sCI); e("s_cselect_b32 s%d, 1, 0" % sB)
        e("s_mul_i32 s%d, s%d, 20" % (sT0, sB)); e("s_sub_u32 s%d, s%d, s%d" % (sH, sCI, sT0))
        e("v_lshlrev_b32 v53, 4, v%d" % vL)
        e("s_lshl_b32 s%d, s%d, 14" % (sT0, sCI)); e("s_lshl_b32 s%d, s%d, 12" % (sT1, sW))
        e("s_add_u32 s%d, s%d, s%d" % (sT0, sT0, sT1)); e("s_add_u32 s%d, s%d, %d" % (sT0, sT0, WS_Y))
        e("v_add_u32 v%d, s%d, v53" % (aY, sT0))
        e("s_lshr_b32 s%d, s%d, 2" % (sT0, sH)); e("s_lshl_b32 s%d, s%d, 1" % (sT0, sT0)); e("s_add_u32 s%d, s%d, s%d" % (sT0, sT0, sB))
        e("s_lshl_b32 s%d, s%d, 2" % (sT0, sT0)); e("s_and_b32 s%d, s%d, 3" % (sT1, sH)); e("s_add_u32 s%d, s%d, s%d" % (sT0, sT0, sT1))
        e("s_mul_i32 s%d, s%d, 3072" % (sT0, sT0)); e("s_mul_i32 s%d, s%d, 768" % (sT1, sW))
        e("s_add_u32 s%d, s%d, s%d" % (sT0, sT0, sT1)); e("s_add_u32 s%d, s%d, %d" % (sT0, sT0, WS_P2))
        e("v_min_u32 v53, 752, v53"); e("v_add_u32 v53, s%d, v53" % sT0)
        e("v_lshrrev_b32 v%d, 3, v%d" % (aML, vL)); e("v_lshlrev_b32 v%d, 7, v%d" % (aML, aML))
        e("s_lshl_b32 s%d, s%d, 14" % (sT0, sB)); e("s_lshl_b32 s%d, s%d, 12" % (sT1, sW))
        e("s_add_u32 s%d, s%d, s%d" % (sT0, sT0, sT1)); e("s_add_u32 s%d, s%d, %d" % (sT0, sT0, WS_ML))
        e("v_add_u32 v%d, s%d, v%d" % (aML, sT0, aML))
        e("v_and_b32 v%d, 31, v%d" % (aCR, vL)); e("v_lshlrev_b32 v%d, 1, v%d" % (aOUT, aCR))
        e("s_lshl_b32 s%d, s%d, 6" % (sT0, sCI)); e("v_add_u32 v%d, s%d, v%d" % (aOUT, sT0, aOUT))
        e("v_lshlrev_b32 v%d, 2, v%d" % (aCR, aCR)); e("v_add_u32 v%d, %d, v%d" % (aCR, L_CO, aCR))
        ld_f(True)
        e.vmem("buffer_load_ushort v%d, v%d, %s, 0 offen" % (cX, aOUT, sr(sX)), "CF")
        e("v_and_b32 v%d, 7, v%d" % (aCO, vL)); e("v_lshlrev_b32 v%d, 4, v%d" % (aCO, aCO))
        e("v_bfe_u32 v%d, v%d, 4, 1" % (cG, vL)); e("v_lshl_add_u32 v%d, v%d, 3, v%d" % (aCO, cG, aCO))
        e("v_lshrrev_b32 v%d, 5, v%d" % (cG, vL)); e("v_lshl_add_u32 v%d, v%d, 2, v%d" % (aCO, cG, aCO))
        e("s_lshl_b32 s%d, s%d, 7" % (sT0, sW)); e("v_add_u32 v%d, s%d, v%d" % (aCO, sT0, aCO))
    def consumer_ffn():
        skip = e.newlab("nocf")
        if not elect: e("s_cmp_eq_u32 s%d, 0" % sCONS); e("s_cbranch_scc1 %s" % skip)
        e.wait_vm("CF")
        poll("cf", [cF], 54, 55, lambda: ld_f(False))
        for r in range(4): untag(cF + r, cF + r)
        e("s_mov_b32 exec_lo, 0"); e("s_mov_b32 exec_hi, 0xffff0000")
        for r in range(4): e("v_mov_b32 v%d, 0" % (cF + r))
        e("s_mov_b64 exec, -1")
        e("v_lshlrev_b32 v%d, 16, v%d" % (cX, cX))
        quad_reduce(cF)
        e("ds_write_b32 v%d, v%d offset:%d" % (aCO, cF, L_CF))
        e.label(skip)

    order = list(range(32))
    if vilv:
        order = [x for k in range(NE) for x in (NE + k, k)] + list(range(2 * NE, 32))
    for g, vg in enumerate(order):
        A = vA0 if g % 2 == 0 else vA1
        if vg < NEARLY: e("v_mul_f32 v%d, v%d, v%d" % (vS + vg, vS + vg, vFAC))
        e("v_cvt_pk_bf16_f32 v%d, v%d, v%d" % (vS + vg, vS + vg, vS + vg))
        afrag(A, vS + vg)
        e("s_nop 0")
        e.wait_vm("V%d" % vg)
        stamp('v%d' % g)
        rs = ring[("V", vg)]
        for t in range(3):
            mfma(vr(vACC + 4 * t), vr(A), reg_of(rs, t), "0" if g == 0 else vr(vACC + 4 * t))
        if g == cf_g: ld_sib(True); consumer_setup()
        if not isinstance(rs, tuple) and vn[0] < 32:
            issue_kv("V", vn[0], rs); vn[0] += 1
        if nwo[0] < 20 and (nwo[0] < NO1 or (nwo[0] - NO1) in order[:g + 1]):
            issue_wo(nwo[0]); nwo[0] += 1
        if g == 0: wave_sum()
        if g == ex_g: wg_exchange()
        if g == 24:
            free = sorted(ring[("V", k)] for k in range(19, 24))
            y0 = [k for k in free if k + 1 in free][0]
            vY = rslot(y0, 0)
            for r in range(20): e("v_mov_b32 v%d, 0" % (vY + r))
            e("v_and_b32 v%d, 7, v%d" % (T0, vL)); e("v_mul_u32_u24 v%d, %d, v%d" % (T0, PSTR, T0))
            e("v_lshrrev_b32 v%d, 4, v%d" % (T1, vL)); e("v_lshl_add_u32 v%d, v%d, 3, v%d" % (T0, T1, T0))
            e("v_bfe_u32 v%d, v%d, 3, 1" % (T1, vL)); e("v_mul_u32_u24 v%d, 96, v%d" % (T1, T1))
            e("s_mul_i32 s%d, s%d, 192" % (sT0, sW))
            e("v_add3_u32 v%d, s%d, v%d, v%d" % (T0, sT0, T0, T1))
            e("s_mul_i32 s%d, s%d, 2560" % (sT0, sW))
            e("v_add_u32 v%d, s%d, v%d" % (T1, sT0, vFA))
            e("v_lshlrev_b32 v%d, 4, v0" % T2)
            e("v_bfe_u32 v%d, v%d, 2, 1" % (T4, vL)); e("v_mul_u32_u24 v%d, 0xffff, v%d" % (T4, T4))
            e("v_xor_b32 v%d, 0xffff, v%d" % (T3, T4))
            e("v_and_b32 v%d, 3, v%d" % (T5, vL)); e("v_add_u32 v%d, 1, v%d" % (vP1O, T5)); e("v_and_b32 v%d, 3, v%d" % (vP1O, vP1O))
            e("v_lshl_or_b32 v%d, v%d, 2, v%d" % (T5, vP1O, T5)); e("v_mul_u32_u24 v%d, 0x1111, v%d" % (T5, T5))
            quads = [rslot(k, t) for k in free if k not in (y0, y0 + 1) for t in range(3)]
            cML, cY = quads[0:4], quads[4:8]
            for q in cY: e("v_xor_b32 v%d, 0xff, v%d" % (q, vTAG))
        if g == cf2_g: split_weight(); consumer_ffn()
    assert nwo[0] == 20 and vn[0] == 32
    stamp('vend')
    e("s_mov_b64 exec, %s" % sr(sVAL, 2))
    e("s_nop 4")
    for t in range(3): e("ds_write_b128 v%d, %s offset:%d" % (vQA, vr(vACC + 4 * t), L_OP + t * 256))
    e("s_mov_b64 exec, -1")
    e("s_waitcnt lgkmcnt(0)")
    e("s_barrier")
    stamp('b3')
    mlds = [(cML[i], "buffer_load_dwordx4 %s, v%d, %s, 0 offen offset:%d %s" % (vr(cML[i]), aML, sr(sWS), 1024 * i, plf)) for i in range(4)]
    ylds = [(cY[i], "buffer_load_dwordx4 %s, v%d, %s, 0 offen offset:%d %s" % (vr(cY[i]), aY, sr(sWS), 1024 * i, plf)) for i in range(4)]
    def first_reads():
        lab = e.newlab("nofr")
        e("s_cmp_eq_u32 s%d, 0" % sCONS); e("s_cbranch_scc1 %s" % lab)
        for _, t in ylds: e.vmem(t, counted=False)
        e.label(lab)
    vO = 58
    for n in range(3): e("ds_read_b64 %s, v%d offset:%d" % (vr(vO + 2 * n, 2), T0, L_OP + 32 * n))
    if early0 == 1 and not elect: first_reads()
    e("s_waitcnt lgkmcnt(0)")
    for i in range(6): e("v_mul_f32 v%d, v%d, v%d" % (vO + i, vO + i, vWJ))
    for pat in (X1, X2, HM):
        for i in range(6): e("v_add_f32_dpp v%d, v%d, v%d %s %s" % (vO + i, vO + i, vO + i, pat, DPP))
    for i in range(6): e("v_cvt_pk_bf16_f32 v%d, v%d, v%d" % (vO + i, vO + i, vO + i))
    assert e.vm[-1] == "V31"
    def sfrag(dst, n, r):
        src = vO + 2 * (n % 3) + (r >> 1); m = T3 if r % 2 == 0 else T4
        if n >= 3: e("v_and_b32_dpp v%d, v%d, v%d %s %s" % (dst + r, src, m, R8, DPP))
        else: e("v_and_b32 v%d, v%d, v%d" % (dst + r, src, m))
    for r in range(4): sfrag(vA0, 0, r)
    for n in range(6):
        A = vA0 if n % 2 == 0 else vA1
        An = vA1 if n % 2 == 0 else vA0
        if n == 0: e("s_nop 1")
        for seg in range(5):
            e("v_smfmac_f32_16x16x64_bf16 %s, %s, %s, v%d" % (vr(vY + 4 * seg), vr(A), ar(8 * (5 * n + seg), 8), T5))
            if n < 5 and seg < 2:
                for r in (2 * seg, 2 * seg + 1): sfrag(An, n + 1, r)
    stamp('mf')
    e("s_mov_b32 exec_hi, 0")
    e("s_nop 3")
    for seg in range(5): e("ds_write_b128 v%d, %s offset:%d" % (T1, vr(vY + 4 * seg), L_YP + seg * 512))
    e("s_mov_b64 exec, -1")
    if early0 == 2 and not elect: first_reads()
    e("s_waitcnt lgkmcnt(0)")
    e("s_barrier")
    lab = e.newlab("noy")
    e("s_cmp_ge_u32 s%d, 3" % sW); e("s_cbranch_scc1 %s" % lab)
    for pp in range(4): e("ds_read_b128 %s, v%d offset:%d" % (vr(18 + 4 * pp), T2, L_YP + pp * 2560))
    e("s_waitcnt lgkmcnt(2)")
    for r in range(4): e("v_add_f32 v%d, v%d, v%d" % (18 + r, 18 + r, 22 + r))
    e("s_waitcnt lgkmcnt(0)")
    for r in range(4): e("v_add_f32 v%d, v%d, v%d" % (26 + r, 26 + r, 30 + r))
    for r in range(4): e("v_add_f32 v%d, v%d, v%d" % (64 + r, 18 + r, 26 + r))
    for r in range(4): tagit(64 + r, 64 + r)
    e.vmem("buffer_store_dwordx4 v[64:67], v%d, %s, 0 offen %s" % (vPY, sr(sWS), yf), counted=False)
    lab2 = e.newlab("pubd")
    e("s_branch %s" % lab2)
    e.label(lab)
    def gate_calc():
        e("ds_read2_b32 v[54:55], v%d offset0:128 offset1:160" % aCR); e("ds_read2_b32 v[56:57], v%d offset0:192 offset1:224" % aCR)
        e("s_waitcnt lgkmcnt(0)")
        e("v_add_f32 v54, v54, v55"); e("v_add_f32 v56, v56, v57"); e("v_add_f32 v54, v54, v56")
        e("v_cvt_pk_bf16_f32 v54, v54, v54"); e("v_and_b32 v54, 0xffff0000, v54")
        e("v_mul_f32 v55, %s, v54" % hx(f2u(-LOG2E)))
        e("v_exp_f32 v55, v55"); e("s_nop 0")
        e("v_add_f32 v55, 1.0, v55")
        e("v_rcp_f32 v55, v55"); e("s_nop 0")
        e("v_mul_f32 v55, v54, v55")
        e("v_cvt_pk_bf16_f32 v55, v55, v55"); e("v_and_b32 v%d, 0xffff0000, v55" % cG)
    if elect:
        e("s_waitcnt vmcnt(0)")
        e("v_mov_b32 v42, %d" % (L_CNT + 4))
        e("s_mov_b64 exec, 1")
        e("ds_write_b32 v42, v44")
        e("s_mov_b64 exec, -1")
        e("s_waitcnt lgkmcnt(0)")
    else: gate_calc()
    e.label(lab2)
    stamp('pub')
    if diag:
        e("s_waitcnt vmcnt(0)")
        stamp('ack')
    if nopoll: e("s_branch L_fin")
    if elect:
        e("v_mov_b32 v42, %d" % (L_CNT + 4))
        e("s_barrier")
        e("ds_read_b32 v44, v42")
        e("s_waitcnt lgkmcnt(0)")
        e("v_readfirstlane_b32 s%d, v44" % sCI)
        e("s_nop 3")
        e("s_cmp_eq_u32 s%d, 40" % sCI); e("s_cbranch_scc1 L_epoch")
        e("s_cmp_gt_u32 s%d, 40" % sCI); e("s_cbranch_scc1 L_fin")
        e.vm = []
        consumer_setup()
    else:
        if tab: e("s_bitcmp1_b32 s%d, 6" % sTHR)
        else: e("s_cmp_eq_u32 s2, %d" % (249 if par else 232 if lightc else 1))
        e("s_cbranch_scc1 L_epoch")
    e("s_cmp_eq_u32 s%d, 0" % sCONS); e("s_cbranch_scc1 L_fin")
    if not early0:
        for _, t in ylds: e(t)
    if wait0 is not None: e("s_waitcnt vmcnt(%d)" % wait0)
    stamp('rd0')
    mpoll("y", ylds, 20, 21, ysleep)
    stamp('yok')
    R0 = 36
    for r in range(4): untag(R0 + r, cY[0] + r)
    for r in range(4): untag(24 + r, cY[1] + r)
    for r in range(4): untag(28 + r, cY[2] + r)
    for r in range(4): untag(32 + r, cY[3] + r)
    for r in range(4): e("v_add_f32 v%d, v%d, v%d" % (R0 + r, R0 + r, 24 + r))
    for r in range(4): e("v_add_f32 v%d, v%d, v%d" % (28 + r, 28 + r, 32 + r))
    for r in range(4): e("v_add_f32 v%d, v%d, v%d" % (R0 + r, R0 + r, 28 + r))
    e("s_nop 0")
    quad_reduce(R0)
    e("ds_write_b32 v%d, v%d offset:%d" % (aCO, R0, L_CO))
    e("s_waitcnt lgkmcnt(0)")
    e("s_barrier")
    stamp('b5')
    e("s_cmp_lg_u32 s%d, 3" % sW); e("s_cbranch_scc1 L_fin")
    e("ds_read2_b32 v[54:55], v%d offset0:0 offset1:32" % aCR); e("ds_read2_b32 v[56:57], v%d offset0:64 offset1:96" % aCR)
    e("s_mov_b32 exec_hi, 0")
    e("s_waitcnt lgkmcnt(0)")
    e("v_add_f32 v54, v54, v55"); e("v_add_f32 v56, v56, v57"); e("v_add_f32 v54, v54, v56")
    e("v_cvt_pk_bf16_f32 v54, v54, v54"); e("v_and_b32 v54, 0xffff0000, v54")
    e("v_mul_f32 v54, v54, v%d" % cG)
    e("v_cvt_pk_bf16_f32 v54, v54, v54"); e("v_and_b32 v54, 0xffff0000, v54")
    e("v_add_f32 v54, v54, v%d" % cX)
    e("v_cvt_pk_bf16_f32 v54, v54, v54")
    e("buffer_store_short v54, v%d, %s, 0 offen %s" % (aOUT, sr(sOUT), of))
    e("s_mov_b64 exec, -1")
    e("s_branch L_fin")
    e.label("L_epoch")
    e("s_cmp_lg_u32 s%d, 0" % sW); e("s_cbranch_scc1 L_fin")
    e("v_lshlrev_b32 v13, 7, v%d" % vL); e("v_add_u32 v13, %d, v13" % WS_ML)
    def ld_all():
        for i in range(4):
            e("s_mov_b32 s%d, %d" % (sT0, 8192 * i))
            e("buffer_load_dwordx4 %s, v13, %s, s%d offen sc1" % (vr(16 + 4 * i), sr(sWS), sT0))
    ld_all()
    e("s_waitcnt vmcnt(0)")
    poll("ep", [16 + 4 * k for k in range(4)], 56, 57, ld_all, sleep=epsleep)
    e("v_mov_b32 v16, s%d" % sTAG)
    e("s_mov_b32 s%d, %d" % (sT0, WS_EP))
    e("s_mov_b64 exec, 1")
    e("buffer_store_dword v16, off, %s, s%d" % (sr(sWS), sT0))
    e("s_mov_b64 exec, -1")
    e.label("L_fin")
    if calib:
        if calk >= 0:
            e("s_and_b32 s100, s2, 7"); e("s_cmp_lg_u32 s100, %d" % calk); e("s_cbranch_scc1 L_end")
        e.label("L_cal")
        e("s_memrealtime s[98:99]"); e("s_waitcnt lgkmcnt(0)")
        e("s_getreg_b32 s100, hwreg(HW_REG_XCC_ID, 0, 4)"); e("s_sub_u32 s100, s100, s2"); e("s_and_b32 s100, s100, 7")
        e("s_mul_i32 s100, s100, %d" % calx); e("s_add_u32 s100, s100, %d" % calib)
        e("s_sub_u32 s98, s98, s%d" % sST); e("s_cmp_lt_u32 s98, s100"); e("s_cbranch_scc1 L_cal")
    if trace:
        trace_pt('fin')
        e("v_writelane_b32 v89, s%d, 63" % sST)
        e("s_add_u32 s92, s26, %d" % STAMP_OFF); e("s_addc_u32 s93, s27, 0"); e("s_mov_b32 s94, 0x100000"); e("s_mov_b32 s95, 0x20000")
        e("s_lshl_b32 s%d, s2, 2" % sT0); e("s_add_u32 s%d, s%d, s%d" % (sT0, sT0, sW)); e("s_lshl_b32 s%d, s%d, 9" % (sT0, sT0))
        e("v_lshlrev_b32 v10, 2, v%d" % vL); e("v_add_u32 v10, s%d, v10" % sT0)
        e("buffer_store_dword v88, v10, s[92:95], 0 offen")
        e("buffer_store_dword v89, v10, s[92:95], 0 offen offset:256")
        open("trace_names.txt", "w").write(" ".join(trnames))
    if stamps:
        stamp('fin')
        n = nst[0]
        e("s_add_u32 s92, s26, %d" % STAMP_OFF); e("s_addc_u32 s93, s27, 0"); e("s_mov_b32 s94, 0x100000"); e("s_mov_b32 s95, 0x20000")
        if allw:
            e("s_lshl_b32 s%d, s2, 2" % sT0); e("s_add_u32 s%d, s%d, s%d" % (sT0, sT0, sW)); e("s_mul_i32 s%d, s%d, %d" % (sT0, sT0, 8 * n))
        else:
            e("s_cmp_lg_u32 s%d, 0" % sW); e("s_cbranch_scc1 L_end")
            e("s_mul_i32 s%d, s2, %d" % (sT0, 8 * n))
        e("v_mov_b32 v10, s%d" % sT0); e("v_mov_b32 v13, 0")
        e("s_mov_b64 exec, 1")
        for k in range(n):
            e("v_mov_b32 v12, s%d" % (sST + k))
            e("buffer_store_dwordx2 v[12:13], v10, s[92:95], 0 offen offset:%d" % (8 * k))
            e("s_nop 1")
    e.label("L_end")
    e("s_endpgm")
    if tab:
        e.raw(".p2align 6"); e.raw(".type role_table,@object"); e.label("role_table")
        words = role_table(*tab)
        for i in range(0, 256, 8): e(".long " + ", ".join(hx(w) for w in words[i:i + 8]))
        e.raw(".size role_table, 1024")
    e.raw('.section .rodata,"a"'); e.raw(".p2align 6"); e.raw(".amdhsa_kernel %s_kernel" % NAME)
    for s in (".amdhsa_next_free_vgpr 512", ".amdhsa_next_free_sgpr 102", ".amdhsa_accum_offset 256",
              ".amdhsa_group_segment_fixed_size 0", ".amdhsa_kernarg_size 96", ".amdhsa_user_sgpr_count 2",
              ".amdhsa_user_sgpr_kernarg_segment_ptr 1", ".amdhsa_system_sgpr_workgroup_id_x 1"):
        e(s)
    e.raw(".end_amdhsa_kernel")
    return "\n".join(e.L) + "\n", nst[0]

if __name__ == "__main__":
    import argparse
    ap = argparse.ArgumentParser()
    ap.add_argument("out"); ap.add_argument("--stamps", action="store_true")
    ap.add_argument("--opt", default="")
    a = ap.parse_args()
    kw = eval("dict(%s)" % a.opt)
    s, n = gen(stamps=a.stamps, **kw)
    hdr = open("cdna_kernels/%s.s.ref" % NAME).read().split("; Override launch")[0]
    note = """; Fused decode step, one launch, 256 workgroups (one per CU) x 4 waves x 512 registers.  Generated by a hand-written script.
"""
    open(a.out, "w").write(hdr + note + s)
    print("wrote", a.out, "stamps", n)
```

```python
import struct, sys
NAME = "recurrent_scan__gqa_block_cached__geglu_ffn__decode"

def f2u(x): return struct.unpack("<I", struct.pack("<f", x))[0]
def hx(x): return "0x%08x" % (x & 0xffffffff)
LOG2E = 1.4426950408889634

WS_Q1 = 0
WS_P1 = 0x30000
P1_LO = 5 * 24576
WS_P2 = 0x6C000
WS_Y  = 0x8A000
WS_ML = 0x12A000
WS_EP = 0x132000
WS_SIZE = 0x133000
STAMP_OFF = 300 << 20
OOB = 0x7ffffff0

L_XN = 0
L_Q1 = 5120
PS2 = 528
L_QC = 9472
L_QB = 24064
L_F1 = 24576
L_F2 = 32768
L_ML = 36864
L_CNT = 36928
L_OP = 37120
PSTR = 784
L_YP = 43520
L_CO = 53760
L_CF = 54272
L_END = 54784

class Em:
    def __init__(self):
        self.L = []; self.vm = []; self.lab = 0
    def __call__(self, s): self.L.append("  " + s)
    def raw(self, s): self.L.append(s)
    def label(self, n): self.L.append(n + ":")
    def newlab(self, p):
        self.lab += 1; return "L_%s_%d" % (p, self.lab)
    def vmem(self, s, tag=None, counted=True):
        self.L.append("  " + s)
        if counted: self.vm.append(tag)
    def behind(self, tag):
        idx = max(i for i, t in enumerate(self.vm) if t == tag)
        return len(self.vm) - 1 - idx
    def wait_vm(self, tag):
        self("s_waitcnt vmcnt(%d)" % min(self.behind(tag), 63))

def vr(a, n=4): return "v[%d:%d]" % (a, a + n - 1)
def ar(a, n=4): return "a[%d:%d]" % (a, a + n - 1)
def sr(a, n=4): return "s[%d:%d]" % (a, a + n - 1)
DPP = "row_mask:0xf bank_mask:0xf"
X1, X2, HM, RM, R8 = "quad_perm:[1,0,3,2]", "quad_perm:[2,3,0,1]", "row_half_mirror", "row_mirror", "row_ror:8"

def role_table(nb, nsm, nf, ns, cons_x, ep_x):
    assert sum(nb) == 96 and sum(nsm) == 96 and sum(nf) == 60 and sum(ns) == 120 and all(a + b + c <= 32 for a, b, c in zip(nb, nsm, nf))
    W = [None] * 256
    big = [(h, qu) for h in range(32) for qu in range(3)]; small = [(h, qu) for h in range(32) for qu in range(3, 6)]
    fi = si = 0
    kind = {}
    for x in range(8):
        ids = [8 * i + x for i in range(32)]
        kinds = ["b"] * nb[x] + ["f"] * nf[x] + ["q"] * nsm[x]; kinds += ["n"] * (32 - len(kinds))
        kinds = [kinds[(k * 13 + 5) % 32] for k in range(32)]
        for wg, kd in zip(ids, kinds):
            kind[wg] = kd
            if kd == "b": qh, qu = big.pop(0); W[wg] = qh | qu << 5
            elif kd == "q": qh, qu = small.pop(0); W[wg] = qh | qu << 5
            elif kd == "f": W[wg] = fi << 8 | 1 << 14; fi += 1
            else: W[wg] = 63 << 8 | 1 << 14
        order = sorted(ids, key=lambda w: "nqbf".index(kind[w]))
        for k, wg in enumerate(order):
            if k < ns[x]: W[wg] |= si << 16; si += 1; kind[wg] += "s"
            else: W[wg] |= 127 << 16
    cand = [w for x in cons_x for w in range(x, 256, 8)]
    cand.sort(key=lambda w: (["n", "q", "ns", "qs", "b", "f", "bs", "fs"].index(kind[w]), w >> 3))
    cons = {w: i for i, w in enumerate(cand[:40])}
    ep = [w for w in range(ep_x, 256, 8) if w not in cons][-1]
    for w in range(256): W[w] |= cons.get(w, 63) << 23 | (1 << 29 if w == ep else 0)
    return W

def gen(stamps=False, kvf="nt", wf="", qf="", ff="", RING=14, NE=3, st2_g=8, p1_g=0, ml_g=31, allw=False,
        sel=('b1', 'b2', 'vend', 'pub', 'fin'), ostep=2, ostart=0, k_pre=0, k_mid=2, qc_after=12, win=0, tmo=0x10000,
        trace=False, xspec=True, mlsleep=2, epsleep=8, nopoll=False, nocheck=False, stf='sc1', yf='sc1', cpf=0, calib=0, ysleep=0, pdepth=6, p1lo=False, ph=(0, 3, 6, 0), vrot=0, cf_g=12, cf2_g=25, of='', elect=False, tk_g=27, early0=0, adapt=0, farsleep=16, yinA=True, wait0=None, mlfull=True, lightc=True, diag=0, plf='sc1', vilv=True, gaptest=0, ex_g=5, k_ln=1, k_role=1, ne_late=0, par=0, wine=0, wmask=0x55, tab=None, ilv4=True, rev=0, ks=320, k_l0=1, k_l2=1, calx=0, calk=-1, wde=1):
    e = Em()
    vL, vKV, vWQ, vWO, vPY = 1, 2, 3, 4, 5
    vM = 6; vA0 = 10; vA1 = 14; vACC = 18; vQF = 30; vS = 42
    vMW, vLW, vTAG = 74, 75, 76
    vQA, vFA, vP1O, vF1 = 78, 79, 80, 81
    T0, T1, T2, T3, T4, T5 = 82, 83, 84, 85, 86, 87
    RB = 256 - 12 * RING
    assert RB >= 88
    def rslot(i, t): return RB + 12 * i + 4 * t
    AVE = 240 - 12 * NE
    sK, sV, sRE, sWO, sX, sRO, sWD, sWS, sOUT, sWSF = 28, 32, 36, 40, 44, 48, 56, 60, 64, 92
    sS1, sS2, sKH, sNT = 52, 53, 54, 55
    sTHR = 53
    sCONS = 52
    sTAG, sU, sACT, sFACT = 68, 69, 70, 71
    sW, sB, sH, sP, sFS, sKR, sC5, sRB, sSO, sT0, sT1, sT2 = 72, 73, 74, 75, 76, 77, 78, 79, 80, 81, 82, 83
    sEX = 84; sVAL = 86; sCNT = 88; sCI = 89; sFF = 90; sWQO = 91; sSEL = 14; sROT = 15; sMK = 28
    sST = 96
    nst = [0]
    def stamp(name):
        if trace: trace_pt(name); return
        if not stamps or name not in sel: return
        e("s_memrealtime s[%d:%d]" % (sEX, sEX + 1))
        e("s_waitcnt lgkmcnt(0)")
        e("s_mov_b32 s%d, s%d" % (sST + nst[0], sEX))
        nst[0] += 1
    tr = [0]; trnames = []
    def trace_pt(name):
        if not trace: return
        k = tr[0]; tr[0] += 1; trnames.append(name)
        e("s_memrealtime s[%d:%d]" % (sST + 2, sST + 3))
        e("s_waitcnt lgkmcnt(0)")
        e("v_writelane_b32 v%d, s%d, %d" % (88 + k // 64, sST + 2, k % 64))
    def mfma(d, a, b, c): e("v_mfma_f32_16x16x32_bf16 %s, %s, %s, %s" % (d, a, b, c))
    def afrag(dst, src):
        for r in range(4): e("v_and_b32 v%d, v%d, v%d" % (dst + r, src, vM + r))
    def tagit(dst, src):
        e("v_add_u32 v%d, 0x80, v%d" % (dst, src))
        e("v_bfi_b32 v%d, s%d, v%d, v%d" % (dst, sFF, vTAG, dst))
    def untag(dst, src): e("v_and_b32 v%d, 0xffffff00, v%d" % (dst, src))
    def piece_bad(p, t0, t1, dst):
        e("v_perm_b32 v%d, v%d, v%d, s%d" % (t0, p + 1, p, sSEL))
        e("v_perm_b32 v%d, v%d, v%d, s%d" % (t1, p + 3, p + 2, sSEL))
        e("v_lshl_or_b32 v%d, v%d, 16, v%d" % (t0, t1, t0))
        e("v_cmp_ne_u32 %s, v%d, v%d" % (dst, t0, vTAG + 1))
    def poll(name, pieces, t0, t1, reload, sleep=4):
        if nocheck: return
        lab = e.newlab(name + "ok"); lp = e.newlab(name + "loop")
        e("s_mov_b32 s%d, %d" % (sCNT, tmo))
        e.label(lp)
        for k, p in enumerate(pieces):
            piece_bad(p, t0, t1, "vcc" if k == 0 else sr(sEX, 2))
            if k: e("s_or_b64 vcc, vcc, %s" % sr(sEX, 2))
        e("s_nop 1")
        e("s_cbranch_vccz %s" % lab)
        e("s_sub_u32 s%d, s%d, 1" % (sCNT, sCNT)); e("s_cbranch_scc1 %s" % lab)
        if sleep: e("s_sleep %d" % sleep)
        reload()
        e("s_waitcnt vmcnt(0)")
        e("s_branch %s" % lp)
        e.label(lab)
    def mpoll(name, loads, t0, t1, sleep):
        lab = e.newlab(name + "ok"); lp = e.newlab(name + "loop")
        e("s_mov_b32 s%d, %d" % (sCNT, 16 * tmo))
        e.label(lp)
        for k, (p, _) in enumerate(loads): piece_bad(p, t0, t1, sr(sMK + 2 * k, 2))
        e("s_nop 0")
        e("s_or_b64 vcc, %s, %s" % (sr(sMK, 2), sr(sMK + 2, 2)))
        for k in range(2, len(loads)): e("s_or_b64 vcc, vcc, %s" % sr(sMK + 2 * k, 2))
        e("s_cbranch_scc0 %s" % lab)
        e("s_sub_u32 s%d, s%d, 1" % (sCNT, sCNT)); e("s_cbranch_scc1 %s" % lab)
        for k, (p, txt) in enumerate(loads):
            sk = e.newlab(name + "sk")
            e("s_mov_b64 exec, %s" % sr(sMK + 2 * k, 2))
            e("s_cbranch_execz %s" % sk)
            e(txt)
            e.label(sk)
        e("s_mov_b64 exec, -1")
        e("s_waitcnt vmcnt(%d)" % pdepth)
        if adapt:
            e("s_bcnt1_i32_b64 s%d, %s" % (sT0, sr(sMK, 2)))
            for k in range(1, len(loads)):
                e("s_bcnt1_i32_b64 s%d, %s" % (sT1, sr(sMK + 2 * k, 2))); e("s_add_u32 s%d, s%d, s%d" % (sT0, sT0, sT1))
            near = e.newlab("near")
            e("s_cmp_le_u32 s%d, %d" % (sT0, 8 * adapt)); e("s_cbranch_scc1 %s" % near)
            e("s_sleep %d" % farsleep)
            e.label(near)
        if sleep: e("s_sleep %d" % sleep)
        e("s_branch %s" % lp)
        e.label(lab)

    e.raw("; @launch grid=(256,1,1) block=(256,1,1) lds=%d" % L_END)
    e.raw('.amdgcn_target "amdgcn-amd-amdhsa--gfx950"')
    e.raw(".text"); e.raw(".globl %s_kernel" % NAME); e.raw(".p2align 8"); e.raw(".type %s_kernel,@function" % NAME)
    e.label("%s_kernel" % NAME)
    e("s_cmp_ge_u32 s2, 256"); e("s_cbranch_scc1 L_end")
    e("s_load_dwordx16 s[4:19], s[0:1], 0")
    e("s_load_dwordx8 s[20:27], s[0:1], 64")
    sTB = 67
    if tab:
        e("s_getpc_b64 s[%d:%d]" % (sEX, sEX + 1))
        e.label("L_pc0")
        e("s_lshl_b32 s%d, s2, 2" % sTB); e("s_add_u32 s%d, s%d, role_table-L_pc0" % (sTB, sTB))
        e("s_add_u32 s%d, s%d, s%d" % (sEX, sEX, sTB)); e("s_addc_u32 s%d, s%d, 0" % (sEX + 1, sEX + 1))
        e("s_load_dword s%d, s[%d:%d], 0" % (sTB, sEX, sEX + 1))
    if stamps or trace or calib:
        e("s_memrealtime s[%d:%d]" % (sST, sST + 1)); nst[0] = 1
        for k in range(2, 6): e("s_mov_b32 s%d, 0" % (sST + k))
    e("v_and_b32 v%d, 63, v0" % vL)
    e("v_lshrrev_b32 v%d, 6, v0" % T0)
    e("v_lshrrev_b32 v%d, 3, v%d" % (T1, vL))
    e("v_and_b32 v%d, 7, v%d" % (T2, vL))
    e("v_readfirstlane_b32 s%d, v%d" % (sW, T0))
    e("v_mul_u32_u24 v%d, 384, v%d" % (vKV, T1))
    e("v_lshl_add_u32 v%d, v%d, 4, v%d" % (vKV, T2, vKV))
    e("v_mul_u32_u24 v%d, 3072, v%d" % (T3, T0))
    e("v_add_u32 v%d, v%d, v%d" % (vKV, vKV, T3))
    e("v_lshl_add_u32 v%d, v%d, 3, v%d" % (vWQ, T0, T1))
    e("v_mul_u32_u24 v%d, 12288, v%d" % (vWQ, vWQ))
    e("v_lshl_add_u32 v%d, v%d, 4, v%d" % (vWQ, T2, vWQ))
    e("v_lshrrev_b32 v%d, 5, v%d" % (T3, vL))
    e("v_mul_u32_u24 v%d, 1280, v%d" % (T3, T3))
    e("v_and_b32 v%d, 31, v%d" % (T5, vL))
    e("v_lshl_add_u32 v%d, v%d, 4, v%d" % (T4, T5, T3))
    e("v_lshl_add_u32 v%d, v%d, 3, v%d" % (T5, T5, T3))
    e("v_lshrrev_b32 v%d, 4, v%d" % (T3, vL))
    e("v_lshl_add_u32 v%d, v%d, 2, v%d" % (vF1, T0, T3))
    e("v_mul_u32_u24 v%d, 3072, v%d" % (vF1, vF1))
    e("v_and_b32 v%d, 15, v%d" % (T1, vL))
    e("v_lshl_add_u32 v%d, v%d, 4, v%d" % (vF1, T1, vF1))
    e("s_and_b32 s%d, s2, 7" % sT0)
    e("s_lshr_b32 s%d, s2, 3" % sT1)
    e("s_lshr_b32 s%d, s%d, 3" % (sT2, sT1))
    e("s_lshl_b32 s%d, s%d, 2" % (sH, sT0))
    e("s_add_u32 s%d, s%d, s%d" % (sH, sH, sT2))
    e("s_and_b32 s%d, s%d, 7" % (sU, sT1))
    e("s_lshr_b32 s%d, s%d, 2" % (sB, sU))
    e("s_and_b32 s%d, s%d, 3" % (sT1, sT1))
    e("s_lshl_b32 s%d, s%d, 2" % (sP, sH))
    e("s_add_u32 s%d, s%d, s%d" % (sP, sP, sT1))
    e("s_lshl_b32 s%d, s%d, 7" % (sT0, sB))
    e("s_add_u32 s%d, s%d, s%d" % (sT0, sT0, sP))
    if ilv4:
        e("s_and_b32 s%d, s%d, 252" % (sT0, sT0))
        e("s_mul_i32 s%d, s%d, 12288" % (sT1, sT1)); e("v_add_u32 v%d, s%d, v%d" % (vKV, sT1, vKV))
    KVSZ = 393216 * (4 if ilv4 else 1); STEP = 12288 * (4 if ilv4 else 1)
    e("s_mul_i32 s%d, s%d, 393216" % (sT0, sT0))
    e("s_mov_b32 s%d, %d" % (sK + 2, KVSZ)); e("s_mov_b32 s%d, 0x20000" % (sK + 3))
    e("s_mov_b32 s%d, 2560" % (sX + 2)); e("s_mov_b32 s%d, 0x20000" % (sX + 3))
    sQH = 3
    if tab:
        e("s_waitcnt lgkmcnt(0)")
        e("s_and_b32 s%d, s%d, 31" % (sQH, sTB)); e("s_bfe_u32 s%d, s%d, 0x30005" % (sNT, sTB))
        e("s_mov_b32 s%d, s%d" % (sWQO, sTB))
    elif par:
        e("s_lshl_b32 s%d, s2, 3" % sT1); e("s_and_b32 s%d, s%d, 8" % (sT1, sT1))
        if par < 0: e("s_xor_b32 s%d, s%d, 8" % (sT1, sT1))
        e("s_add_u32 s%d, s%d, s%d" % (sT1, sT1, sU))
        e("s_cmp_ge_u32 s%d, 14" % sT1)
        e("s_cselect_b32 s%d, 2, 0" % sT2); e("s_sub_u32 s%d, s%d, s%d" % (sNT, sU, sT2))
        e("s_lshl_b32 s%d, s%d, 1" % (sT2, sT2)); e("%s s%d, s%d, s%d" % ("s_add_u32" if par < 0 else "s_sub_u32", sQH, sH, sT2))
        e("s_sub_u32 s%d, s%d, 4" % (sS1, sT1))
    else:
        e("s_mov_b32 s%d, s%d" % (sNT, sU)); e("s_mov_b32 s%d, s%d" % (sQH, sH))
    e("s_cmp_ge_u32 s%d, 3" % sNT); e("s_cselect_b32 s%d, 1, 0" % sKH)
    e("s_mul_i32 s%d, s%d, 3" % (sT1, sKH)); e("s_sub_u32 s%d, s%d, s%d" % (sNT, sNT, sT1))
    e("s_mul_i32 s%d, s%d, %d" % (sCI, sKH, ks * 12288))
    e("s_mul_i32 s%d, s%d, %d" % (sSO, sKH, (2 * ks - 640) * 12288)); e("s_sub_u32 s%d, %d, s%d" % (sSO, (ks - 1) * 12288 + 128, sSO))
    e("s_mul_i32 s%d, s%d, 384" % (sT1, sQH)); e("s_add_u32 s%d, s%d, s%d" % (sCI, sCI, sT1))
    e("s_lshl_b32 s%d, s%d, 7" % (sT1, sNT)); e("s_add_u32 s%d, s%d, s%d" % (sCI, sCI, sT1))
    if tab:
        e("s_bfe_u32 s%d, s%d, 0x60008" % (sT1, sTB))
    elif par:
        e("s_bfe_u32 s%d, s2, 0x20001" % sT1); e("s_lshl_b32 s%d, s%d, 4" % (sT1, sT1))
        e("s_lshr_b32 s%d, s2, 6" % sT2); e("s_lshl_b32 s%d, s%d, 2" % (sT2, sT2))
        e("s_add_u32 s%d, s%d, s%d" % (sT1, sT1, sT2)); e("s_add_u32 s%d, s%d, s%d" % (sT1, sT1, sS1))
    else:
        e("s_lshl_b32 s%d, s%d, 1" % (sT1, sH)); e("s_add_u32 s%d, s%d, s%d" % (sT1, sT1, sU)); e("s_sub_u32 s%d, s%d, 6" % (sT1, sT1))
    e("s_and_b32 s%d, s%d, 63" % (sT1, sT1))
    e("s_mul_i32 s%d, s%d, 43" % (sKR, sT1)); e("s_lshr_b32 s%d, s%d, 9" % (sKR, sKR))
    e("s_mul_i32 s%d, s%d, 12" % (sT2, sKR)); e("s_sub_u32 s%d, s%d, s%d" % (sFS, sT1, sT2))
    e("s_cmp_lt_u32 s%d, 60" % sT1); e("s_cselect_b32 s%d, %d, 0" % (sFACT, 127 * 3072 + 256))
    e("s_min_u32 s%d, s%d, 4" % (sKR, sKR))
    e("s_mul_i32 s%d, s%d, %d" % (sCNT, sKR, 128 * 3072))
    e("s_lshl_b32 s%d, s%d, 8" % (sT2, sFS)); e("s_add_u32 s%d, s%d, s%d" % (sCNT, sCNT, sT2))
    e("s_mov_b32 s%d, 0x20000" % (sRE + 3)); e("s_mov_b32 s%d, 0x20000" % (sRO + 3))
    e("s_mov_b32 s%d, 786432" % sS2)
    if tab: e("s_bitcmp1_b32 s%d, 14" % sTB)
    elif par: e("s_cmp_lt_u32 s%d, 4" % sS1)
    else: e("s_cmp_ge_u32 s%d, 6" % sU)
    e("s_cselect_b32 s%d, s%d, s%d" % (sRE + 2, sFACT, sSO))
    e("s_cselect_b32 s%d, s%d, s%d" % (sRO + 2, sFACT, sSO))
    e("s_cselect_b32 s%d, 0, 393216" % sS1)
    e("s_cselect_b32 s%d, 49152, s%d" % (sS2, sS2))
    e("s_cselect_b32 s%d, s%d, s%d" % (sCI, sCNT, sCI))
    e("s_cselect_b64 vcc, -1, 0")
    e("s_waitcnt lgkmcnt(0)")
    if stamps and 'ka' in sel:
        e("s_memrealtime s[%d:%d]" % (sEX, sEX + 1)); e("s_waitcnt lgkmcnt(0)"); e("s_mov_b32 s%d, s%d" % (sST + nst[0], sEX)); nst[0] += 1
    e("s_cselect_b32 s%d, s16, s10" % sRE); e("s_cselect_b32 s%d, s17, s11" % (sRE + 1))
    e("s_cselect_b32 s%d, s18, s10" % sRO); e("s_cselect_b32 s%d, s19, s11" % (sRO + 1))
    e("s_mov_b32 s%d, s4" % sX); e("s_mov_b32 s%d, s5" % (sX + 1))
    e("v_cndmask_b32 v%d, v%d, v%d, vcc" % (vWQ, vWQ, vF1))
    e.vmem("buffer_load_dwordx4 %s, v%d, %s, 0 offen" % (vr(18), T4, sr(sX)), "x")
    e.vmem("buffer_load_dwordx4 %s, v%d, %s, 0 offen offset:512" % (vr(22), T4, sr(sX)), "x")
    e.vmem("buffer_load_dwordx2 %s, v%d, %s, 0 offen offset:1024" % (vr(26, 2), T5, sr(sX)), "x")
    e("s_add_u32 s%d, s%d, s%d" % (sRE, sRE, sCI)); e("s_addc_u32 s%d, s%d, 0" % (sRE + 1, sRE + 1))
    e("s_add_u32 s%d, s%d, s%d" % (sRO, sRO, sCI)); e("s_addc_u32 s%d, s%d, 0" % (sRO + 1, sRO + 1))
    e("s_add_u32 s%d, s6, s%d" % (sK, sT0)); e("s_addc_u32 s%d, s7, 0" % (sK + 1))
    e("s_add_u32 s%d, s8, s%d" % (sV, sT0)); e("s_addc_u32 s%d, s9, 0" % (sV + 1))

    ring = {}
    curwin = [0]
    def throttle(n=3):
        if wine and curwin[0] == -1:
            sk = e.newlab("thr")
            e("s_cmp_eq_u32 s%d, 0" % sTHR); e("s_cbranch_scc1 %s" % sk); e("s_waitcnt vmcnt(%d)" % (wine - n)); e.label(sk)
            return
        if curwin[0] and len(e.vm) + n > curwin[0]: e("s_waitcnt vmcnt(%d)" % (curwin[0] - n))
    def issue_kv(kind, g, rs):
        throttle()
        ring[(kind, g)] = rs
        srd = sK if kind == "K" else sV
        if ph:
            e("s_add_u32 s%d, s%d, %d" % (sSO, sROT, g)); e("s_and_b32 s%d, s%d, 31" % (sSO, sSO))
            if rev and (rev == 2 or kind == "V"): pass
            e("s_mul_i32 s%d, s%d, %d" % (sSO, sSO, STEP)); so = "s%d" % sSO
        elif g == 0: so = "0"
        else:
            e("s_mov_b32 s%d, %d" % (sSO, g * 12288)); so = "s%d" % sSO
        for t in range(3):
            e.vmem("buffer_load_dwordx4 %s, v%d, %s, %s offen offset:%d %s" % (reg_of(rs, t), vKV, sr(srd), so, t * 128, kvf), "%s%d" % (kind, g))
    def reg_of(rs, t):
        return ar(rs[1] + 4 * t) if isinstance(rs, tuple) else vr(rslot(rs, t))
    def issue_wo(n):
        throttle()
        last = None
        for t in range(3):
            z = 3 * n + t; i, seg = 2 * (z // 10) + (z & 1), (z % 10) >> 1
            if i == 0: so = "0"
            else:
                if last != i: e("s_mov_b32 s%d, %d" % (sSO, i * 5120))
                so = "s%d" % sSO
                last = i
            e.vmem("buffer_load_dwordx4 %s, v%d, %s, %s offen offset:%d %s" % (ar(4 * z), vWO, sr(sWO), so, seg * 256, wf), "O%d" % n)
    e("s_mov_b32 s%d, 0" % sCNT)
    for m in range(8):
        e.vmem("buffer_load_dwordx4 %s, v%d, %s, s%d offen %s" % (ar(8 * m), vWQ, sr(sRE), sCNT, qf), "R")
        e("s_add_u32 s%d, s%d, s%d" % (sSO, sCNT, sS1))
        e.vmem("buffer_load_dwordx4 %s, v%d, %s, s%d offen %s" % (ar(8 * m + 4), vWQ, sr(sRO), sSO, qf), "R")
        if m < 7: e("s_add_u32 s%d, s%d, s%d" % (sCNT, sCNT, sS2))
    stamp('rl')
    if cpf:
        e("s_getpc_b64 s[6:7]")
        e.label("L_pc")
        e("s_sub_u32 s6, s6, L_pc-%s_kernel" % NAME); e("s_subb_u32 s7, s7, 0")
        e("s_lshr_b32 s8, s2, 3"); e("s_lshl_b32 s8, s8, 2"); e("s_add_u32 s8, s8, s%d" % sW)
        e("s_mul_i32 s8, s8, %d" % (64 * cpf)); e("s_min_u32 s8, s8, L_end-%s_kernel-%d" % (NAME, 64 * cpf))
        e("s_add_u32 s6, s6, s8"); e("s_addc_u32 s7, s7, 0")
        for k in range(cpf): e("s_load_dword s8, s[6:7], %d" % (64 * k))
    e("s_add_u32 s%d, s26, %d" % (sEX, WS_EP)); e("s_addc_u32 s%d, s27, 0" % (sEX + 1))
    e("s_load_dword s%d, s[%d:%d], 0" % (sTAG, sEX, sEX + 1))
    if ph:
        aj, ab, ah, ax = ph
        e("s_bfe_u32 s%d, s2, 0x20003" % sT0); e("s_mul_i32 s%d, s%d, %d" % (sROT, sT0, aj))
        e("s_mul_i32 s%d, s%d, %d" % (sT0, sB, ab)); e("s_add_u32 s%d, s%d, s%d" % (sROT, sROT, sT0))
        e("s_lshr_b32 s%d, s2, 6" % sT0); e("s_mul_i32 s%d, s%d, %d" % (sT0, sT0, ah)); e("s_add_u32 s%d, s%d, s%d" % (sROT, sROT, sT0))
        e("s_and_b32 s%d, s2, 7" % sT0); e("s_mul_i32 s%d, s%d, %d" % (sT0, sT0, ax)); e("s_add_u32 s%d, s%d, s%d" % (sROT, sROT, sT0))
    e("s_mov_b32 s%d, %d" % (sV + 2, KVSZ)); e("s_mov_b32 s%d, 0x20000" % (sV + 3))
    e("s_mul_i32 s%d, s%d, 245760" % (sT0, sH))
    e("s_add_u32 s%d, s12, s%d" % (sWO, sT0)); e("s_addc_u32 s%d, s13, 0" % (sWO + 1))
    e("s_mov_b32 s%d, 245760" % (sWO + 2)); e("s_mov_b32 s%d, 0x20000" % (sWO + 3))
    e("s_mov_b32 s%d, s26" % sWS); e("s_mov_b32 s%d, s27" % (sWS + 1))
    e("s_mov_b32 s%d, %d" % (sWS + 2, WS_SIZE)); e("s_mov_b32 s%d, 0x20000" % (sWS + 3))
    e("s_mov_b32 s%d, s22" % sOUT); e("s_mov_b32 s%d, s23" % (sOUT + 1))
    e("s_mov_b32 s%d, 2560" % (sOUT + 2)); e("s_mov_b32 s%d, 0x20000" % (sOUT + 3))
    if tab:
        e("s_bfe_u32 s%d, s%d, 0x70010" % (sT0, sWQO))
        e("s_lshr_b32 s%d, s%d, 23" % (sTHR, sWQO))
    elif par == 2:
        e("s_bfe_u32 s%d, s2, 0x20001" % sT0); e("s_lshl_b32 s%d, s%d, 5" % (sT0, sT0)); e("s_lshr_b32 s%d, s2, 3" % sT1); e("s_add_u32 s%d, s%d, s%d" % (sT0, sT0, sT1))
    elif par == 3:
        e("s_and_b32 s%d, s2, 3" % sT0); e("s_lshl_b32 s%d, s%d, 5" % (sT0, sT0)); e("s_lshr_b32 s%d, s2, 3" % sT1); e("s_add_u32 s%d, s%d, s%d" % (sT0, sT0, sT1))
    elif par == 4:
        e("s_and_b32 s%d, s2, 7" % sT0); e("s_lshl_b32 s%d, s%d, 2" % (sT0, sT0)); e("s_lshr_b32 s%d, 0x83888210, s%d" % (sT0, sT0)); e("s_and_b32 s%d, s%d, 15" % (sT0, sT0))
        e("s_lshl_b32 s%d, s%d, 5" % (sT0, sT0)); e("s_lshr_b32 s%d, s2, 3" % sT1); e("s_add_u32 s%d, s%d, s%d" % (sT0, sT0, sT1)); e("s_min_u32 s%d, s%d, 199" % (sT0, sT0))
    else:
        e("s_lshl_b32 s%d, s%d, 2" % (sT0, sH)); e("s_add_u32 s%d, s%d, s%d" % (sT0, sT0, sU))
    e("s_mul_i32 s%d, s%d, 205" % (sRB, sT0)); e("s_lshr_b32 s%d, s%d, 10" % (sRB, sRB))
    e("s_mul_i32 s%d, s%d, 5" % (sT1, sRB)); e("s_sub_u32 s%d, s%d, s%d" % (sC5, sT0, sT1))
    if not tab:
        if par == 2: e("s_bitcmp0_b32 s2, 0")
        elif par == 3: e("s_bitcmp0_b32 s2, 2")
        elif par == 4: e("s_cmp_eq_u32 s2, s2")
        else: e("s_cmp_lt_u32 s%d, 4" % sU)
        e("s_cselect_b32 s%d, s%d, 255" % (sT0, sT0))
    e("s_cmp_lt_u32 s%d, 120" % sT0)
    e("s_cselect_b32 s%d, %d, 0" % (sWD + 2, 1536 * 1280))
    e("s_cselect_b32 s%d, %d, 0" % (sWSF + 2, WS_Y))
    e("s_cselect_b32 s%d, 1, 0" % sACT)
    e("s_mov_b32 s%d, s20" % sWD); e("s_mov_b32 s%d, s21" % (sWD + 1)); e("s_mov_b32 s%d, 0x20000" % (sWD + 3))
    e("s_mov_b32 s%d, s26" % sWSF); e("s_mov_b32 s%d, s27" % (sWSF + 1)); e("s_mov_b32 s%d, 0x20000" % (sWSF + 3))
    e("s_mov_b32 s%d, 0x00ff00ff" % sVAL); e("s_mov_b32 s%d, 0xff00ff00" % (sVAL + 1))
    e("v_mul_u32_u24 v%d, 1280, v%d" % (vWO, T3))
    e("v_lshl_add_u32 v%d, v%d, 4, v%d" % (vWO, T1, vWO))
    e("s_mul_i32 s%d, s%d, 61440" % (sT0, sW))
    e("v_add_u32 v%d, s%d, v%d" % (vWO, sT0, vWO))
    e("v_lshrrev_b32 v%d, 5, v%d" % (T0, vL))
    e("v_and_b32 v%d, 16, v%d" % (T3, vL))
    e("v_lshl_add_u32 v%d, v%d, 5, v%d" % (vP1O, T2, T3))
    e("v_mul_u32_u24 v%d, %d, v%d" % (vQA, PSTR, T0)); e("v_add_u32 v%d, v%d, v%d" % (vQA, vQA, vP1O))
    e("s_mul_i32 s%d, s%d, %d" % (sT0, sW, 2 * PSTR))
    e("v_add_u32 v%d, s%d, v%d" % (vQA, sT0, vQA))
    e("v_mul_u32_u24 v%d, %d, v%d" % (vF1, PS2, T0)); e("v_add_u32 v%d, v%d, v%d" % (vF1, vF1, vP1O))
    e("s_mul_i32 s%d, s%d, %d" % (sT0, sW, 2 * PS2))
    e("v_add_u32 v%d, s%d, v%d" % (vF1, sT0, vF1))
    e("v_lshlrev_b32 v%d, 9, v%d" % (vFA, T0)); e("v_lshl_add_u32 v%d, v%d, 5, v%d" % (vFA, T1, vFA))
    e("v_add_u32 v%d, v%d, v%d" % (vFA, vFA, T3))
    e("v_lshrrev_b32 v%d, 3, v0" % T0); e("v_lshlrev_b32 v%d, 14, v%d" % (T0, T0))
    e("v_lshl_add_u32 v%d, v%d, 4, v%d" % (T0, T2, T0))
    e("s_mul_i32 s%d, s%d, %d" % (sT0, sB, 20 * 16384))
    e("s_lshl_b32 s%d, s%d, 7" % (sT1, sP))
    e("s_add_u32 s%d, s%d, s%d" % (sT0, sT0, sT1)); e("s_add_u32 s%d, s%d, %d" % (sT0, sT0, WS_Y))
    e("v_cmp_gt_u32 vcc, %d, v0" % (80 if diag == 2 else 160))
    e("v_add_u32 v%d, s%d, v%d" % (T0, sT0, T0))
    e("v_mov_b32 v%d, %d" % (vPY, OOB))
    e("v_cndmask_b32 v%d, v%d, v%d, vcc" % (vPY, vPY, T0))
    e("s_mov_b32 s%d, 0xff" % sFF); e("s_mov_b32 s%d, 0x0c0c0400" % sSEL)
    e("v_and_b32 v%d, 1, v%d" % (T0, vL))
    e("v_lshlrev_b32 v%d, 4, v%d" % (T0, T0))
    e("v_mov_b32 v%d, 0xffff" % T1)
    e("v_lshlrev_b32 v%d, v%d, v%d" % (T0, T0, T1))
    e("v_bfe_u32 v%d, v%d, 1, 2" % (T1, vL))
    for r in range(4):
        e("v_cmp_eq_u32 vcc, %d, v%d" % (r, T1))
        e("s_nop 1")
        e("v_cndmask_b32 v%d, 0, v%d, vcc" % (vM + r, T0))
    def issue_wd():
        e("s_lshl_b32 s%d, s%d, 2" % (sT0, sRB)); e("s_add_u32 s%d, s%d, s%d" % (sT0, sT0, sW))
        e("s_mul_i32 s%d, s%d, 20480" % (sT1, sT0))
        e("s_lshl_b32 s%d, s%d, 8" % (sT2, sC5)); e("s_add_u32 s%d, s%d, s%d" % (sT1, sT1, sT2))
        e("s_mul_i32 s%d, s%d, 61440" % (sT2, sW))
        e("v_subrev_u32 v%d, s%d, v%d" % (T1, sT2, vWO))
        for i in range(4):
            e.vmem("buffer_load_dwordx4 %s, v%d, %s, s%d offen %s" % (ar(240 + 4 * i), T1, sr(sWD), sT1, ff), "WD")
            if i < 3: e("s_add_u32 s%d, s%d, 5120" % (sT1, sT1))
    kn = [0]
    def more_k(n):
        for _ in range(n):
            if kn[0] < RING: issue_kv("K", kn[0], kn[0]); trace_pt("ik%d" % kn[0]); kn[0] += 1
    if wde == 1: issue_wd()
    more_k(k_pre)
    stamp('iss')
    e.wait_vm("x")
    stamp('x')
    X = 28
    for r in range(10):
        e("v_lshlrev_b32 v%d, 16, v%d" % (X + 2 * r, 18 + r))
        e("v_and_b32 v%d, 0xffff0000, v%d" % (X + 2 * r + 1, 18 + r))
    def half_allreduce(v, t, op="v_add_f32"):
        for pat in (X1, X2, HM, RM):
            e("s_nop 1")
            e("%s_dpp v%d, v%d, v%d %s %s" % (op, v, v, v, pat, DPP))
        e("v_mov_b32 v%d, v%d" % (t, v))
        e("s_nop 1")
        e("v_permlane16_swap_b32 v%d, v%d" % (v, t))
        e("s_nop 1")
        e("%s v%d, v%d, v%d" % (op, v, v, t))
    for r in range(4): e("v_add_f32 v%d, v%d, v%d" % (48 + r, X + r, X + 4 + r))
    for k in range(8, 20): e("v_add_f32 v%d, v%d, v%d" % (48 + k % 4, 48 + k % 4, X + k))
    e("v_add_f32 v48, v48, v49"); e("v_add_f32 v50, v50, v51"); e("v_add_f32 v48, v48, v50")
    half_allreduce(48, 49)
    more_k(k_l0)
    e("v_mul_f32 v48, %s, v48" % hx(f2u(1.0 / 640)))
    for k in range(20):
        e("v_sub_f32 v%d, v%d, v48" % (18 + k % 4, X + k))
        if k < 4: e("v_mul_f32 v%d, v%d, v%d" % (52 + k, 18 + k, 18 + k))
        else: e("v_fmac_f32 v%d, v%d, v%d" % (52 + k % 4, 18 + k % 4, 18 + k % 4))
    e("v_add_f32 v52, v52, v53"); e("v_add_f32 v54, v54, v55"); e("v_add_f32 v52, v52, v54")
    half_allreduce(52, 53)
    more_k(k_ln)
    e("v_mul_f32 v52, %s, v52" % hx(f2u(1.0 / 640)))
    e("v_cvt_pk_bf16_f32 v48, v48, v52")
    e("v_and_b32 v52, 0xffff0000, v48")
    e("v_lshlrev_b32 v48, 16, v48")
    e("v_add_f32 v52, %s, v52" % hx(f2u(1e-5)))
    e("v_cvt_pk_bf16_f32 v52, v52, v52")
    e("v_and_b32 v52, 0xffff0000, v52")
    e("v_sqrt_f32 v52, v52")
    e("s_nop 0")
    e("v_cvt_pk_bf16_f32 v52, v52, v52")
    e("v_and_b32 v52, 0xffff0000, v52")
    e("v_rcp_f32 v53, v52")
    for k in range(0, 20, 2):
        if k == 10: more_k(k_l2)
        a, b2 = X + k, X + k + 1
        e("v_sub_f32 v%d, v%d, v48" % (a, a)); e("v_sub_f32 v%d, v%d, v48" % (b2, b2))
        e("v_cvt_pk_bf16_f32 v18, v%d, v%d" % (a, b2))
        e("v_lshlrev_b32 v%d, 16, v18" % a); e("v_and_b32 v%d, 0xffff0000, v18" % b2)
        e("v_mul_f32 v19, v%d, v53" % a); e("v_mul_f32 v20, v%d, v53" % b2)
        e("v_fma_f32 v%d, -v19, v52, v%d" % (a, a)); e("v_fma_f32 v%d, -v20, v52, v%d" % (b2, b2))
        e("v_fmac_f32 v19, v%d, v53" % a); e("v_fmac_f32 v20, v%d, v53" % b2)
        e("v_cvt_pk_bf16_f32 v%d, v19, v19" % a); e("v_cvt_pk_bf16_f32 v%d, v20, v20" % b2)
    e("v_lshlrev_b32 v%d, 1, v%d" % (T4, T4)); e("v_lshlrev_b32 v%d, 1, v%d" % (T5, T5))
    e("ds_write_b128 v%d, %s offset:%d" % (T4, vr(X), L_XN))
    e("ds_write_b128 v%d, %s offset:%d" % (T4, vr(X + 4), L_XN + 16))
    e("ds_write_b128 v%d, %s offset:%d" % (T4, vr(X + 8), L_XN + 1024))
    e("ds_write_b128 v%d, %s offset:%d" % (T4, vr(X + 12), L_XN + 1024 + 16))
    e("ds_write_b128 v%d, %s offset:%d" % (T5, vr(X + 16), L_XN + 2048))
    e("v_mov_b32 v%d, %d" % (T4, L_CNT)); e("v_mov_b32 v%d, 0" % T5)
    e("s_waitcnt lgkmcnt(0)")
    e("s_add_u32 s%d, s%d, 1" % (sTAG, sTAG))
    e("s_and_b32 s%d, s%d, 0xff" % (sT0, sTAG)); e("s_mul_i32 s%d, s%d, 0x01010101" % (sT1, sT0))
    e("ds_write_b32 v%d, v%d" % (T4, T5))
    e("v_mov_b32 v%d, s%d" % (vTAG, sT0)); e("v_mov_b32 v%d, s%d" % (vTAG + 1, sT1))
    more_k(k_mid)
    stamp('ln')
    e("s_cmp_eq_u32 s%d, 0" % sS1); e("s_cbranch_scc1 L_frole")
    N0, N1 = ks // 32, (640 - ks) // 32
    e("s_mul_i32 s%d, s%d, %d" % (sT0, sKH, 4 * ks)); e("s_lshl_b32 s%d, s%d, 5" % (sT1, sW)); e("s_add_u32 s%d, s%d, s%d" % (sT0, sT0, sT1))
    e("v_lshrrev_b32 v%d, 3, v%d" % (T0, vL)); e("v_lshlrev_b32 v%d, 2, v%d" % (T1, T0))
    e("v_add_u32 v%d, s%d, v%d" % (T1, sT0, T1))
    for n in range(N0):
        e("ds_read_b32 v%d, v%d offset:%d" % (vS + 2 * n, T1, 128 * n))
        e("ds_read_b32 v%d, v%d offset:%d" % (vS + 2 * n + 1, T1, 128 * n + 2560))
        if n in (6, 9, 12): e("s_waitcnt lgkmcnt(8)")
    e("s_waitcnt lgkmcnt(0)")
    for n in range(N0):
        if n == N1:
            e("s_cmp_lg_u32 s%d, 0" % sKH); e("s_cbranch_scc1 L_qshort")
        afrag(vA0, vS + 2 * n); afrag(vA1, vS + 2 * n + 1)
        if n == 0: rwait = "s_waitcnt vmcnt(%d)" % min(e.behind("R"), 63); e(rwait)
        else: e("s_nop 0")
        mfma(vr(vACC), vr(vA0), ar(4 * n), "0" if n == 0 else vr(vACC))
        mfma(vr(vACC + 4), vr(vA1), ar(4 * n), "0" if n == 0 else vr(vACC + 4))
    e.label("L_qshort")
    mark0 = len(e.L); more_k(k_role); role_k = e.L[mark0:]
    e("v_and_b32 v%d, 31, v%d" % (T1, vL)); e("v_lshlrev_b32 v%d, 4, v%d" % (T1, T1))
    e("v_bfe_u32 v%d, v%d, 4, 1" % (T3, vL)); e("v_mul_u32_u24 v%d, 3072, v%d" % (T3, T3))
    e("v_and_b32 v%d, 15, v%d" % (T4, vL)); e("v_lshl_add_u32 v%d, v%d, 4, v%d" % (T3, T4, T3))
    e("v_lshrrev_b32 v%d, 5, v%d" % (T4, vL)); e("v_mul_u32_u24 v%d, 768, v%d" % (T4, T4)); e("v_add_u32 v%d, v%d, v%d" % (T3, T3, T4))
    e("s_mul_i32 s%d, s%d, 6144" % (sT0, sQH)); e("s_mul_i32 s%d, s%d, 1536" % (sT1, sKH)); e("s_add_u32 s%d, s%d, s%d" % (sT0, sT0, sT1))
    e("s_lshl_b32 s%d, s%d, 8" % (sT1, sNT)); e("s_add_u32 s%d, s%d, s%d" % (sT0, sT0, sT1))
    e("s_mov_b64 exec, %s" % sr(sVAL, 2))
    e("ds_write_b128 v%d, %s offset:%d" % (vF1, vr(vACC), L_Q1))
    e("ds_write_b128 v%d, %s offset:%d" % (vF1, vr(vACC + 4), L_Q1 + 256))
    e("s_mov_b64 exec, -1")
    e("s_waitcnt lgkmcnt(0)")
    e("s_barrier")
    e("s_cmp_lg_u32 s%d, 0" % sW); e("s_cbranch_scc1 L_rdone")
    for pp in range(8): e("ds_read_b128 %s, v%d offset:%d" % (vr(vS + 4 * pp), T1, L_Q1 + pp * PS2))
    e("s_waitcnt lgkmcnt(6)")
    for r in range(4): e("v_add_f32 v%d, v%d, v%d" % (18 + r, vS + r, vS + 4 + r))
    for pp in range(2, 8):
        e("s_waitcnt lgkmcnt(%d)" % (7 - pp))
        for r in range(4): e("v_add_f32 v%d, v%d, v%d" % (18 + r, 18 + r, vS + 4 * pp + r))
    e("s_mov_b32 exec_lo, 0")
    for r in range(4): untag(22 + r, 18 + r)
    for r in range(4): e("v_sub_f32 v%d, v%d, v%d" % (18 + r, 18 + r, 22 + r))
    e("s_mov_b64 exec, -1")
    for r in range(4): e("v_bfi_b32 v%d, s%d, v%d, v%d" % (18 + r, sFF, vTAG, 18 + r))
    e.vmem("buffer_store_dwordx4 v[18:21], v%d, %s, s%d offen %s" % (T3, sr(sWS), sT0, stf), counted=False)
    e("s_branch L_rdone")
    e.label("L_frole")
    e("v_bfe_u32 v%d, v%d, 3, 1" % (T0, vL)); e("v_mul_u32_u24 v%d, 2560, v%d" % (T0, T0))
    e("v_lshrrev_b32 v%d, 4, v%d" % (T3, vL)); e("v_lshl_add_u32 v%d, v%d, 2, v%d" % (T0, T3, T0))
    e("s_lshl_b32 s%d, s%d, 9" % (sT0, sKR)); e("s_lshl_b32 s%d, s%d, 4" % (sT1, sW)); e("s_add_u32 s%d, s%d, s%d" % (sT0, sT0, sT1))
    e("v_add_u32 v%d, s%d, v%d" % (T0, sT0, T0))
    for m in range(0, 8, 2): e("ds_read2_b32 v[%d:%d], v%d offset0:%d offset1:%d" % (vS + m, vS + m + 1, T0, 16 * m, 16 * m + 16))
    e("s_waitcnt lgkmcnt(0)")
    for m in range(8):
        A = vA0 if m % 2 == 0 else vA1
        afrag(A, vS + m)
        e("s_nop 0")
        if m == 0: e(rwait)
        else: e("s_nop 0")
        mfma(vr(vACC), vr(A), ar(8 * m), "0" if m == 0 else vr(vACC))
        mfma(vr(vACC + 4), vr(A), ar(8 * m + 4), "0" if m == 0 else vr(vACC + 4))
    e.L += role_k
    e("s_lshl_b32 s%d, s%d, 11" % (sT0, sW))
    e("v_add_u32 v%d, s%d, v%d" % (T0, sT0, vFA))
    e("v_bfe_u32 v%d, v0, 1, 2" % T2); e("v_lshlrev_b32 v%d, 9, v%d" % (T2, T2))
    e("v_bfe_u32 v%d, v0, 3, 4" % T3); e("v_lshl_add_u32 v%d, v%d, 5, v%d" % (T2, T3, T2))
    e("v_and_b32 v%d, 1, v0" % T4); e("v_lshl_add_u32 v%d, v%d, 4, v%d" % (T2, T4, T2))
    e("v_and_b32 v%d, 127, v0" % T3); e("v_lshlrev_b32 v%d, 4, v%d" % (T3, T3))
    e("s_mul_i32 s%d, s%d, 24576" % (sT0, sKR)); e("s_lshl_b32 s%d, s%d, 11" % (sT1, sFS))
    e("s_add_u32 s%d, s%d, s%d" % (sT0, sT0, sT1)); e("s_add_u32 s%d, s%d, %d" % (sT0, sT0, WS_P1))
    e("ds_write_b128 v%d, %s offset:%d" % (T0, vr(vACC), L_F1))
    e("ds_write_b128 v%d, %s offset:%d" % (T0, vr(vACC + 4), L_F1 + 1024))
    e("s_waitcnt lgkmcnt(0)")
    e("s_barrier")
    e("s_cmp_eq_u32 s%d, 0" % sFACT); e("s_cbranch_scc1 L_rdone")
    for pp in range(4): e("ds_read_b128 %s, v%d offset:%d" % (vr(vS + 4 * pp), T2, L_F1 + pp * 2048))
    e("s_waitcnt lgkmcnt(0)")
    for r in range(4): e("v_add_f32 v%d, v%d, v%d" % (18 + r, vS + r, vS + 4 + r))
    for pp in (2, 3):
        for r in range(4): e("v_add_f32 v%d, v%d, v%d" % (18 + r, 18 + r, vS + 4 * pp + r))
    if p1lo:
        lab = e.newlab("p1hi")
        e("s_cmp_lt_u32 s%d, 2" % sW); e("s_cbranch_scc1 %s" % lab)
        for r in range(4): untag(22 + r, 18 + r)
        for r in range(4): e("v_sub_f32 v%d, v%d, v%d" % (18 + r, 18 + r, 22 + r))
        e("s_add_u32 s%d, s%d, %d" % (sT0, sT0, P1_LO))
        e.label(lab)
        for r in range(4): e("v_bfi_b32 v%d, s%d, v%d, v%d" % (18 + r, sFF, vTAG, 18 + r))
    else:
        e("s_cmp_ge_u32 s%d, 2" % sW); e("s_cbranch_scc1 L_rdone")
        for r in range(4): tagit(18 + r, 18 + r)
    e.vmem("buffer_store_dwordx4 v[18:21], v%d, %s, s%d offen %s" % (T3, sr(sWS), sT0, stf), counted=False)
    e.label("L_rdone")
    stamp('q1')
    if wde == 2: issue_wd()
    e("s_lshl_b32 s%d, s%d, 1" % (sT0, sH)); e("s_add_u32 s%d, s%d, s%d" % (sT0, sT0, sB)); e("s_mul_i32 s%d, s%d, 3072" % (sT0, sT0))
    e("s_mul_i32 s%d, s%d, 768" % (sT1, sW)); e("s_add_u32 s%d, s%d, s%d" % (sT0, sT0, sT1))
    e("v_lshlrev_b32 v%d, 4, v%d" % (T4, vL)); e("v_add_u32 v%d, s%d, v%d" % (vWQ, sT0, T4))
    vQC = vS
    def issue_qc(counted):
        e.vmem("buffer_load_dwordx4 %s, v%d, %s, 0 offen sc1" % (vr(vQC), vWQ, sr(sWS)), "QC", counted=counted)
    more_k(qc_after - kn[0])
    e("s_mov_b32 exec_hi, 0xffff")
    issue_qc(True)
    e("s_mov_b64 exec, -1")
    more_k(RING)
    for g in range(NE - ne_late): issue_kv("V", g, ('a', AVE + 12 * g)); trace_pt("iv%d" % g)
    for g in range(4, 32): e("v_mov_b32 v%d, 0" % (vS + g))
    e("s_mul_i32 s%d, s%d, 768" % (sT0, sW)); e("s_add_u32 s%d, s%d, %d" % (sT0, sT0, L_QC))
    e("v_lshlrev_b32 v%d, 3, v%d" % (T2, vL)); e("v_add_u32 v%d, s%d, v%d" % (T3, sT0, T4))
    e("v_and_b32 v%d, 7, v%d" % (T5, vL)); e("v_lshlrev_b32 v%d, 4, v%d" % (T5, T5))
    stamp('iss2')
    e.wait_vm("QC")
    e("s_mov_b32 exec_hi, 0xffff")
    poll("qc", [vQC], T0, T1, lambda: issue_qc(False))
    for r in range(4): untag(vQC + r, vQC + r)
    e("ds_write_b128 v%d, %s" % (T3, vr(vQC)))
    e("s_mov_b64 exec, -1")
    e("s_waitcnt lgkmcnt(0)")
    e("s_barrier")
    stamp('b1')
    e("ds_read_b128 %s, v%d offset:%d" % (vr(vQF), T4, L_QC))
    e("ds_read_b128 %s, v%d offset:%d" % (vr(vQF + 4), T4, L_QC + 768))
    e("ds_read_b128 %s, v%d offset:%d" % (vr(vQF + 8), T4, L_QC + 1536))
    e("ds_read_b128 %s, v%d offset:%d" % (vr(vA0), T4, L_QC + 2304))
    for g in range(4): e("v_mov_b32 v%d, 0" % (vS + g))
    for g in range(NE - ne_late, NE): issue_kv("V", g, ('a', AVE + 12 * g))
    e("s_waitcnt lgkmcnt(0)")
    for r in range(4): e("v_add_f32 v%d, v%d, v%d" % (vQF + r, vQF + r, vQF + 4 + r))
    for r in range(4): e("v_add_f32 v%d, v%d, v%d" % (vQF + 8 + r, vQF + 8 + r, vA0 + r))
    for r in range(4): e("v_add_f32 v%d, v%d, v%d" % (vQF + r, vQF + r, vQF + 8 + r))
    e("v_cvt_pk_bf16_f32 v%d, v%d, v%d" % (vQF, vQF, vQF + 1))
    e("v_cvt_pk_bf16_f32 v%d, v%d, v%d" % (vQF + 1, vQF + 2, vQF + 3))
    e("ds_write_b64 v%d, %s offset:%d" % (T2, vr(vQF, 2), L_QB))
    e("s_waitcnt lgkmcnt(0)")
    for t in range(3): e("ds_read_b128 %s, v%d offset:%d" % (vr(vQF + 4 * t), T5, L_QB + t * 128))
    e("s_waitcnt lgkmcnt(0)")

    vP1 = 10
    def issue_p1(counted):
        e.vmem("buffer_load_dwordx4 %s, v%d, %s, 0 offen sc1" % (vr(vP1), vP1O, sr(sWSF)), "P1", counted=counted)
        e.vmem("buffer_load_dwordx4 %s, v%d, %s, 0 offen sc1" % (vr(vP1 + 4), vF1, sr(sWSF)), "P1", counted=counted)
        if not p1lo: return
        e("s_mov_b32 s%d, %d" % (sSO, P1_LO))
        e.vmem("buffer_load_dwordx4 %s, v%d, %s, s%d offen sc1" % (vr(vP1 + 8), vP1O, sr(sWSF), sSO), "P1", counted=counted)
        e.vmem("buffer_load_dwordx4 %s, v%d, %s, s%d offen sc1" % (vr(vP1 + 12), vF1, sr(sWSF), sSO), "P1", counted=counted)
    def start_p1():
        e("s_lshl_b32 s%d, s%d, 2" % (sT0, sRB)); e("s_add_u32 s%d, s%d, s%d" % (sT0, sT0, sW))
        e("s_lshl_b32 s%d, s%d, 8" % (sT1, sT0)); e("s_add_u32 s%d, s%d, %d" % (sT1, sT1, WS_P1))
        e("v_and_b32 v%d, 15, v%d" % (vF1, vL)); e("v_lshlrev_b32 v%d, 4, v%d" % (vF1, vF1)); e("v_add_u32 v%d, s%d, v%d" % (vF1, sT1, vF1))
        e("v_lshrrev_b32 v%d, 4, v%d" % (vP1O, vL)); e("v_mul_u32_u24 v%d, 24576, v%d" % (vP1O, vP1O)); e("v_add_u32 v%d, v%d, v%d" % (vP1O, vP1O, vF1))
        e("v_add_u32 v%d, %d, v%d" % (vF1, 4 * 24576, vF1))
        issue_p1(True)
        if not wde: issue_wd()
    def stage2():
        skip = e.newlab("nost2")
        e("s_cmp_eq_u32 s%d, 0" % sACT); e("s_cbranch_scc1 %s" % skip)
        e.wait_vm("P1" if wde else "WD")
        poll("p1", [vP1, vP1 + 4, vP1 + 8, vP1 + 12][:4 if p1lo else 2], T1, T2, lambda: issue_p1(False))
        for r in range(16 if p1lo else 8): untag(10 + r, 10 + r)
        if p1lo:
            for r in range(8): e("v_add_f32 v%d, v%d, v%d" % (10 + r, 10 + r, 18 + r))
        e("s_mov_b64 exec, 0xffff")
        for r in range(4): e("v_add_f32 v%d, v%d, v%d" % (10 + r, 10 + r, 14 + r))
        e("s_mov_b64 exec, -1")
        for sw in ("v_permlane16_swap_b32", "v_permlane32_swap_b32"):
            for r in range(4): e("v_mov_b32 v%d, v%d" % (14 + r, 10 + r))
            e("s_nop 0")
            for r in range(4): e("%s v%d, v%d" % (sw, 10 + r, 14 + r))
            e("s_nop 0")
            for r in range(4): e("v_add_f32 v%d, v%d, v%d" % (10 + r, 10 + r, 14 + r))
        e("v_cvt_pk_bf16_f32 v14, v10, v11"); e("v_cvt_pk_bf16_f32 v15, v12, v13")
        e("v_lshlrev_b32 v10, 16, v14"); e("v_and_b32 v11, 0xffff0000, v14")
        e("v_lshlrev_b32 v12, 16, v15"); e("v_and_b32 v13, 0xffff0000, v15")
        e("s_nop 0")
        for r in range(4): e("v_mov_b32_dpp v%d, v%d row_shl:4 %s" % (14 + r, 10 + r, DPP))
        for k in range(4): e("v_mul_f32 v%d, v%d, v%d" % (18 + k, 10 + k, 10 + k))
        for k in range(4): e("v_mul_f32 v%d, %s, v%d" % (18 + k, hx(f2u(0.044715)), 18 + k))
        for k in range(4): e("v_fma_f32 v%d, v%d, v%d, v%d" % (18 + k, 18 + k, 10 + k, 10 + k))
        for k in range(4): e("v_mul_f32 v%d, %s, v%d" % (18 + k, hx(f2u(-2.0 * LOG2E * 0.7978845608028654)), 18 + k))
        for k in range(4): e("v_exp_f32 v%d, v%d" % (18 + k, 18 + k))
        for k in range(4): e("v_add_f32 v%d, 1.0, v%d" % (18 + k, 18 + k))
        for k in range(4): e("v_rcp_f32 v%d, v%d" % (18 + k, 18 + k))
        for k in range(4): e("v_mul_f32 v%d, v%d, v%d" % (18 + k, 10 + k, 18 + k))
        e("v_cvt_pk_bf16_f32 v10, v18, v19"); e("v_cvt_pk_bf16_f32 v11, v20, v21")
        e("v_lshlrev_b32 v18, 16, v10"); e("v_and_b32 v19, 0xffff0000, v10")
        e("v_lshlrev_b32 v20, 16, v11"); e("v_and_b32 v21, 0xffff0000, v11")
        for k in range(4): e("v_mul_f32 v%d, v%d, v%d" % (18 + k, 18 + k, 14 + k))
        e("v_cvt_pk_bf16_f32 v28, v18, v19"); e("v_cvt_pk_bf16_f32 v29, v20, v21")
        e("v_bfe_u32 v18, v%d, 3, 1" % vL); e("v_lshlrev_b32 v18, 3, v18")
        for i, off in enumerate((0, 4, 32, 36)):
            e("ds_bpermute_b32 v%d, v18, v28 offset:%d" % (10 + i, off)); e("ds_bpermute_b32 v%d, v18, v29 offset:%d" % (14 + i, off))
        e("v_lshrrev_b32 v19, 4, v%d" % vL); e("v_mul_u32_u24 v19, 0x0202, v19"); e("v_add_u32 v19, 0x0100, v19")
        e("v_lshl_or_b32 v19, v19, 16, v19")
        e("s_waitcnt lgkmcnt(0)")
        for i in range(4): e("v_perm_b32 v%d, v%d, v%d, v19" % (10 + i, 14 + i, 10 + i))
        for i in range(4):
            A = 20 if i % 2 == 0 else 24
            afrag(A, 10 + i)
            e("s_nop 1")
            mfma(vr(16), vr(A), ar(240 + 4 * i), "0" if i == 0 else vr(16))
        e("s_lshl_b32 s%d, s%d, 10" % (sT0, sW))
        e("v_add_u32 v10, s%d, v%d" % (sT0, vFA))
        e("v_mov_b32 v11, %d" % L_CNT); e("v_mov_b32 v12, 1")
        e("s_nop 5")
        e("ds_write_b128 v10, %s offset:%d" % (vr(16), L_F2))
        e("s_waitcnt lgkmcnt(0)")
        e("s_mov_b64 exec, 1")
        e("ds_add_rtn_u32 v12, v11, v12")
        e("s_mov_b64 exec, -1")
        e("s_waitcnt lgkmcnt(0)")
        e("v_readfirstlane_b32 s%d, v12" % sT0)
        e("s_nop 3")
        e("s_cmp_lg_u32 s%d, 3" % sT0); e("s_cbranch_scc1 %s" % skip)
        e("v_lshlrev_b32 v28, 4, v%d" % vL)
        for pp in range(4): e("ds_read_b128 %s, v28 offset:%d" % (vr(10 + 4 * pp), L_F2 + pp * 1024))
        e("v_lshrrev_b32 v28, 3, v%d" % vL); e("v_mul_u32_u24 v28, 3072, v28")
        e("v_and_b32 v29, 7, v%d" % vL); e("v_lshl_add_u32 v28, v29, 4, v28")
        e("s_mul_i32 s%d, s%d, %d" % (sT0, sC5, 8 * 3072))
        e("s_lshl_b32 s%d, s%d, 7" % (sT1, sRB))
        e("s_add_u32 s%d, s%d, s%d" % (sT0, sT0, sT1)); e("s_add_u32 s%d, s%d, %d" % (sT0, sT0, WS_P2))
        e("s_waitcnt lgkmcnt(0)")
        for pp in range(1, 4):
            for r in range(4): e("v_add_f32 v%d, v%d, v%d" % (10 + r, 10 + r, 10 + 4 * pp + r))
        for r in range(4): tagit(10 + r, 10 + r)
        e.vmem("buffer_store_dwordx4 %s, v28, %s, s%d offen %s" % (vr(10), sr(sWSF), sT0, stf), counted=False)
        e("s_nop 1")
        e.label(skip)

    curwin[0] = -1 if wine else win
    if wine:
        e("s_and_b32 s%d, s2, 7" % sT0); e("s_lshr_b32 s%d, %d, s%d" % (sTHR, wmask, sT0)); e("s_and_b32 s%d, s%d, 1" % (sTHR, sTHR))
    sc = hx(f2u(192 ** -0.5))
    nwo = [0]
    NO1 = AVE // 12
    def finish_scores(g0):
        a, b2, t = vS + g0, vS + g0 + 1, T0
        for pat in (X1, X2, HM):
            e("v_add_f32_dpp v%d, v%d, v%d %s %s" % (a, a, a, pat, DPP))
            e("v_add_f32_dpp v%d, v%d, v%d %s %s" % (b2, b2, b2, pat, DPP))
            e("s_nop 0")
        e("v_cvt_pk_bf16_f32 v%d, v%d, v%d" % (t, a, b2))
        e("v_lshlrev_b32 v%d, 16, v%d" % (a, t)); e("v_and_b32 v%d, 0xffff0000, v%d" % (b2, t))
        e("v_mul_f32 v%d, %s, v%d" % (a, sc, a)); e("v_mul_f32 v%d, %s, v%d" % (b2, sc, b2))
        e("v_cvt_pk_bf16_f32 v%d, v%d, v%d" % (t, a, b2))
        e("v_lshlrev_b32 v%d, 16, v%d" % (a, t)); e("v_and_b32 v%d, 0xffff0000, v%d" % (b2, t))
        if g0 == 0: e("v_max_f32 v%d, v%d, v%d" % (vMW, a, b2))
        else: e("v_max3_f32 v%d, v%d, v%d, v%d" % (vMW, vMW, a, b2))
    def group_allreduce(v, t, op):
        e("s_nop 1")
        e("%s_dpp v%d, v%d, v%d %s %s" % (op, v, v, v, R8, DPP))
        e("v_mov_b32 v%d, v%d" % (t, v)); e("s_nop 1")
        e("v_permlane16_swap_b32 v%d, v%d" % (v, t)); e("s_nop 1")
        e("%s v%d, v%d, v%d" % (op, v, v, t))
        e("v_mov_b32 v%d, v%d" % (t, v)); e("s_nop 1")
        e("v_permlane32_swap_b32 v%d, v%d" % (v, t)); e("s_nop 1")
        e("%s v%d, v%d, v%d" % (op, v, v, t))
    l2e = hx(f2u(LOG2E))
    def exps(gs, m):
        for g in gs: e("v_sub_f32 v%d, v%d, v%d" % (vS + g, vS + g, m))
        for g in gs: e("v_mul_f32 v%d, %s, v%d" % (vS + g, l2e, vS + g))
        for g in gs: e("v_exp_f32 v%d, v%d" % (vS + g, vS + g))
    NEARLY = 28
    vM1, vL1 = T1, T2
    vn = [NE]
    for g in range(32):
        e.wait_vm("K%d" % g)
        stamp('k%d' % g)
        rs = ring[("K", g)]
        for t in range(3):
            for r in range(4):
                e("v_dot2c_f32_bf16 v%d, v%d, v%d" % (vS + g, rslot(rs, t) + r, vQF + 4 * t + r))
        if g + RING < 32: issue_kv("K", g + RING, rs)
        else: issue_kv("V", vn[0], rs); vn[0] += 1
        if nwo[0] < NO1 and g >= ostart and (g - ostart) % ostep == 0:
            issue_wo(nwo[0]); nwo[0] += 1
        if g == p1_g: start_p1()
        if g == st2_g: stage2()
        if g % 2 == 1 and 3 <= g < 31: finish_scores(g - 3)
        if g == 29:
            e("v_mov_b32 v%d, v%d" % (vM1, vMW))
            group_allreduce(vM1, T0, "v_max_f32")
            exps(range(0, 14), vM1)
        if g == 30:
            exps(range(14, 28), vM1)
            finish_scores(28)
            e("v_add_f32 v%d, v%d, v%d" % (vL1, vS, vS + 1)); e("v_add_f32 v%d, v%d, v%d" % (T0, vS + 2, vS + 3))
            for k in range(4, NEARLY, 2):
                e("v_add_f32 v%d, v%d, v%d" % (vL1, vL1, vS + k)); e("v_add_f32 v%d, v%d, v%d" % (T0, T0, vS + k + 1))
            e("v_add_f32 v%d, v%d, v%d" % (vL1, vL1, T0))
    finish_scores(30)
    group_allreduce(vMW, T0, "v_max_f32")
    vFAC, vLF = 41, 39
    e("v_sub_f32 v%d, v%d, v%d" % (vFAC, vM1, vMW)); e("v_mul_f32 v%d, %s, v%d" % (vFAC, l2e, vFAC)); e("v_exp_f32 v%d, v%d" % (vFAC, vFAC))
    exps(range(NEARLY, 32), vMW)
    stamp('b2')
    def wave_sum():
        e("v_mul_f32 v%d, v%d, v%d" % (vLW, vL1, vFAC))
        for k in range(NEARLY, 32): e("v_add_f32 v%d, v%d, v%d" % (vLW, vLW, vS + k))
        group_allreduce(vLW, T0, "v_add_f32")
        e("s_lshl_b32 s%d, s%d, 3" % (sT0, sW)); e("s_add_u32 s%d, s%d, %d" % (sT0, sT0, L_ML)); e("v_mov_b32 v%d, s%d" % (T0, sT0))
        e("ds_write_b64 v%d, v[%d:%d]" % (T0, vMW, vLW))
    def wg_exchange():
        e("v_bfe_u32 v%d, v%d, 1, 2" % (T0, vL)); e("v_lshlrev_b32 v%d, 3, v%d" % (T0, T0))
        e("s_waitcnt lgkmcnt(0)")
        e("s_barrier")
        e("ds_read_b64 v[30:31], v%d offset:%d" % (T0, L_ML))
        e("s_waitcnt lgkmcnt(0)")
        e("v_mov_b32 v32, v30")
        for pat in (X2, HM):
            e("s_nop 1"); e("v_max_f32_dpp v32, v32, v32 %s %s" % (pat, DPP))
        e("v_sub_f32 v33, v30, v32")
        e("v_mul_f32 v33, %s, v33" % l2e)
        e("v_exp_f32 v33, v33")
        e("s_nop 0")
        e("v_mul_f32 v30, v33, v31")
        for pat in (X2, HM):
            e("s_nop 1"); e("v_add_f32_dpp v30, v30, v30 %s %s" % (pat, DPP))
        e("v_rcp_f32 v31, v30")
        tagit(34, 32); tagit(35, 30); tagit(36, 32); tagit(37, 30)
        e("v_mul_f32 v%d, v33, v31" % vLF)
        e("s_lshl_b32 s%d, s%d, 7" % (sT0, sB)); e("s_add_u32 s%d, s%d, s%d" % (sT0, sT0, sP))
        e("s_lshl_b32 s%d, s%d, 7" % (sT0, sT0)); e("s_add_u32 s%d, s%d, %d" % (sWQO, sT0, WS_ML))
        e("v_mov_b32 v%d, v32" % vMW); e("v_mov_b32 v%d, v30" % vLW)
        e("v_lshlrev_b32 v%d, 4, v%d" % (vF1, vL))
        lab = e.newlab("noml")
        e("s_cmp_lg_u32 s%d, 3" % sW); e("s_cbranch_scc1 %s" % lab)
        e("s_mov_b64 exec, 0xff")
        e.vmem("buffer_store_dwordx4 %s, v%d, %s, s%d offen %s" % (vr(34), vF1, sr(sWS), sWQO, stf), counted=False)
        e("s_mov_b64 exec, -1")
        e.label(lab)
        e("s_and_b32 s%d, s%d, %d" % (sWQO, sWQO, ~511 & 0xffffffff))
        e("v_and_b32 v%d, 3, v%d" % (vF1, vL)); e("v_lshlrev_b32 v%d, 7, v%d" % (vF1, vF1))

    aY, aML, cF, cX, aOUT, aCO, aCR, cG = 42, 43, 44, 48, 49, 50, 51, 52
    def quad_reduce(q):
        e("s_nop 0")
        e("v_permlane32_swap_b32 v%d, v%d" % (q, q + 1)); e("v_permlane32_swap_b32 v%d, v%d" % (q + 2, q + 3)); e("s_nop 0")
        e("v_add_f32 v%d, v%d, v%d" % (q, q, q + 1)); e("v_add_f32 v%d, v%d, v%d" % (q + 2, q + 2, q + 3)); e("s_nop 1")
        e("v_permlane16_swap_b32 v%d, v%d" % (q, q + 2)); e("s_nop 0")
        e("v_add_f32 v%d, v%d, v%d" % (q, q, q + 2)); e("s_nop 1")
        e("v_add_f32_dpp v%d, v%d, v%d %s %s" % (q, q, q, R8, DPP))
    def ld_f(counted): e.vmem("buffer_load_dwordx4 %s, v%d, %s, 0 offen sc1" % (vr(cF), 53, sr(sWSF)), "CF", counted=counted)
    vWJ = 38
    def ld_sib(counted): e.vmem("buffer_load_dwordx4 %s, v%d, %s, s%d offen sc1" % (vr(30), vF1, sr(sWS), sWQO), "SIB", counted=counted)
    def split_weight():
        e.wait_vm("SIB")
        poll("sib", [30], 54, 55, lambda: ld_sib(False))
        untag(30, 30); untag(31, 31)
        e("v_mov_b32 v32, v30")
        for pat in (X1, X2):
            e("s_nop 1"); e("v_max_f32_dpp v32, v32, v32 %s %s" % (pat, DPP))
        e("v_sub_f32 v30, v30, v32"); e("v_sub_f32 v33, v%d, v32" % vMW)
        e("v_mul_f32 v30, %s, v30" % l2e); e("v_mul_f32 v33, %s, v33" % l2e)
        e("v_exp_f32 v30, v30"); e("v_exp_f32 v33, v33")
        e("v_add_u32 v32, 0x80, v%d" % vLW); untag(32, 32)
        e("v_mul_f32 v30, v30, v31"); e("v_mul_f32 v33, v33, v32")
        for pat in (X1, X2):
            e("s_nop 1"); e("v_add_f32_dpp v30, v30, v30 %s %s" % (pat, DPP))
        e("v_rcp_f32 v30, v30"); e("s_nop 0")
        e("v_mul_f32 v%d, v33, v30" % vWJ)
        e("v_mul_f32 v%d, v%d, v%d" % (vWJ, vWJ, vLF))
    def consumer_setup():
        if elect:
            e("s_mov_b32 s%d, %d" % (sWSF + 2, WS_SIZE))
        elif tab:
            e("s_and_b32 s%d, s%d, 63" % (sCI, sTHR))
            e("s_cmp_lt_u32 s%d, 40" % sCI)
            e("s_cselect_b32 s%d, 1, 0" % sCONS); e("s_cselect_b32 s%d, %d, 0" % (sWSF + 2, WS_SIZE))
        elif par:
            e("s_lshr_b32 s%d, s2, 6" % sT0); e("s_lshl_b32 s%d, s%d, 2" % (sT0, sT0))
            e("s_sub_u32 s%d, s%d, 4" % (sT1, sU)); e("s_add_u32 s%d, s%d, s%d" % (sT0, sT0, sT1))
            e("s_cmp_lt_u32 s%d, 4" % sT1); e("s_cselect_b32 s%d, s%d, 99" % (sT0, sT0))
            e("s_bitcmp%d_b32 s2, 0" % (0 if par < 0 else 1)); e("s_cselect_b32 s%d, s%d, 99" % (sT0, sT0))
            e("s_bfe_u32 s%d, s2, 0x20001" % sT1); e("s_mul_i32 s%d, s%d, 10" % (sCI, sT1)); e("s_add_u32 s%d, s%d, s%d" % (sCI, sCI, sT0))
            e("s_cmp_lt_u32 s%d, 10" % sT0)
            e("s_cselect_b32 s%d, 1, 0" % sCONS); e("s_cselect_b32 s%d, %d, 0" % (sWSF + 2, WS_SIZE))
        elif lightc:
            e("s_lshr_b32 s%d, s2, 6" % sT0); e("s_lshl_b32 s%d, s%d, 1" % (sT0, sT0))
            e("s_sub_u32 s%d, s%d, 4" % (sT1, sU)); e("s_add_u32 s%d, s%d, s%d" % (sT0, sT0, sT1))
            e("s_cmp_lt_u32 s%d, 2" % sT1); e("s_cselect_b32 s%d, s%d, 99" % (sT0, sT0))
            e("s_and_b32 s%d, s2, 7" % sT1); e("s_mul_i32 s%d, s%d, 5" % (sCI, sT1)); e("s_add_u32 s%d, s%d, s%d" % (sCI, sCI, sT0))
            e("s_cmp_lt_u32 s%d, 5" % sT0)
            e("s_cselect_b32 s%d, 1, 0" % sCONS); e("s_cselect_b32 s%d, %d, 0" % (sWSF + 2, WS_SIZE))
        else:
            e("s_and_b32 s%d, s2, 1" % sT0); e("s_lshl_b32 s%d, s%d, 8" % (sT0, sT0)); e("s_add_u32 s%d, s%d, s2" % (sT0, sT0))
            e("s_cmp_lt_u32 s%d, 80" % sT0)
            e("s_cselect_b32 s%d, 1, 0" % sCONS); e("s_cselect_b32 s%d, %d, 0" % (sWSF + 2, WS_SIZE))
            e("s_lshr_b32 s%d, s2, 1" % sCI)
        e("s_cmp_ge_u32 s%d, 20" % sCI); e("s_cselect_b32 s%d, 1, 0" % sB)
        e("s_mul_i32 s%d, s%d, 20" % (sT0, sB)); e("s_sub_u32 s%d, s%d, s%d" % (sH, sCI, sT0))
        e("v_lshlrev_b32 v53, 4, v%d" % vL)
        e("s_lshl_b32 s%d, s%d, 14" % (sT0, sCI)); e("s_lshl_b32 s%d, s%d, 12" % (sT1, sW))
        e("s_add_u32 s%d, s%d, s%d" % (sT0, sT0, sT1)); e("s_add_u32 s%d, s%d, %d" % (sT0, sT0, WS_Y))
        e("v_add_u32 v%d, s%d, v53" % (aY, sT0))
        e("s_lshr_b32 s%d, s%d, 2" % (sT0, sH)); e("s_lshl_b32 s%d, s%d, 1" % (sT0, sT0)); e("s_add_u32 s%d, s%d, s%d" % (sT0, sT0, sB))
        e("s_lshl_b32 s%d, s%d, 2" % (sT0, sT0)); e("s_and_b32 s%d, s%d, 3" % (sT1, sH)); e("s_add_u32 s%d, s%d, s%d" % (sT0, sT0, sT1))
        e("s_mul_i32 s%d, s%d, 3072" % (sT0, sT0)); e("s_mul_i32 s%d, s%d, 768" % (sT1, sW))
        e("s_add_u32 s%d, s%d, s%d" % (sT0, sT0, sT1)); e("s_add_u32 s%d, s%d, %d" % (sT0, sT0, WS_P2))
        e("v_min_u32 v53, 752, v53"); e("v_add_u32 v53, s%d, v53" % sT0)
        e("v_lshrrev_b32 v%d, 3, v%d" % (aML, vL)); e("v_lshlrev_b32 v%d, 7, v%d" % (aML, aML))
        e("s_lshl_b32 s%d, s%d, 14" % (sT0, sB)); e("s_lshl_b32 s%d, s%d, 12" % (sT1, sW))
        e("s_add_u32 s%d, s%d, s%d" % (sT0, sT0, sT1)); e("s_add_u32 s%d, s%d, %d" % (sT0, sT0, WS_ML))
        e("v_add_u32 v%d, s%d, v%d" % (aML, sT0, aML))
        e("v_and_b32 v%d, 31, v%d" % (aCR, vL)); e("v_lshlrev_b32 v%d, 1, v%d" % (aOUT, aCR))
        e("s_lshl_b32 s%d, s%d, 6" % (sT0, sCI)); e("v_add_u32 v%d, s%d, v%d" % (aOUT, sT0, aOUT))
        e("v_lshlrev_b32 v%d, 2, v%d" % (aCR, aCR)); e("v_add_u32 v%d, %d, v%d" % (aCR, L_CO, aCR))
        ld_f(True)
        e.vmem("buffer_load_ushort v%d, v%d, %s, 0 offen" % (cX, aOUT, sr(sX)), "CF")
        e("v_and_b32 v%d, 7, v%d" % (aCO, vL)); e("v_lshlrev_b32 v%d, 4, v%d" % (aCO, aCO))
        e("v_bfe_u32 v%d, v%d, 4, 1" % (cG, vL)); e("v_lshl_add_u32 v%d, v%d, 3, v%d" % (aCO, cG, aCO))
        e("v_lshrrev_b32 v%d, 5, v%d" % (cG, vL)); e("v_lshl_add_u32 v%d, v%d, 2, v%d" % (aCO, cG, aCO))
        e("s_lshl_b32 s%d, s%d, 7" % (sT0, sW)); e("v_add_u32 v%d, s%d, v%d" % (aCO, sT0, aCO))
    def consumer_ffn():
        skip = e.newlab("nocf")
        if not elect: e("s_cmp_eq_u32 s%d, 0" % sCONS); e("s_cbranch_scc1 %s" % skip)
        e.wait_vm("CF")
        poll("cf", [cF], 54, 55, lambda: ld_f(False))
        for r in range(4): untag(cF + r, cF + r)
        e("s_mov_b32 exec_lo, 0"); e("s_mov_b32 exec_hi, 0xffff0000")
        for r in range(4): e("v_mov_b32 v%d, 0" % (cF + r))
        e("s_mov_b64 exec, -1")
        e("v_lshlrev_b32 v%d, 16, v%d" % (cX, cX))
        quad_reduce(cF)
        e("ds_write_b32 v%d, v%d offset:%d" % (aCO, cF, L_CF))
        e.label(skip)

    order = list(range(32))
    if vilv:
        order = [x for k in range(NE) for x in (NE + k, k)] + list(range(2 * NE, 32))
    for g, vg in enumerate(order):
        A = vA0 if g % 2 == 0 else vA1
        if vg < NEARLY: e("v_mul_f32 v%d, v%d, v%d" % (vS + vg, vS + vg, vFAC))
        e("v_cvt_pk_bf16_f32 v%d, v%d, v%d" % (vS + vg, vS + vg, vS + vg))
        afrag(A, vS + vg)
        e("s_nop 0")
        e.wait_vm("V%d" % vg)
        stamp('v%d' % g)
        rs = ring[("V", vg)]
        for t in range(3):
            mfma(vr(vACC + 4 * t), vr(A), reg_of(rs, t), "0" if g == 0 else vr(vACC + 4 * t))
        if g == cf_g: ld_sib(True); consumer_setup()
        if not isinstance(rs, tuple) and vn[0] < 32:
            issue_kv("V", vn[0], rs); vn[0] += 1
        if nwo[0] < 20 and (nwo[0] < NO1 or (nwo[0] - NO1) in order[:g + 1]):
            issue_wo(nwo[0]); nwo[0] += 1
        if g == 0: wave_sum()
        if g == ex_g: wg_exchange()
        if g == 24:
            free = sorted(ring[("V", k)] for k in range(19, 24))
            y0 = [k for k in free if k + 1 in free][0]
            vY = rslot(y0, 0)
            for r in range(20): e("v_mov_b32 v%d, 0" % (vY + r))
            e("v_and_b32 v%d, 7, v%d" % (T0, vL)); e("v_mul_u32_u24 v%d, %d, v%d" % (T0, PSTR, T0))
            e("v_lshrrev_b32 v%d, 4, v%d" % (T1, vL)); e("v_lshl_add_u32 v%d, v%d, 3, v%d" % (T0, T1, T0))
            e("v_bfe_u32 v%d, v%d, 3, 1" % (T1, vL)); e("v_mul_u32_u24 v%d, 96, v%d" % (T1, T1))
            e("s_mul_i32 s%d, s%d, 192" % (sT0, sW))
            e("v_add3_u32 v%d, s%d, v%d, v%d" % (T0, sT0, T0, T1))
            e("s_mul_i32 s%d, s%d, 2560" % (sT0, sW))
            e("v_add_u32 v%d, s%d, v%d" % (T1, sT0, vFA))
            e("v_lshlrev_b32 v%d, 4, v0" % T2)
            e("v_bfe_u32 v%d, v%d, 2, 1" % (T4, vL)); e("v_mul_u32_u24 v%d, 0xffff, v%d" % (T4, T4))
            e("v_xor_b32 v%d, 0xffff, v%d" % (T3, T4))
            e("v_and_b32 v%d, 3, v%d" % (T5, vL)); e("v_add_u32 v%d, 1, v%d" % (vP1O, T5)); e("v_and_b32 v%d, 3, v%d" % (vP1O, vP1O))
            e("v_lshl_or_b32 v%d, v%d, 2, v%d" % (T5, vP1O, T5)); e("v_mul_u32_u24 v%d, 0x1111, v%d" % (T5, T5))
            quads = [rslot(k, t) for k in free if k not in (y0, y0 + 1) for t in range(3)]
            cML, cY = quads[0:4], quads[4:8]
            for q in cY: e("v_xor_b32 v%d, 0xff, v%d" % (q, vTAG))
        if g == cf2_g: split_weight(); consumer_ffn()
    assert nwo[0] == 20 and vn[0] == 32
    stamp('vend')
    e("s_mov_b64 exec, %s" % sr(sVAL, 2))
    e("s_nop 4")
    for t in range(3): e("ds_write_b128 v%d, %s offset:%d" % (vQA, vr(vACC + 4 * t), L_OP + t * 256))
    e("s_mov_b64 exec, -1")
    e("s_waitcnt lgkmcnt(0)")
    e("s_barrier")
    stamp('b3')
    mlds = [(cML[i], "buffer_load_dwordx4 %s, v%d, %s, 0 offen offset:%d %s" % (vr(cML[i]), aML, sr(sWS), 1024 * i, plf)) for i in range(4)]
    ylds = [(cY[i], "buffer_load_dwordx4 %s, v%d, %s, 0 offen offset:%d %s" % (vr(cY[i]), aY, sr(sWS), 1024 * i, plf)) for i in range(4)]
    def first_reads():
        lab = e.newlab("nofr")
        e("s_cmp_eq_u32 s%d, 0" % sCONS); e("s_cbranch_scc1 %s" % lab)
        for _, t in ylds: e.vmem(t, counted=False)
        e.label(lab)
    vO = 58
    for n in range(3): e("ds_read_b64 %s, v%d offset:%d" % (vr(vO + 2 * n, 2), T0, L_OP + 32 * n))
    if early0 == 1 and not elect: first_reads()
    e("s_waitcnt lgkmcnt(0)")
    for i in range(6): e("v_mul_f32 v%d, v%d, v%d" % (vO + i, vO + i, vWJ))
    for pat in (X1, X2, HM):
        for i in range(6): e("v_add_f32_dpp v%d, v%d, v%d %s %s" % (vO + i, vO + i, vO + i, pat, DPP))
    for i in range(6): e("v_cvt_pk_bf16_f32 v%d, v%d, v%d" % (vO + i, vO + i, vO + i))
    assert e.vm[-1] == "V31"
    def sfrag(dst, n, r):
        src = vO + 2 * (n % 3) + (r >> 1); m = T3 if r % 2 == 0 else T4
        if n >= 3: e("v_and_b32_dpp v%d, v%d, v%d %s %s" % (dst + r, src, m, R8, DPP))
        else: e("v_and_b32 v%d, v%d, v%d" % (dst + r, src, m))
    for r in range(4): sfrag(vA0, 0, r)
    for n in range(6):
        A = vA0 if n % 2 == 0 else vA1
        An = vA1 if n % 2 == 0 else vA0
        if n == 0: e("s_nop 1")
        for seg in range(5):
            e("v_smfmac_f32_16x16x64_bf16 %s, %s, %s, v%d" % (vr(vY + 4 * seg), vr(A), ar(8 * (5 * n + seg), 8), T5))
            if n < 5 and seg < 2:
                for r in (2 * seg, 2 * seg + 1): sfrag(An, n + 1, r)
    stamp('mf')
    e("s_mov_b32 exec_hi, 0")
    e("s_nop 3")
    for seg in range(5): e("ds_write_b128 v%d, %s offset:%d" % (T1, vr(vY + 4 * seg), L_YP + seg * 512))
    e("s_mov_b64 exec, -1")
    if early0 == 2 and not elect: first_reads()
    e("s_waitcnt lgkmcnt(0)")
    e("s_barrier")
    lab = e.newlab("noy")
    e("s_cmp_ge_u32 s%d, 3" % sW); e("s_cbranch_scc1 %s" % lab)
    for pp in range(4): e("ds_read_b128 %s, v%d offset:%d" % (vr(18 + 4 * pp), T2, L_YP + pp * 2560))
    e("s_waitcnt lgkmcnt(2)")
    for r in range(4): e("v_add_f32 v%d, v%d, v%d" % (18 + r, 18 + r, 22 + r))
    e("s_waitcnt lgkmcnt(0)")
    for r in range(4): e("v_add_f32 v%d, v%d, v%d" % (26 + r, 26 + r, 30 + r))
    for r in range(4): e("v_add_f32 v%d, v%d, v%d" % (64 + r, 18 + r, 26 + r))
    for r in range(4): tagit(64 + r, 64 + r)
    e.vmem("buffer_store_dwordx4 v[64:67], v%d, %s, 0 offen %s" % (vPY, sr(sWS), yf), counted=False)
    lab2 = e.newlab("pubd")
    e("s_branch %s" % lab2)
    e.label(lab)
    def gate_calc():
        e("ds_read2_b32 v[54:55], v%d offset0:128 offset1:160" % aCR); e("ds_read2_b32 v[56:57], v%d offset0:192 offset1:224" % aCR)
        e("s_waitcnt lgkmcnt(0)")
        e("v_add_f32 v54, v54, v55"); e("v_add_f32 v56, v56, v57"); e("v_add_f32 v54, v54, v56")
        e("v_cvt_pk_bf16_f32 v54, v54, v54"); e("v_and_b32 v54, 0xffff0000, v54")
        e("v_mul_f32 v55, %s, v54" % hx(f2u(-LOG2E)))
        e("v_exp_f32 v55, v55"); e("s_nop 0")
        e("v_add_f32 v55, 1.0, v55")
        e("v_rcp_f32 v55, v55"); e("s_nop 0")
        e("v_mul_f32 v55, v54, v55")
        e("v_cvt_pk_bf16_f32 v55, v55, v55"); e("v_and_b32 v%d, 0xffff0000, v55" % cG)
    if elect:
        e("s_waitcnt vmcnt(0)")
        e("v_mov_b32 v42, %d" % (L_CNT + 4))
        e("s_mov_b64 exec, 1")
        e("ds_write_b32 v42, v44")
        e("s_mov_b64 exec, -1")
        e("s_waitcnt lgkmcnt(0)")
    else: gate_calc()
    e.label(lab2)
    stamp('pub')
    if diag:
        e("s_waitcnt vmcnt(0)")
        stamp('ack')
    if nopoll: e("s_branch L_fin")
    if elect:
        e("v_mov_b32 v42, %d" % (L_CNT + 4))
        e("s_barrier")
        e("ds_read_b32 v44, v42")
        e("s_waitcnt lgkmcnt(0)")
        e("v_readfirstlane_b32 s%d, v44" % sCI)
        e("s_nop 3")
        e("s_cmp_eq_u32 s%d, 40" % sCI); e("s_cbranch_scc1 L_epoch")
        e("s_cmp_gt_u32 s%d, 40" % sCI); e("s_cbranch_scc1 L_fin")
        e.vm = []
        consumer_setup()
    else:
        if tab: e("s_bitcmp1_b32 s%d, 6" % sTHR)
        else: e("s_cmp_eq_u32 s2, %d" % (248 if par < 0 else 249 if par else 232 if lightc else 1))
        e("s_cbranch_scc1 L_epoch")
    e("s_cmp_eq_u32 s%d, 0" % sCONS); e("s_cbranch_scc1 L_fin")
    if not early0:
        for _, t in ylds: e(t)
    if wait0 is not None: e("s_waitcnt vmcnt(%d)" % wait0)
    stamp('rd0')
    mpoll("y", ylds, 20, 21, ysleep)
    stamp('yok')
    R0 = 36
    for r in range(4): untag(R0 + r, cY[0] + r)
    for r in range(4): untag(24 + r, cY[1] + r)
    for r in range(4): untag(28 + r, cY[2] + r)
    for r in range(4): untag(32 + r, cY[3] + r)
    for r in range(4): e("v_add_f32 v%d, v%d, v%d" % (R0 + r, R0 + r, 24 + r))
    for r in range(4): e("v_add_f32 v%d, v%d, v%d" % (28 + r, 28 + r, 32 + r))
    for r in range(4): e("v_add_f32 v%d, v%d, v%d" % (R0 + r, R0 + r, 28 + r))
    e("s_nop 0")
    quad_reduce(R0)
    e("ds_write_b32 v%d, v%d offset:%d" % (aCO, R0, L_CO))
    e("s_waitcnt lgkmcnt(0)")
    e("s_barrier")
    stamp('b5')
    e("s_cmp_lg_u32 s%d, 3" % sW); e("s_cbranch_scc1 L_fin")
    e("ds_read2_b32 v[54:55], v%d offset0:0 offset1:32" % aCR); e("ds_read2_b32 v[56:57], v%d offset0:64 offset1:96" % aCR)
    e("s_mov_b32 exec_hi, 0")
    e("s_waitcnt lgkmcnt(0)")
    e("v_add_f32 v54, v54, v55"); e("v_add_f32 v56, v56, v57"); e("v_add_f32 v54, v54, v56")
    e("v_cvt_pk_bf16_f32 v54, v54, v54"); e("v_and_b32 v54, 0xffff0000, v54")
    e("v_mul_f32 v54, v54, v%d" % cG)
    e("v_cvt_pk_bf16_f32 v54, v54, v54"); e("v_and_b32 v54, 0xffff0000, v54")
    e("v_add_f32 v54, v54, v%d" % cX)
    e("v_cvt_pk_bf16_f32 v54, v54, v54")
    e("buffer_store_short v54, v%d, %s, 0 offen %s" % (aOUT, sr(sOUT), of))
    e("s_mov_b64 exec, -1")
    e("s_branch L_fin")
    e.label("L_epoch")
    e("s_cmp_lg_u32 s%d, 0" % sW); e("s_cbranch_scc1 L_fin")
    e("v_lshlrev_b32 v13, 7, v%d" % vL); e("v_add_u32 v13, %d, v13" % WS_ML)
    def ld_all():
        for i in range(4):
            e("s_mov_b32 s%d, %d" % (sT0, 8192 * i))
            e("buffer_load_dwordx4 %s, v13, %s, s%d offen sc1" % (vr(16 + 4 * i), sr(sWS), sT0))
    ld_all()
    e("s_waitcnt vmcnt(0)")
    poll("ep", [16 + 4 * k for k in range(4)], 56, 57, ld_all, sleep=epsleep)
    e("v_mov_b32 v16, s%d" % sTAG)
    e("s_mov_b32 s%d, %d" % (sT0, WS_EP))
    e("s_mov_b64 exec, 1")
    e("buffer_store_dword v16, off, %s, s%d" % (sr(sWS), sT0))
    e("s_mov_b64 exec, -1")
    e.label("L_fin")
    if calib:
        if calk >= 0:
            e("s_and_b32 s100, s2, 7"); e("s_cmp_lg_u32 s100, %d" % calk); e("s_cbranch_scc1 L_end")
        e.label("L_cal")
        e("s_memrealtime s[98:99]"); e("s_waitcnt lgkmcnt(0)")
        e("s_getreg_b32 s100, hwreg(HW_REG_XCC_ID, 0, 4)"); e("s_sub_u32 s100, s100, s2"); e("s_and_b32 s100, s100, 7")
        e("s_mul_i32 s100, s100, %d" % calx); e("s_add_u32 s100, s100, %d" % calib)
        e("s_sub_u32 s98, s98, s%d" % sST); e("s_cmp_lt_u32 s98, s100"); e("s_cbranch_scc1 L_cal")
    if trace:
        trace_pt('fin')
        e("v_writelane_b32 v89, s%d, 63" % sST)
        e("s_add_u32 s92, s26, %d" % STAMP_OFF); e("s_addc_u32 s93, s27, 0"); e("s_mov_b32 s94, 0x100000"); e("s_mov_b32 s95, 0x20000")
        e("s_lshl_b32 s%d, s2, 2" % sT0); e("s_add_u32 s%d, s%d, s%d" % (sT0, sT0, sW)); e("s_lshl_b32 s%d, s%d, 9" % (sT0, sT0))
        e("v_lshlrev_b32 v10, 2, v%d" % vL); e("v_add_u32 v10, s%d, v10" % sT0)
        e("buffer_store_dword v88, v10, s[92:95], 0 offen")
        e("buffer_store_dword v89, v10, s[92:95], 0 offen offset:256")
        open("trace_names.txt", "w").write(" ".join(trnames))
    if stamps:
        stamp('fin')
        n = nst[0]
        e("s_add_u32 s92, s26, %d" % STAMP_OFF); e("s_addc_u32 s93, s27, 0"); e("s_mov_b32 s94, 0x100000"); e("s_mov_b32 s95, 0x20000")
        if allw:
            e("s_lshl_b32 s%d, s2, 2" % sT0); e("s_add_u32 s%d, s%d, s%d" % (sT0, sT0, sW)); e("s_mul_i32 s%d, s%d, %d" % (sT0, sT0, 8 * n))
        else:
            e("s_cmp_lg_u32 s%d, 0" % sW); e("s_cbranch_scc1 L_end")
            e("s_mul_i32 s%d, s2, %d" % (sT0, 8 * n))
        e("v_mov_b32 v10, s%d" % sT0); e("v_mov_b32 v13, 0")
        e("s_mov_b64 exec, 1")
        for k in range(n):
            e("v_mov_b32 v12, s%d" % (sST + k))
            e("buffer_store_dwordx2 v[12:13], v10, s[92:95], 0 offen offset:%d" % (8 * k))
            e("s_nop 1")
    e.label("L_end")
    e("s_endpgm")
    if tab:
        e.raw(".p2align 6"); e.raw(".type role_table,@object"); e.label("role_table")
        words = role_table(*tab)
        for i in range(0, 256, 8): e(".long " + ", ".join(hx(w) for w in words[i:i + 8]))
        e.raw(".size role_table, 1024")
    e.raw('.section .rodata,"a"'); e.raw(".p2align 6"); e.raw(".amdhsa_kernel %s_kernel" % NAME)
    for s in (".amdhsa_next_free_vgpr 512", ".amdhsa_next_free_sgpr 102", ".amdhsa_accum_offset 256",
              ".amdhsa_group_segment_fixed_size 0", ".amdhsa_kernarg_size 96", ".amdhsa_user_sgpr_count 2",
              ".amdhsa_user_sgpr_kernarg_segment_ptr 1", ".amdhsa_system_sgpr_workgroup_id_x 1"):
        e(s)
    e.raw(".end_amdhsa_kernel")
    return "\n".join(e.L) + "\n", nst[0]

if __name__ == "__main__":
    import argparse
    ap = argparse.ArgumentParser()
    ap.add_argument("out"); ap.add_argument("--stamps", action="store_true")
    ap.add_argument("--opt", default="")
    a = ap.parse_args()
    kw = eval("dict(%s)" % a.opt)
    s, n = gen(stamps=a.stamps, **kw)
    hdr = open("cdna_kernels/%s.s.ref" % NAME).read().split("; Override launch")[0]
    note = """; Fused decode step, one launch, 256 workgroups (one per CU) x 4 waves x 512 registers.  Generated by a hand-written script.
"""
    open(a.out, "w").write(hdr + note + s)
    print("wrote", a.out, "stamps", n)
```
